```python
import torch

def _softmax(x, axis=-1):
    return torch.softmax(x, dim=axis)
def _gelu(x):
    return torch.nn.functional.gelu(x, approximate="tanh")
def _silu(x):
    return torch.nn.functional.silu(x)
def _sigmoid(x):
    return torch.sigmoid(x)
def _layernorm(x, axis=-1, eps=1e-5):
    m = x.mean(dim=axis, keepdim=True)
    v = x.var(dim=axis, keepdim=True, unbiased=False)
    return (x - m) / torch.sqrt(v + eps)
def _scatter_add(tgt, idx, src, axis=0):
    return tgt.clone().index_add_(axis, idx, src)
def _segment_sum(src, seg, n):
    out = torch.zeros((n,) + src.shape[1:], dtype=src.dtype)
    return out.index_add_(0, seg, src)
def _pad(x, pw):
    flat = tuple(v for pair in reversed(pw) for v in pair)
    return torch.nn.functional.pad(x, flat)

kernel_name = 'concat_heads__ssm_conv_s5__compressed_kv_cla__prompt'

def setup_inputs():

    _w = (lambda a: (lambda t: t.to(torch.bfloat16) if t.is_floating_point() else t)(torch.as_tensor(a)))
    def _A_setup():
        B, S, D = 1, 2048, 512
        P = D
        Lambda_re = -0.5 * (lambda _x: torch.exp(torch.as_tensor(_x)))((lambda *s: torch.randn(*s, dtype=torch.bfloat16) * 0.2)(P))
        Lambda_im = (lambda *s: torch.randn(*s, dtype=torch.bfloat16) * 0.4)(P) * 1.0
        B_re = (lambda *s: torch.randn(*s, dtype=torch.bfloat16) * 0.2)(P, D) * (D ** -0.5)
        B_im = (lambda *s: torch.randn(*s, dtype=torch.bfloat16) * 0.2)(P, D) * (D ** -0.5)
        C_re = (lambda *s: torch.randn(*s, dtype=torch.bfloat16) * 0.2)(D, P) * (P ** -0.5)
        C_im = (lambda *s: torch.randn(*s, dtype=torch.bfloat16) * 0.2)(D, P) * (P ** -0.5)
        log_dt = (lambda *s: torch.randn(*s, dtype=torch.bfloat16) * 0.2)(P) * 0.3 - 2.0
        Dskip = (lambda *s: torch.randn(*s, dtype=torch.bfloat16) * 0.05)(D)
        return {
            "x": _w((lambda *s: torch.randn(*s, dtype=torch.bfloat16) * 0.05)(B, S, D)),
            "Lambda_re": _w(Lambda_re),
            "Lambda_im": _w(Lambda_im),
            "B_re": _w(B_re),
            "B_im": _w(B_im),
            "C_re": _w(C_re),
            "C_im": _w(C_im),
            "log_dt": _w(log_dt),
            "Dskip": _w(Dskip),
        }
    _A_in = _A_setup()

    def _B_setup():
        B, H, Sq, Sk, D, M = 1, 32, 2048, 2048, 128, 512
        Dc = 4 * D
        return {
            "x": _w((lambda *s: torch.randn(*s, dtype=torch.bfloat16) * 3.2)(B, Sq, M)),
            "c_kv": _w((lambda *s: torch.randn(*s, dtype=torch.bfloat16) * 0.1)(B, Sk, Dc)),
            "w_q": _w((lambda *s: torch.randn(*s, dtype=torch.bfloat16) * 6.4)(M, H, D) * (M ** -0.5)),
            "w_uk": _w((lambda *s: torch.randn(*s, dtype=torch.bfloat16) * 6.4)(Dc, H, D) * (Dc ** -0.5)),
            "w_uv": _w((lambda *s: torch.randn(*s, dtype=torch.bfloat16) * 0.1)(Dc, H, D) * (Dc ** -0.5)),
            "w_o": _w((lambda *s: torch.randn(*s, dtype=torch.bfloat16) * 0.1)(H, D, M) * ((H * D) ** -0.5)),
        }
    _B_in = _B_setup()

    return {
        "A_x": _A_in["x"],
        "A_Lambda_re": _A_in["Lambda_re"],
        "A_Lambda_im": _A_in["Lambda_im"],
        "A_B_re": _A_in["B_re"],
        "A_B_im": _A_in["B_im"],
        "A_C_re": _A_in["C_re"],
        "A_C_im": _A_in["C_im"],
        "A_log_dt": _A_in["log_dt"],
        "A_Dskip": _A_in["Dskip"],
        "B_x": _B_in["x"],
        "B_c_kv": _B_in["c_kv"],
        "B_w_q": _B_in["w_q"],
        "B_w_uk": _B_in["w_uk"],
        "B_w_uv": _B_in["w_uv"],
        "B_w_o": _B_in["w_o"],
    }

def reference(A_x, A_Lambda_re, A_Lambda_im, A_B_re, A_B_im, A_C_re, A_C_im, A_log_dt, A_Dskip, B_x, B_c_kv, B_w_q, B_w_uk, B_w_uv, B_w_o):
    def _A_ref(x, Lambda_re, Lambda_im, B_re, B_im, C_re, C_im, log_dt, Dskip):
        Bsz, L, H = x.shape
        Lam = Lambda_re + 1j * Lambda_im
        Bmat = B_re + 1j * B_im
        Cmat = C_re + 1j * C_im
        dt = torch.exp(log_dt)
        Lam_bar = torch.exp(dt * Lam)
        B_bar = ((Lam_bar - 1.0) / Lam)[:, None] * Bmat
        Bu = torch.einsum("bld,pd->blp", x + 0j, B_bar)
        h = torch.zeros_like(Bu[:, 0, :])
        hs = []
        for t in range(L):
            h = Lam_bar[None, :] * h + Bu[:, t, :]
            hs.append(h)
        hseq = torch.stack(hs, 1)
        y = 2.0 * torch.einsum("blp,dp->bld", hseq, Cmat).real + x * Dskip[None, None, :]
        return y

    def _B_ref(x, c_kv, w_q, w_uk, w_uv, w_o):
        B, Sq, M = x.shape[0], x.shape[1], x.shape[2]
        Sk = c_kv.shape[1]
        H, D = w_q.shape[1], w_q.shape[2]
        q = torch.einsum("bqm,mhd->bhqd", x, w_q)
        k = torch.einsum("bkc,chd->bhkd", c_kv, w_uk)
        v = torch.einsum("bkc,chd->bhkd", c_kv, w_uv)
        scores = torch.einsum("bhqd,bhkd->bhqk", q, k) * (D ** -0.5)
        off = Sk - Sq
        qi = torch.arange(Sq)[:, None]
        kj = torch.arange(Sk)[None, :]
        cmask = kj <= (qi + off)
        scores = torch.where(cmask[None, None], scores, -1e9)
        p = _softmax(scores, axis=-1)
        ctx = torch.einsum("bhqk,bhkd->bhqd", p, v)
        return torch.einsum("bhqd,hdm->bqm", ctx, w_o)

    a = _A_ref(A_x, A_Lambda_re, A_Lambda_im, A_B_re, A_B_im, A_C_re, A_C_im, A_log_dt, A_Dskip)
    b = _B_ref(B_x, B_c_kv, B_w_q, B_w_uk, B_w_uv, B_w_o)
    return torch.concatenate([a, b], axis=-1)
```

```python
import re

REG_RE = re.compile(r"^(-?)(?:abs\()?([vas])(?:(\d+)|\[(\d+):(\d+)\])\)?$")

TRANS = ("v_exp_f32", "v_log_f32", "v_rcp_f32", "v_rsq_f32", "v_sqrt_f32", "v_sin_f32", "v_cos_f32",
         "v_rcp_iflag_f32")


def regs_of(tok):
    tok = tok.strip()
    if tok in ("vcc",):
        return ["vcc"]
    if tok in ("vcc_lo", "vcc_hi"):
        return ["vcc"]
    if tok in ("exec", "exec_lo", "exec_hi"):
        return ["exec"]
    if tok == "m0":
        return ["m0"]
    tok = tok.replace("|", "")
    m = REG_RE.match(tok)
    if not m:
        return []
    k = m.group(2)
    if m.group(3) is not None:
        return [f"{k}{int(m.group(3))}"]
    return [f"{k}{i}" for i in range(int(m.group(4)), int(m.group(5)) + 1)]


class Ins:
    __slots__ = ("text", "op", "cls", "reads", "writes", "srcc", "srcab", "target", "nstates", "wait", "auto",
                 "wide", "comment", "tag")

    def __init__(self, text):
        self.auto = False
        self.comment = ""
        t = text.strip()
        tag = None
        if "@@" in t:
            t, tag = t.split("@@")
            t = t.strip()
            tag = "#" + tag.strip()
        self.tag = tag
        self.text = t
        self.reads = set()
        self.writes = set()
        self.srcc = set()
        self.srcab = set()
        self.target = None
        self.nstates = 1
        self.wait = None
        self.wide = False
        if t.endswith(":"):
            self.op = "label"
            self.cls = "label"
            self.target = t[:-1]
            self.nstates = 0
            return
        if t.startswith("."):
            self.op = "dir"
            self.cls = "dir"
            self.nstates = 0
            return
        if t.startswith("@need"):
            self.op = "@need"
            self.cls = "pseudo"
            self.nstates = 0
            for tok in t.split()[1:]:
                tok = tok.rstrip(",")
                r = [tok] if tok.startswith("#") else regs_of(tok)
                assert r, t
                self.reads.update(r)
            return
        parts = t.split(None, 1)
        op = parts[0]
        self.op = op
        rest = parts[1] if len(parts) > 1 else ""
        ops = []
        mods = []
        if rest:
            raw = re.split(r",\s*(?![^\[]*\])", rest)
            for idx, r in enumerate(raw):
                r = r.strip()
                if idx == len(raw) - 1:
                    sp = r.split()
                    ops.append(sp[0])
                    mods = sp[1:]
                else:
                    ops.append(r)
        R = [regs_of(o) for o in ops]
        base = re.sub(r"_(e32|e64|dpp|sdwa)$", "", op)

        def rd(lst):
            for x in lst:
                self.reads.update(x)

        if op.startswith("v_mfma"):
            self.cls = "mfma8" if "32x32x16" in op else "mfma4"
            assert "32x32x16" in op or "16x16x32" in op, t
            self.writes.update(R[0])
            rd(R[1:4])
            self.srcab.update(R[1])
            self.srcab.update(R[2])
            self.srcc.update(R[3])
        elif op.startswith("ds_read") or op.startswith("ds_bpermute") or op.startswith("ds_swizzle"):
            self.cls = "ds_read"
            self.writes.update(R[0])
            rd(R[1:])
        elif op.startswith("ds_write") or op.startswith("ds_add"):
            self.cls = "ds_write"
            rd(R)
        elif op.startswith("buffer_load"):
            if "lds" in mods:
                self.cls = "vm_dma"
                rd(R)
                self.reads.add("m0")
            else:
                self.cls = "vm_load"
                self.writes.update(R[0])
                rd(R[1:])
                if "d16" in op:
                    rd(R[:1])
        elif op.startswith("global_load"):
            self.cls = "vm_load"
            self.writes.update(R[0])
            rd(R[1:])
        elif op.startswith("buffer_store"):
            self.cls = "vm_store"
            rd(R)
            self.wide = op.endswith("x4") or op.endswith("x3")
            self.srcab.update(R[0])
        elif op.startswith("buffer_atomic"):
            if "sc0" in mods:
                self.cls = "vm_load"
                self.writes.update(R[0])
            else:
                self.cls = "vm_store"
            rd(R)
        elif op in ("buffer_inv", "buffer_wbl2"):
            self.cls = "vm_store"
        elif op.startswith("s_load") or op in ("s_memtime", "s_memrealtime"):
            self.cls = "smem"
            self.writes.update(R[0])
            rd(R[1:])
        elif op == "s_waitcnt":
            self.cls = "wait"
            w = {}
            for m in re.finditer(r"(vmcnt|lgkmcnt)\((\d+)\)", t):
                w[m.group(1)] = int(m.group(2))
            self.wait = w
        elif op == "s_barrier":
            self.cls = "barrier"
        elif op == "s_nop":
            self.cls = "nop"
            self.nstates = int(ops[0], 0) + 1
        elif op == "s_endpgm":
            self.cls = "end"
        elif op == "s_branch":
            self.cls = "branch"
            self.target = ops[0]
        elif op.startswith("s_cbranch"):
            self.cls = "cbranch"
            self.target = ops[0]
            if "vcc" in op:
                self.reads.add("vcc")
            if "scc" in op:
                self.reads.add("scc")
            if "exec" in op:
                self.reads.add("exec")
        elif op == "s_call_b64":
            self.cls = "call"
            self.writes.update(R[0])
            self.target = ops[1]
        elif op == "s_setpc_b64":
            self.cls = "ret"
            rd(R)
        elif op in ("s_setprio", "s_sleep"):
            self.cls = "salu"
        elif op.startswith("s_cmp") or op.startswith("s_bitcmp"):
            self.cls = "salu"
            rd(R)
            self.writes.add("scc")
        elif op.startswith("s_"):
            self.cls = "salu"
            self.writes.update(R[0])
            rd(R[1:])
            if op.startswith("s_cselect") or op.startswith("s_addc") or op.startswith("s_subb"):
                self.reads.add("scc")
            if op in ("s_addk_i32", "s_mulk_i32"):
                rd(R[:1])
            if "saveexec" in op:
                self.reads.add("exec")
                self.writes.add("exec")
            if not (op.startswith("s_mov") or op.startswith("s_cselect") or op.startswith("s_mul")
                    or op.startswith("s_getreg") or op.startswith("s_getpc")):
                self.writes.add("scc")
        elif op.startswith("v_"):
            self.cls = "trans" if base in TRANS else "valu"
            if base.startswith("v_permlane") and "swap" in base:
                self.writes.update(R[0])
                self.writes.update(R[1])
                rd(R)
            elif base in ("v_add_co_u32", "v_sub_co_u32", "v_addc_co_u32", "v_subb_co_u32", "v_subrev_co_u32"):
                self.writes.update(R[0])
                self.writes.update(R[1])
                rd(R[2:])
            else:
                self.writes.update(R[0])
                rd(R[1:])
                if base.startswith("v_fmac") or base.startswith("v_pk_fmac") or base.startswith("v_dot2c") \
                        or base == "v_writelane_b32" or op.endswith("_dpp"):
                    rd(R[:1])
                if base.startswith("v_cmpx"):
                    self.writes.add("exec")
        else:
            raise ValueError("unknown instruction: " + t)

    def is_valu(self):
        return self.cls in ("valu", "trans")

    def is_mfma(self):
        return self.cls in ("mfma4", "mfma8")

    def is_vm(self):
        return self.cls in ("vm_load", "vm_dma", "vm_store")

    def is_ds(self):
        return self.cls in ("ds_read", "ds_write")


def vregs(s):
    return {r for r in s if r[0] in "va" and r != "vcc"}


def sregs(s):
    return {r for r in s if (r[0] == "s" and r != "scc") or r == "vcc"}


def required_states(p, c):
    need = 0
    pw = p.writes
    if p.is_valu():
        vw = vregs(pw)
        if c.is_mfma() and vw & c.reads:
            need = max(need, 2)
        if p.cls == "trans" and c.cls == "valu" and vw & c.reads:
            need = max(need, 1)
        if c.is_valu() and (c.op.startswith("v_permlane") or c.op.endswith("_dpp")) and vw & c.reads:
            need = max(need, 2)
        if c.is_valu() and (c.op.startswith("v_readlane") or c.op.startswith("v_readfirstlane")) and vw & c.reads:
            need = max(need, 1)
        sw = sregs(pw)
        if sw:
            if c.is_valu() and sw & c.reads:
                need = max(need, 4 if (c.op.startswith("v_readlane") or c.op.startswith("v_writelane")) else 2)
            if c.is_vm() and sw & c.reads:
                need = max(need, 5)
            if c.cls in ("salu", "cbranch", "smem") and sw & c.reads:
                need = max(need, 1)
        if "exec" in pw:
            if c.is_mfma() or c.op.startswith("v_permlane") or c.op.startswith("v_read"):
                need = max(need, 4)
            if c.op.endswith("_dpp"):
                need = max(need, 5)
        if "op_sel" in p.text and not p.op.startswith("v_pk") and c.is_valu() and vw & (c.reads | c.writes):
            need = max(need, 1)
    if p.is_mfma():
        big = 12 if p.cls == "mfma8" else 8
        ovl = 10 if p.cls == "mfma8" else 6
        war = 7 if p.cls == "mfma8" else 3
        if c.is_mfma():
            if pw & c.srcab:
                need = max(need, big)
            if pw & c.srcc:
                if not (pw == c.srcc and p.cls == c.cls):
                    need = max(need, ovl)
            elif pw & c.writes:
                need = max(need, ovl)
        elif c.is_valu() or c.is_vm() or c.is_ds():
            if pw & (c.reads | c.writes):
                need = max(need, big)
            if c.is_valu() and p.srcc & c.writes:
                need = max(need, war)
            if (c.is_vm() or c.is_ds()) and p.srcc & c.writes:
                need = max(need, war)
    if p.cls == "salu" and "m0" in pw and c.cls == "vm_dma":
        need = max(need, 1)
    if p.cls == "vm_store" and p.wide and p.srcab & c.writes:
        need = max(need, 2 if c.is_valu() else 1)
    return need


MAXCNT = {"vmcnt": 63, "lgkmcnt": 15}


class Prog:
    def __init__(self):
        self.ins = []
        self.uid = 0

    def __call__(self, text):
        for line in text.split("\n"):
            line = line.split(";")[0].strip()
            if line:
                self.ins.append(Ins(line))

    def label(self, name):
        self.ins.append(Ins(name + ":"))

    def newlabel(self, base):
        self.uid += 1
        return f"{base}_{self.uid}"

    def _succ(self):
        labels = {x.target: i for i, x in enumerate(self.ins) if x.cls == "label"}
        n = len(self.ins)
        succ = [[] for _ in range(n)]
        calls = {}
        for i, x in enumerate(self.ins):
            if x.cls == "call":
                calls.setdefault(x.target, []).append(i + 1)
        retmap = {}
        for tgt, rets in calls.items():
            j = labels[tgt]
            while self.ins[j].cls != "ret":
                j += 1
            retmap.setdefault(j, []).extend(rets)
        for i, x in enumerate(self.ins):
            if x.cls == "end":
                continue
            if x.cls == "branch" or x.cls == "call":
                succ[i].append(labels[x.target])
            elif x.cls == "cbranch":
                succ[i].append(labels[x.target])
                succ[i].append(i + 1)
            elif x.cls == "ret":
                succ[i].extend(retmap.get(i, []))
            elif i + 1 < n:
                succ[i].append(i + 1)
        return succ

    def insert_waits(self, verbose=False):
        for _round in range(10000):
            succ = self._succ()
            n = len(self.ins)
            states = [None] * n
            states[0] = {}
            work = [0]
            while work:
                i = work.pop()
                st = dict(states[i])
                x = self.ins[i]
                if x.cls == "wait":
                    for cn, val in x.wait.items():
                        st = {r: e for r, e in st.items() if not (e[0] == cn and e[1] >= val)}
                    if x.wait.get("lgkmcnt") == 0:
                        st = {r: e for r, e in st.items() if e[0] != "smem"}
                else:
                    used = (x.reads | x.writes) & st.keys()
                    if used:
                        mins = {}
                        for r in used:
                            cn, y = st[r]
                            mins[cn] = min(mins.get(cn, 99), y)
                        for cn, val in mins.items():
                            if cn == "smem":
                                st = {r: e for r, e in st.items() if e[0] not in ("smem", "lgkmcnt")}
                            else:
                                st = {r: e for r, e in st.items() if not (e[0] == cn and e[1] >= val)}
                    cn = None
                    if x.is_vm():
                        cn = "vmcnt"
                    elif x.is_ds():
                        cn = "lgkmcnt"
                    if cn:
                        st = {r: ((e[0], min(e[1] + 1, 99)) if e[0] == cn else e) for r, e in st.items()}
                        if x.cls in ("vm_load", "ds_read"):
                            for r in x.writes:
                                st[r] = (cn, 0)
                        if x.tag:
                            st[x.tag] = (cn, 0)
                    if x.cls == "smem":
                        for r in x.writes:
                            st[r] = ("smem", 0)
                        st["__smem__"] = ("smem", 0)
                for j in succ[i]:
                    if states[j] is None:
                        states[j] = dict(st)
                        work.append(j)
                    else:
                        old = states[j]
                        ch = False
                        for r, e in st.items():
                            if r not in old:
                                old[r] = e
                                ch = True
                            elif old[r][0] != e[0]:
                                raise RuntimeError(f"register {r} pending on two counters at {self.ins[j].text}")
                            elif e[1] < old[r][1]:
                                old[r] = e
                                ch = True
                        if ch:
                            work.append(j)
            new = []
            added = 0
            for i, x in enumerate(self.ins):
                st = states[i]
                if st is not None and x.cls != "wait":
                    used = (x.reads | x.writes) & st.keys()
                    if used:
                        w = {}
                        for r in used:
                            cn, y = st[r]
                            if cn == "smem":
                                w["lgkmcnt"] = 0
                            else:
                                if cn == "lgkmcnt" and "__smem__" in st:
                                    y = 0
                                w[cn] = min(w.get(cn, 99), min(y, MAXCNT[cn]))
                        wi = Ins("s_waitcnt " + " ".join(f"{k}({v})" for k, v in sorted(w.items(), reverse=True)))
                        wi.auto = True
                        new.append(wi)
                        added += 1
                if x.cls != "pseudo" or added == 0 and False:
                    new.append(x)
                elif x.cls == "pseudo":
                    pass
            self.ins = new
            if added == 0:
                return
        raise RuntimeError("waitcnt insertion did not converge")

    def insert_nops(self, verbose=False):
        total = 0
        for _round in range(1000):
            succ = self._succ()
            n = len(self.ins)
            pred = [[] for _ in range(n)]
            for i in range(n):
                for j in succ[i]:
                    pred[j].append(i)
            fixes = {}
            for i, c in enumerate(self.ins):
                if c.cls in ("label", "dir", "nop", "wait", "barrier", "end", "branch"):
                    continue
                best = {}
                stack = [(p, 0) for p in pred[i]]
                short = 0
                why = None
                while stack:
                    j, d = stack.pop()
                    if j in best and best[j] <= d:
                        continue
                    best[j] = d
                    p = self.ins[j]
                    need = required_states(p, c)
                    if need - d > short:
                        short = need - d
                        why = p
                    d2 = d + p.nstates
                    if d2 < 12:
                        for q in pred[j]:
                            stack.append((q, d2))
                if short > 0:
                    fixes[i] = (short, why)
            if not fixes:
                return total
            new = []
            last = -100
            for i, x in enumerate(self.ins):
                if i in fixes and i - last > 14:
                    s, why = fixes[i]
                    ni = Ins(f"s_nop {s - 1}")
                    ni.auto = True
                    ni.comment = f"hazard: {why.text}"
                    if verbose:
                        print(f"  pad {s} before [{x.text}] after [{why.text}]")
                    new.append(ni)
                    total += s
                    last = i
                new.append(x)
            self.ins = new
        raise RuntimeError("nop insertion did not converge")

    def merge_waits(self):
        new = []
        for x in self.ins:
            if x.cls == "wait" and new and new[-1].cls == "wait":
                w = dict(new[-1].wait)
                for k, v in x.wait.items():
                    w[k] = min(w.get(k, 99), v)
                new[-1] = Ins("s_waitcnt " + " ".join(f"{k}({v})" for k, v in sorted(w.items(), reverse=True)))
            else:
                new.append(x)
        self.ins = new

    def finish(self, verbose=False):
        self.insert_waits(verbose)
        self.merge_waits()
        self.insert_nops(verbose)

    def maxreg(self, kind):
        m = -1
        for x in self.ins:
            for r in x.reads | x.writes:
                if r[0] == kind and r[1:].isdigit():
                    m = max(m, int(r[1:]))
        return m

    def text(self):
        out = []
        for x in self.ins:
            if x.cls in ("label", "dir"):
                out.append(x.text)
            else:
                out.append("    " + x.text + (("    ; " + x.comment) if x.comment else ""))
        return "\n".join(out) + "\n"


def kernel_text(name, prog, vgpr=512, sgpr=96, accum=256):
    s = [f".text\n.globl {name}\n.p2align 8\n.type {name},@function\n{name}:\n"]
    s.append(prog.text())
    return "".join(s)


def descriptor_text(name, vgpr=512, sgpr=96, accum=256, extra=""):
    return f""".amdhsa_kernel {name}
  .amdhsa_next_free_vgpr {vgpr}
  .amdhsa_next_free_sgpr {sgpr}
  .amdhsa_accum_offset {accum}
  .amdhsa_group_segment_fixed_size 0
  .amdhsa_kernarg_size 144
  .amdhsa_user_sgpr_count 2
  .amdhsa_user_sgpr_kernarg_segment_ptr 1
  .amdhsa_system_sgpr_workgroup_id_x 1
{extra}.end_amdhsa_kernel
"""


def vr(b, n=1):
    return f"v{b}" if n == 1 else f"v[{b}:{b + n - 1}]"


def ar(b, n=1):
    return f"a{b}" if n == 1 else f"a[{b}:{b + n - 1}]"


def sr(b, n=1):
    return f"s{b}" if n == 1 else f"s[{b}:{b + n - 1}]"


class Slots:
    def __init__(self, backbone):
        self.bb = list(backbone)
        self.fill = [[] for _ in self.bb]
        self.pre = [[] for _ in self.bb]

    def after(self, i, text):
        self.fill[i].append(text)

    def before(self, i, text):
        self.pre[i].append(text)

    def spread(self, items, lo, hi):
        n = len(items)
        for k, it in enumerate(items):
            self.fill[lo + (k * (hi - lo)) // n].append(it)

    def emit(self, p):
        for b, pre, f in zip(self.bb, self.pre, self.fill):
            for x in pre:
                p(x)
            p(b)
            for x in f:
                p(x)
```

```python
from gen_common import *
import gen_ka as K
from gen_ka import (SREG, PREG, NEGM, QREG, OREG, FRING, NFR, vLSUM, vLU, vET, vRD, vTHR, vMT, vL16, vW, vX0, vX1,
                    sW, sH, sI, sT0, sT1, sT2, sM0, sKVOFF, sSLOT, sCNT, sTHR, sRET, sWLDS, sD0, sST,
                    S_KVR, S_WS)

BIG = 2.0 ** 100
LDSEND = 163840
sW8K = K.sCKV
vBASE = vMT + 7
vSC = [vMT + 5, vMT + 6]
LOOK = 8

sites = []


def fr(f):
    return ar(FRING + 4 * (f % NFR), 4)


def sm_ops(g, par, masked, tb):
    S, P, lu = SREG[g][par], PREG[g][par], vLU[g]
    ops = []

    def t(k):
        return vr(tb + (k & 3))

    def post(j):
        if j == 1:
            ops.append(f"v_add_f32 {vr(lu)}, {t(0)}, {t(1)}")
        elif j > 1:
            ops.append(f"v_add_f32 {vr(lu)}, {vr(lu)}, {t(j)}")
        if j & 1:
            ops.append(f"v_cvt_pk_bf16_f32 {vr(P + j // 2)}, {t(j - 1)}, {t(j)}")

    for k in range(16):
        if masked:
            ops += mask_ops(g, S, k)
        ops.append(f"v_exp_f32 {t(k)}, {vr(S + k)}")
        if k >= 1:
            post(k - 1)
    if masked:
        ops.append(f"v_add_f32 {vr(vTHR[g])}, {f32hex(-32 * BIG)}, {vr(vTHR[g])}")
    post(15)
    return ops


def mask_ops(g, S, k):
    c = 8 * (k >> 2) + (k & 3)
    if c == 0:
        return [f"v_min_f32 {vr(S + k)}, {vr(S + k)}, {vr(vTHR[g])}"]
    return [f"v_add_f32 {vr(vMT)}, {f32hex(-c * BIG)}, {vr(vTHR[g])}",
            f"v_min_f32 {vr(S + k)}, {vr(S + k)}, {vr(vMT)}"]


def dma_ops():
    out = []
    for j in range(8):
        su = []
        if j == 0:
            su = [f"s_add_u32 m0, {sr(sM0)}, {sr(sW8K)}"]
        if j == 4:
            su = [f"s_add_u32 m0, m0, 4096", f"s_add_u32 {sr(sKVOFF)}, {sr(sKVOFF)}, 4096"]
        out.append((su, f"buffer_load_dwordx4 {vr(vW)}, {sr(S_KVR, 4)}, {sr(sKVOFF)} offen offset:{(j % 4) * 1024} sc1 lds"))
    tail = [f"s_add_u32 {sr(sKVOFF)}, {sr(sKVOFF)}, {32768 - 4096}",
            f"s_add_u32 {sr(sM0)}, {sr(sM0)}, 32768",
            f"s_cmp_eq_u32 {sr(sM0)}, {LDSEND}\n s_cselect_b32 {sr(sM0)}, 0, {sr(sM0)}"]
    return out, tail


def slot_adv():
    return [f"s_add_u32 {sr(sSLOT)}, {sr(sSLOT)}, 32768",
            f"s_cmp_eq_u32 {sr(sSLOT)}, {LDSEND}\n s_cselect_b32 {sr(sSLOT)}, 0, {sr(sSLOT)}"]


def body(p, name, its, last=False, dma=True, tail=""):
    mf = []
    fuse = {}
    bounds = []
    for it, d in enumerate(its):
        b0 = len(mf)
        for s in range(8):
            for g in d["qk"]:
                S = SREG[g][it]
                c = NEGM[g] if s == 0 else S
                f = 16 * it + s
                fuse[f] = (fuse.get(f, (len(mf),))[0], len(mf))
                mf.append(f"v_mfma_f32_32x32x16_bf16 {vr(S, 16)}, {fr(f)}, {vr(QREG[g] + 4 * s, 4)}, {vr(c, 16)}")
        for x in range(8):
            for g in d["pv"]:
                f = 16 * it + 8 + x
                o = OREG[g] + 16 * (x & 3)
                fuse[f] = (fuse.get(f, (len(mf),))[0], len(mf))
                mf.append(f"v_mfma_f32_32x32x16_bf16 {ar(o, 16)}, {fr(f)}, {vr(PREG[g][it] + 4 * (x >> 2), 4)}, {ar(o, 16)}")
        bounds.append((b0, len(mf)))
    n = len(mf)
    sl = Slots(mf)
    pre = []
    used = sorted(fuse)
    seq = list(used)
    if not last:
        seq += [32 + k for k in range(LOOK)]
    barslot = None
    for idx, f in enumerate(seq):
        if f < LOOK:
            continue
        s = fuse[seq[idx - LOOK]][0] if idx >= LOOK else -1
        if f - NFR in fuse:
            assert fuse[f - NFR][1] <= s
        if f == 32:
            barslot = s
            sl.after(s, f"s_waitcnt vmcnt(16)\n s_barrier\n v_add_u32 {vr(vRD)}, {sr(sSLOT)}, {vr(vL16)}")
        t = f"ds_read_b128 {fr(f)}, {vr(vRD)} offset:{(f % 32) * 1024}"
        if s < 0:
            pre.append(t)
        else:
            sl.after(s, t)
    for f in used:
        if f % 2 == 0 and f + 1 in fuse:
            sl.before(fuse[f][0], f"@need {fr(f)} {fr(f + 1)}")
    if not last:
        items = []
        if dma:
            dm, tl = dma_ops()
            span = barslot - 4
            for j, (su, ins) in enumerate(dm):
                s = 1 + (j * span) // 10
                for x in su:
                    sl.after(s - 1, x)
                sl.after(s, ins)
            items += tl
        items += slot_adv()
        sl.spread(items, max(1 + (8 * (barslot - 4)) // 10, 0), barslot)
    for it, d in enumerate(its):
        b0, b1 = bounds[it]
        par = it ^ 1
        ops = [f"v_add_f32 {vr(vLSUM[g])}, {vr(vLSUM[g])}, {vr(vLU[g])}" for g in d["acc"]]
        for g in d["sm"]:
            ops += sm_ops(g, par, g in d["mask"], vET + 4 * g)
        if d["sm"]:
            if len(d["sm"]) == 2:
                ops.append(f"v_max_f32 {vr(vMT + 1)}, {vr(vLU[0])}, {vr(vLU[1])}")
                ops.append(f"v_cmp_lt_f32 vcc, {sr(sTHR)}, {vr(vMT + 1)}")
            else:
                ops.append(f"v_cmp_lt_f32 vcc, {sr(sTHR)}, {vr(vLU[d['sm'][0]])}")
        if ops:
            sl.spread(ops, b0, b1 - 1)
        if d["sm"]:
            lab = f"FIX_{name}_{it}"
            sl.after(b1 - 1, f"s_cbranch_vccnz {lab}\n {lab}_ret:")
            sites.append((lab, par, d["sm"]))
    for x in pre:
        p(x)
    sl.emit(p)
    if tail:
        p(tail)


def rowmax(S, t0, t1):
    out = [f"v_max3_f32 {vr(t0)}, {vr(S)}, {vr(S + 1)}, {vr(S + 2)}"]
    for k in range(3, 15, 2):
        out.append(f"v_max3_f32 {vr(t0)}, {vr(t0)}, {vr(S + k)}, {vr(S + k + 1)}")
    out += [f"v_max_f32 {vr(t0)}, {vr(t0)}, {vr(S + 15)}",
            f"v_mov_b32 {vr(t1)}, {vr(t0)}",
            f"v_permlane32_swap_b32 {vr(t0)}, {vr(t1)}",
            f"v_max_f32 {vr(t0)}, {vr(t0)}, {vr(t1)}"]
    return out


def gen_attention(p, cfg, slot0, st):
    global sites
    sites.clear()
    BIAS = cfg.get("bias", 0.0)
    THR = cfg.get("thr", 40.0)
    slot4 = (slot0 + 4 * 32768) % LDSEND
    slot1 = (slot0 + 32768) % LDSEND
    p(f"""
    v_add_u32 {vr(vRD)}, {slot0}, {vr(vL16)}
    """)
    for f in list(range(8)):
        p(f"ds_read_b128 {fr(f)}, {vr(vRD)} offset:{f * 1024}")
    for f in range(8):
        p(f"ds_read_b128 {fr(8 + f)}, {vr(vRD)} offset:{(16 + f) * 1024}")
    p(f"""
    s_lshl_b32 {sr(sW8K)}, {sr(sW)}, 13
    s_mov_b32 {sr(sM0)}, {slot4}
    s_mov_b32 {sr(sSLOT)}, {slot1}
    s_mov_b32 {sr(sKVOFF)}, {4 * 32768}
    s_mov_b32 {sr(sTHR)}, {f32hex(2.0 ** (THR - BIAS))}
    v_and_b32 {vr(vX0)}, 31, v0
    v_lshrrev_b32 {vr(vX1)}, 5, v0
    v_lshlrev_b32 {vr(vX1)}, 2, {vr(vX1)}
    v_sub_u32 {vr(vX0)}, {vr(vX0)}, {vr(vX1)}
    s_lshl_b32 {sr(sT0)}, {sr(sW)}, 5
    v_add_u32 {vr(vX0)}, {sr(sT0)}, {vr(vX0)}
    s_lshl_b32 {sr(sT0)}, {sr(sI)}, 7
    v_add_u32 {vr(vTHR[0])}, {sr(sT0)}, {vr(vX0)}
    s_lshl_b32 {sr(sT0)}, {sr(sI)}, 8
    s_sub_u32 {sr(sT0)}, {14 * 128}, {sr(sT0)}
    v_add_u32 {vr(vTHR[1])}, {sr(sT0)}, {vr(vX0)}
    v_add_u32 {vr(vBASE)}, 32, {vr(vX0)}
    """)
    for r in (vTHR[0], vTHR[1], vBASE):
        p(f"v_cvt_f32_i32 {vr(r)}, {vr(r)}")
        p(f"v_add_f32 {vr(r)}, 0.5, {vr(r)}")
        p(f"v_mul_f32 {vr(r)}, {f32hex(BIG)}, {vr(r)}")
    p(f"v_mov_b32 {vr(vLSUM[0])}, 0\n v_mov_b32 {vr(vLSUM[1])}, 0")

    mf = []
    for g in range(2):
        for s in range(8):
            S = SREG[g][0]
            c = "0" if s == 0 else vr(S, 16)
            mf.append(f"v_mfma_f32_32x32x16_bf16 {vr(S, 16)}, {fr(s)}, {vr(QREG[g] + 4 * s, 4)}, {c}")
    for g in range(2):
        for s in range(8):
            S = SREG[g][1]
            c = NEGM[g] if s == 0 else S
            mf.append(f"v_mfma_f32_32x32x16_bf16 {vr(S, 16)}, {fr(8 + s)}, {vr(QREG[g] + 4 * s, 4)}, {vr(c, 16)}")
    sl = Slots(mf)

    def first(g):
        S = SREG[g][0]
        o = []
        if g == 0:
            for k in range(16):
                o += mask_ops(0, S, k)
            o.append(f"v_add_f32 {vr(vTHR[0])}, {f32hex(-32 * BIG)}, {vr(vTHR[0])}")
        o += rowmax(S, vMT + 1, vMT + 2)
        o.append(f"v_sub_f32 {vr(NEGM[g])}, {f32hex(-BIAS) if BIAS else '0'}, {vr(vMT + 1)}")
        o += [f"v_mov_b32 {vr(NEGM[g] + k)}, {vr(NEGM[g])}" for k in range(1, 16)]
        return o

    def shift(g):
        S = SREG[g][0]
        return [f"v_add_f32 {vr(S + k)}, {vr(S + k)}, {vr(NEGM[g])}" for k in range(16)]

    sl.spread(first(0), 9, 16)
    sl.spread(shift(0) + first(1), 16, 24)
    sl.spread(sm_ops(0, 0, False, vET), 24, 32)
    sl.after(23, f"@need #tile1\n s_barrier\n v_add_u32 {vr(vRD)}, {sr(sSLOT)}, {vr(vL16)}")
    for k in range(8):
        sl.after(24 + k, f"ds_read_b128 {fr(k)}, {vr(vRD)} offset:{k * 1024}")
    sl.emit(p)
    for x in shift(1) + sm_ops(1, 0, False, vET + 4) :
        p(x)
    st()

    AB, B = [0, 1], [1]

    def it(qk, sm, pv, acc, mask=()):
        return dict(qk=qk, sm=sm, pv=pv, acc=acc, mask=set(mask))

    loop_tail = lambda lab: f"s_sub_u32 {sr(sCNT)}, {sr(sCNT)}, 1\n s_cmp_lg_u32 {sr(sCNT)}, 0\n s_cbranch_scc1 {lab}"
    p(f"""
    s_mov_b32 {sr(sCNT)}, 1
    s_cmp_eq_u32 {sr(sI)}, 0
    s_cbranch_scc1 ATT_D2
    s_lshl_b32 {sr(sCNT)}, {sr(sI)}, 1
    s_sub_u32 {sr(sCNT)}, {sr(sCNT)}, 1
    v_mov_b32 {vr(vTHR[0])}, {vr(vBASE)}
    """)
    p(".p2align 3")
    p.label("ATT_DL")
    body(p, "DL", [it(AB, AB, AB, AB), it(AB, AB, AB, AB)], tail=loop_tail("ATT_DL"))
    p(f"s_mov_b32 {sr(sCNT)}, 2")
    p.label("ATT_D2")
    body(p, "D2", [it(AB, AB, AB, AB, [0]), it(AB, AB, AB, AB, [0])], tail=loop_tail("ATT_D2"))
    body(p, "D3", [it(B, AB, AB, AB, [0]), it(B, B, AB, AB, [1])])
    st()
    p(f"""
    s_mov_b32 {sr(sCNT)}, 1
    s_cmp_eq_u32 {sr(sI)}, 7
    s_cbranch_scc1 ATT_S2
    s_lshl_b32 {sr(sCNT)}, {sr(sI)}, 2
    s_sub_u32 {sr(sCNT)}, 27, {sr(sCNT)}
    v_mov_b32 {vr(vTHR[1])}, {vr(vBASE)}
    """)
    p(".p2align 3")
    p.label("ATT_SL")
    body(p, "SL", [it(B, B, B, B), it(B, B, B, B)], tail=loop_tail("ATT_SL"))
    p(f"s_mov_b32 {sr(sCNT)}, 2")
    p.label("ATT_S2")
    body(p, "S2", [it(B, B, B, B, [1]), it(B, B, B, B, [1])], tail=loop_tail("ATT_S2"))
    body(p, "S3", [it([], B, B, B, [1]), it([], [], B, B)], last=True)
    st()

    p(f"""
    v_bfe_u32 {vr(vX0)}, v0, 4, 1
    v_lshlrev_b32 {vr(vX0)}, 10, {vr(vX0)}
    v_lshrrev_b32 {vr(vX1)}, 5, v0
    v_lshl_add_u32 {vr(vX0)}, {vr(vX1)}, 8, {vr(vX0)}
    v_and_b32 {vr(vX1)}, 15, v0
    v_lshl_add_u32 {vr(vX0)}, {vr(vX1)}, 4, {vr(vX0)}
    s_lshr_b32 {sr(sT0)}, {sr(sW)}, 1
    s_lshl_b32 {sr(sT0)}, {sr(sT0)}, 19
    s_and_b32 {sr(sT1)}, {sr(sW)}, 1
    s_lshl_b32 {sr(sT1)}, {sr(sT1)}, 11
    s_add_u32 {sr(sT0)}, {sr(sT0)}, {sr(sT1)}
    s_lshl_b32 {sr(sT1)}, {sr(sH)}, 14
    s_add_u32 {sr(sT0)}, {sr(sT0)}, {sr(sT1)}
    s_add_u32 {sr(sT0)}, {sr(sT0)}, {WS_CTX}
    s_lshl_b32 {sr(sT1)}, {sr(sI)}, 20
    """)
    T = 96
    for g in range(2):
        if g == 0:
            p(f"s_add_u32 {sr(sST)}, {sr(sT0)}, {sr(sT1)}")
        else:
            p(f"s_add_u32 {sr(sST)}, {sr(sT0)}, {15 << 20}\n s_sub_u32 {sr(sST)}, {sr(sST)}, {sr(sT1)}")
        l = vLSUM[g]
        p(f"""
        v_mov_b32 {vr(vMT)}, {vr(l)}
        v_permlane32_swap_b32 {vr(l)}, {vr(vMT)}
        v_add_f32 {vr(l)}, {vr(l)}, {vr(vMT)}
        v_rcp_f32 {vr(l)}, {vr(l)}
        """)
        for n in range(8):
            db, gp = n >> 1, n & 1
            t = T + 12 * (n & 3)
            for k in range(8):
                p(f"v_accvgpr_read_b32 {vr(t + k)}, {ar(OREG[g] + 16 * db + 8 * gp + k)}")
            for k in range(8):
                p(f"v_mul_f32 {vr(t + k)}, {vr(t + k)}, {vr(l)}")
            for k in range(4):
                p(f"v_cvt_pk_bf16_f32 {vr(t + 8 + k)}, {vr(t + 2 * k)}, {vr(t + 2 * k + 1)}")
            p(f"buffer_store_dwordx4 {vr(t + 8, 4)}, {vr(vX0)}, {sr(S_WS, 4)}, {sr(sST)} offen offset:{gp * 512} sc1")
            if gp == 1 and db < 3:
                p(f"s_add_u32 {sr(sST)}, {sr(sST)}, 4096")
    st()


def gen_attention_rare(p, cfg):
    BIAS = cfg.get("bias", 0.0)
    for lab, par, groups in sites:
        p.label(lab)
        for g in groups:
            p(f"s_call_b64 {sr(sRET, 2)}, FIXS_{g}_{par}")
            p(f"s_call_b64 {sr(sRET, 2)}, FIXO_{g}")
        p(f"s_branch {lab}_ret")
    for g in range(2):
        for par in range(2):
            p.label(f"FIXS_{g}_{par}")
            S, S2 = SREG[g][par], SREG[g][par ^ 1]
            d = vMT + 1
            for x in rowmax(S, d, vMT + 2):
                p(x)
            if BIAS:
                p(f"v_add_f32 {vr(d)}, {f32hex(BIAS)}, {vr(d)}")
            p(f"v_max_f32 {vr(d)}, 0, {vr(d)}")
            p(f"v_exp_f32 {vr(vSC[g])}, -{vr(d)}")
            for base in (NEGM[g], S, S2):
                for k in range(16):
                    p(f"v_sub_f32 {vr(base + k)}, {vr(base + k)}, {vr(d)}")
            p(f"v_mul_f32 {vr(vLSUM[g])}, {vr(vLSUM[g])}, {vr(vSC[g])}")
            for x in sm_ops(g, par, False, vET + 4 * g):
                p(x)
            p(f"s_setpc_b64 {sr(sRET, 2)}")
        p.label(f"FIXO_{g}")
        for b in range(0, 64, 4):
            for k in range(4):
                p(f"v_accvgpr_read_b32 {vr(vET + k)}, {ar(OREG[g] + b + k)}")
            for k in range(4):
                p(f"v_mul_f32 {vr(vET + k)}, {vr(vET + k)}, {vr(vSC[g])}")
            for k in range(4):
                p(f"v_accvgpr_write_b32 {ar(OREG[g] + b + k)}, {vr(vET + k)}")
        p(f"s_setpc_b64 {sr(sRET, 2)}")
```

```python
from asmlib import *

NAME = "concat_heads__ssm_conv_s5__compressed_kv_cla__prompt"

KA = dict(XA=0, LRE=8, LIM=16, BRE=24, BIM=32, CRE=40, CIM=48, LDT=56, DSK=64, XB=72, CKV=80, WQ=88, WUK=96,
          WUV=104, WO=112, OUT=120, DBG=128, WS=136)

HEADSTRIDE = 33 * 32768
WS_KV = 0
WS_CTX = 0x2200000
WS_WO = WS_CTX + (16 << 20)
WS_HF = WS_WO + (4 << 20)
WS_CF = WS_HF + (4 << 20)
WS_E = WS_CF + (1 << 20)
WS_END = WS_E + 65536
WS_STAMP = WS_END
WS_SIZE = 268435456

SRD3 = "0x20000"


def f32hex(x):
    import struct
    return hex(struct.unpack("<I", struct.pack("<f", x))[0])


def stamp(p, on, idx, s_tmp, v_a, v_b, srd_ws, s_wgoff):
    if not on:
        return
    p(f"s_memtime {sr(s_tmp, 2)}")
    p(f"s_memrealtime {sr(s_tmp + 2, 2)}")
    p("s_waitcnt lgkmcnt(0)")
    p(f"v_mov_b32 {vr(v_a)}, {sr(s_tmp)}")
    p(f"v_mov_b32 {vr(v_a + 1)}, {sr(s_tmp + 2)}")
    p(f"v_mov_b32 {vr(v_b)}, {idx * 8}")
    p(f"buffer_store_dwordx2 {vr(v_a, 2)}, {vr(v_b)}, {sr(srd_ws, 4)}, {sr(s_wgoff)} offen")
```

```python
from gen_common import *

PSTR = 272
PART = 64 * PSTR


def gen_k3(timing=False):
    p = Prog()
    S_XA, S_DSK, S_OUT, S_WS = 4, 8, 12, 16
    sW, sRT, sCT, sA, sB, sA2, sB2, sCnt, sT, sT2, sOutOff, sStamp = 20, 21, 22, 23, 24, 25, 26, 27, 28, 29, 30, 31
    vL16, vWr, vRd, vX, vO, vT = 1, 2, 3, 4, 5, 6
    XR = 16
    ACC = 64
    TMP = 128
    p(f"""
    s_cmp_ge_u32 s2, 256
    s_cbranch_scc1 K3_end
    s_load_dwordx2 {sr(S_XA, 2)}, s[0:1], {KA['XA']}
    s_load_dwordx2 {sr(S_DSK, 2)}, s[0:1], {KA['DSK']}
    s_load_dwordx2 {sr(S_OUT, 2)}, s[0:1], {KA['OUT']}
    s_load_dwordx2 {sr(S_WS, 2)}, s[0:1], {KA['WS']}
    v_lshrrev_b32 {vr(vT)}, 6, v0
    v_and_b32 v0, 63, v0
    v_readfirstlane_b32 {sr(sW)}, {vr(vT)}
    v_lshlrev_b32 {vr(vL16)}, 4, v0
    s_and_b32 {sr(sT)}, s2, 7
    s_lshr_b32 {sr(sT2)}, s2, 3
    s_and_b32 {sr(sCT)}, {sr(sT2)}, 7
    s_lshr_b32 {sr(sT2)}, {sr(sT2)}, 3
    s_lshl_b32 {sr(sT)}, {sr(sT)}, 2
    s_add_u32 {sr(sRT)}, {sr(sT)}, {sr(sT2)}
    s_mov_b32 {sr(S_XA + 2)}, {2048 * 1024}
    s_mov_b32 {sr(S_XA + 3)}, {SRD3}
    s_mov_b32 {sr(S_DSK + 2)}, 1024
    s_mov_b32 {sr(S_DSK + 3)}, {SRD3}
    s_mov_b32 {sr(S_OUT + 2)}, {2048 * 4096}
    s_mov_b32 {sr(S_OUT + 3)}, {SRD3}
    s_mov_b32 {sr(S_WS + 2)}, {WS_END + (1 << 20 if timing else 0)}
    s_mov_b32 {sr(S_WS + 3)}, {SRD3}
    s_lshl_b32 {sr(sT)}, {sr(sW)}, 15
    s_lshl_b32 {sr(sA)}, {sr(sRT)}, 17
    s_add_u32 {sr(sA)}, {sr(sA)}, {sr(sT)}
    s_lshl_b32 {sr(sA2)}, {sr(sA)}, 2
    s_add_u32 {sr(sA)}, {sr(sA)}, {WS_HF}
    s_add_u32 {sr(sA2)}, {sr(sA2)}, {WS_CTX}
    s_lshl_b32 {sr(sB)}, {sr(sCT)}, 17
    s_add_u32 {sr(sB)}, {sr(sB)}, {sr(sT)}
    s_lshl_b32 {sr(sB2)}, {sr(sB)}, 2
    s_add_u32 {sr(sB)}, {sr(sB)}, {WS_CF}
    s_add_u32 {sr(sB2)}, {sr(sB2)}, {WS_WO}
    s_waitcnt lgkmcnt(0)
    """)
    if timing:
        p(f"s_lshl_b32 {sr(sStamp)}, s2, 10")
        p(f"s_add_u32 {sr(sStamp)}, {sr(sStamp)}, {WS_STAMP + 512}")
    stamp(p, timing, 0, 32, 8, 10, S_WS, sStamp)

    def fa(d, tb):
        return 32 * d + 4 * tb

    def fb(d, mb):
        return 32 * d + 16 + 4 * mb

    def load(reg, soff, k):
        return f"buffer_load_dwordx4 {ar(reg, 4)}, {vr(vL16)}, {sr(S_WS, 4)}, {sr(soff)} offen offset:{k * 1024}"

    for d in range(4):
        for k in range(4):
            p(load(fa(d, k), sA, k))
        for k in range(4):
            p(load(fb(d, k), sB, k))
        p(f"s_add_u32 {sr(sA)}, {sr(sA)}, 4096")
        p(f"s_add_u32 {sr(sB)}, {sr(sB)}, 4096")
    p(f"""
    v_lshrrev_b32 {vr(vT)}, 4, v0
    v_and_b32 {vr(vT + 1)}, 15, v0
    v_lshlrev_b32 {vr(vX)}, 10, {vr(vT)}
    v_lshl_add_u32 {vr(vX)}, {vr(vT + 1)}, 3, {vr(vX)}
    v_lshlrev_b32 {vr(vO)}, 12, {vr(vT)}
    v_lshl_add_u32 {vr(vO)}, {vr(vT + 1)}, 4, {vr(vO)}
    s_lshl_b32 {sr(sT)}, {sr(sRT)}, 2
    s_add_u32 {sr(sT)}, {sr(sT)}, {sr(sW)}
    s_lshl_b32 {sr(sOutOff)}, {sr(sT)}, 16
    s_lshl_b32 {sr(sT)}, {sr(sT)}, 14
    s_lshl_b32 {sr(sT2)}, {sr(sCT)}, 7
    s_add_u32 {sr(sT)}, {sr(sT)}, {sr(sT2)}
    """)
    for n in range(4):
        p(f"buffer_load_dwordx2 {vr(XR + 2 * n, 2)}, {vr(vX)}, {sr(S_XA, 4)}, {sr(sT)} offen")
        p(f"s_add_u32 {sr(sT)}, {sr(sT)}, 4096")
    p(f"""
    v_lshlrev_b32 {vr(vX)}, 3, {vr(vT + 1)}
    buffer_load_dwordx2 {vr(XR + 8, 2)}, {vr(vX)}, {sr(S_DSK, 4)}, {sr(sT2)} offen
    s_lshl_b32 {sr(sT2)}, {sr(sCT)}, 8
    s_add_u32 {sr(sOutOff)}, {sr(sOutOff)}, {sr(sT2)}
    v_mul_u32_u24 {vr(vRd)}, {PSTR}, {vr(vT)}
    v_lshl_add_u32 {vr(vRd)}, {vr(vT + 1)}, 4, {vr(vRd)}
    s_mul_i32 {sr(sT)}, {sr(sW)}, {16 * PSTR}
    v_add_u32 {vr(vRd)}, {sr(sT)}, {vr(vRd)}
    v_mul_u32_u24 {vr(vWr)}, {PSTR}, {vr(vT + 1)}
    v_lshl_add_u32 {vr(vWr)}, {vr(vT)}, 4, {vr(vWr)}
    s_mul_i32 {sr(sT)}, {sr(sW)}, {PART}
    v_add_u32 {vr(vWr)}, {sr(sT)}, {vr(vWr)}
    s_mov_b32 {sr(sCnt)}, 0
    """)
    for r in range(64):
        p(f"v_mov_b32 {vr(ACC + r)}, 0")

    p.label("K3_loop")
    for d in range(4):
        p(f"@need {ar(32 * d, 32)}")
        for tb in range(4):
            for mb in range(4):
                c = ACC + 16 * tb + 4 * mb
                p(f"v_mfma_f32_16x16x32_bf16 {vr(c, 4)}, {ar(fb(d, mb), 4)}, {ar(fa(d, tb), 4)}, {vr(c, 4)}")
                if tb == 3:
                    p(load(fb(d, mb), sB, mb))
            p(load(fa(d, tb), sA, tb))
        p(f"s_add_u32 {sr(sA)}, {sr(sA)}, 4096")
        p(f"s_add_u32 {sr(sB)}, {sr(sB)}, 4096")
    p(f"""
    s_add_u32 {sr(sCnt)}, {sr(sCnt)}, 1
    s_cmp_eq_u32 {sr(sCnt)}, 1
    s_cselect_b32 {sr(sA)}, {sr(sA2)}, {sr(sA)}
    s_cselect_b32 {sr(sB)}, {sr(sB2)}, {sr(sB)}
    s_cmp_eq_u32 {sr(sCnt)}, 9
    s_cselect_b32 {sr(sA)}, {WS_END + (2 << 20)}, {sr(sA)}
    s_cselect_b32 {sr(sB)}, {WS_END + (2 << 20)}, {sr(sB)}
    s_cmp_eq_u32 {sr(sCnt)}, 2
    s_cbranch_scc1 K3_flushA
    s_cmp_lt_u32 {sr(sCnt)}, 10
    s_cbranch_scc1 K3_loop
    """)

    def flush(partA):
        for tb in range(4):
            for mb in range(4):
                c = ACC + 16 * tb + 4 * mb
                p(f"ds_write_b128 {vr(vWr)}, {vr(c, 4)} offset:{tb * 16 * PSTR + mb * 64}")
        if partA:
            for r in range(64):
                p(f"v_mov_b32 {vr(ACC + r)}, 0")
        p("s_waitcnt lgkmcnt(0)")
        p("s_barrier")
        for n in range(4):
            for q in range(4):
                p(f"ds_read_b128 {vr(TMP + 16 * n + 4 * q, 4)}, {vr(vRd)} offset:{q * PART + n * 4 * PSTR}")
        if partA:
            p(f"""
            v_lshlrev_b32 v26, 16, {vr(XR + 8)}
            v_and_b32 v27, 0xffff0000, {vr(XR + 8)}
            v_lshlrev_b32 v28, 16, {vr(XR + 9)}
            v_and_b32 v29, 0xffff0000, {vr(XR + 9)}
            """)
        for n in range(4):
            t = TMP + 16 * n
            if partA:
                x = XR + 2 * n
                p(f"""
                v_lshlrev_b32 v30, 16, {vr(x)}
                v_and_b32 v31, 0xffff0000, {vr(x)}
                v_lshlrev_b32 v32, 16, {vr(x + 1)}
                v_and_b32 v33, 0xffff0000, {vr(x + 1)}
                v_mul_f32 v30, v30, v26
                v_mul_f32 v31, v31, v27
                v_mul_f32 v32, v32, v28
                v_mul_f32 v33, v33, v29
                v_cvt_pk_bf16_f32 v34, v30, v31
                v_cvt_pk_bf16_f32 v35, v32, v33
                v_lshlrev_b32 v30, 16, v34
                v_and_b32 v31, 0xffff0000, v34
                v_lshlrev_b32 v32, 16, v35
                v_and_b32 v33, 0xffff0000, v35
                """)
            for e in range(4):
                p(f"v_add_f32 {vr(t + e)}, {vr(t + e)}, {vr(t + 4 + e)}")
                p(f"v_add_f32 {vr(t + 8 + e)}, {vr(t + 8 + e)}, {vr(t + 12 + e)}")
            for e in range(4):
                p(f"v_add_f32 {vr(t + e)}, {vr(t + e)}, {vr(t + 8 + e)}")
                if partA:
                    p(f"v_add_f32 {vr(t + e)}, {vr(t + e)}, {vr(30 + e)}")
            off = 0 if partA else 2048
            p(f"buffer_store_dwordx4 {vr(t, 4)}, {vr(vO)}, {sr(S_OUT, 4)}, {sr(sOutOff)} offen offset:{off} sc1")
            if n < 3:
                p(f"s_add_u32 {sr(sOutOff)}, {sr(sOutOff)}, 16384")
        if partA:
            p(f"s_sub_u32 {sr(sOutOff)}, {sr(sOutOff)}, {3 * 16384}")
            p(f"v_add_u32 {vr(vWr)}, {4 * PART}, {vr(vWr)}")
            p(f"v_add_u32 {vr(vRd)}, {4 * PART}, {vr(vRd)}")

    stamp(p, timing, 2, 32, 8, 10, S_WS, sStamp)
    flush(False)
    stamp(p, timing, 3, 32, 8, 10, S_WS, sStamp)
    p.label("K3_end")
    p("s_endpgm")
    p.label("K3_flushA")
    flush(True)
    stamp(p, timing, 1, 32, 8, 10, S_WS, sStamp)
    p("s_branch K3_loop")
    p.finish()
    return p


K3_LDS = 8 * PART
```

```python
from gen_common import *
import math

BLK = 16384
NBLK = 10

S_CKV, S_WUK, S_WUV, S_XA, S_BSEL, S_XB, S_WQ, S_WO, S_CSEL, S_WS, S_KVR, S_DBG, S_E = range(4, 56, 4)
S_LRE, S_LIM, S_LDT = 56, 58, 60
sW, sH, sI, sC, sPG = 62, 63, 64, 65, 66
sT0, sT1, sT2, sT3 = 67, 68, 69, 70
sWLDS = 71
sCKV, sWOFF, sKVST, sXA, sBOFF, sXQA, sXQB = 72, 73, 74, 75, 76, 77, 78
sD0 = 79
sST = 80
sStamp = 81
sTS = 84
sRET = 88
sM0, sKVOFF, sSLOT, sCNT, sTHR = 90, 91, 92, 93, 94
sMSK = 82
sQS = 95

vLANE = 0
vN, vK, vS, vW = 1, 2, 3, 4
vF = 5
vFA = 8
vFB = 11
vT = 14
vKST, vVST, vL16 = 20, 21, 22
vPRE = 24
vZA, vZB, vLA, vLB = 26, 27, 28, 29
vX0, vX1 = 30, 31
v23 = 23
RING = 32
TMP = 64
RSET = [96 + 32 * k for k in range(5)]

QREG = [32, 64]
SREG = [[96, 112], [128, 144]]
PREG = [[160, 168], [176, 184]]
NEGM = [192, 208]
vLSUM = [224, 225]
vLU = [226, 227]
vET = 228
vRD, vDMA = 236, 237
vTHR = [238, 239]
vMT = 240
OREG = [0, 64]
FRING = 128
NFR = 16

QSCALE = math.log2(math.e) / math.sqrt(128.0)
LOG2E = math.log2(math.e)


def ldsaddr(vbase, addr):
    return vr(vbase + addr // 65536), addr % 65536


class Stage:
    def __init__(self, name, lb):
        self.name = name
        self.blocks = []
        self.mf = []
        self.reads = []
        self.fill = []
        self.at_barrier = []
        self.after_barrier = []
        self.lb = lb
        self.rate = 1


def cexp(n, outre, outim, t0, t1):
    return [
        f"v_mul_f32 {vr(t0)}, {n}, {vr(vZA)}",
        f"v_mul_f32 {vr(t1)}, {n}, {vr(vZB)}",
        f"v_exp_f32 {vr(t0)}, {vr(t0)}",
        f"v_fract_f32 {vr(t1)}, {vr(t1)}",
        f"v_cos_f32 {vr(outre)}, {vr(t1)}",
        f"v_sin_f32 {vr(outim)}, {vr(t1)}",
        f"v_mul_f32 {vr(outre)}, {vr(outre)}, {vr(t0)}",
        f"v_mul_f32 {vr(outim)}, {vr(outim)}, {vr(t0)}",
    ]


def cmadd(dre, dim, lre, lim, hre, him, ure, uim):
    return [
        f"v_fma_f32 {vr(dre)}, {vr(lre)}, {vr(hre)}, {vr(ure)}",
        f"v_fma_f32 {vr(dim)}, {vr(lre)}, {vr(him)}, {vr(uim)}",
        f"v_fma_f32 {vr(dre)}, -{vr(lim)}, {vr(him)}, {vr(dre)}",
        f"v_fma_f32 {vr(dim)}, {vr(lim)}, {vr(hre)}, {vr(dim)}",
    ]


def gen_ka(cfg):
    timing = cfg.get("timing", False)
    stop = cfg.get("stop", None)
    BIAS = cfg.get("bias", 0.0)
    THR = cfg.get("thr", 40.0)
    p = Prog()
    nstamp = [0]

    def st(early=False):
        stamp(p, timing, nstamp[0], sTS, vX0, v23 if early else vS, S_WS, sStamp)
        nstamp[0] += 1

    p(f"""
    s_cmp_ge_u32 s2, 256
    s_cbranch_scc1 KA_end
    s_load_dwordx2 {sr(S_CKV, 2)}, s[0:1], {KA['CKV']}
    s_load_dwordx2 {sr(S_WUK, 2)}, s[0:1], {KA['WUK']}
    s_load_dwordx2 {sr(S_WUV, 2)}, s[0:1], {KA['WUV']}
    s_load_dwordx2 {sr(S_XA, 2)}, s[0:1], {KA['XA']}
    s_load_dwordx4 {sr(S_BSEL, 4)}, s[0:1], {KA['BRE']}
    s_load_dwordx2 {sr(S_XB, 2)}, s[0:1], {KA['XB']}
    s_load_dwordx2 {sr(S_WQ, 2)}, s[0:1], {KA['WQ']}
    s_load_dwordx2 {sr(S_WO, 2)}, s[0:1], {KA['WO']}
    s_load_dwordx4 {sr(S_CSEL, 4)}, s[0:1], {KA['CRE']}
    s_load_dwordx2 {sr(S_WS, 2)}, s[0:1], {KA['WS']}
    s_load_dwordx2 {sr(S_DBG, 2)}, s[0:1], {KA['DBG']}
    s_load_dwordx4 {sr(S_LRE, 4)}, s[0:1], {KA['LRE']}
    s_load_dwordx2 {sr(S_LDT, 2)}, s[0:1], {KA['LDT']}
    """)
    if cfg.get("pretouch", True):
        p(f"""
        s_getpc_b64 {sr(S_E, 2)}
        s_mov_b32 {sr(S_E + 2)}, KA_codeend-KA_pc
        s_mov_b32 {sr(S_E + 3)}, {SRD3}
        v_lshlrev_b32 {vr(vX0)}, 7, v0
        """)
        p.ins.insert(len(p.ins) - 3, Ins("KA_pc:"))
        p(f"buffer_load_dword {vr(TMP)}, {vr(vX0)}, {sr(S_E, 4)}, 0 offen")
        p(f"s_mov_b32 {sr(sT0)}, 0x8000")
        p(f"buffer_load_dword {vr(TMP + 1)}, {vr(vX0)}, {sr(S_E, 4)}, {sr(sT0)} offen")
    p(f"""
    v_lshrrev_b32 {vr(vX0)}, 6, v0
    v_and_b32 v0, 63, v0
    v_readfirstlane_b32 {sr(sW)}, {vr(vX0)}
    s_and_b32 {sr(sT0)}, s2, 7
    s_lshr_b32 {sr(sT1)}, s2, 3
    s_and_b32 {sr(sT2)}, {sr(sT1)}, 3
    s_lshl_b32 {sr(sH)}, {sr(sT0)}, 2
    s_add_u32 {sr(sH)}, {sr(sH)}, {sr(sT2)}
    s_lshr_b32 {sr(sI)}, {sr(sT1)}, 2
    s_lshr_b32 {sr(sC)}, {sr(sT0)}, 1
    s_lshl_b32 {sr(sC)}, {sr(sC)}, 2
    s_lshr_b32 {sr(sT2)}, {sr(sT1)}, 3
    s_add_u32 {sr(sC)}, {sr(sC)}, {sr(sT2)}
    s_and_b32 {sr(sPG)}, {sr(sT0)}, 1
    s_lshl_b32 {sr(sPG)}, {sr(sPG)}, 3
    s_and_b32 {sr(sT2)}, {sr(sT1)}, 7
    s_add_u32 {sr(sPG)}, {sr(sPG)}, {sr(sT2)}
    s_lshl_b32 {sr(sWLDS)}, {sr(sW)}, 12
    """)
    p(f"""
    v_lshrrev_b32 {vr(vX0)}, 5, v0
    v_lshlrev_b32 {vr(vX0)}, 1, {vr(vX0)}
    v_and_b32 {vr(vX1)}, 3, v0
    v_xor_b32 {vr(vX0)}, {vr(vX0)}, {vr(vX1)}
    v_lshlrev_b32 {vr(vX0)}, 4, {vr(vX0)}
    v_lshrrev_b32 {vr(vX1)}, 2, v0
    v_lshl_add_u32 {vr(vW)}, {vr(vX1)}, 13, {vr(vX0)}
    v_lshl_add_u32 {vr(vN)}, {vr(vX1)}, 10, {vr(vX0)}
    v_lshrrev_b32 {vr(vK)}, 5, v0
    v_lshl_add_u32 {vr(vK)}, {vr(vK)}, 13, {vr(vN)}
    v_lshrrev_b32 {vr(vS)}, 4, v0
    v_mul_u32_u24 {vr(vS)}, {12 * 1024}, {vr(vS)}
    v_add_u32 {vr(vS)}, {vr(vS)}, {vr(vN)}
    v_lshlrev_b32 {vr(vL16)}, 4, v0
    """)
    p(f"""
    s_lshl_b32 {sr(sCKV)}, {sr(sI)}, 18
    s_lshl_b32 {sr(sWOFF)}, {sr(sW)}, 17
    s_lshl_b32 {sr(sT0)}, {sr(sH)}, 8
    s_add_u32 {sr(sWOFF)}, {sr(sWOFF)}, {sr(sT0)}
    s_waitcnt lgkmcnt(0)
    """)
    for s, n in ((S_CKV, 2048 * 1024), (S_WUK, 512 * 8192), (S_WUV, 512 * 8192)):
        p(f"s_mov_b32 {sr(s + 2)}, {n}")
        p(f"s_mov_b32 {sr(s + 3)}, {SRD3}")

    late_setup = f"""
    s_cmp_ge_u32 {sr(sW)}, 2
    s_cselect_b32 {sr(S_BSEL)}, {sr(S_BSEL + 2)}, {sr(S_BSEL)}
    s_cselect_b32 {sr(S_BSEL + 1)}, {sr(S_BSEL + 3)}, {sr(S_BSEL + 1)}
    s_cselect_b32 {sr(S_CSEL)}, {sr(S_CSEL + 2)}, {sr(S_CSEL)}
    s_cselect_b32 {sr(S_CSEL + 1)}, {sr(S_CSEL + 3)}, {sr(S_CSEL + 1)}
    """
    for s, n in ((S_XA, 2048 * 1024), (S_BSEL, 512 * 1024), (S_XB, 2048 * 1024), (S_WQ, 512 * 8192),
                 (S_WO, 4096 * 1024), (S_CSEL, 512 * 1024), (S_WS, WS_END + (1 << 20 if timing else 0)),
                 (S_DBG, 256), (S_E, 65536)):
        late_setup += f"s_mov_b32 {sr(s + 2)}, {n}\n s_mov_b32 {sr(s + 3)}, {SRD3}\n"
    late_setup += f"""
    s_add_u32 {sr(S_E)}, {sr(S_WS)}, {WS_E}
    s_addc_u32 {sr(S_E + 1)}, {sr(S_WS + 1)}, 0
    s_mul_i32 {sr(sKVST)}, {sr(sH)}, {HEADSTRIDE}
    s_add_u32 {sr(S_KVR)}, {sr(S_WS)}, {sr(sKVST)}
    s_addc_u32 {sr(S_KVR + 1)}, {sr(S_WS + 1)}, 0
    s_lshl_b32 {sr(sT0)}, {sr(sI)}, 16
    s_sub_u32 {sr(S_KVR + 2)}, {33 * 32768}, {sr(sT0)}
    s_mov_b32 {sr(S_KVR + 3)}, {SRD3}
    s_lshl_b32 {sr(sT0)}, {sr(sI)}, 17
    s_add_u32 {sr(sKVST)}, {sr(sKVST)}, {sr(sT0)}
    s_lshl_b32 {sr(sXA)}, {sr(sC)}, 17
    s_lshr_b32 {sr(sT0)}, {sr(sW)}, 1
    s_lshl_b32 {sr(sT0)}, {sr(sT0)}, 16
    s_add_u32 {sr(sXA)}, {sr(sXA)}, {sr(sT0)}
    s_and_b32 {sr(sT0)}, {sr(sW)}, 1
    s_lshl_b32 {sr(sT1)}, {sr(sT0)}, 13
    s_add_u32 {sr(sXA)}, {sr(sXA)}, {sr(sT1)}
    s_lshl_b32 {sr(sBOFF)}, {sr(sPG)}, 15
    s_lshl_b32 {sr(sT1)}, {sr(sT0)}, 14
    s_add_u32 {sr(sBOFF)}, {sr(sBOFF)}, {sr(sT1)}
    s_lshl_b32 {sr(sT0)}, {sr(sW)}, 15
    s_lshl_b32 {sr(sXQA)}, {sr(sI)}, 17
    s_sub_u32 {sr(sXQB)}, {15 << 17}, {sr(sXQA)}
    s_add_u32 {sr(sXQA)}, {sr(sXQA)}, {sr(sT0)}
    s_add_u32 {sr(sXQB)}, {sr(sXQB)}, {sr(sT0)}
    s_mov_b32 {sr(sQS)}, {f32hex(QSCALE)}
    s_mov_b32 {sr(sCNT)}, 0
    """
    if timing:
        late_setup += f"s_lshl_b32 {sr(sStamp)}, s2, 10\n s_add_u32 {sr(sStamp)}, {sr(sStamp)}, {WS_STAMP}\n"
    late_setup += f"""
    v_and_b32 {vr(vX0)}, 15, v0
    v_lshrrev_b32 {vr(vX1)}, 4, v0
    v_bfe_u32 {vr(vF)}, v0, 3, 1
    v_lshlrev_b32 {vr(vF)}, 1, {vr(vF)}
    v_xor_b32 {vr(vF)}, {vr(vF)}, {vr(vX1)}
    v_lshl_add_u32 {vr(vF)}, {vr(vX0)}, 2, {vr(vF)}
    v_lshlrev_b32 {vr(vF)}, 4, {vr(vF)}
    v_add_u32 {vr(vF + 1)}, 0x10000, {vr(vF)}
    v_add_u32 {vr(vF + 2)}, 0x20000, {vr(vF)}
    v_lshrrev_b32 {vr(vT)}, 5, v0
    v_lshlrev_b32 {vr(vT)}, 12, {vr(vT)}
    v_bfe_u32 {vr(vT + 1)}, v0, 4, 1
    v_mul_u32_u24 {vr(vT + 1)}, {512 + 32}, {vr(vT + 1)}
    v_add_u32 {vr(vT)}, {vr(vT)}, {vr(vT + 1)}
    v_bfe_u32 {vr(vT + 1)}, v0, 2, 2
    v_lshl_add_u32 {vr(vT)}, {vr(vT + 1)}, 6, {vr(vT)}
    v_and_b32 {vr(vT + 1)}, 3, v0
    v_lshl_add_u32 {vr(vT)}, {vr(vT + 1)}, 3, {vr(vT)}
    s_lshl_b32 {sr(sT0)}, {sr(sW)}, 10
    v_add_u32 {vr(vT)}, {sr(sT0)}, {vr(vT)}
    v_add_u32 {vr(vT + 1)}, 0x10000, {vr(vT)}
    v_add_u32 {vr(vT + 2)}, 0x20000, {vr(vT)}
    v_xor_b32 {vr(vT + 3)}, 32, {vr(vT)}
    v_xor_b32 {vr(vT + 4)}, 32, {vr(vT + 1)}
    v_xor_b32 {vr(vT + 5)}, 32, {vr(vT + 2)}
    s_lshr_b32 {sr(sT0)}, {sr(sW)}, 1
    s_lshl_b32 {sr(sT0)}, {sr(sT0)}, 13
    v_add_u32 {vr(vFA)}, {sr(sT0)}, {vr(vF)}
    v_add_u32 {vr(vFA + 1)}, {sr(sT0)}, {vr(vF + 1)}
    v_add_u32 {vr(vFA + 2)}, {sr(sT0)}, {vr(vF + 2)}
    s_and_b32 {sr(sT0)}, {sr(sW)}, 1
    s_lshl_b32 {sr(sT0)}, {sr(sT0)}, 12
    v_add_u32 {vr(vFB)}, {sr(sT0)}, {vr(vF)}
    v_add_u32 {vr(vFB + 1)}, {sr(sT0)}, {vr(vF + 1)}
    v_add_u32 {vr(vFB + 2)}, {sr(sT0)}, {vr(vF + 2)}
    v_bfe_u32 {vr(vKST)}, v0, 4, 1
    v_lshlrev_b32 {vr(vVST)}, 9, {vr(vKST)}
    v_lshlrev_b32 {vr(vKST)}, 10, {vr(vKST)}
    v_lshrrev_b32 {vr(vX1)}, 5, v0
    v_lshl_add_u32 {vr(vKST)}, {vr(vX1)}, 9, {vr(vKST)}
    v_lshl_add_u32 {vr(vVST)}, {vr(vX1)}, 12, {vr(vVST)}
    v_lshl_add_u32 {vr(vKST)}, {vr(vX0)}, 4, {vr(vKST)}
    v_lshl_add_u32 {vr(vVST)}, {vr(vX0)}, 4, {vr(vVST)}
    v_bfe_u32 {vr(vX1)}, v0, 3, 1
    v_lshl_add_u32 {vr(vKST)}, {vr(vX1)}, 7, {vr(vKST)}
    s_lshl_b32 {sr(sT0)}, {sr(sW)}, 11
    v_add_u32 {vr(vKST)}, {sr(sT0)}, {vr(vKST)}
    s_lshl_b32 {sr(sT0)}, {sr(sW)}, 10
    s_add_u32 {sr(sT0)}, {sr(sT0)}, {5 * 8192}
    v_add_u32 {vr(vVST)}, {sr(sT0)}, {vr(vVST)}
    """

    def dma_group(kind, par, addr, tag):
        out = []

        def one(pos, setup, vpat, srd, imm, flags=""):
            s = list(setup) + [f"s_add_u32 m0, {sr(sWLDS)}, {addr + pos * 1024 - imm}"]
            off = f" offset:{imm}" if imm else ""
            out.append((s, f"buffer_load_dwordx4 {vr(vpat)}, {sr(srd, 4)}, {sr(sD0)} offen{off}{flags} lds @@{tag}"))

        if kind == "C1":
            for pos in range(4):
                xy, kk = pos >> 1, pos & 1
                su = []
                if pos == 0:
                    su = [f"s_lshl_b32 {sr(sD0)}, {sr(sW)}, 15", f"s_add_u32 {sr(sD0)}, {sr(sD0)}, {sr(sCKV)}",
                          f"s_add_u32 {sr(sD0)}, {sr(sD0)}, {par * 128}"]
                if pos == 2:
                    su = [f"s_add_u32 {sr(sD0)}, {sr(sD0)}, 8192"]
                one(pos, su, vK, S_CKV, kk * 64)
        elif kind == "W":
            srd, stg = par
            for pos in range(4):
                su = [f"s_add_u32 {sr(sD0)}, {sr(sWOFF)}, {stg * 64 * 8192}"] if pos == 0 else []
                one(pos, su, vW, srd, pos * 64)
        elif kind == "C2":
            u, xy = par
            for pos in range(4):
                su = []
                if pos == 0:
                    su = [f"s_lshl_b32 {sr(sD0)}, {sr(sW)}, 8", f"s_add_u32 {sr(sD0)}, {sr(sD0)}, {sr(sCKV)}",
                          f"s_add_u32 {sr(sD0)}, {sr(sD0)}, {u * 32768 + xy * 8192}"]
                one(pos, su, vK, S_CKV, pos * 64)
        elif kind == "SX":
            for pos in range(4):
                rb, kk = pos >> 1, pos & 1
                su = []
                if pos == 0:
                    su = [f"s_add_u32 {sr(sD0)}, {sr(sXA)}, {par * 128}"]
                if pos == 2:
                    su = [f"s_add_u32 {sr(sD0)}, {sr(sD0)}, 4096"]
                one(pos, su, vS, S_XA, kk * 64)
        elif kind == "SB":
            for pos in range(4):
                su = [f"s_add_u32 {sr(sD0)}, {sr(sBOFF)}, {par * 256}"] if pos == 0 else []
                one(pos, su, vN, S_BSEL, pos * 64)
        elif kind == "X":
            g, stg = par
            for pos in range(4):
                qb, kk = pos >> 1, pos & 1
                su = []
                if pos == 0:
                    su = [f"s_add_u32 {sr(sD0)}, {sr(sXQB if g else sXQA)}, {stg * 128}"]
                if pos == 2:
                    su = [f"s_add_u32 {sr(sD0)}, {sr(sD0)}, 16384"]
                one(pos, su, vN, S_XB, kk * 64)
        elif kind == "WO":
            for pos in range(4):
                su = []
                if pos == 0:
                    su = [f"s_lshr_b32 {sr(sD0)}, s2, 2", f"s_lshl_b32 {sr(sD0)}, {sr(sD0)}, 2",
                          f"s_add_u32 {sr(sD0)}, {sr(sD0)}, {sr(sW)}", f"s_lshl_b32 {sr(sD0)}, {sr(sD0)}, 6",
                          f"s_and_b32 {sr(sMSK)}, s2, 3", f"s_add_u32 {sr(sD0)}, {sr(sD0)}, {sr(sMSK)}",
                          f"s_lshl_b32 {sr(sD0)}, {sr(sD0)}, 8"]
                one(pos, su, vN, S_WO, pos * 64)
        elif kind == "SCR":
            pass
        else:
            raise ValueError(kind)
        return out

    stages = []
    ringpos = [0]

    def ring_alloc(n, base, size, reg):
        r = base + 4 * (ringpos[0] % size)
        ringpos[0] += 1
        return r

    def frag_read(dst, vb, blk, off):
        def fn(addrs):
            r, imm = ldsaddr(vb, addrs[blk] + off)
            return f"ds_read_b128 {dst}, {r} offset:{imm}"
        return fn

    def tr_read(dst, c, blk, off):
        def fn(addrs):
            r, imm = ldsaddr(vT + 3 * c, addrs[blk] + off)
            return f"ds_read_b64_tr_b16 {dst}, {r} offset:{imm}"
        return fn

    def kv_mfmas(S, ks, R, X, Y):
        w = [ar(16 * ks + 4 * j, 4) for j in range(4)]
        first = ks == 0
        for j, (a, b, d) in enumerate(((w[0], X, 0), (w[0], Y, 8), (w[1], X, 4), (w[1], Y, 12),
                                       (X, w[2], 16), (Y, w[2], 20), (X, w[3], 24), (Y, w[3], 28))):
            c = "0" if first else vr(R + d, 4)
            S.mf.append(f"v_mfma_f32_16x16x32_bf16 {vr(R + d, 4)}, {a}, {b}, {c}")

    def drain(unit, R, tmp):
        cv, stv = [], []
        for n in range(4):
            t = tmp + 4 * n
            for k in range(4):
                cv.append(f"v_cvt_pk_bf16_f32 {vr(t + k)}, {vr(R + 8 * n + 2 * k)}, {vr(R + 8 * n + 2 * k + 1)}")
            va = vKST if n < 2 else vVST
            imm = (n & 1) * (128 if n < 2 else 256)
            s = f"buffer_store_dwordx4 {vr(t, 4)}, {vr(va)}, {sr(S_WS, 4)}, {sr(sST)} offen offset:{imm} sc1 @@kvst"
            if n == 0:
                s = f"s_add_u32 {sr(sST)}, {sr(sKVST)}, {unit * 16384}\n" + s
            stv.append(s)
        return cv, stv

    def drain_inter(unit, R, tmp):
        cv, stv = drain(unit, R, tmp)
        out = []
        for n in range(4):
            out += cv[4 * n:4 * n + 4] + [stv[n]]
        return out

    for n in range(8):
        S = Stage(f"kv1_{n}", 18)
        S.blocks = [("C1", n), ("W", (S_WUK, n)), ("W", (S_WUV, n))]
        for kk in range(2):
            ks = 2 * n + kk
            for j in range(4):
                for x in range(2):
                    S.reads.append((tr_read(ar(16 * ks + 4 * j + 2 * x, 2), j & 1, 1 + (j >> 1), kk * 8192 + x * 256),
                                    len(S.mf) + (0, 2, 4, 6)[j]))
            for u in range(4):
                X = vr(ring_alloc(1, RING, 8, "v"), 4)
                Y = vr(ring_alloc(1, RING, 8, "v"), 4)
                S.reads.append((frag_read(X, vF, 0, (4 * u + kk) * 1024), len(S.mf)))
                S.reads.append((frag_read(Y, vF, 0, (4 * u + 2 + kk) * 1024), len(S.mf) + 1))
                kv_mfmas(S, ks, RSET[u], X, Y)
        stages.append(S)

    def kv2_stage(u, R):
        S = Stage(f"kv2_{u}", 18)
        S.blocks = [("C2", (u, 0)), ("C2", (u, 1))]
        for ks in range(16):
            X = vr(ring_alloc(1, RING, 8, "v"), 4)
            Y = vr(ring_alloc(1, RING, 8, "v"), 4)
            S.reads.append((frag_read(X, vF, 0, ks * 1024), len(S.mf)))
            S.reads.append((frag_read(Y, vF, 1, ks * 1024), len(S.mf) + 1))
            kv_mfmas(S, ks, R, X, Y)
        return S

    def ssm_stage(n, R):
        S = Stage(f"ssm_{n}", 8)
        S.rate = 2
        S.blocks = [("SX", 2 * n), ("SB", n), ("SX", 2 * n + 1)]
        for k4 in range(4):
            kh, kk = k4 >> 1, k4 & 1
            B = []
            for reim in range(2):
                r = vr(ring_alloc(1, RING, 12, "v"), 4)
                B.append(r)
                S.reads.append((frag_read(r, vFB, 1, reim * 8192 + k4 * 1024), len(S.mf) + reim))
            for rb in range(4):
                r = vr(ring_alloc(1, RING, 12, "v"), 4)
                S.reads.append((frag_read(r, vFA, 2 * kh, (2 * rb + kk) * 1024), len(S.mf)))
                for reim in range(2):
                    d = R + 16 * reim + 4 * rb
                    c = "0" if (n == 0 and k4 == 0) else vr(d, 4)
                    S.mf.append(f"v_mfma_f32_16x16x32_bf16 {vr(d, 4)}, {r}, {B[reim]}, {c}")
        return S

    QACC = [RSET[0], RSET[2], RSET[4], RSET[3]]
    RB = RSET[1]

    def qacc(db, qb):
        return QACC[db >> 1] + 16 * (db & 1) + 4 * qb

    qring = [0, 0]

    def q_stage(n):
        S = Stage(f"q_{n}", 14)
        S.blocks = [("X", (0, n)), ("W", (S_WQ, n)), ("X", (1, n))]
        for kk in range(2):
            xs = []
            base = len(S.mf)
            for qb in range(4):
                r = ar(128 + 4 * (qring[0] % 12), 4)
                qring[0] += 1
                xs.append(r)
                S.reads.append((frag_read(r, vFA, 2 * (qb >> 1), (2 * (qb & 1) + kk) * 1024), base + qb))
            for db in range(8):
                rr = 192 + 4 * (qring[1] % 8)
                qring[1] += 1
                for x in range(2):
                    S.reads.append((tr_read(ar(rr + 2 * x, 2), db & 1, 1, kk * 8192 + (db >> 1) * 1024 + x * 256),
                                    len(S.mf)))
                for qb in range(4):
                    d = qacc(db, qb)
                    c = "0" if (n == 0 and kk == 0) else vr(d, 4)
                    S.mf.append(f"v_mfma_f32_16x16x32_bf16 {vr(d, 4)}, {ar(rr, 4)}, {xs[qb]}, {c}")
        S.reads.sort(key=lambda r: r[1])
        return S

    U4 = kv2_stage(4, RSET[4])
    U5 = kv2_stage(5, RSET[0])
    ringpos[0] = 0
    SS = [ssm_stage(n, RB) for n in range(4)]
    ringpos[0] = 0
    U6 = kv2_stage(6, RSET[2])
    U7 = kv2_stage(7, RSET[3])
    U6.lb = 7
    SS[0].lb = 14
    QS = [q_stage(n) for n in range(8)]
    stages += [U4, U5] + SS + [U6, U7] + QS
    for S in stages[:8]:
        S.reads.sort(key=lambda r: r[1])

    DT = TMP + 16
    U4.fill.append((drain_inter(0, RSET[0], DT) + drain_inter(1, RSET[1], DT), 8, 120))
    U5.fill.append((drain_inter(2, RSET[2], DT) + drain_inter(3, RSET[3], DT) + drain_inter(4, RSET[4], DT), 2, 124))
    U6.fill.append((drain_inter(5, RSET[0], DT), 2, 40))
    U7.fill.append((drain_inter(6, RSET[2], DT), 8, 50))
    cv7, st7 = drain(7, RSET[3], DT)
    QS[0].fill.append((cv7, 3, 19))
    QS[0].fill.append((st7, 20, 40))

    U6.blocks.append(("WO", None))
    WOT = TMP

    def wo_job(addrs):
        a = addrs[2]
        out = [f"v_lshrrev_b32 {vr(vX0)}, 5, v0",
               f"v_lshlrev_b32 {vr(vX0)}, 12, {vr(vX0)}",
               f"v_bfe_u32 {vr(vX1)}, v0, 2, 3",
               f"v_lshl_add_u32 {vr(vX0)}, {vr(vX1)}, 6, {vr(vX0)}",
               f"v_and_b32 {vr(vX1)}, 3, v0",
               f"v_lshl_add_u32 {vr(vX0)}, {vr(vX1)}, 3, {vr(vX0)}",
               f"s_lshl_b32 {sr(sT0)}, {sr(sW)}, 10\n s_add_u32 {sr(sT0)}, {sr(sT0)}, {a}",
               f"v_add_u32 {vr(vX0)}, {sr(sT0)}, {vr(vX0)}"]
        for kk in range(2):
            for c in range(2):
                for x in range(2):
                    out.append(f"ds_read_b64_tr_b16 {vr(WOT + 8 * kk + 4 * c + 2 * x, 2)}, {vr(vX0)} "
                               f"offset:{kk * 8192 + x * 512 + (c ^ x) * 32}")
        out += [f"s_and_b32 {sr(sT0)}, s2, 3\n s_lshl_b32 {sr(sT0)}, {sr(sT0)}, 20",
                f"s_lshr_b32 {sr(sT1)}, {sr(sW)}, 1\n s_lshl_b32 {sr(sT1)}, {sr(sT1)}, 19",
                f"s_add_u32 {sr(sT0)}, {sr(sT0)}, {sr(sT1)}\n s_lshr_b32 {sr(sT1)}, s2, 2",
                f"s_lshl_b32 {sr(sT1)}, {sr(sT1)}, 13\n s_add_u32 {sr(sT0)}, {sr(sT0)}, {sr(sT1)}",
                f"s_and_b32 {sr(sT1)}, {sr(sW)}, 1\n s_lshl_b32 {sr(sT1)}, {sr(sT1)}, 11",
                f"s_add_u32 {sr(sT0)}, {sr(sT0)}, {sr(sT1)}\n s_add_u32 {sr(sT0)}, {sr(sT0)}, {WS_WO}"]
        for kk in range(2):
            for c in range(2):
                out.append(f"buffer_store_dwordx4 {vr(WOT + 8 * kk + 4 * c, 4)}, {vr(vL16)}, {sr(S_WS, 4)}, {sr(sT0)} "
                           f"offen offset:{c * 1024} sc1")
            if kk == 0:
                out.append(f"s_add_u32 {sr(sT0)}, {sr(sT0)}, 4096")
        return out

    U6.fill.append((wo_job, 42, 100))

    c_load = [f"v_and_b32 {vr(vX0)}, 15, v0",
              f"v_lshrrev_b32 {vr(vX1)}, 4, v0",
              f"v_lshlrev_b32 {vr(vX1)}, 4, {vr(vX1)}",
              f"v_lshl_add_u32 {vr(vX1)}, {vr(vX0)}, 10, {vr(vX1)}",
              f"s_lshr_b32 {sr(sT0)}, s2, 3\n s_lshl_b32 {sr(sT0)}, {sr(sT0)}, 14",
              f"s_and_b32 {sr(sT1)}, s2, 7\n s_lshl_b32 {sr(sT1)}, {sr(sT1)}, 1",
              f"s_and_b32 {sr(sT2)}, {sr(sW)}, 1\n s_add_u32 {sr(sT1)}, {sr(sT1)}, {sr(sT2)}",
              f"s_lshl_b32 {sr(sT3)}, {sr(sT1)}, 6\n s_add_u32 {sr(sT0)}, {sr(sT0)}, {sr(sT3)}",
              f"buffer_load_dwordx4 {vr(TMP, 4)}, {vr(vX1)}, {sr(S_CSEL, 4)}, {sr(sT0)} offen",
              f"s_lshl_b32 {sr(sT2)}, {sr(sT2)}, 4\n s_lshl_b32 {sr(sT3)}, {sr(sPG)}, 5",
              f"s_add_u32 {sr(sT2)}, {sr(sT2)}, {sr(sT3)}",
              f"v_add_lshl_u32 {vr(vX0)}, {vr(vX0)}, {sr(sT2)}, 1",
              f"global_load_ushort {vr(vLA)}, {vr(vX0)}, {sr(S_LRE, 2)}",
              f"global_load_ushort {vr(vLB)}, {vr(vX0)}, {sr(S_LIM, 2)}",
              f"global_load_ushort {vr(vZA)}, {vr(vX0)}, {sr(S_LDT, 2)}"]
    c_store = [f"s_lshr_b32 {sr(sT0)}, s2, 5\n s_lshl_b32 {sr(sT0)}, {sr(sT0)}, 17",
               f"s_bfe_u32 {sr(sT2)}, s2, 0x20003\n s_lshl_b32 {sr(sT2)}, {sr(sT2)}, 10",
               f"s_add_u32 {sr(sT0)}, {sr(sT0)}, {sr(sT2)}\n s_lshl_b32 {sr(sT1)}, {sr(sT1)}, 13",
               f"s_add_u32 {sr(sT0)}, {sr(sT0)}, {sr(sT1)}\n s_lshr_b32 {sr(sT2)}, {sr(sW)}, 1",
               f"s_lshl_b32 {sr(sT2)}, {sr(sT2)}, 12\n s_add_u32 {sr(sT0)}, {sr(sT0)}, {sr(sT2)}",
               f"s_add_u32 {sr(sT0)}, {sr(sT0)}, {WS_CF}",
               f"buffer_store_dwordx4 {vr(TMP, 4)}, {vr(vL16)}, {sr(S_WS, 4)}, {sr(sT0)} offen sc1",
               f"v_lshlrev_b32 {vr(vLA)}, 16, {vr(vLA)}",
               f"v_lshlrev_b32 {vr(vLB)}, 16, {vr(vLB)}",
               f"v_lshlrev_b32 {vr(vZA)}, 16, {vr(vZA)}",
               f"v_mul_f32 {vr(vZA)}, {f32hex(LOG2E)}, {vr(vZA)}",
               f"v_exp_f32 {vr(vZA)}, {vr(vZA)}",
               f"s_nop 0\n v_cvt_pk_bf16_f32 {vr(vZA)}, {vr(vZA)}, {vr(vZA)}",
               f"v_lshlrev_b32 {vr(vZA)}, 16, {vr(vZA)}",
               f"v_mul_f32 {vr(vZB)}, {vr(vZA)}, {vr(vLB)}",
               f"v_mul_f32 {vr(vZA)}, {vr(vZA)}, {vr(vLA)}",
               f"v_mul_f32 {vr(vZB)}, {f32hex(1.0 / (2 * math.pi))}, {vr(vZB)}",
               f"v_mul_f32 {vr(vZA)}, {f32hex(LOG2E)}, {vr(vZA)}"]
    U4.fill.append((c_load, 1, 30))
    U4.fill.append((c_store, 90, 126))

    U7.blocks.append(("SCR", None))
    scr_addr = [None]
    E0 = TMP

    def scan1(addrs):
        a = addrs[2]
        scr_addr[0] = a
        lr, li = E0, E0 + 1
        out = cexp("1.0", lr, li, E0 + 2, E0 + 3)
        cur = (RB, RB + 16)
        for t in range(1, 16):
            d = (E0 + 4 + 2 * (t & 1), E0 + 5 + 2 * (t & 1))
            out += cmadd(d[0], d[1], lr, li, cur[0], cur[1], RB + t, RB + 16 + t)
            cur = d
        assert cur == (E0 + 6, E0 + 7)
        out += [f"v_lshrrev_b32 {vr(vX0)}, 4, v0",
                f"s_lshr_b32 {sr(sT0)}, {sr(sW)}, 1\n s_lshl_b32 {sr(sT0)}, {sr(sT0)}, 2",
                f"v_add_u32 {vr(v23)}, {sr(sT0)}, {vr(vX0)}",
                f"v_and_b32 {vr(vX0)}, 15, v0",
                f"s_and_b32 {sr(sT0)}, {sr(sW)}, 1\n s_lshl_b32 {sr(sT0)}, {sr(sT0)}, 7",
                f"s_add_u32 {sr(sT0)}, {sr(sT0)}, {a}",
                f"v_lshl_add_u32 {vr(E0 + 8)}, {vr(vX0)}, 3, {sr(sT0)}",
                f"v_lshl_add_u32 {vr(vX1)}, {vr(v23)}, 8, {vr(E0 + 8)}",
                f"ds_write_b64 {vr(vX1)}, {vr(E0 + 6, 2)}"]
        return out

    U7.fill.append((scan1, 4, 104))

    U7.fill.append(([f"v_add_u32 {vr(vFA + k)}, {sr(sWLDS)}, {vr(vF + k)}" for k in range(3)] +
                    [f"s_lshl_b32 {sr(sT1)}, {sr(sW)}, 10"] +
                    [f"v_subrev_u32 {vr(vT + k)}, {sr(sT1)}, {vr(vT + k)}" for k in range(6)], 60, 100))

    ER = RING

    def scan2(addrs):
        out = [f"ds_read_b64 {vr(ER + 2 * s, 2)}, {vr(E0 + 8)} offset:{256 * s}" for s in range(8)]
        lr, li = E0, E0 + 1
        out += cexp(f32hex(16.0), lr, li, E0 + 2, E0 + 3)
        out += [f"v_mov_b32 {vr(vPRE)}, 0", f"v_mov_b32 {vr(vPRE + 1)}, 0"]
        cur = (ER, ER + 1)
        for s in range(1, 8):
            out += [f"v_cmp_eq_u32 vcc, {s}, {vr(v23)}"]
            d = (E0 + 4 + 2 * (s & 1), E0 + 5 + 2 * (s & 1))
            out += cmadd(d[0], d[1], lr, li, cur[0], cur[1], ER + 2 * s, ER + 2 * s + 1)
            out += [f"v_cndmask_b32 {vr(vPRE)}, {vr(vPRE)}, {vr(cur[0])}, vcc",
                    f"v_cndmask_b32 {vr(vPRE + 1)}, {vr(vPRE + 1)}, {vr(cur[1])}, vcc"]
            cur = d
        assert cur == (E0 + 6, E0 + 7)
        out += [f"v_and_b32 {vr(vX0)}, 15, v0",
                f"s_and_b32 {sr(sT0)}, {sr(sW)}, 1\n s_lshl_b32 {sr(sT0)}, {sr(sT0)}, 7",
                f"s_lshl_b32 {sr(sT1)}, {sr(sPG)}, 8\n s_add_u32 {sr(sT0)}, {sr(sT0)}, {sr(sT1)}",
                f"v_lshl_add_u32 {vr(vK)}, {vr(vX0)}, 3, {sr(sT0)}",
                f"v_lshl_add_u32 {vr(vX0)}, {vr(v23)}, 16, {vr(vK)}",
                f"s_lshl_b32 {sr(sT0)}, {sr(sC)}, 12",
                f"buffer_store_dwordx2 {vr(E0 + 6, 2)}, {vr(vX0)}, {sr(S_E, 4)}, {sr(sT0)} offen sc1 @@est"]
        return out

    QS[0].fill.append((lambda a: scan2(a)[:8], 0, 8))
    QS[0].fill.append((lambda a: scan2(a)[8:18], 40, 62))
    QS[1].fill.append((lambda a: scan2(a)[18:], 0, 60))

    for n in range(2, 6):
        QS[n].fill.append(([f"v_accvgpr_write_b32 {ar(32 * (n - 2) + k)}, 0" for k in range(32)], 2, 62))

    QS[2].at_barrier.append("@need #kvst #est")
    QS[2].after_barrier.append(f"""
    s_cmp_lg_u32 {sr(sW)}, 0
    s_cbranch_scc1 KA_nosig
    v_mov_b32 {vr(vX0)}, {sr(sH)}
    v_mov_b32 {vr(vX1)}, {sr(sPG)}
    v_add_u32 {vr(vX1)}, 32, {vr(vX1)}
    v_cmp_eq_u32 vcc, 0, v0
    v_cndmask_b32 {vr(vX0)}, {vr(vX1)}, {vr(vX0)}, vcc
    v_lshlrev_b32 {vr(vX0)}, 2, {vr(vX0)}
    v_lshrrev_b32 {vr(vX1)}, 1, v0
    v_lshl_add_u32 {vr(vX0)}, {vr(vX1)}, 8, {vr(vX0)}
    v_mov_b32 {vr(vX1)}, 1
    buffer_atomic_add {vr(vX1)}, {vr(vX0)}, {sr(S_DBG, 4)}, 0 offen
    KA_nosig:
    """)

    POLL = RING + 16
    QS[5].fill.append(([f"v_mov_b32 {vr(vX0)}, {sr(sH)}",
                        f"v_mov_b32 {vr(vX1)}, {sr(sPG)}",
                        f"v_add_u32 {vr(vX1)}, 32, {vr(vX1)}",
                        f"v_cmp_gt_u32 vcc, 32, v0",
                        f"v_mov_b32 {vr(POLL)}, 16",
                        f"v_cndmask_b32 {vr(POLL + 1)}, {vr(vX1)}, {vr(vX0)}, vcc",
                        f"v_cndmask_b32 {vr(POLL)}, {vr(POLL)}, 8, vcc",
                        f"v_lshlrev_b32 {vr(POLL + 1)}, 2, {vr(POLL + 1)}"], 1, 30))
    QS[6].fill.append(([f"buffer_load_dword {vr(POLL + 2)}, {vr(POLL + 1)}, {sr(S_DBG, 4)}, 0 offen sc1"], 10, 11))
    QS[6].at_barrier.append(f"""
    KA_poll:
    v_cmp_ne_u32 vcc, {vr(POLL)}, {vr(POLL + 2)}
    s_cbranch_vccnz KA_spin
    KA_pollok:
    """)

    nst = len(stages)
    start = []
    mf = []
    for S in stages:
        start.append(len(mf))
        mf += S.mf
    total = len(mf)
    start.append(total)
    blocks = []
    saddr = []
    for n, S in enumerate(stages):
        a = []
        for kind, par in S.blocks:
            rel = n + 1 if kind == "SCR" else n
            a.append((len(blocks) % NBLK) * BLK)
            blocks.append((n, kind, par, rel))
        saddr.append(a)
    nblocks = len(blocks)
    assert nblocks % 2 == 0, nblocks
    att_first_block = nblocks
    bar = [start[n] - stages[n].lb - 1 for n in range(nst)]
    bar[0] = -1
    bar.append(total - 1)
    mfins = [Ins(t) for t in mf]
    sl = Slots(mf)
    load = [0] * total

    def put(slot, text):
        sl.after(slot, text)
        load[slot] += len([x for x in text.split("\n") if x.strip() and not x.strip().startswith("@")
                           and not x.strip().endswith(":")])

    prolog_reads = []
    for n in range(1, nst):
        txt = ""
        for x in stages[n - 1].at_barrier:
            txt += x + "\n"
        need = " ".join(f"#blk{k}" for k, b in enumerate(blocks) if b[0] == n and b[1] != "SCR")
        txt += f"@need {need}\n s_waitcnt lgkmcnt(0)\n s_barrier\n"
        for x in stages[n - 1].after_barrier:
            txt += x + "\n"
        put(bar[n], txt)
    cur = -1
    cnt = 0
    for n, S in enumerate(stages):
        for fn, fu in S.reads:
            t = fn(saddr[n])
            dst = Ins(t).writes
            fu += start[n]
            e = fu - 1
            while e >= 0 and not (mfins[e].reads & dst):
                e -= 1
            s = max(e, bar[n], cur)
            if s == cur and cnt >= S.rate and s >= 0:
                s += 1
            if s == -1 and len(prolog_reads) >= 14:
                s = 0
            if s != cur:
                cur, cnt = s, 0
            cnt += 1
            assert s < fu, (S.name, t, s, fu)
            assert s < bar[n + 1] or n == nst - 1, (S.name, "read after next barrier", s, bar[n + 1])
            if fu - s < 5 and s >= 0 and cfg.get("verbose"):
                print(f"  tight read {S.name}: {t} issued {fu - s} slots before use")
            if s == -1:
                prolog_reads.append(t)
            else:
                put(s, t)
    prolog_dma = []
    dcur = 0
    pace = cfg.get("pace", 3)

    def place_group(grp, earliest):
        nonlocal dcur
        for setup, ins in grp:
            s = max(dcur, earliest)
            assert s + 1 < total
            put(s, "\n".join(setup))
            sl.fill[s + 1].insert(0, ins)
            load[s + 1] += 1
            dcur = s + pace

    for k, (n, kind, par, rel) in enumerate(blocks):
        grp = dma_group(kind, par, (k % NBLK) * BLK, f"blk{k}")
        if k < NBLK:
            prolog_dma.append(grp)
        else:
            e = bar[blocks[k - NBLK][3] + 1] + 1
            if kind == "SCR":
                assert e <= start[n], "scratch block not free in time"
            place_group(grp, e)
            assert dcur - pace + 1 < bar[n], (k, kind, "DMA issued after its barrier")

    def tile_dma(tile, addr):
        out = []
        for j in range(8):
            su = []
            if j % 4 == 0:
                su = [f"s_mov_b32 {sr(sD0)}, {tile * 32768 + j * 1024}",
                      f"s_lshl_b32 {sr(sT0)}, {sr(sWLDS)}, 1",
                      f"s_add_u32 m0, {sr(sT0)}, {addr + j * 1024}"]
            out.append((su, f"buffer_load_dwordx4 {vr(vW)}, {sr(S_KVR, 4)}, {sr(sD0)} offen offset:{(j % 4) * 1024} "
                            f"sc1 lds @@tile{tile}"))
        return out

    def tile_addr(t):
        return ((att_first_block + 2 * t) % NBLK) * BLK

    poll_bar = bar[nst - 1]
    assert dcur <= poll_bar
    put(poll_bar, f"s_lshl_b32 {sr(sT0)}, {sr(sWLDS)}, 1\n v_add_u32 {vr(vW)}, {sr(sT0)}, {vr(vL16)}")
    ntile_pre = 0
    pace_save = pace
    pace = 2
    for t in range(4):
        kb = att_first_block + 2 * t
        e = max(bar[blocks[kb - NBLK][3] + 1], bar[blocks[kb + 1 - NBLK][3] + 1], poll_bar) + 1
        if e + 16 >= total or max(dcur, e) + 17 >= total:
            break
        place_group(tile_dma(t, tile_addr(t)), e)
        ntile_pre += 1
    pace = pace_save

    for n, S in enumerate(stages):
        for items, lo, hi in S.fill:
            if callable(items):
                items = items(saddr[n])
            lo += start[n]
            hi += start[n]
            m = len(items)
            prev = lo
            for k, it in enumerate(items):
                s = max(prev, lo + (k * (hi - lo)) // m)
                lim = min(total - 1, lo + ((k + 3) * (hi - lo)) // m, hi)
                while load[s] >= 2 and s < lim:
                    s += 1
                put(s, it)
                prev = s
    if cfg.get("verbose"):
        for n, S in enumerate(stages):
            ld = load[start[n]:start[n + 1]]
            print(f"  stage {S.name}: {len(ld)} mfma, fillers {sum(ld)}, slots>2: {sum(1 for x in ld if x > 2)}")

    for gi, grp in enumerate(prolog_dma):
        for setup, ins in grp:
            p("\n".join(setup))
            p(ins)
        if gi == 2:
            p(late_setup)
    st(True)
    p("@need #blk0 #blk1 #blk2\n s_barrier")
    st(True)
    for t in prolog_reads:
        p(t)
    if timing:
        for n in (8, 10, 14, 16):
            tp = Prog()
            stamp(tp, True, nstamp[0], sTS, TMP + 12, TMP + 14, S_WS, sStamp)
            nstamp[0] += 1
            sl.before(start[n], "\n".join(x.text for x in tp.ins))
    sl.emit(p)
    st()

    p("s_barrier")
    for t in range(ntile_pre, 4):
        for setup, ins in tile_dma(t, tile_addr(t)):
            p("\n".join(setup))
            p(ins)
    scr2 = tile_addr(4)

    for k in range(15):
        p(f"s_add_i32 {sr(sT0)}, {sr(sC)}, {k - 15}")
        p(f"s_min_u32 {sr(sT0)}, {sr(sT0)}, 16")
        p(f"s_lshl_b32 {sr(sT0)}, {sr(sT0)}, 12")
        p(f"buffer_load_dwordx2 {ar(192 + 2 * k, 2)}, {vr(vK)}, {sr(S_E, 4)}, {sr(sT0)} offen sc1")

    for cg in range(4):
        for g in range(2):
            regs = []
            for hq in range(2):
                qb = 2 * g + hq
                dst = QREG[g] + 4 * (2 * cg + hq)
                src = [qacc(2 * cg, qb) + k for k in range(4)] + [qacc(2 * cg + 1, qb) + k for k in range(4)]
                for r in src:
                    p(f"v_mul_f32 {vr(r)}, {sr(sQS)}, {vr(r)}")
                for k in range(4):
                    p(f"v_cvt_pk_bf16_f32 {vr(dst + k)}, {vr(src[2 * k])}, {vr(src[2 * k + 1])}")
                regs.append(dst)
            for k in range(4):
                p(f"v_permlane16_swap_b32 {vr(regs[0] + k)}, {vr(regs[1] + k)}")
    st()

    A = RSET[0]
    for k in range(30):
        p(f"v_accvgpr_read_b32 {vr(RSET[2] + k)}, {ar(192 + k)}")
    lr, li = A, A + 1
    for x in cexp(f32hex(128.0), lr, li, A + 2, A + 3):
        p(x)
    cur = (RSET[2], RSET[2] + 1)
    for k in range(1, 15):
        d = (A + 4 + 2 * (k & 1), A + 5 + 2 * (k & 1))
        for x in cmadd(d[0], d[1], lr, li, cur[0], cur[1], RSET[2] + 2 * k, RSET[2] + 2 * k + 1):
            p(x)
        cur = d
    p(f"v_cvt_f32_u32 {vr(A + 8)}, {vr(v23)}")
    p(f"v_mul_f32 {vr(A + 8)}, {f32hex(16.0)}, {vr(A + 8)}")
    for x in cexp(vr(A + 8), lr, li, A + 2, A + 3):
        p(x)
    for x in cmadd(A + 10, A + 11, lr, li, cur[0], cur[1], vPRE, vPRE + 1):
        p(x)
    for x in cexp("1.0", lr, li, A + 2, A + 3):
        p(x)
    cr, ci = A + 12, A + 13
    p(f"""
    v_add_f32 {vr(A + 2)}, -1.0, {vr(lr)}
    v_mul_f32 {vr(A + 3)}, {vr(vLA)}, {vr(vLA)}
    v_fmac_f32 {vr(A + 3)}, {vr(vLB)}, {vr(vLB)}
    v_rcp_f32 {vr(A + 3)}, {vr(A + 3)}
    v_mul_f32 {vr(cr)}, {vr(A + 2)}, {vr(vLA)}
    v_fmac_f32 {vr(cr)}, {vr(li)}, {vr(vLB)}
    v_mul_f32 {vr(ci)}, {vr(li)}, {vr(vLA)}
    v_fma_f32 {vr(ci)}, -{vr(A + 2)}, {vr(vLB)}, {vr(ci)}
    v_add_f32 {vr(A + 3)}, {vr(A + 3)}, {vr(A + 3)}
    v_mul_f32 {vr(cr)}, {vr(cr)}, {vr(A + 3)}
    v_mul_f32 {vr(ci)}, {vr(ci)}, {vr(A + 3)}
    """)
    cur = (A + 10, A + 11)
    HP = RSET[3]
    for t in range(16):
        d = (A + 4 + 2 * (t & 1), A + 5 + 2 * (t & 1))
        for x in cmadd(d[0], d[1], lr, li, cur[0], cur[1], RB + t, RB + 16 + t):
            p(x)
        cur = d
        p(f"v_mul_f32 {vr(RB + t)}, {vr(cr)}, {vr(d[0])}")
        p(f"v_mul_f32 {vr(RB + 16 + t)}, {vr(cr)}, {vr(d[1])}")
        p(f"v_fma_f32 {vr(RB + t)}, -{vr(ci)}, {vr(d[1])}, {vr(RB + t)}")
        p(f"v_fma_f32 {vr(RB + 16 + t)}, -{vr(ci)}, {vr(d[0])}, -{vr(RB + 16 + t)}")
        if t & 1:
            p(f"v_cvt_pk_bf16_f32 {vr(HP + t // 2)}, {vr(RB + t - 1)}, {vr(RB + t)}")
            p(f"v_cvt_pk_bf16_f32 {vr(HP + 8 + t // 2)}, {vr(RB + 16 + t - 1)}, {vr(RB + 16 + t)}")
    p(f"""
    v_and_b32 {vr(vX0)}, 15, v0
    v_bfe_u32 {vr(vX1)}, v0, 3, 2
    v_add_u32 {vr(vX1)}, 1, {vr(vX1)}
    v_bfe_u32 {vr(vX1)}, {vr(vX1)}, 1, 1
    v_lshlrev_b32 {vr(vX1)}, 5, {vr(vX1)}
    v_lshl_add_u32 {vr(vX0)}, {vr(vX0)}, 6, {vr(vX1)}
    v_lshrrev_b32 {vr(vX1)}, 1, {vr(v23)}
    v_lshl_add_u32 {vr(vX0)}, {vr(vX1)}, 10, {vr(vX0)}
    s_and_b32 {sr(sT0)}, {sr(sW)}, 1
    s_lshl_b32 {sr(sT0)}, {sr(sT0)}, 12
    s_add_u32 {sr(sT0)}, {sr(sT0)}, {scr2}
    v_add_u32 {vr(vX0)}, {sr(sT0)}, {vr(vX0)}
    ds_write_b128 {vr(vX0)}, {vr(HP, 4)}
    ds_write_b128 {vr(vX0)}, {vr(HP + 4, 4)} offset:16
    ds_write_b128 {vr(vX0)}, {vr(HP + 8, 4)} offset:8192
    ds_write_b128 {vr(vX0)}, {vr(HP + 12, 4)} offset:8208
    s_lshl_b32 {sr(sT0)}, {sr(sW)}, 10
    s_add_u32 {sr(sT0)}, {sr(sT0)}, {scr2}
    v_add_u32 {vr(vX0)}, {sr(sT0)}, {vr(vT)}
    v_add_u32 {vr(vX1)}, {sr(sT0)}, {vr(vT + 3)}
    @need #tile0
    s_waitcnt lgkmcnt(0)
    s_barrier
    """)
    for kk in range(2):
        for c in range(2):
            for x in range(2):
                p(f"ds_read_b64_tr_b16 {vr(HP + 16 + 8 * kk + 4 * c + 2 * x, 2)}, {vr(vX1 if c else vX0)} "
                  f"offset:{kk * 8192 + x * 256}")
    p(f"""
    s_lshl_b32 {sr(sT0)}, {sr(sC)}, 18
    s_lshr_b32 {sr(sT1)}, {sr(sW)}, 1
    s_lshl_b32 {sr(sT1)}, {sr(sT1)}, 17
    s_add_u32 {sr(sT0)}, {sr(sT0)}, {sr(sT1)}
    s_lshl_b32 {sr(sT1)}, {sr(sPG)}, 13
    s_add_u32 {sr(sT0)}, {sr(sT0)}, {sr(sT1)}
    s_and_b32 {sr(sT1)}, {sr(sW)}, 1
    s_lshl_b32 {sr(sT1)}, {sr(sT1)}, 11
    s_add_u32 {sr(sT0)}, {sr(sT0)}, {sr(sT1)}
    s_add_u32 {sr(sT0)}, {sr(sT0)}, {WS_HF}
    """)
    for kk in range(2):
        for c in range(2):
            p(f"buffer_store_dwordx4 {vr(HP + 16 + 8 * kk + 4 * c, 4)}, {vr(vL16)}, {sr(S_WS, 4)}, {sr(sT0)} "
              f"offen offset:{c * 1024} sc1")
        if kk == 0:
            p(f"s_add_u32 {sr(sT0)}, {sr(sT0)}, 4096")
    st()

    from gen_att import gen_attention
    gen_attention(p, cfg, tile_addr(0), st)

    p.label("KA_end")
    p("s_endpgm")
    p(f"""
    KA_spin:
    s_add_u32 {sr(sCNT)}, {sr(sCNT)}, 1
    s_cmp_gt_u32 {sr(sCNT)}, 0x40000
    s_cbranch_scc1 KA_pollok
    s_sleep 2
    buffer_load_dword {vr(POLL + 2)}, {vr(POLL + 1)}, {sr(S_DBG, 4)}, 0 offen sc1
    s_waitcnt vmcnt(0)
    s_branch KA_poll
    """)
    from gen_att import gen_attention_rare
    gen_attention_rare(p, cfg)
    p.label("KA_codeend")
    p.finish(cfg.get("verbose_nop", False))
    return p


KA_LDS = NBLK * BLK
```

```python
import sys, json
from gen_common import *
from gen_ka import gen_ka, KA_LDS
from gen_k3 import gen_k3, K3_LDS

def build(cfg):
    hdr = [l for l in open("cdna_kernels/" + NAME + ".s.ref").read().split("\n") if l.startswith(";") and "@launch" not in l]
    hdr = hdr[:19]
    ka = gen_ka(cfg)
    k3 = gen_k3(cfg.get("timing", False))
    out = "\n".join(hdr) + "\n"
    out += f"; @launch kernel={NAME}_kernel grid=(256,1,1) block=(256,1,1) lds={KA_LDS}\n"
    out += f"; @launch kernel=outproj_kernel grid=(256,1,1) block=(256,1,1) lds={K3_LDS}\n"
    out += '.amdgcn_target "amdgcn-amd-amdhsa--gfx950"\n'
    out += kernel_text(NAME + "_kernel", ka)
    out += kernel_text("outproj_kernel", k3)
    out += '.section .rodata,"a"\n.p2align 6\n'
    out += descriptor_text(NAME + "_kernel", 512, 96, 256)
    out += ".p2align 6\n"
    out += descriptor_text("outproj_kernel", 512, 96, 256)
    print("KA instrs", len(ka.ins), "maxv", ka.maxreg("v"), "maxa", ka.maxreg("a"), "maxs", ka.maxreg("s"),
          "auto nops", sum(1 for x in ka.ins if x.auto and x.cls == "nop"), file=sys.stderr)
    return out

if __name__ == "__main__":
    cfg = json.loads(sys.argv[2]) if len(sys.argv) > 2 else {}
    open(sys.argv[1], "w").write(build(cfg))
```

```python
import sys, json
from gen_common import *
from gen_ka import gen_ka, KA_LDS
from gen_k3 import gen_k3, K3_LDS

def build(cfg):
    hdr = [l for l in open("cdna_kernels/" + NAME + ".s.ref").read().split("\n") if l.startswith(";") and "@launch" not in l]
    hdr = hdr[:19]
    ka = gen_ka(cfg)
    k3 = gen_k3(cfg.get("timing", False))
    out = "\n".join(hdr) + "\n"
    out += f"; @launch kernel={NAME}_kernel grid=(256,1,1) block=(256,1,1) lds={KA_LDS}\n"
    out += f"; @launch kernel=outproj_kernel grid=(256,1,1) block=(256,1,1) lds={K3_LDS}\n"
    for _ in range(cfg.get("dummy", 0)):
        out += f"; @launch kernel=dummy_kernel grid=(256,1,1) block=(256,1,1) lds=0\n"
    out += '.amdgcn_target "amdgcn-amd-amdhsa--gfx950"\n'
    out += kernel_text(NAME + "_kernel", ka)
    out += kernel_text("outproj_kernel", k3)
    if cfg.get("dummy"):
        out += ".text\n.globl dummy_kernel\n.p2align 8\n.type dummy_kernel,@function\ndummy_kernel:\n    s_endpgm\n"
    out += '.section .rodata,"a"\n.p2align 6\n'
    if cfg.get("dummy"):
        out += descriptor_text("dummy_kernel", 32, 32, 32) + ".p2align 6\n"
    out += descriptor_text(NAME + "_kernel", 512, 96, 256)
    out += ".p2align 6\n"
    out += descriptor_text("outproj_kernel", 512, 96, 256)
    print("KA instrs", len(ka.ins), "maxv", ka.maxreg("v"), "maxa", ka.maxreg("a"), "maxs", ka.maxreg("s"),
          "auto nops", sum(1 for x in ka.ins if x.auto and x.cls == "nop"), file=sys.stderr)
    return out

if __name__ == "__main__":
    cfg = json.loads(sys.argv[2]) if len(sys.argv) > 2 else {}
    open(sys.argv[1], "w").write(build(cfg))
```

```python
from gen_common import *
from regs import *

BIG = 2.0 ** 100
LDSEND = 163840
vBASE = vMT + 7
vSC = [vMT + 5, vMT + 6]
LOOK = 8

sites = []


def fr(f):
    return ar(FRING + 4 * (f % NFR), 4)


def sm_ops(g, par, masked, tb):
    S, P, lu = SREG[g][par], PREG[g][par], vLU[g]
    ops = []

    def t(k):
        return vr(tb + (k & 3))

    def post(j):
        if j == 1:
            ops.append(f"v_add_f32 {vr(lu)}, {t(0)}, {t(1)}")
        elif j > 1:
            ops.append(f"v_add_f32 {vr(lu)}, {vr(lu)}, {t(j)}")
        if j & 1:
            ops.append(f"v_cvt_pk_bf16_f32 {vr(P + j // 2)}, {t(j - 1)}, {t(j)}")

    for k in range(16):
        if masked:
            ops += mask_ops(g, S, k)
        ops.append(f"v_exp_f32 {t(k)}, {vr(S + k)}")
        if k >= 1:
            post(k - 1)
    if masked:
        ops.append(f"v_add_f32 {vr(vTHR[g])}, {f32hex(-32 * BIG)}, {vr(vTHR[g])}")
    post(15)
    return ops


def mask_ops(g, S, k):
    c = 8 * (k >> 2) + (k & 3)
    if c == 0:
        return [f"v_min_f32 {vr(S + k)}, {vr(S + k)}, {vr(vTHR[g])}"]
    return [f"v_add_f32 {vr(vMT)}, {f32hex(-c * BIG)}, {vr(vTHR[g])}",
            f"v_min_f32 {vr(S + k)}, {vr(S + k)}, {vr(vMT)}"]


def dma_ops():
    out = []
    for j in range(8):
        su = []
        if j == 0:
            su = [f"s_add_u32 m0, {sr(sM0)}, {sr(sW8K)}"]
        if j == 4:
            su = [f"s_add_u32 m0, m0, 4096", f"s_add_u32 {sr(sKVOFF)}, {sr(sKVOFF)}, 4096"]
        out.append((su, f"buffer_load_dwordx4 {vr(vW)}, {sr(S_KVR, 4)}, {sr(sKVOFF)} offen offset:{(j % 4) * 1024} sc1 lds"))
    tail = [f"s_add_u32 {sr(sKVOFF)}, {sr(sKVOFF)}, {32768 - 4096}",
            f"s_add_u32 {sr(sM0)}, {sr(sM0)}, 32768",
            f"s_cmp_eq_u32 {sr(sM0)}, {LDSEND}\n s_cselect_b32 {sr(sM0)}, 0, {sr(sM0)}"]
    return out, tail


def slot_adv():
    return [f"s_add_u32 {sr(sSLOT)}, {sr(sSLOT)}, 32768",
            f"s_cmp_eq_u32 {sr(sSLOT)}, {LDSEND}\n s_cselect_b32 {sr(sSLOT)}, 0, {sr(sSLOT)}"]


def body(p, name, its, last=False, dma=True, tail=""):
    mf = []
    fuse = {}
    bounds = []
    for it, d in enumerate(its):
        b0 = len(mf)
        for s in range(8):
            for g in d["qk"]:
                S = SREG[g][it]
                c = NEGM[g] if s == 0 else S
                f = 16 * it + s
                fuse[f] = (fuse.get(f, (len(mf),))[0], len(mf))
                mf.append(f"v_mfma_f32_32x32x16_bf16 {vr(S, 16)}, {fr(f)}, {vr(QREG[g] + 4 * s, 4)}, {vr(c, 16)}")
        for x in range(8):
            for g in d["pv"]:
                f = 16 * it + 8 + x
                o = OREG[g] + 16 * (x & 3)
                fuse[f] = (fuse.get(f, (len(mf),))[0], len(mf))
                mf.append(f"v_mfma_f32_32x32x16_bf16 {ar(o, 16)}, {fr(f)}, {vr(PREG[g][it] + 4 * (x >> 2), 4)}, {ar(o, 16)}")
        bounds.append((b0, len(mf)))
    n = len(mf)
    sl = Slots(mf)
    pre = []
    used = sorted(fuse)
    seq = list(used)
    if not last:
        seq += [32 + k for k in range(LOOK)]
    barslot = None
    for idx, f in enumerate(seq):
        if f < LOOK:
            continue
        s = fuse[seq[idx - LOOK]][0] if idx >= LOOK else -1
        if f - NFR in fuse:
            assert fuse[f - NFR][1] <= s
        if f == 32:
            barslot = s
            sl.after(s, f"s_waitcnt vmcnt(16)\n s_barrier\n v_add_u32 {vr(vRD)}, {sr(sSLOT)}, {vr(vL16)}")
        t = f"ds_read_b128 {fr(f)}, {vr(vRD)} offset:{(f % 32) * 1024}"
        if s < 0:
            pre.append(t)
        else:
            sl.after(s, t)
    for f in used:
        if f % 2 == 0 and f + 1 in fuse:
            sl.before(fuse[f][0], f"@need {fr(f)} {fr(f + 1)}")
    if not last:
        items = []
        if dma:
            dm, tl = dma_ops()
            span = barslot - 4
            for j, (su, ins) in enumerate(dm):
                s = 1 + (j * span) // 10
                for x in su:
                    sl.after(s - 1, x)
                sl.after(s, ins)
            items += tl
        items += slot_adv()
        sl.spread(items, max(1 + (8 * (barslot - 4)) // 10, 0), barslot)
    for it, d in enumerate(its):
        b0, b1 = bounds[it]
        par = it ^ 1
        ops = [f"v_add_f32 {vr(vLSUM[g])}, {vr(vLSUM[g])}, {vr(vLU[g])}" for g in d["acc"]]
        for g in d["sm"]:
            ops += sm_ops(g, par, g in d["mask"], vET + 4 * g)
        if d["sm"]:
            if len(d["sm"]) == 2:
                ops.append(f"v_max_f32 {vr(vMT + 1)}, {vr(vLU[0])}, {vr(vLU[1])}")
                ops.append(f"v_cmp_lt_f32 vcc, {sr(sTHR)}, {vr(vMT + 1)}")
            else:
                ops.append(f"v_cmp_lt_f32 vcc, {sr(sTHR)}, {vr(vLU[d['sm'][0]])}")
        if ops:
            sl.spread(ops, b0, b1 - 1)
        if d["sm"]:
            lab = f"FIX_{name}_{it}"
            sl.after(b1 - 1, f"s_cbranch_vccnz {lab}\n {lab}_ret:")
            sites.append((lab, par, d["sm"]))
    for x in pre:
        p(x)
    sl.emit(p)
    if tail:
        p(tail)


def rowmax(S, t0, t1):
    out = [f"v_max3_f32 {vr(t0)}, {vr(S)}, {vr(S + 1)}, {vr(S + 2)}"]
    for k in range(3, 15, 2):
        out.append(f"v_max3_f32 {vr(t0)}, {vr(t0)}, {vr(S + k)}, {vr(S + k + 1)}")
    out += [f"v_max_f32 {vr(t0)}, {vr(t0)}, {vr(S + 15)}",
            f"v_mov_b32 {vr(t1)}, {vr(t0)}",
            f"v_permlane32_swap_b32 {vr(t0)}, {vr(t1)}",
            f"v_max_f32 {vr(t0)}, {vr(t0)}, {vr(t1)}"]
    return out


def gen_attention(p, cfg, slot0, st, pre, hst, rest, hsig, mid_hook, pre_last):
    global sites
    sites.clear()
    BIAS = cfg.get("bias", 0.0)
    THR = cfg.get("thr", 40.0)
    slot4 = (slot0 + 4 * 32768) % LDSEND
    slot1 = (slot0 + 32768) % LDSEND
    p(f"v_add_u32 {vr(vRD)}, {slot0}, {vr(vL16)}")
    for f in range(8):
        p(f"ds_read_b128 {fr(f)}, {vr(vRD)} offset:{f * 1024}")
    for x in hst:
        p(x)
    for x in pre:
        p(x)
    setup = f"""
    v_and_b32 {vr(vX0)}, 31, v0
    v_lshrrev_b32 {vr(vX1)}, 5, v0
    v_lshlrev_b32 {vr(vX1)}, 2, {vr(vX1)}
    v_sub_u32 {vr(vX0)}, {vr(vX0)}, {vr(vX1)}
    s_lshl_b32 {sr(sT0)}, {sr(sW)}, 5
    v_add_u32 {vr(vX0)}, {sr(sT0)}, {vr(vX0)}
    s_lshl_b32 {sr(sT0)}, {sr(sI)}, 7
    v_add_u32 {vr(vTHR[0])}, {sr(sT0)}, {vr(vX0)}
    s_lshl_b32 {sr(sT0)}, {sr(sI)}, 8
    s_sub_u32 {sr(sT0)}, {14 * 128}, {sr(sT0)}
    v_add_u32 {vr(vTHR[1])}, {sr(sT0)}, {vr(vX0)}
    v_add_u32 {vr(vBASE)}, 32, {vr(vX0)}
    """.strip().split("\n")
    for r in (vTHR[0], vTHR[1], vBASE):
        setup += [f"v_cvt_f32_i32 {vr(r)}, {vr(r)}", f"v_add_f32 {vr(r)}, 0.5, {vr(r)}",
                  f"v_mul_f32 {vr(r)}, {f32hex(BIG)}, {vr(r)}"]
    ZQ = 248
    setup += [f"v_mov_b32 {vr(vLSUM[0])}, 0", f"v_mov_b32 {vr(vLSUM[1])}, 0"]
    setup += [f"v_mov_b32 {vr(ZQ + k)}, 0" for k in range(4)]
    setup += [f"s_mov_b32 {sr(sM0)}, {slot4}", f"s_mov_b32 {sr(sSLOT)}, {slot1}",
              f"s_mov_b32 {sr(sKVOFF)}, {4 * 32768}", f"s_mov_b32 {sr(sTHR)}, {f32hex(2.0 ** (THR - BIAS))}"]

    mf = []

    def qk(g, par, f0):
        for s in range(8):
            S = SREG[g][par]
            c = ("0" if par == 0 else vr(NEGM[g], 16)) if s == 0 else vr(S, 16)
            mf.append(f"v_mfma_f32_32x32x16_bf16 {vr(S, 16)}, {fr(f0 + s)}, {vr(QREG[g] + 4 * s, 4)}, {c}")

    def zero(k):
        mf.append(f"v_mfma_f32_32x32x16_bf16 {ar(16 * k, 16)}, {vr(ZQ, 4)}, {vr(ZQ, 4)}, 0")

    qk(0, 0, 0)
    qk(1, 0, 0)
    for k in range(3):
        zero(k)
    qk(0, 1, 8)
    qk(1, 1, 8)
    for k in range(3, 8):
        zero(k)
    sl = Slots(mf)

    def first(g):
        S = SREG[g][0]
        o = []
        if g == 0:
            for k in range(16):
                o += mask_ops(0, S, k)
            o.append(f"v_add_f32 {vr(vTHR[0])}, {f32hex(-32 * BIG)}, {vr(vTHR[0])}")
        o += rowmax(S, vMT + 1, vMT + 2)
        o.append(f"v_sub_f32 {vr(NEGM[g])}, {f32hex(-BIAS) if BIAS else '0'}, {vr(vMT + 1)}")
        o += [f"v_mov_b32 {vr(NEGM[g] + k)}, {vr(NEGM[g])}" for k in range(1, 16)]
        return o

    def shift(g):
        S = SREG[g][0]
        return [f"v_add_f32 {vr(S + k)}, {vr(S + k)}, {vr(NEGM[g])}" for k in range(16)]

    for f in range(8):
        sl.after(f, f"ds_read_b128 {fr(8 + f)}, {vr(vRD)} offset:{(16 + f) * 1024}")
    sl.spread(setup, 0, 10)
    sl.spread(first(0), 10, 19)
    sl.spread(first(1) + shift(0), 19, 27)
    sl.spread(sm_ops(0, 0, False, vET) + shift(1) + sm_ops(1, 0, False, vET + 4), 27, 40)
    if rest:
        sl.spread(rest, 2, 30)
    sl.after(30, f"@need #tile1 #hst\n s_barrier\n v_add_u32 {vr(vRD)}, {sr(sSLOT)}, {vr(vL16)}\n" + hsig)
    for k in range(8):
        sl.after(31 + k, f"ds_read_b128 {fr(k)}, {vr(vRD)} offset:{k * 1024}")
    sl.emit(p)
    st()

    AB, B = [0, 1], [1]

    def it(qk, sm, pv, acc, mask=()):
        return dict(qk=qk, sm=sm, pv=pv, acc=acc, mask=set(mask))

    loop_tail = lambda lab: f"s_sub_u32 {sr(sCNT)}, {sr(sCNT)}, 1\n s_cmp_lg_u32 {sr(sCNT)}, 0\n s_cbranch_scc1 {lab}"
    p(f"""
    s_mov_b32 {sr(sCNT)}, 1
    s_cmp_eq_u32 {sr(sI)}, 0
    s_cbranch_scc1 ATT_D2
    s_lshl_b32 {sr(sCNT)}, {sr(sI)}, 1
    s_sub_u32 {sr(sCNT)}, {sr(sCNT)}, 1
    v_mov_b32 {vr(vTHR[0])}, {vr(vBASE)}
    """)
    p(".p2align 3")
    p.label("ATT_DL")
    body(p, "DL", [it(AB, AB, AB, AB), it(AB, AB, AB, AB)], tail=loop_tail("ATT_DL"))
    p(f"s_mov_b32 {sr(sCNT)}, 2")
    p.label("ATT_D2")
    body(p, "D2", [it(AB, AB, AB, AB, [0]), it(AB, AB, AB, AB, [0])], tail=loop_tail("ATT_D2"))
    body(p, "D3", [it(B, AB, AB, AB, [0]), it(B, B, AB, AB, [1])])
    mid_hook()
    ctx_epilogue(p, cfg, 0, [])
    st()
    p(f"""
    s_mov_b32 {sr(sCNT)}, 1
    s_cmp_eq_u32 {sr(sI)}, 7
    s_cbranch_scc1 ATT_S2
    s_lshl_b32 {sr(sCNT)}, {sr(sI)}, 2
    s_sub_u32 {sr(sCNT)}, 27, {sr(sCNT)}
    v_mov_b32 {vr(vTHR[1])}, {vr(vBASE)}
    """)
    p(".p2align 3")
    p.label("ATT_SL")
    body(p, "SL", [it(B, B, B, B), it(B, B, B, B)], tail=loop_tail("ATT_SL"))
    p(f"s_mov_b32 {sr(sCNT)}, 2")
    p.label("ATT_S2")
    body(p, "S2", [it(B, B, B, B, [1]), it(B, B, B, B, [1])], tail=loop_tail("ATT_S2"))
    p(pre_last)
    body(p, "S3", [it([], B, B, B, [1]), it([], [], B, B)], last=True)
    st()


def ctx_epilogue(p, cfg, g, extra):
    VSC = cfg.get("vscale", 0)
    if g == 0:
        p(f"""
        v_bfe_u32 {vr(vX0)}, v0, 4, 1
        s_and_b32 {sr(sT0)}, {sr(sW)}, 1
        s_lshl_b32 {sr(sT0)}, {sr(sT0)}, 1
        s_lshr_b32 {sr(sT1)}, {sr(sH)}, 3
        s_sub_u32 {sr(sT0)}, {sr(sT0)}, {sr(sT1)}
        v_add_u32 {vr(vX0)}, {sr(sT0)}, {vr(vX0)}
        v_and_b32 {vr(vX0)}, 3, {vr(vX0)}
        v_lshlrev_b32 {vr(vCST)}, 10, {vr(vX0)}
        v_lshrrev_b32 {vr(vX1)}, 5, v0
        v_lshl_add_u32 {vr(vCST)}, {vr(vX1)}, 8, {vr(vCST)}
        v_and_b32 {vr(vX1)}, 15, v0
        v_lshl_add_u32 {vr(vCST)}, {vr(vX1)}, 4, {vr(vCST)}
        s_lshr_b32 {sr(sT0)}, {sr(sW)}, 1
        s_lshl_b32 {sr(sT0)}, {sr(sT0)}, 12
        s_lshl_b32 {sr(sT1)}, {sr(sH)}, 15
        s_add_u32 {sr(sT0)}, {sr(sT0)}, {sr(sT1)}
        s_add_u32 {sr(sT0)}, {sr(sT0)}, {WS_CTX}
        v_add_u32 {vr(vCST)}, {sr(sT0)}, {vr(vCST)}
        s_lshl_b32 {sr(sST)}, {sr(sI)}, 20
        """)
    else:
        p(f"s_lshl_b32 {sr(sST)}, {sr(sI)}, 20\n s_sub_u32 {sr(sST)}, {15 << 20}, {sr(sST)}")
    T = 32 if g == 0 else 96
    l = vLSUM[g]
    p(f"""
    v_mov_b32 {vr(vMT)}, {vr(l)}
    v_permlane32_swap_b32 {vr(l)}, {vr(vMT)}
    v_add_f32 {vr(l)}, {vr(l)}, {vr(vMT)}
    """)
    if VSC:
        p(f"v_ldexp_f32 {vr(l)}, {vr(l)}, {VSC}")
    p(f"v_rcp_f32 {vr(l)}, {vr(l)}")
    extra = list(extra)
    per = (len(extra) + 7) // 8
    for n in range(8):
        db, gp = n >> 1, n & 1
        t = T + 12 * (n & 1)
        for k in range(8):
            p(f"v_accvgpr_read_b32 {vr(t + k)}, {ar(OREG[g] + 16 * db + 8 * gp + k)}")
        for k in range(8):
            p(f"v_mul_f32 {vr(t + k)}, {vr(t + k)}, {vr(l)}")
        for k in range(4):
            p(f"v_cvt_pk_bf16_f32 {vr(t + 8 + k)}, {vr(t + 2 * k)}, {vr(t + 2 * k + 1)}")
        p(f"buffer_store_dwordx4 {vr(t + 8, 4)}, {vr(vCST)}, {sr(S_WS, 4)}, {sr(sST)} offen offset:{gp * 512} sc1 @@ctxst")
        if gp == 1 and db < 3:
            p(f"s_add_u32 {sr(sST)}, {sr(sST)}, 8192")
        if cfg.get("tailmix", False):
            for x in extra[:per]:
                p(x)
            del extra[:per]
    for x in extra:
        p(x)


def gen_attention_rare(p, cfg):
    BIAS = cfg.get("bias", 0.0)
    for lab, par, groups in sites:
        p.label(lab)
        for g in groups:
            p(f"s_call_b64 {sr(sRET, 2)}, FIXS_{g}_{par}")
            p(f"s_call_b64 {sr(sRET, 2)}, FIXO_{g}")
        p(f"s_branch {lab}_ret")
    for g in range(2):
        for par in range(2):
            p.label(f"FIXS_{g}_{par}")
            S, S2 = SREG[g][par], SREG[g][par ^ 1]
            d = vMT + 1
            for x in rowmax(S, d, vMT + 2):
                p(x)
            if BIAS:
                p(f"v_add_f32 {vr(d)}, {f32hex(BIAS)}, {vr(d)}")
            p(f"v_max_f32 {vr(d)}, 0, {vr(d)}")
            p(f"v_exp_f32 {vr(vSC[g])}, -{vr(d)}")
            for base in (NEGM[g], S, S2):
                for k in range(16):
                    p(f"v_sub_f32 {vr(base + k)}, {vr(base + k)}, {vr(d)}")
            p(f"v_mul_f32 {vr(vLSUM[g])}, {vr(vLSUM[g])}, {vr(vSC[g])}")
            for x in sm_ops(g, par, False, vET + 4 * g):
                p(x)
            p(f"s_setpc_b64 {sr(sRET, 2)}")
        p.label(f"FIXO_{g}")
        for b in range(0, 64, 4):
            for k in range(4):
                p(f"v_accvgpr_read_b32 {vr(vET + k)}, {ar(OREG[g] + b + k)}")
            for k in range(4):
                p(f"v_mul_f32 {vr(vET + k)}, {vr(vET + k)}, {vr(vSC[g])}")
            for k in range(4):
                p(f"v_accvgpr_write_b32 {ar(OREG[g] + b + k)}, {vr(vET + k)}")
        p(f"s_setpc_b64 {sr(sRET, 2)}")
```

```python
from asmlib import *

NAME = "concat_heads__ssm_conv_s5__compressed_kv_cla__prompt"

KA = dict(XA=0, LRE=8, LIM=16, BRE=24, BIM=32, CRE=40, CIM=48, LDT=56, DSK=64, XB=72, CKV=80, WQ=88, WUK=96,
          WUV=104, WO=112, OUT=120, DBG=128, WS=136)

HEADSTRIDE = 33 * 32768
WS_KV = 0
WS_CTX = 0x2200000
WS_HF = WS_CTX + (16 << 20)
WS_PX = WS_HF + (4 << 20)
WS_E = WS_PX + (14 << 20)
WS_FLG = WS_E + 65536
WS_END = WS_FLG + 32768
WS_STAMP = WS_END
WS_SIZE = 268435456
FL_KV, FL_E, FL_H, FL_CTX, FL_P = 0, 32, 48, 64, 128

SRD3 = "0x20000"


def f32hex(x):
    import struct
    return hex(struct.unpack("<I", struct.pack("<f", x))[0])


def stamp(p, on, idx, s_tmp, v_a, v_b, srd_ws, s_wgoff):
    if not on:
        return
    p(f"s_memtime {sr(s_tmp, 2)}")
    p(f"s_memrealtime {sr(s_tmp + 2, 2)}")
    p("s_waitcnt lgkmcnt(0)")
    p(f"v_mov_b32 {vr(v_a)}, {sr(s_tmp)}")
    p(f"v_mov_b32 {vr(v_a + 1)}, {sr(s_tmp + 2)}")
    p(f"v_mov_b32 {vr(v_b)}, {idx * 8}")
    p(f"buffer_store_dwordx2 {vr(v_a, 2)}, {vr(v_b)}, {sr(srd_ws, 4)}, {sr(s_wgoff)} offen")
```

```python
from asmlib import *

BLK = 16384
NBLK = 10


def ldsaddr(vbase, addr):
    return vr(vbase + addr // 65536), addr % 65536


class Stage:
    def __init__(self, name, lb):
        self.name = name
        self.blocks = []
        self.mf = []
        self.reads = []
        self.fill = []
        self.at_barrier = []
        self.after_barrier = []
        self.lb = lb
        self.rate = 1
        self.gate = None
        self.frac = None
        self.maxpace = None


def ninstr(text):
    return len([x for x in text.split("\n") if x.strip() and not x.strip().startswith("@") and not x.strip().endswith(":")])


class Pipe:
    def __init__(self, stages, dma_group, cfg, tag, npro, stampfn=None, gated=()):
        self.stages = stages
        self.cfg = cfg
        nst = len(stages)
        start, mf = [], []
        for S in stages:
            start.append(len(mf))
            mf += S.mf
        total = len(mf)
        start.append(total)
        self.start, self.total = start, total
        blocks, saddr = [], []
        for n, S in enumerate(stages):
            a = []
            for kind, par in S.blocks:
                rel = n + 1 if kind == "SCR" else n
                a.append((len(blocks) % NBLK) * BLK)
                blocks.append((n, kind, par, rel))
            saddr.append(a)
        self.blocks, self.saddr = blocks, saddr
        bar = [start[n] - stages[n].lb - 1 for n in range(nst)]
        bar[0] = -1
        bar.append(total - 1)
        self.bar = bar
        mfins = [Ins(t) for t in mf]
        self.sl = sl = Slots(mf)
        self.load = load = [0] * total
        self.first_need = " ".join(f"#{tag}{k}" for k, b in enumerate(blocks) if b[0] == 0 and b[1] != "SCR")
        for n in range(1, nst):
            txt = "".join(x + "\n" for x in stages[n - 1].at_barrier)
            need = " ".join(f"#{tag}{k}" for k, b in enumerate(blocks) if b[0] == n and b[1] != "SCR")
            txt += f"@need {need}\n s_waitcnt lgkmcnt(0)\n s_barrier\n"
            if stampfn:
                txt += stampfn(n)
            txt += "".join(x + "\n" for x in stages[n - 1].after_barrier)
            self.put(bar[n], txt)
        self.prolog_reads = []
        cur, cnt = -1, 0
        for n, S in enumerate(stages):
            for fn, fu in sorted(S.reads, key=lambda r: r[1]):
                t = fn(saddr[n])
                dst = Ins(t).writes
                fu += start[n]
                e = fu - 1
                while e >= 0 and not (mfins[e].reads & dst):
                    e -= 1
                s = max(e, bar[n], cur)
                if s == cur and cnt >= S.rate and s >= 0:
                    s += 1
                if s == -1 and len(self.prolog_reads) >= 14:
                    s = 0
                if s != cur:
                    cur, cnt = s, 0
                cnt += 1
                assert s < fu, (S.name, t, s, fu)
                assert s < bar[n + 1] or n == nst - 1, (S.name, "read after next barrier", s, bar[n + 1])
                if fu - s < 5 and s >= 0 and cfg.get("verbose"):
                    print(f"  tight read {S.name}: {t} issued {fu - s} slots before use")
                if s == -1:
                    self.prolog_reads.append(t)
                else:
                    self.put(s, t)
        self.prolog_dma = []
        self.dcur = 0
        byb = {}
        fbmin = 0
        for k, (n, kind, par, rel) in enumerate(blocks):
            grp = dma_group(kind, par, (k % NBLK) * BLK, f"{tag}{k}")
            if k < npro:
                assert kind not in gated
                self.prolog_dma.append(grp)
                continue
            fb = 0 if k < NBLK else blocks[k - NBLK][3] + 1
            if kind == "SCR":
                assert bar[fb] + 1 <= start[n], "scratch block not free in time"
                continue
            if kind in gated and stages[n].gate is not None:
                fb = max(fb, stages[n].gate + 1)
            fb = max(fb, fbmin)
            fbmin = fb
            byb.setdefault(fb, []).append((k, n, kind, grp))
        for fb in sorted(byb):
            cnt = sum(len(g[3]) for g in byb[fb])
            S = stages[fb]
            frac = S.frac if S.frac is not None else cfg.get("spread", 0.9)
            mp = S.maxpace if S.maxpace is not None else cfg.get("maxpace", 8)
            lo = max(bar[fb] + 1, self.dcur)
            span = max(bar[fb + 1] - lo, 1)
            pace = min(max(1, int(span * frac) // cnt), mp)
            for k, n, kind, grp in byb[fb]:
                self.place_group(grp, lo, pace)
                assert self.dcur - pace + 1 <= bar[n], (k, kind, "DMA issued after its barrier", self.dcur, bar[n])

    def put(self, slot, text):
        self.sl.after(slot, text)
        self.load[slot] += ninstr(text)

    def place_group(self, grp, earliest, pace):
        for setup, ins in grp:
            s = max(self.dcur, earliest)
            assert s + 1 < self.total
            if setup:
                self.put(s, "\n".join(setup))
            self.sl.fill[s + 1].insert(0, ins)
            self.load[s + 1] += 1
            self.dcur = s + pace

    def place_fillers(self):
        load, total = self.load, self.total
        for n, S in enumerate(self.stages):
            for items, lo, hi in S.fill:
                if callable(items):
                    items = items(self.saddr[n])
                lo += self.start[n]
                hi += self.start[n]
                m = len(items)
                prev = lo
                for k, it in enumerate(items):
                    s = max(prev, lo + (k * (hi - lo)) // m)
                    lim = min(total - 1, lo + ((k + 3) * (hi - lo)) // m, hi)
                    while load[s] >= 2 and s < lim:
                        s += 1
                    self.put(s, it)
                    prev = s
        if self.cfg.get("verbose"):
            for n, S in enumerate(self.stages):
                ld = load[self.start[n]:self.start[n + 1]]
                print(f"  stage {S.name}: {len(ld)} mfma, fillers {sum(ld)}, over: {sum(max(0, x - 2) for x in ld)}")
```

```python
import math
S_CKV, S_WUK, S_WUV, S_XA, S_BSEL, S_XB, S_WQ, S_WO, S_CSEL, S_WS, S_KVR, S_FLG, S_E = range(4, 56, 4)
S_OUT, S_DSK, S_CODE = S_CKV, S_WUK, S_WUV
S_LRE, S_LIM, S_LDT = 56, 58, 60
S_DBG = 56
sDBGP = 82
sW, sH, sI, sC, sPG = 62, 63, 64, 65, 66
sT0, sT1, sT2, sT3 = 67, 68, 69, 70
sWLDS = 71
sCKV, sWOFF, sKVST, sXA, sBOFF, sXQA, sXQB = 72, 73, 74, 75, 76, 77, 78
sD0 = 79
sST = 80
sStamp = 81
sTS = 84
sRET = 88
sM0, sKVOFF, sSLOT, sCNT, sTHR = 90, 91, 92, 93, 94
sQS = 95
sRK, sRS, sRQ = 96, 97, 98
sCKV2a, sCKV2b, sKVST2 = 99, 100, 101
sSPIN = 3
sFO = 61
sW8K = sCKV
sKQ, sRT, sCT, sRT64, sCT64 = sWOFF, sKVST, sXA, sBOFF, sXQA
sCTXO, sWOO, sHO, sCO, sRO, sR2, sRO2 = sXQB, sRK, sRS, sRQ, sCKV2a, sCKV2b, sKVST2

vN, vK, vS, vW = 1, 2, 3, 4
vF = 5
vFA = 8
vFB = 11
vT = 14
vKST, vVST, vL16 = 20, 21, 22
vSEG = 23
vPRE = 24
vZA, vZB, vLA, vLB = 26, 27, 28, 29
vX0, vX1 = 30, 31
RING = 32
TMP = 64
DT = 80
vSIG, vONE, vPA, vPV = 88, 89, 90, 91
RSET = [96 + 32 * k for k in range(5)]

QREG = [32, 64]
SREG = [[96, 112], [128, 144]]
PREG = [[160, 168], [176, 184]]
NEGM = [192, 208]
vLSUM = [224, 225]
vLU = [226, 227]
vET = 228
vRD = 29
vTHR = [238, 239]
vMT = 240
vSIG2, vONE2, vPA2, vPV2 = 24, 25, 26, 27
vCST = 28
OREG = [0, 64]
FRING = 128
NFR = 16

QSCALE = math.log2(math.e) / math.sqrt(128.0)
LOG2E = math.log2(math.e)
```

```python
import sys, json
from gen_common import *
from regs import *
from pipesched import *
import gen_att2 as ATT

PSTR = 272
PART = 64 * PSTR


def cexp(n, outre, outim, t0, t1):
    return [
        f"v_mul_f32 {vr(t0)}, {n}, {vr(vZA)}",
        f"v_mul_f32 {vr(t1)}, {n}, {vr(vZB)}",
        f"v_exp_f32 {vr(t0)}, {vr(t0)}",
        f"v_fract_f32 {vr(t1)}, {vr(t1)}",
        f"v_cos_f32 {vr(outre)}, {vr(t1)}",
        f"v_sin_f32 {vr(outim)}, {vr(t1)}",
        f"v_mul_f32 {vr(outre)}, {vr(outre)}, {vr(t0)}",
        f"v_mul_f32 {vr(outim)}, {vr(outim)}, {vr(t0)}",
    ]


def cmadd(dre, dim, lre, lim, hre, him, ure, uim):
    return [
        f"v_fma_f32 {vr(dre)}, {vr(lre)}, {vr(hre)}, {vr(ure)}",
        f"v_fma_f32 {vr(dim)}, {vr(lre)}, {vr(him)}, {vr(uim)}",
        f"v_fma_f32 {vr(dre)}, -{vr(lim)}, {vr(him)}, {vr(dre)}",
        f"v_fma_f32 {vr(dim)}, {vr(lim)}, {vr(hre)}, {vr(dim)}",
    ]


class Sync:
    def __init__(self, cfg):
        self.spins = []
        self.cfg = cfg

    def load(self, srd, soff, pa, pv):
        return f"buffer_load_dword {vr(pv)}, {vr(pa)}, {sr(srd, 4)}, {soff} offen sc1"

    def check(self, name, srd, soff, pa, pv):
        self.spins.append((name, srd, soff, pa, pv))
        return f"""
        POLL_{name}:
        v_cmp_ne_u32 vcc, 1, {vr(pv)}
        s_cbranch_vccnz SPIN_{name}
        POLLOK_{name}:
        """

    def emit(self, p):
        for name, srd, soff, pa, pv in self.spins:
            p(f"""
            SPIN_{name}:
            s_add_u32 {sr(sSPIN)}, {sr(sSPIN)}, 1
            s_cmp_gt_u32 {sr(sSPIN)}, 0x100000
            s_cbranch_scc1 POLLOK_{name}
            s_sleep {self.cfg.get('sleep', 2)}
            {self.load(srd, soff, pa, pv)}
            s_waitcnt vmcnt(0)
            s_branch POLL_{name}
            """)


def frag_read(dst, vb, blk, off):
    def fn(addrs):
        r, imm = ldsaddr(vb, addrs[blk] + off)
        return f"ds_read_b128 {dst}, {r} offset:{imm}"
    return fn


def tr_read(dst, vb, blk, off):
    def fn(addrs):
        r, imm = ldsaddr(vb, addrs[blk] + off)
        return f"ds_read_b64_tr_b16 {dst}, {r} offset:{imm}"
    return fn


def adv(r, step, mask=1023):
    return [f"s_add_u32 {sr(r)}, {sr(r)}, {step}", f"s_and_b32 {sr(r)}, {sr(r)}, {mask}"]


def dma_group(kind, par, addr, tag):
    out = []

    def one(pos, setup, vpat, srd, imm, flags="", linear=False):
        s = list(setup)
        if not linear or pos == 0:
            s.append(f"s_add_u32 m0, {sr(sWLDS)}, {addr + pos * 1024 - imm}")
        off = f" offset:{imm}" if imm else ""
        out.append((s, f"buffer_load_dwordx4 {vr(vpat)}, {sr(srd, 4)}, {sr(sD0)} offen{off}{flags} lds @@{tag}"))

    if kind == "C1":
        for pos in range(4):
            su = []
            if pos == 0:
                su = (adv(sRK, 128) if par else []) + [f"s_add_u32 {sr(sD0)}, {sr(sCKV)}, {sr(sRK)}"]
            if pos == 2:
                su = [f"s_add_u32 {sr(sD0)}, {sr(sD0)}, 8192"]
            one(pos, su, vK, S_CKV, (pos & 1) * 64)
    elif kind == "W":
        srd, rot, same = par
        for pos in range(4):
            su = []
            if pos == 0 and not same:
                su = [f"s_lshl_b32 {sr(sD0)}, {sr(rot)}, 12", f"s_add_u32 {sr(sD0)}, {sr(sD0)}, {sr(sWOFF)}"]
            one(pos, su, vW, srd, pos * 64)
    elif kind == "C2":
        u, xy = par
        for pos in range(4):
            su = []
            if pos % 2 == 0:
                su = [f"s_add_u32 {sr(sD0)}, {sr(sCKV2b if pos else sCKV2a)}, {(u - 4) * 32768 + xy * 8192}"]
            one(pos, su, vK, S_CKV, (pos & 1) * 64)
    elif kind == "SX":
        for pos in range(4):
            su = []
            if pos == 0:
                su = (adv(sRS, 256) if (par and par % 2 == 0) else []) + [f"s_add_u32 {sr(sD0)}, {sr(sXA)}, {sr(sRS)}"]
                if par & 1:
                    su.append(f"s_add_u32 {sr(sD0)}, {sr(sD0)}, 128")
            if pos == 2:
                su = [f"s_add_u32 {sr(sD0)}, {sr(sD0)}, 4096"]
            one(pos, su, vS, S_XA, (pos & 1) * 64)
    elif kind == "SB":
        for pos in range(4):
            su = [f"s_add_u32 {sr(sD0)}, {sr(sBOFF)}, {sr(sRS)}"] if pos == 0 else []
            one(pos, su, vN, S_BSEL, pos * 64)
    elif kind == "X":
        g, stg = par
        for pos in range(4):
            su = []
            if pos == 0:
                su = (adv(sRQ, 128) if (stg and g == 0) else []) + \
                    [f"s_add_u32 {sr(sD0)}, {sr(sXQB if g else sXQA)}, {sr(sRQ)}"]
            if pos == 2:
                su = [f"s_add_u32 {sr(sD0)}, {sr(sD0)}, 16384"]
            one(pos, su, vN, S_XB, (pos & 1) * 64)
    elif kind == "H":
        for pos in range(4):
            su = []
            if pos == 0:
                su = (adv(sR2, 128) if par else []) + \
                    [f"s_lshl_b32 {sr(sD0)}, {sr(sR2)}, 7", f"s_add_u32 {sr(sD0)}, {sr(sD0)}, {sr(sHO)}"]
            one(pos, su, vL16, S_WS, pos * 1024, " sc1", linear=True)
    elif kind == "C":
        for pos in range(4):
            su = []
            if pos == 0:
                su = [f"s_add_u32 {sr(sD0)}, {sr(sCO)}, {sr(sR2)}"]
            if pos == 2:
                su = [f"s_add_u32 {sr(sD0)}, {sr(sD0)}, 16384"]
            one(pos, su, vN, S_CSEL, (pos & 1) * 64)
    elif kind == "WO":
        for pos in range(4):
            su = []
            if pos == 0:
                su = (adv(sRO, 16384, 0x3ffff) if par else []) + \
                    [f"s_lshl_b32 {sr(sD0)}, {sr(sRO)}, 2", f"s_add_u32 {sr(sD0)}, {sr(sD0)}, {sr(sWOO)}"]
            one(pos, su, vN, S_WO, pos * 64)
    elif kind == "CX":
        for pos in range(4):
            su = [f"s_add_u32 {sr(sD0)}, {sr(sCTXO)}, {sr(sRO)}"] if pos == 0 else []
            one(pos, su, vL16, S_WS, pos * 1024, " sc1", linear=True)
    elif kind == "SCR":
        pass
    else:
        raise ValueError(kind)
    return out


def gen(cfg):
    timing = cfg.get("timing", False)
    p = Prog()
    sync = Sync(cfg)
    nstamp = [0]

    def st(va=vS):
        stamp(p, timing, nstamp[0], sTS, vX0, va, S_WS, sStamp)
        nstamp[0] += 1

    def fine(base):
        if not timing:
            return None
        return lambda n: f"s_memtime {sr(sTS, 2)}\n s_waitcnt lgkmcnt(0)\n v_writelane_b32 v95, {sr(sTS)}, {base + n}\n"

    def touch_code(srd, label, dst):
        p(f"""
        s_getpc_b64 {sr(srd, 2)}
        {label}:
        s_mov_b32 {sr(srd + 2)}, KA_codeend-{label}
        s_mov_b32 {sr(srd + 3)}, {SRD3}
        s_lshr_b32 {sr(sT0)}, s2, 3
        s_lshl_b32 {sr(sT0)}, {sr(sT0)}, 2
        s_add_u32 {sr(sT0)}, {sr(sT0)}, {sr(sW)}
        s_lshl_b32 {sr(sT0)}, {sr(sT0)}, 7
        v_lshlrev_b32 {vr(vX0)}, 14, v0
        buffer_load_dword {vr(dst)}, {vr(vX0)}, {sr(srd, 4)}, {sr(sT0)} offen
        """)

    p(f"""
    s_cmp_ge_u32 s2, 256
    s_cbranch_scc1 KA_end
    {"s_memrealtime " + sr(sRET, 2) if timing else ""}
    s_load_dwordx2 {sr(S_CKV, 2)}, s[0:1], {KA['CKV']}
    s_load_dwordx2 {sr(S_WUK, 2)}, s[0:1], {KA['WUK']}
    s_load_dwordx2 {sr(S_WUV, 2)}, s[0:1], {KA['WUV']}
    s_load_dwordx2 {sr(S_XA, 2)}, s[0:1], {KA['XA']}
    s_load_dwordx4 {sr(S_BSEL, 4)}, s[0:1], {KA['BRE']}
    s_load_dwordx2 {sr(S_XB, 2)}, s[0:1], {KA['XB']}
    s_load_dwordx2 {sr(S_WQ, 2)}, s[0:1], {KA['WQ']}
    s_load_dwordx2 {sr(S_WO, 2)}, s[0:1], {KA['WO']}
    s_load_dwordx4 {sr(S_CSEL, 4)}, s[0:1], {KA['CRE']}
    s_load_dwordx2 {sr(S_WS, 2)}, s[0:1], {KA['WS']}
    s_load_dwordx2 {sr(sDBGP, 2)}, s[0:1], {KA['DBG']}
    s_load_dwordx4 {sr(S_LRE, 4)}, s[0:1], {KA['LRE']}
    s_load_dwordx2 {sr(S_LDT, 2)}, s[0:1], {KA['LDT']}
    v_lshlrev_b32 {vr(vSIG)}, 16, v0
    v_lshrrev_b32 {vr(vX0)}, 6, v0
    v_and_b32 v0, 63, v0
    v_readfirstlane_b32 {sr(sW)}, {vr(vX0)}
    """)
    if cfg.get("pretouch", True):
        touch_code(S_E, "KA_pc", TMP)
    hs = 1 if cfg.get("hswap", True) else 0
    rk = cfg.get("rotk", (4, 4, 0))
    rq = cfg.get("rotq", (1, 2, 1))
    p(f"""
    s_and_b32 {sr(sT0)}, s2, 7
    s_lshr_b32 {sr(sT1)}, s2, 3
    s_and_b32 {sr(sT2)}, {sr(sT1)}, 3
    s_lshl_b32 {sr(sH)}, {sr(sT0)}, 2
    s_add_u32 {sr(sH)}, {sr(sH)}, {sr(sT2)}
    s_lshr_b32 {sr(sI)}, {sr(sT1)}, 2
    s_lshl_b32 {sr(sWLDS)}, {sr(sW)}, 12
    v_lshrrev_b32 {vr(vX0)}, 5, v0
    v_lshlrev_b32 {vr(vX0)}, 1, {vr(vX0)}
    v_and_b32 {vr(vX1)}, 3, v0
    v_xor_b32 {vr(vX0)}, {vr(vX0)}, {vr(vX1)}
    v_lshlrev_b32 {vr(vX0)}, 4, {vr(vX0)}
    v_lshrrev_b32 {vr(vX1)}, 2, v0
    v_lshl_add_u32 {vr(vW)}, {vr(vX1)}, 13, {vr(vX0)}
    v_lshl_add_u32 {vr(vN)}, {vr(vX1)}, 10, {vr(vX0)}
    v_lshrrev_b32 {vr(vK)}, 5, v0
    v_lshl_add_u32 {vr(vK)}, {vr(vK)}, 13, {vr(vN)}
    s_and_b32 {sr(sT0)}, {sr(sH)}, {hs}
    s_lshl_b32 {sr(sT0)}, {sr(sT0)}, 17
    s_lshl_b32 {sr(sCKV)}, {sr(sI)}, 18
    s_add_u32 {sr(sCKV)}, {sr(sCKV)}, {sr(sT0)}
    s_xor_b32 {sr(sCKV2b)}, {sr(sCKV)}, 0x20000
    s_lshl_b32 {sr(sT0)}, {sr(sW)}, 15
    s_add_u32 {sr(sCKV)}, {sr(sCKV)}, {sr(sT0)}
    s_lshl_b32 {sr(sWOFF)}, {sr(sW)}, 17
    s_lshl_b32 {sr(sT0)}, {sr(sH)}, 8
    s_add_u32 {sr(sWOFF)}, {sr(sWOFF)}, {sr(sT0)}
    s_mul_i32 {sr(sRK)}, {sr(sI)}, {rk[0]}
    s_bfe_u32 {sr(sT0)}, {sr(sH)}, 0x10001
    s_mul_i32 {sr(sT0)}, {sr(sT0)}, {rk[1]}
    s_add_u32 {sr(sRK)}, {sr(sRK)}, {sr(sT0)}
    s_lshr_b32 {sr(sT0)}, {sr(sH)}, 2
    s_mul_i32 {sr(sT0)}, {sr(sT0)}, {rk[2]}
    s_add_u32 {sr(sRK)}, {sr(sRK)}, {sr(sT0)}
    s_and_b32 {sr(sRK)}, {sr(sRK)}, 7
    s_lshl_b32 {sr(sRK)}, {sr(sRK)}, 7
    s_lshl_b32 {sr(sT0)}, {sr(sW)}, 8
    s_add_u32 {sr(sT0)}, {sr(sT0)}, {sr(sRK)}
    s_and_b32 {sr(sT1)}, {sr(sT0)}, 1023
    s_add_u32 {sr(sCKV2a)}, {sr(sCKV2b)}, {sr(sT1)}
    s_add_u32 {sr(sT0)}, {sr(sT0)}, 128
    s_and_b32 {sr(sT0)}, {sr(sT0)}, 1023
    s_add_u32 {sr(sCKV2b)}, {sr(sCKV2b)}, {sr(sT0)}
    """)
    for s, n in ((S_CKV, 2048 * 1024), (S_WUK, 512 * 8192), (S_WUV, 512 * 8192)):
        p(f"s_mov_b32 {sr(s + 2)}, {n}")
        p(f"s_mov_b32 {sr(s + 3)}, {SRD3}")
    p("s_waitcnt lgkmcnt(0)")

    late = f"""
    s_and_b32 {sr(sT0)}, s2, 7
    s_lshr_b32 {sr(sT1)}, s2, 3
    s_lshr_b32 {sr(sC)}, {sr(sT0)}, 1
    s_lshl_b32 {sr(sC)}, {sr(sC)}, 2
    s_lshr_b32 {sr(sT2)}, {sr(sT1)}, 3
    s_add_u32 {sr(sC)}, {sr(sC)}, {sr(sT2)}
    s_and_b32 {sr(sPG)}, {sr(sT0)}, 1
    s_lshl_b32 {sr(sPG)}, {sr(sPG)}, 3
    s_and_b32 {sr(sT2)}, {sr(sT1)}, 7
    s_add_u32 {sr(sPG)}, {sr(sPG)}, {sr(sT2)}
    v_and_b32 {vr(vX0)}, 15, v0
    s_and_b32 {sr(sT2)}, {sr(sW)}, 1
    s_lshl_b32 {sr(sT2)}, {sr(sT2)}, 4
    s_lshl_b32 {sr(sT3)}, {sr(sPG)}, 5
    s_add_u32 {sr(sT2)}, {sr(sT2)}, {sr(sT3)}
    v_add_lshl_u32 {vr(vX1)}, {vr(vX0)}, {sr(sT2)}, 1
    global_load_ushort {vr(vLA)}, {vr(vX1)}, {sr(S_LRE, 2)}
    global_load_ushort {vr(vLB)}, {vr(vX1)}, {sr(S_LIM, 2)}
    global_load_ushort {vr(vZA)}, {vr(vX1)}, {sr(S_LDT, 2)}
    s_add_u32 {sr(S_FLG)}, {sr(S_WS)}, {WS_FLG}
    s_addc_u32 {sr(S_FLG + 1)}, {sr(S_WS + 1)}, 0
    s_mov_b32 {sr(S_FLG + 2)}, 32768
    s_mov_b32 {sr(S_FLG + 3)}, {SRD3}
    v_lshlrev_b32 {vr(vL16)}, 4, v0
    v_mov_b32 {vr(DT)}, 0
    v_mov_b32 {vr(DT + 1)}, 0
    v_mov_b32 {vr(DT + 2)}, 0
    v_mov_b32 {vr(DT + 3)}, 0
    s_lshl_b32 {sr(sT0)}, s2, 2
    s_add_u32 {sr(sT0)}, {sr(sT0)}, {sr(sW)}
    s_lshl_b32 {sr(sT0)}, {sr(sT0)}, 10
    buffer_store_dwordx4 {vr(DT, 4)}, {vr(vL16)}, {sr(S_FLG, 4)}, {sr(sT0)} offen sc1 @@zero
    s_mov_b32 {sr(S_DBG)}, {sr(sDBGP)}
    s_mov_b32 {sr(S_DBG + 1)}, {sr(sDBGP + 1)}
    s_mov_b32 {sr(S_DBG + 2)}, 32
    s_mov_b32 {sr(S_DBG + 3)}, {SRD3}
    v_mov_b32 {vr(vONE)}, 1
    s_mov_b32 {sr(sSPIN)}, 0
    s_cmp_ge_u32 {sr(sW)}, 2
    s_cselect_b32 {sr(S_BSEL)}, {sr(S_BSEL + 2)}, {sr(S_BSEL)}
    s_cselect_b32 {sr(S_BSEL + 1)}, {sr(S_BSEL + 3)}, {sr(S_BSEL + 1)}
    s_bitcmp1_b32 {sr(sW)}, 0
    s_cselect_b32 {sr(S_CSEL)}, {sr(S_CSEL + 2)}, {sr(S_CSEL)}
    s_cselect_b32 {sr(S_CSEL + 1)}, {sr(S_CSEL + 3)}, {sr(S_CSEL + 1)}
    """
    for s, n in ((S_XA, 2048 * 1024), (S_BSEL, 512 * 1024), (S_XB, 2048 * 1024), (S_WQ, 512 * 8192),
                 (S_WO, 4096 * 1024), (S_CSEL, 512 * 1024), (S_WS, WS_END + (1 << 20 if timing else 0)),
                 (S_E, 65536)):
        late += f"s_mov_b32 {sr(s + 2)}, {n}\n s_mov_b32 {sr(s + 3)}, {SRD3}\n"
    late += f"""
    s_add_u32 {sr(S_E)}, {sr(S_WS)}, {WS_E}
    s_addc_u32 {sr(S_E + 1)}, {sr(S_WS + 1)}, 0
    s_mul_i32 {sr(sKVST)}, {sr(sH)}, {HEADSTRIDE}
    s_add_u32 {sr(S_KVR)}, {sr(S_WS)}, {sr(sKVST)}
    s_addc_u32 {sr(S_KVR + 1)}, {sr(S_WS + 1)}, 0
    s_lshl_b32 {sr(sT0)}, {sr(sI)}, 16
    s_sub_u32 {sr(S_KVR + 2)}, {33 * 32768}, {sr(sT0)}
    s_mov_b32 {sr(S_KVR + 3)}, {SRD3}
    s_lshl_b32 {sr(sT0)}, {sr(sI)}, 17
    s_add_u32 {sr(sKVST)}, {sr(sKVST)}, {sr(sT0)}
    s_and_b32 {sr(sT0)}, {sr(sH)}, {hs}
    s_lshl_b32 {sr(sT0)}, {sr(sT0)}, 16
    s_sub_u32 {sr(sKVST2)}, {sr(sKVST)}, {sr(sT0)}
    s_add_u32 {sr(sKVST)}, {sr(sKVST)}, {sr(sT0)}
    s_add_u32 {sr(sRS)}, {sr(sC)}, {sr(sPG)}
    s_mul_i32 {sr(sRS)}, {sr(sRS)}, {cfg.get("rots", 1)}
    s_and_b32 {sr(sRS)}, {sr(sRS)}, 3
    s_lshl_b32 {sr(sRS)}, {sr(sRS)}, 8
    s_mul_i32 {sr(sRQ)}, {sr(sI)}, {rq[0]}
    s_mul_i32 {sr(sT0)}, {sr(sH)}, {rq[1]}
    s_add_u32 {sr(sRQ)}, {sr(sRQ)}, {sr(sT0)}
    s_lshr_b32 {sr(sT0)}, {sr(sH)}, 2
    s_mul_i32 {sr(sT0)}, {sr(sT0)}, {rq[2]}
    s_add_u32 {sr(sRQ)}, {sr(sRQ)}, {sr(sT0)}
    s_and_b32 {sr(sRQ)}, {sr(sRQ)}, 7
    s_lshl_b32 {sr(sRQ)}, {sr(sRQ)}, 7
    s_lshl_b32 {sr(sXA)}, {sr(sC)}, 17
    s_lshr_b32 {sr(sT0)}, {sr(sW)}, 1
    s_lshl_b32 {sr(sT0)}, {sr(sT0)}, 16
    s_add_u32 {sr(sXA)}, {sr(sXA)}, {sr(sT0)}
    s_and_b32 {sr(sT0)}, {sr(sW)}, 1
    s_lshl_b32 {sr(sT1)}, {sr(sT0)}, 13
    s_add_u32 {sr(sXA)}, {sr(sXA)}, {sr(sT1)}
    s_lshl_b32 {sr(sBOFF)}, {sr(sPG)}, 15
    s_lshl_b32 {sr(sT1)}, {sr(sT0)}, 14
    s_add_u32 {sr(sBOFF)}, {sr(sBOFF)}, {sr(sT1)}
    s_lshl_b32 {sr(sT0)}, {sr(sW)}, 15
    s_lshl_b32 {sr(sXQA)}, {sr(sI)}, 17
    s_sub_u32 {sr(sXQB)}, {15 << 17}, {sr(sXQA)}
    s_add_u32 {sr(sXQA)}, {sr(sXQA)}, {sr(sT0)}
    s_add_u32 {sr(sXQB)}, {sr(sXQB)}, {sr(sT0)}
    s_mov_b32 {sr(sQS)}, {f32hex(QSCALE)}
    """
    if timing:
        late += f"s_lshl_b32 {sr(sStamp)}, s2, 10\n s_add_u32 {sr(sStamp)}, {sr(sStamp)}, {WS_STAMP}\n"
    late += f"""
    v_lshrrev_b32 {vr(vX1)}, 4, v0
    v_mul_u32_u24 {vr(vS)}, {12 * 1024}, {vr(vX1)}
    v_add_u32 {vr(vS)}, {vr(vS)}, {vr(vN)}
    s_lshr_b32 {sr(sT0)}, {sr(sW)}, 1
    s_lshl_b32 {sr(sT0)}, {sr(sT0)}, 2
    v_add_u32 {vr(vSEG)}, {sr(sT0)}, {vr(vX1)}
    v_bfe_u32 {vr(vF)}, v0, 3, 1
    v_lshlrev_b32 {vr(vF)}, 1, {vr(vF)}
    v_xor_b32 {vr(vF)}, {vr(vF)}, {vr(vX1)}
    v_lshl_add_u32 {vr(vF)}, {vr(vX0)}, 2, {vr(vF)}
    v_lshlrev_b32 {vr(vF)}, 4, {vr(vF)}
    v_add_u32 {vr(vF + 1)}, 0x10000, {vr(vF)}
    v_add_u32 {vr(vF + 2)}, 0x20000, {vr(vF)}
    v_lshrrev_b32 {vr(vT)}, 5, v0
    v_lshlrev_b32 {vr(vT)}, 12, {vr(vT)}
    v_bfe_u32 {vr(vT + 1)}, v0, 4, 1
    v_mul_u32_u24 {vr(vT + 1)}, {512 + 32}, {vr(vT + 1)}
    v_add_u32 {vr(vT)}, {vr(vT)}, {vr(vT + 1)}
    v_bfe_u32 {vr(vT + 1)}, v0, 2, 2
    v_lshl_add_u32 {vr(vT)}, {vr(vT + 1)}, 6, {vr(vT)}
    v_and_b32 {vr(vT + 1)}, 3, v0
    v_lshl_add_u32 {vr(vT)}, {vr(vT + 1)}, 3, {vr(vT)}
    s_lshl_b32 {sr(sT0)}, {sr(sW)}, 10
    v_add_u32 {vr(vT)}, {sr(sT0)}, {vr(vT)}
    v_add_u32 {vr(vT + 1)}, 0x10000, {vr(vT)}
    v_add_u32 {vr(vT + 2)}, 0x20000, {vr(vT)}
    v_xor_b32 {vr(vT + 3)}, 32, {vr(vT)}
    v_xor_b32 {vr(vT + 4)}, 32, {vr(vT + 1)}
    v_xor_b32 {vr(vT + 5)}, 32, {vr(vT + 2)}
    s_lshr_b32 {sr(sT0)}, {sr(sW)}, 1
    s_lshl_b32 {sr(sT0)}, {sr(sT0)}, 13
    v_add_u32 {vr(vFA)}, {sr(sT0)}, {vr(vF)}
    v_add_u32 {vr(vFA + 1)}, {sr(sT0)}, {vr(vF + 1)}
    v_add_u32 {vr(vFA + 2)}, {sr(sT0)}, {vr(vF + 2)}
    s_and_b32 {sr(sT0)}, {sr(sW)}, 1
    s_lshl_b32 {sr(sT0)}, {sr(sT0)}, 12
    v_add_u32 {vr(vFB)}, {sr(sT0)}, {vr(vF)}
    v_add_u32 {vr(vFB + 1)}, {sr(sT0)}, {vr(vF + 1)}
    v_add_u32 {vr(vFB + 2)}, {sr(sT0)}, {vr(vF + 2)}
    v_bfe_u32 {vr(vKST)}, v0, 4, 1
    v_lshlrev_b32 {vr(vVST)}, 9, {vr(vKST)}
    v_lshlrev_b32 {vr(vKST)}, 10, {vr(vKST)}
    v_lshrrev_b32 {vr(vX1)}, 5, v0
    v_lshl_add_u32 {vr(vKST)}, {vr(vX1)}, 9, {vr(vKST)}
    v_lshl_add_u32 {vr(vVST)}, {vr(vX1)}, 12, {vr(vVST)}
    v_lshl_add_u32 {vr(vKST)}, {vr(vX0)}, 4, {vr(vKST)}
    v_bfe_u32 {vr(vX1)}, v0, 3, 1
    v_lshl_add_u32 {vr(vKST)}, {vr(vX1)}, 7, {vr(vKST)}
    v_lshl_add_u32 {vr(vVST)}, {vr(vX1)}, 6, {vr(vVST)}
    v_bfe_u32 {vr(vX1)}, v0, 2, 1
    v_lshl_add_u32 {vr(vVST)}, {vr(vX1)}, 7, {vr(vVST)}
    v_and_b32 {vr(vX1)}, 3, v0
    v_lshl_add_u32 {vr(vVST)}, {vr(vX1)}, 4, {vr(vVST)}
    s_lshl_b32 {sr(sT0)}, {sr(sW)}, 11
    v_add_u32 {vr(vKST)}, {sr(sT0)}, {vr(vKST)}
    s_lshl_b32 {sr(sT0)}, {sr(sW)}, 10
    s_add_u32 {sr(sT0)}, {sr(sT0)}, {5 * 8192}
    v_add_u32 {vr(vVST)}, {sr(sT0)}, {vr(vVST)}
    """

    stages = []
    ringpos = [0]

    def ring_alloc(size):
        r = RING + 4 * (ringpos[0] % size)
        ringpos[0] += 1
        return vr(r, 4)

    def kv_mfmas(S, ks, R, X, Y):
        w = [ar(16 * ks + 4 * j, 4) for j in range(4)]
        for a, b, d in ((w[0], X, 0), (w[0], Y, 8), (w[1], X, 4), (w[1], Y, 12),
                        (X, w[2], 16), (Y, w[2], 20), (X, w[3], 24), (Y, w[3], 28)):
            c = "0" if ks == 0 else vr(R + d, 4)
            S.mf.append(f"v_mfma_f32_16x16x32_bf16 {vr(R + d, 4)}, {a}, {b}, {c}")

    VSC = cfg.get("vscale", 0)

    def drain(unit, R, tmp=None):
        cv, stv = [], []
        for n in range(4):
            t = R + 8 * n if tmp is None else tmp + 4 * n
            for k in range(4):
                a, b = R + 8 * n + 2 * k, R + 8 * n + 2 * k + 1
                if n < 2:
                    cv += [f"v_mul_f32 {vr(a)}, {sr(sQS)}, {vr(a)}", f"v_mul_f32 {vr(b)}, {sr(sQS)}, {vr(b)}"]
                elif VSC:
                    cv += [f"v_ldexp_f32 {vr(a)}, {vr(a)}, {VSC}", f"v_ldexp_f32 {vr(b)}, {vr(b)}, {VSC}"]
                cv.append(f"v_cvt_pk_bf16_f32 {vr(t + k)}, {vr(a)}, {vr(b)}")
            va = vKST if n < 2 else vVST
            imm = (n & 1) * (128 if n < 2 else 256)
            s = f"buffer_store_dwordx4 {vr(t, 4)}, {vr(va)}, {sr(S_WS, 4)}, {sr(sST)} offen offset:{imm} sc1 @@kvst"
            if n == 0:
                s = f"s_add_u32 {sr(sST)}, {sr(sKVST if unit < 4 else sKVST2)}, {unit * 16384}\n" + s
            stv.append(s)
        return cv, stv

    for n in range(8):
        S = Stage(f"kv1_{n}", 18)
        S.blocks = [("C1", n), ("W", (S_WUK, sRK, False)), ("W", (S_WUV, sRK, True))]
        for kk in range(2):
            ks = 2 * n + kk
            for j in range(4):
                for x in range(2):
                    S.reads.append((tr_read(ar(16 * ks + 4 * j + 2 * x, 2), vT + 3 * (j & 1), 1 + (j >> 1),
                                            kk * 8192 + x * 256), len(S.mf) + 2 * j))
            for u in range(4):
                X, Y = ring_alloc(8), ring_alloc(8)
                S.reads.append((frag_read(X, vF, 0, (4 * u + kk) * 1024), len(S.mf)))
                S.reads.append((frag_read(Y, vF, 0, (4 * u + 2 + kk) * 1024), len(S.mf) + 1))
                kv_mfmas(S, ks, RSET[u], X, Y)
        stages.append(S)

    def kv2_stage(u, R):
        S = Stage(f"kv2_{u}", 18)
        S.blocks = [("C2", (u, 0)), ("C2", (u, 1))]
        for ks in range(16):
            X, Y = ring_alloc(8), ring_alloc(8)
            S.reads.append((frag_read(X, vF, 0, ks * 1024), len(S.mf)))
            S.reads.append((frag_read(Y, vF, 1, ks * 1024), len(S.mf) + 1))
            kv_mfmas(S, ks, R, X, Y)
        return S

    def ssm_stage(n, R):
        S = Stage(f"ssm_{n}", 8)
        S.rate = 2
        S.blocks = [("SX", 2 * n), ("SB", n), ("SX", 2 * n + 1)]
        for k4 in range(4):
            kh, kk = k4 >> 1, k4 & 1
            B = []
            for reim in range(2):
                r = ring_alloc(12)
                B.append(r)
                S.reads.append((frag_read(r, vFB, 1, reim * 8192 + k4 * 1024), len(S.mf) + reim))
            for rb in range(4):
                r = ring_alloc(12)
                S.reads.append((frag_read(r, vFA, 2 * kh, (2 * rb + kk) * 1024), len(S.mf)))
                for reim in range(2):
                    d = R + 16 * reim + 4 * rb
                    c = "0" if (n == 0 and k4 == 0) else vr(d, 4)
                    S.mf.append(f"v_mfma_f32_16x16x32_bf16 {vr(d, 4)}, {r}, {B[reim]}, {c}")
        return S

    QACC = [RSET[0], RSET[2], RSET[4], RSET[3]]
    RB = RSET[1]

    def qacc(db, qb):
        return QACC[db >> 1] + 16 * (db & 1) + 4 * qb

    qring = [0, 0]

    def q_stage(n):
        S = Stage(f"q_{n}", 14)
        S.blocks = [("X", (0, n)), ("W", (S_WQ, sRQ, False)), ("X", (1, n))]
        for kk in range(2):
            xs = []
            base = len(S.mf)
            for qb in range(4):
                r = ar(128 + 4 * (qring[0] % 12), 4)
                qring[0] += 1
                xs.append(r)
                S.reads.append((frag_read(r, vFA, 2 * (qb >> 1), (2 * (qb & 1) + kk) * 1024), base + qb))
            for db in range(8):
                rr = 192 + 4 * (qring[1] % 8)
                qring[1] += 1
                for x in range(2):
                    S.reads.append((tr_read(ar(rr + 2 * x, 2), vT + 3 * (db & 1), 1,
                                            kk * 8192 + (db >> 1) * 1024 + x * 256), len(S.mf)))
                for qb in range(4):
                    d = qacc(db, qb)
                    c = "0" if (n == 0 and kk == 0) else vr(d, 4)
                    S.mf.append(f"v_mfma_f32_16x16x32_bf16 {vr(d, 4)}, {ar(rr, 4)}, {xs[qb]}, {c}")
        return S

    U4 = kv2_stage(4, RSET[4])
    U5 = kv2_stage(5, RSET[0])
    ringpos[0] = 0
    SS = [ssm_stage(n, RB) for n in range(4)]
    ringpos[0] = 0
    U6 = kv2_stage(6, RSET[2])
    U7 = kv2_stage(7, RSET[3])
    U6.lb = 7
    SS[0].lb = 14
    QS = [q_stage(n) for n in range(8)]
    stages += [U4, U5] + SS + [U6, U7] + QS
    for k, v in cfg.get("frac", {}).items():
        stages[int(k)].frac = v
    for k, v in cfg.get("mpace", {}).items():
        stages[int(k)].maxpace = v

    UR = [RSET[0], RSET[1], RSET[2], RSET[3], RSET[4], RSET[0], RSET[2], RSET[3]]
    byname = {"U4": U4, "U5": U5, "U6": U6, "U7": U7}
    dplan = cfg.get("drains", [["U4", 4, 36, 36, 44], ["U4", 64, 96, 96, 104], ["U5", 4, 36, 36, 44],
                               ["U5", 64, 96, 96, 104], ["U6", 2, 30, 30, 38], ["U6", 64, 96, 96, 104],
                               ["U7", 64, 96, 96, 104]])
    for u, (nm, a, b, c, d) in enumerate(dplan):
        cv, stv = drain(u, UR[u])
        byname[nm].fill.append((cv, a, b))
        byname[nm].fill.append((stv, c, d))
    cv7, st7 = drain(7, RSET[3], RING)
    QS[0].fill.append((cv7, 2, 22))
    QS[0].fill.append((st7, 24, 32))

    def signal(line_sgpr_setup, sig=vSIG, one=vONE):
        return line_sgpr_setup + f"\n buffer_store_dword {vr(one)}, {vr(sig)}, {sr(S_FLG, 4)}, {sr(sFO)} offen sc1"

    stages[0].at_barrier.append("@need #zero")
    stages[0].after_barrier.append(f"v_lshl_add_u32 {vr(vPA)}, s2, 2, {vr(vSIG)}\n"
                                   f"buffer_store_dword {vr(vONE)}, {vr(vPA)}, {sr(S_DBG, 4)}, 0 offen sc1")
    U5.fill.append(([f"v_lshlrev_b32 {vr(vLA)}, 16, {vr(vLA)}",
                     f"v_lshlrev_b32 {vr(vLB)}, 16, {vr(vLB)}",
                     f"v_lshlrev_b32 {vr(vZA)}, 16, {vr(vZA)}",
                     f"v_mul_f32 {vr(vZA)}, {f32hex(LOG2E)}, {vr(vZA)}",
                     f"v_exp_f32 {vr(vZA)}, {vr(vZA)}",
                     f"v_and_b32 {vr(vPA)}, 7, v0",
                     f"v_cvt_pk_bf16_f32 {vr(vZA)}, {vr(vZA)}, {vr(vZA)}",
                     f"v_lshlrev_b32 {vr(vZA)}, 16, {vr(vZA)}",
                     f"v_mul_f32 {vr(vZB)}, {vr(vZA)}, {vr(vLB)}",
                     f"v_mul_f32 {vr(vZA)}, {vr(vZA)}, {vr(vLA)}",
                     f"v_mul_f32 {vr(vZB)}, {f32hex(1.0 / (2 * math.pi))}, {vr(vZB)}",
                     f"v_mul_f32 {vr(vZA)}, {f32hex(LOG2E)}, {vr(vZA)}",
                     f"v_lshlrev_b32 {vr(vPA)}, 2, {vr(vPA)}",
                     sync.load(S_DBG, "0", vPA, vPV)], 44, 64))
    U6.at_barrier.append(sync.check("Z", S_DBG, "0", vPA, vPV))

    U6.blocks.append(("SCR", None))
    U6.blocks.append(("SCR", None))
    E0 = TMP

    def scan1(addrs):
        a = addrs[2]
        lr, li = E0, E0 + 1
        out = cexp("1.0", lr, li, E0 + 2, E0 + 3)
        cur = (RB, RB + 16)
        for t in range(1, 16):
            d = (E0 + 4 + 2 * (t & 1), E0 + 5 + 2 * (t & 1))
            out += cmadd(d[0], d[1], lr, li, cur[0], cur[1], RB + t, RB + 16 + t)
            cur = d
        assert cur == (E0 + 6, E0 + 7)
        out += [f"v_and_b32 {vr(vX0)}, 15, v0",
                f"s_and_b32 {sr(sT0)}, {sr(sW)}, 1\n s_lshl_b32 {sr(sT0)}, {sr(sT0)}, 7",
                f"s_add_u32 {sr(sT0)}, {sr(sT0)}, {a}",
                f"v_lshl_add_u32 {vr(E0 + 8)}, {vr(vX0)}, 3, {sr(sT0)}",
                f"v_lshl_add_u32 {vr(vX1)}, {vr(vSEG)}, 8, {vr(E0 + 8)}",
                f"ds_write_b64 {vr(vX1)}, {vr(E0 + 6, 2)}"]
        return out

    U6.fill.append((scan1, 6, 100))

    ER = RSET[4]
    vEA = vFB
    scan2 = [f"ds_read_b64 {vr(ER + 2 * s, 2)}, {vr(E0 + 8)} offset:{256 * s}" for s in range(8)]
    lr, li = E0, E0 + 1
    scan2 += cexp(f32hex(16.0), lr, li, E0 + 2, E0 + 3)
    scan2 += [f"v_mov_b32 {vr(vPRE)}, 0", f"v_mov_b32 {vr(vPRE + 1)}, 0",
              f"v_and_b32 {vr(vX0)}, 15, v0",
              f"s_and_b32 {sr(sT0)}, {sr(sW)}, 1\n s_lshl_b32 {sr(sT0)}, {sr(sT0)}, 7",
              f"s_lshl_b32 {sr(sT2)}, {sr(sPG)}, 8\n s_add_u32 {sr(sT0)}, {sr(sT0)}, {sr(sT2)}",
              f"v_lshl_add_u32 {vr(vEA)}, {vr(vX0)}, 3, {sr(sT0)}",
              f"v_lshl_add_u32 {vr(vX0)}, {vr(vSEG)}, 16, {vr(vEA)}",
              f"s_lshl_b32 {sr(sT0)}, {sr(sC)}, 12"]
    cur = (ER, ER + 1)
    for s in range(1, 8):
        scan2 += [f"v_cmp_eq_u32 vcc, {s}, {vr(vSEG)}"]
        d = (E0 + 4 + 2 * (s & 1), E0 + 5 + 2 * (s & 1))
        scan2 += cmadd(d[0], d[1], lr, li, cur[0], cur[1], ER + 2 * s, ER + 2 * s + 1)
        scan2 += [f"v_cndmask_b32 {vr(vPRE)}, {vr(vPRE)}, {vr(cur[0])}, vcc",
                  f"v_cndmask_b32 {vr(vPRE + 1)}, {vr(vPRE + 1)}, {vr(cur[1])}, vcc"]
        cur = d
    scan2 += [f"buffer_store_dwordx2 {vr(E0 + 6, 2)}, {vr(vX0)}, {sr(S_E, 4)}, {sr(sT0)} offen sc1 @@est"]
    U7.fill.append((scan2, 0, 58))
    U7.at_barrier.append("@need #est")
    U7.after_barrier.append(signal(f"s_lshl_b32 {sr(sFO)}, {sr(sPG)}, 5\n s_add_u32 {sr(sFO)}, {sr(sFO)}, {sr(sC)}\n"
                                   f"s_lshl_b32 {sr(sFO)}, {sr(sFO)}, 2\n s_add_u32 {sr(sFO)}, {sr(sFO)}, {FL_E * 128}"))
    U7.fill.append(([f"v_add_u32 {vr(vFA + k)}, {sr(sWLDS)}, {vr(vF + k)}" for k in range(3)] +
                    [f"s_lshl_b32 {sr(sT1)}, {sr(sW)}, 10"] +
                    [f"v_subrev_u32 {vr(vT + k)}, {sr(sT1)}, {vr(vT + k)}" for k in range(6)], 58, 70))

    QS[1].at_barrier.append("@need #kvst")
    QS[1].after_barrier.append(signal(f"s_lshl_b32 {sr(sFO)}, {sr(sH)}, 5\n s_add_u32 {sr(sFO)}, {sr(sFO)}, {sr(sI)}\n"
                                      f"s_lshl_b32 {sr(sFO)}, {sr(sFO)}, 2"))

    EV = 48
    LAM, L128, LSEG, COEF, CT = 78, 80, 82, 84, 86
    s2a = cexp("1.0", LAM, LAM + 1, CT, CT + 1) + [
        f"v_add_f32 {vr(CT)}, -1.0, {vr(LAM)}",
        f"v_mul_f32 {vr(CT + 1)}, {vr(vLA)}, {vr(vLA)}",
        f"v_fmac_f32 {vr(CT + 1)}, {vr(vLB)}, {vr(vLB)}",
        f"v_rcp_f32 {vr(CT + 1)}, {vr(CT + 1)}",
        f"v_mul_f32 {vr(COEF)}, {vr(CT)}, {vr(vLA)}",
        f"v_fmac_f32 {vr(COEF)}, {vr(LAM + 1)}, {vr(vLB)}",
        f"v_mul_f32 {vr(COEF + 1)}, {vr(LAM + 1)}, {vr(vLA)}",
        f"v_fma_f32 {vr(COEF + 1)}, -{vr(CT)}, {vr(vLB)}, {vr(COEF + 1)}",
        f"v_add_f32 {vr(CT + 1)}, {vr(CT + 1)}, {vr(CT + 1)}",
        f"v_mul_f32 {vr(COEF)}, {vr(COEF)}, {vr(CT + 1)}",
        f"v_mul_f32 {vr(COEF + 1)}, {vr(COEF + 1)}, {vr(CT + 1)}"]
    s2a += cexp(f32hex(128.0), L128, L128 + 1, CT, CT + 1)
    s2a += [f"v_cvt_f32_u32 {vr(vX0)}, {vr(vSEG)}", f"v_mul_f32 {vr(vX0)}, {f32hex(16.0)}, {vr(vX0)}"]
    s2a += cexp(vr(vX0), LSEG, LSEG + 1, CT, CT + 1)
    epoll = cfg.get("epoll", 2)
    s2a += [f"v_and_b32 {vr(vPA)}, 15, v0", f"v_lshlrev_b32 {vr(vPA)}, 2, {vr(vPA)}"]
    QS[1].fill.append((s2a, 0, 48))
    QS[epoll].fill.append(([f"s_lshl_b32 {sr(sFO)}, {sr(sPG)}, 7\n s_add_u32 {sr(sFO)}, {sr(sFO)}, {FL_E * 128}",
                            sync.load(S_FLG, sr(sFO), vPA, vPV)], 4, 8))
    QS[epoll].at_barrier.append(sync.check("E", S_FLG, sr(sFO), vPA, vPV))
    eload = []
    for k in range(15):
        eload.append(f"s_add_i32 {sr(sT0)}, {sr(sC)}, {k - 15}\n s_min_u32 {sr(sT0)}, {sr(sT0)}, 16")
        eload.append(f"s_lshl_b32 {sr(sT0)}, {sr(sT0)}, 12\n"
                     f"buffer_load_dwordx2 {vr(EV + 2 * k, 2)}, {vr(vEA)}, {sr(S_E, 4)}, {sr(sT0)} offen sc1")
    QS[epoll].fill.append((eload, 51, 64 + 30))
    A = RING
    s2b = []
    cur = (EV, EV + 1)
    for k in range(1, 15):
        d = (A + 2 * (k & 1), A + 1 + 2 * (k & 1))
        s2b += cmadd(d[0], d[1], L128, L128 + 1, cur[0], cur[1], EV + 2 * k, EV + 2 * k + 1)
        cur = d
    s2b += cmadd(A + 2, A + 3, LSEG, LSEG + 1, cur[0], cur[1], vPRE, vPRE + 1)
    assert cur == (A, A + 1)
    cur = (A + 2, A + 3)
    for t in range(16):
        d = (A + 2 * (t & 1), A + 1 + 2 * (t & 1))
        o = (A + 4 + (t & 1), A + 6 + (t & 1))
        s2b += cmadd(d[0], d[1], LAM, LAM + 1, cur[0], cur[1], RB + t, RB + 16 + t)
        cur = d
        s2b += [f"v_mul_f32 {vr(o[0])}, {vr(COEF)}, {vr(d[0])}",
                f"v_mul_f32 {vr(o[1])}, {vr(COEF)}, {vr(d[1])}",
                f"v_fma_f32 {vr(o[0])}, -{vr(COEF + 1)}, {vr(d[1])}, {vr(o[0])}",
                f"v_fma_f32 {vr(o[1])}, -{vr(COEF + 1)}, {vr(d[0])}, -{vr(o[1])}"]
        if t & 1:
            s2b += [f"v_cvt_pk_bf16_f32 {vr(RB + t // 2)}, {vr(A + 4)}, {vr(A + 5)}",
                    f"v_cvt_pk_bf16_f32 {vr(RB + 16 + t // 2)}, {vr(A + 6)}, {vr(A + 7)}"]
    s2b += [f"s_lshl_b32 {sr(sT1)}, {sr(sC)}, 18\n s_lshr_b32 {sr(sT2)}, {sr(sW)}, 1",
            f"s_lshl_b32 {sr(sT2)}, {sr(sT2)}, 17\n s_add_u32 {sr(sT1)}, {sr(sT1)}, {sr(sT2)}",
            f"s_lshl_b32 {sr(sT2)}, {sr(sPG)}, 13\n s_add_u32 {sr(sT1)}, {sr(sT1)}, {sr(sT2)}",
            f"s_and_b32 {sr(sT2)}, {sr(sW)}, 1\n s_lshl_b32 {sr(sT2)}, {sr(sT2)}, 11",
            f"s_add_u32 {sr(sT1)}, {sr(sT1)}, {sr(sT2)}\n s_add_u32 {sr(sT1)}, {sr(sT1)}, {WS_HF}",
            f"v_mov_b32 {vr(vSIG2)}, {vr(vSIG)}", f"v_mov_b32 {vr(vONE2)}, 1"]
    hst = []
    for reim in range(2):
        for half in range(2):
            hst.append(f"buffer_store_dwordx4 {vr(RB + 16 * reim + 4 * half, 4)}, {vr(vL16)}, {sr(S_WS, 4)}, {sr(sT1)} "
                       f"offen offset:{half * 1024} sc1 @@hst")
        if reim == 0:
            hst.append(f"s_add_u32 {sr(sT1)}, {sr(sT1)}, 4096")
    s2lo = 64 * (epoll + 2) - 10
    QS[0].fill.append((s2b, s2lo, 64 * 7 + 36))

    QS[6].fill.append(([f"v_and_b32 {vr(vPA)}, 7, v0", f"v_lshlrev_b32 {vr(vPA)}, 2, {vr(vPA)}",
                        f"s_lshl_b32 {sr(sFO)}, {sr(sH)}, 7", sync.load(S_FLG, sr(sFO), vPA, vPV)], 6, 14))
    QS[6].at_barrier.append(sync.check("KV", S_FLG, sr(sFO), vPA, vPV))

    def qpack(cg):
        out = []
        for g in range(2):
            for hq in range(2):
                qb = 2 * g + hq
                dst = QREG[g] + 4 * (2 * cg + hq)
                src = [qacc(2 * cg, qb) + k for k in range(4)] + [qacc(2 * cg + 1, qb) + k for k in range(4)]
                out += [f"v_cvt_pk_bf16_f32 {vr(dst + k)}, {vr(src[2 * k])}, {vr(src[2 * k + 1])}" for k in range(4)]
        for g in range(2):
            d = QREG[g] + 8 * cg
            out += [f"v_permlane16_swap_b32 {vr(d + k)}, {vr(d + 4 + k)}" for k in range(4)]
        return out

    QS[7].fill.append((qpack(0), 42, 52))
    QS[7].fill.append((qpack(1), 52, 63))

    P1 = Pipe(stages, dma_group, cfg, "blk", cfg.get("npro", 6), fine(0))
    nblocks = len(P1.blocks)
    assert nblocks % 2 == 0, nblocks

    def tile_dma(tile, addr):
        out = []
        for j in range(8):
            su = []
            if j % 4 == 0:
                su = [f"s_mov_b32 {sr(sD0)}, {tile * 32768 + j * 1024}", f"s_add_u32 m0, {sr(sW8K)}, {addr + j * 1024}"]
            out.append((su, f"buffer_load_dwordx4 {vr(vW)}, {sr(S_KVR, 4)}, {sr(sD0)} offen offset:{(j % 4) * 1024} "
                            f"sc1 lds @@tile{tile}"))
        return out

    def tile_addr(t):
        return ((nblocks + 2 * t) % NBLK) * BLK

    poll_bar = P1.bar[len(stages) - 1]
    assert P1.dcur <= poll_bar
    P1.put(poll_bar, f"s_lshl_b32 {sr(sW8K)}, {sr(sW)}, 13\n v_add_u32 {vr(vW)}, {sr(sW8K)}, {vr(vL16)}")
    ntile_pre = 0
    tp = cfg.get("tilepace", 4)
    for t in range(cfg.get("ntilepre", 2)):
        kb = nblocks + 2 * t
        e = max(P1.bar[P1.blocks[kb - NBLK][3] + 1], P1.bar[P1.blocks[kb + 1 - NBLK][3] + 1], poll_bar) + 1
        if max(P1.dcur, e) + 8 * tp + 1 >= P1.total:
            break
        P1.place_group(tile_dma(t, tile_addr(t)), e, tp)
        ntile_pre += 1
    P1.place_fillers()

    for gi, grp in enumerate(P1.prolog_dma):
        for setup, ins in grp:
            p("\n".join(setup))
            p(ins)
        if gi == 2:
            p(late)
    if timing:
        p(f"v_mov_b32 {vr(vX0)}, {sr(sRET)}\n v_mov_b32 {vr(vX1)}, {sr(sRET)}\n v_mov_b32 v94, {63 * 8}")
        p(f"buffer_store_dwordx2 {vr(vX0, 2)}, v94, {sr(S_WS, 4)}, {sr(sStamp)} offen")
    st(94)
    p(f"@need {P1.first_need}\n s_barrier")
    st(94)
    for t in P1.prolog_reads:
        p(t)
    if timing:
        for n in (8, 10, 14, 16):
            tq = Prog()
            stamp(tq, True, nstamp[0], sTS, 92, 94, S_WS, sStamp)
            nstamp[0] += 1
            P1.sl.before(P1.start[n], "\n".join(x.text for x in tq.ins))
    P1.sl.emit(p)
    if timing:
        p(f"v_lshlrev_b32 v94, 2, v0\n buffer_store_dword v95, v94, {sr(S_WS, 4)}, {sr(sStamp)} offen offset:768")
    st()

    p("@need #tile0\n s_barrier")
    rest = []
    for t in range(ntile_pre, 4):
        rest += ["\n".join(su + [ins]) for su, ins in tile_dma(t, tile_addr(t))]
    hsig = signal(f"s_lshl_b32 {sr(sFO)}, {sr(sC)}, 5\n s_add_u32 {sr(sFO)}, {sr(sFO)}, {sr(sPG)}\n"
                  f"s_lshl_b32 {sr(sFO)}, {sr(sFO)}, 2\n s_add_u32 {sr(sFO)}, {sr(sFO)}, {FL_H * 128}", vSIG2, vONE2)

    SACC, OACC = 32, 96
    vH = vFB
    vCF = vFA
    vCX = vF
    ro, r2 = cfg.get("roto", (8, 8)), cfg.get("rot2", (1, 2))
    tail_setup = f"""
    s_load_dwordx2 {sr(S_OUT, 2)}, s[0:1], {KA['OUT']}
    s_load_dwordx2 {sr(S_DSK, 2)}, s[0:1], {KA['DSK']}
    s_and_b32 {sr(sT0)}, s2, 7
    s_lshr_b32 {sr(sT1)}, s2, 3
    s_lshr_b32 {sr(sKQ)}, {sr(sT0)}, 1
    s_lshr_b32 {sr(sRT)}, {sr(sT1)}, 2
    s_and_b32 {sr(sCT)}, {sr(sT1)}, 3
    s_mul_i32 {sr(sRO)}, {sr(sRT)}, {ro[0]}
    s_mul_i32 {sr(sT2)}, {sr(sCT)}, {ro[1]}
    s_add_u32 {sr(sRO)}, {sr(sRO)}, {sr(sT2)}
    s_and_b32 {sr(sRO)}, {sr(sRO)}, 15
    s_lshl_b32 {sr(sRO)}, {sr(sRO)}, 14
    s_lshl_b32 {sr(sRT)}, {sr(sRT)}, 1
    s_and_b32 {sr(sT2)}, {sr(sT0)}, 1
    s_add_u32 {sr(sRT)}, {sr(sRT)}, {sr(sT2)}
    s_lshl_b32 {sr(sRT64)}, {sr(sT0)}, 2
    s_lshr_b32 {sr(sT2)}, {sr(sT1)}, 3
    s_add_u32 {sr(sRT64)}, {sr(sRT64)}, {sr(sT2)}
    s_and_b32 {sr(sCT64)}, {sr(sT1)}, 7
    s_mul_i32 {sr(sR2)}, {sr(sCT64)}, {r2[0]}
    s_mul_i32 {sr(sT2)}, {sr(sT2)}, {r2[1]}
    s_add_u32 {sr(sR2)}, {sr(sR2)}, {sr(sT2)}
    s_and_b32 {sr(sR2)}, {sr(sR2)}, 7
    s_lshl_b32 {sr(sR2)}, {sr(sR2)}, 7
    s_lshl_b32 {sr(sCTXO)}, {sr(sRT)}, 20
    s_lshl_b32 {sr(sT2)}, {sr(sKQ)}, 18
    s_add_u32 {sr(sCTXO)}, {sr(sCTXO)}, {sr(sT2)}
    s_add_u32 {sr(sCTXO)}, {sr(sCTXO)}, {sr(sWLDS)}
    s_add_u32 {sr(sCTXO)}, {sr(sCTXO)}, {WS_CTX}
    s_lshl_b32 {sr(sWOO)}, {sr(sKQ)}, 20
    s_lshl_b32 {sr(sT2)}, {sr(sW)}, 14
    s_add_u32 {sr(sWOO)}, {sr(sWOO)}, {sr(sT2)}
    s_lshl_b32 {sr(sT2)}, {sr(sCT)}, 8
    s_add_u32 {sr(sWOO)}, {sr(sWOO)}, {sr(sT2)}
    s_lshl_b32 {sr(sHO)}, {sr(sRT64)}, 17
    s_add_u32 {sr(sHO)}, {sr(sHO)}, {sr(sWLDS)}
    s_add_u32 {sr(sHO)}, {sr(sHO)}, {WS_HF}
    s_lshl_b32 {sr(sCO)}, {sr(sCT64)}, 16
    s_lshr_b32 {sr(sT2)}, {sr(sW)}, 1
    s_lshl_b32 {sr(sT3)}, {sr(sT2)}, 15
    s_add_u32 {sr(sCO)}, {sr(sCO)}, {sr(sT3)}
    s_and_b32 {sr(sT0)}, {sr(sW)}, 1
    s_lshl_b32 {sr(sT1)}, {sr(sT0)}, 12
    s_lshl_b32 {sr(sT3)}, {sr(sT2)}, 10
    s_add_u32 {sr(sT1)}, {sr(sT1)}, {sr(sT3)}
    v_add_u32 {vr(vCF)}, {sr(sT1)}, {vr(vF)}
    v_add_u32 {vr(vCF + 1)}, {sr(sT1)}, {vr(vF + 1)}
    v_add_u32 {vr(vCF + 2)}, {sr(sT1)}, {vr(vF + 2)}
    s_lshl_b32 {sr(sT3)}, {sr(sT2)}, 12
    v_add_u32 {vr(vCX)}, {sr(sT3)}, {vr(vL16)}
    v_add_u32 {vr(vCX + 1)}, 0x10000, {vr(vCX)}
    v_add_u32 {vr(vCX + 2)}, 0x20000, {vr(vCX)}
    s_lshl_b32 {sr(sT1)}, {sr(sT0)}, 11
    """
    tail_setup += "".join(f"v_add_u32 {vr(vT + k)}, {sr(sT1)}, {vr(vT + k)}\n" for k in range(6))
    tail_setup += f"""
    v_lshrrev_b32 {vr(vX0)}, 5, v0
    v_lshl_add_u32 {vr(vH)}, {vr(vX0)}, 11, {sr(sWLDS)}
    v_bfe_u32 {vr(vX0)}, v0, 1, 1
    v_lshl_add_u32 {vr(vH)}, {vr(vX0)}, 10, {vr(vH)}
    v_bfe_u32 {vr(vX0)}, v0, 4, 1
    v_lshl_add_u32 {vr(vH)}, {vr(vX0)}, 7, {vr(vH)}
    v_bfe_u32 {vr(vX0)}, v0, 2, 2
    v_lshl_add_u32 {vr(vH)}, {vr(vX0)}, 4, {vr(vH)}
    v_and_b32 {vr(vX0)}, 1, v0
    v_lshl_add_u32 {vr(vH)}, {vr(vX0)}, 3, {vr(vH)}
    v_add_u32 {vr(vH + 1)}, 0x10000, {vr(vH)}
    v_add_u32 {vr(vH + 2)}, 0x20000, {vr(vH)}
    s_waitcnt lgkmcnt(0)
    s_mov_b32 {sr(S_OUT + 2)}, {2048 * 4096}
    s_mov_b32 {sr(S_OUT + 3)}, {SRD3}
    s_mov_b32 {sr(S_DSK + 2)}, 1024
    s_mov_b32 {sr(S_DSK + 3)}, {SRD3}
    """

    def mid_hook():
        p(tail_setup)
        if cfg.get("touch2", True):
            p(f"""
            v_lshlrev_b32 {vr(vX0)}, 7, v0
            s_lshl_b32 {sr(sT0)}, s2, 1
            s_and_b32 {sr(sT1)}, {sr(sW)}, 1
            s_add_u32 {sr(sT0)}, {sr(sT0)}, {sr(sT1)}
            s_lshr_b32 {sr(sT1)}, {sr(sW)}, 1
            s_lshl_b32 {sr(sT1)}, {sr(sT1)}, 9
            s_add_u32 {sr(sT0)}, {sr(sT0)}, {sr(sT1)}
            s_lshl_b32 {sr(sT0)}, {sr(sT0)}, 13
            buffer_load_dword {vr(vMT + 3)}, {vr(vX0)}, {sr(S_WO, 4)}, {sr(sT0)} offen
            v_lshlrev_b32 {vr(vX0)}, 16, v0
            s_lshl_b32 {sr(sT0)}, s2, 1
            s_lshr_b32 {sr(sT1)}, {sr(sW)}, 1
            s_add_u32 {sr(sT0)}, {sr(sT0)}, {sr(sT1)}
            s_lshl_b32 {sr(sT0)}, {sr(sT0)}, 7
            buffer_load_dword {vr(vMT + 4)}, {vr(vX0)}, {sr(S_CSEL, 4)}, {sr(sT0)} offen
            """)
            touch_code(S_CODE, "KA_pc2", 237)

    def ctx_signal(g):
        rt = f"s_mov_b32 {sr(sFO)}, {sr(sI)}" if g == 0 else f"s_sub_u32 {sr(sFO)}, 15, {sr(sI)}"
        return signal(f"""{rt}
        s_lshl_b32 {sr(sFO)}, {sr(sFO)}, 2
        s_lshr_b32 {sr(sT0)}, {sr(sH)}, 3
        s_add_u32 {sr(sFO)}, {sr(sFO)}, {sr(sT0)}
        s_lshl_b32 {sr(sFO)}, {sr(sFO)}, 5
        s_and_b32 {sr(sT0)}, {sr(sH)}, 7
        s_add_u32 {sr(sFO)}, {sr(sFO)}, {sr(sT0)}
        s_lshl_b32 {sr(sFO)}, {sr(sFO)}, 2
        s_add_u32 {sr(sFO)}, {sr(sFO)}, {FL_CTX * 128}""", vSIG2, vONE2)

    hpoll_load = f"""
    v_and_b32 {vr(vPA2)}, 15, v0
    v_lshlrev_b32 {vr(vPA2)}, 2, {vr(vPA2)}
    s_lshr_b32 {sr(sFO)}, {sr(sRT64)}, 1
    s_lshl_b32 {sr(sFO)}, {sr(sFO)}, 7
    s_add_u32 {sr(sFO)}, {sr(sFO)}, {FL_H * 128}
    {sync.load(S_FLG, sr(sFO), vPA2, vPV2)}
    """

    ATT.gen_attention(p, cfg, tile_addr(0), st, pre=qpack(2) + qpack(3), hst=hst, rest=rest, hsig=hsig,
                      mid_hook=mid_hook, pre_last=hpoll_load)

    tring = [0, 0]

    def s2_stage(n):
        S = Stage(f"s2_{n}", 9)
        S.rate = 2
        S.frac = 0.8
        S.blocks = [("H", n), ("C", n)]
        cf = []
        for db in range(4):
            r = ar(128 + 4 * (tring[0] % 12), 4)
            tring[0] += 1
            cf.append(r)
            S.reads.append((frag_read(r, vCF, 1, (db >> 1) * 8192 + (db & 1) * 2048), db))
        for tb in range(4):
            rr = 192 + 4 * (tring[1] % 12)
            tring[1] += 1
            for x in range(2):
                S.reads.append((tr_read(ar(rr + 2 * x, 2), vH, 0, tb * 256 + x * 64), len(S.mf)))
            for db in range(4):
                d = SACC + 16 * tb + 4 * db
                c = "0" if n == 0 else vr(d, 4)
                S.mf.append(f"v_mfma_f32_16x16x32_bf16 {vr(d, 4)}, {cf[db]}, {ar(rr, 4)}, {c}")
        return S

    def o_stage(n):
        S = Stage(f"o_{n}", 12)
        S.rate = 2
        S.blocks = [("WO", n), ("CX", n)]
        for kk in range(2):
            xs = []
            base = len(S.mf)
            for tb in range(4):
                r = ar(128 + 4 * (tring[0] % 12), 4)
                tring[0] += 1
                xs.append(r)
                S.reads.append((frag_read(r, vCX, 1, kk * 8192 + tb * 1024), base + tb))
            for mb in range(4):
                rr = 192 + 4 * (tring[1] % 12)
                tring[1] += 1
                for x in range(2):
                    S.reads.append((tr_read(ar(rr + 2 * x, 2), vT + 3 * (mb & 1), 0,
                                            kk * 8192 + (mb >> 1) * 1024 + x * 256), len(S.mf)))
                for tb in range(4):
                    d = OACC + 16 * tb + 4 * mb
                    c = "0" if (n == 0 and kk == 0) else vr(d, 4)
                    S.mf.append(f"v_mfma_f32_16x16x32_bf16 {vr(d, 4)}, {ar(rr, 4)}, {xs[tb]}, {c}")
        return S

    na = cfg.get("s2a", 4)
    T2a = [s2_stage(n) for n in range(na)]
    TO = [o_stage(n) for n in range(16)]
    T2b = [s2_stage(n) for n in range(na, 8)]
    TO[0].lb = 9
    tst = T2a + TO + T2b
    sigst, pollst = cfg.get("ctxsig", 0), cfg.get("ctxpoll", na - 2)
    T2a[sigst].at_barrier.append("@need #ctxst")
    T2a[sigst].after_barrier.append(ctx_signal(1))
    T2a[pollst].at_barrier.append(f"""
    v_and_b32 {vr(vPA2)}, 7, v0
    v_lshlrev_b32 {vr(vPA2)}, 2, {vr(vPA2)}
    s_lshl_b32 {sr(sFO)}, {sr(sRT)}, 2
    s_add_u32 {sr(sFO)}, {sr(sFO)}, {sr(sKQ)}
    s_lshl_b32 {sr(sFO)}, {sr(sFO)}, 7
    s_add_u32 {sr(sFO)}, {sr(sFO)}, {FL_CTX * 128}
    {sync.load(S_FLG, sr(sFO), vPA2, vPV2)}
    """ + sync.check("CTX", S_FLG, sr(sFO), vPA2, vPV2))
    for S in TO:
        S.gate = pollst

    XR = 160
    vX, vO, vWr, vRd = 170, 171, 172, 173
    pst = [f"s_lshl_b32 {sr(sT1)}, {sr(sRT)}, 2\n s_add_u32 {sr(sT1)}, {sr(sT1)}, {sr(sCT)}",
           f"s_mul_i32 {sr(sT1)}, {sr(sT1)}, {12 * 8192}\n s_lshl_b32 {sr(sT2)}, {sr(sW)}, 11",
           f"s_add_u32 {sr(sT1)}, {sr(sT1)}, {sr(sT2)}\n s_add_u32 {sr(sT1)}, {sr(sT1)}, {WS_PX}"]
    TO[15].fill.append((pst, 2, 10))
    pcv = []
    for tb in range(1, 4):
        r = OACC + 16 * tb
        pcv.append(f"s_add_u32 {sr(sT2)}, {sr(sKQ)}, {tb}\n s_and_b32 {sr(sT2)}, {sr(sT2)}, 3")
        pcv.append(f"s_mul_i32 {sr(sT2)}, {sr(sT2)}, {3 * 8192}\n s_add_u32 {sr(sT2)}, {sr(sT2)}, {sr(sT1)}")
        if tb > 1:
            pcv.append(f"s_add_u32 {sr(sT2)}, {sr(sT2)}, {(tb - 1) * 8192}")
        pcv += [f"v_cvt_pk_bf16_f32 {vr(r + k)}, {vr(r + 2 * k)}, {vr(r + 2 * k + 1)}" for k in range(8)]
        pcv += [f"buffer_store_dwordx4 {vr(r + 4 * k, 4)}, {vr(vL16)}, {sr(S_WS, 4)}, {sr(sT2)} offen offset:{k * 1024} sc1 @@pst"
                for k in range(2)]
    psig = signal(f"""s_lshl_b32 {sr(sFO)}, {sr(sRT)}, 2
    s_add_u32 {sr(sFO)}, {sr(sFO)}, {sr(sCT)}
    s_lshl_b32 {sr(sFO)}, {sr(sFO)}, 5
    s_add_u32 {sr(sFO)}, {sr(sFO)}, {sr(sKQ)}
    s_lshl_b32 {sr(sFO)}, {sr(sFO)}, 2
    s_add_u32 {sr(sFO)}, {sr(sFO)}, {FL_P * 128}""", vSIG2, vONE2)
    T2b[0].fill.append((pcv, 2, 15))
    psg = cfg.get("psig", len(T2b) - 2)
    T2b[psg].at_barrier.append("@need #pst")
    T2b[psg].after_barrier.append(psig)
    epi = [f"v_lshrrev_b32 {vr(vX0)}, 4, v0", f"v_and_b32 {vr(vX1)}, 15, v0",
           f"v_lshlrev_b32 {vr(vX)}, 10, {vr(vX0)}", f"v_lshl_add_u32 {vr(vX)}, {vr(vX1)}, 3, {vr(vX)}",
           f"v_lshlrev_b32 {vr(vO)}, 12, {vr(vX0)}", f"v_lshl_add_u32 {vr(vO)}, {vr(vX1)}, 4, {vr(vO)}",
           f"s_lshl_b32 {sr(sT0)}, {sr(sRT64)}, 2\n s_add_u32 {sr(sT0)}, {sr(sT0)}, {sr(sW)}",
           f"s_lshl_b32 {sr(sT0)}, {sr(sT0)}, 14\n s_lshl_b32 {sr(sT2)}, {sr(sCT64)}, 7",
           f"s_add_u32 {sr(sT0)}, {sr(sT0)}, {sr(sT2)}"]
    for n in range(4):
        epi.append(f"buffer_load_dwordx2 {vr(XR + 2 * n, 2)}, {vr(vX)}, {sr(S_XA, 4)}, {sr(sT0)} offen\n"
                   f"s_add_u32 {sr(sT0)}, {sr(sT0)}, 4096")
    epi += [f"v_lshlrev_b32 {vr(vX)}, 3, {vr(vX1)}",
            f"buffer_load_dwordx2 {vr(XR + 8, 2)}, {vr(vX)}, {sr(S_DSK, 4)}, {sr(sT2)} offen",
            f"v_mul_u32_u24 {vr(vRd)}, {PSTR}, {vr(vX0)}", f"v_lshl_add_u32 {vr(vRd)}, {vr(vX1)}, 4, {vr(vRd)}",
            f"s_mul_i32 {sr(sT0)}, {sr(sW)}, {16 * PSTR}", f"v_add_u32 {vr(vRd)}, {sr(sT0)}, {vr(vRd)}",
            f"v_mul_u32_u24 {vr(vWr)}, {PSTR}, {vr(vX1)}", f"v_lshl_add_u32 {vr(vWr)}, {vr(vX0)}, 4, {vr(vWr)}",
            f"v_add_u32 {vr(vX)}, {sr(sT0)}, {vr(vWr)}",
            f"s_mul_i32 {sr(sT0)}, {sr(sW)}, {PART}", f"v_add_u32 {vr(vWr)}, {sr(sT0)}, {vr(vWr)}"]
    TO[2].fill.append((epi, 0, 60))

    P2 = Pipe(tst, dma_group, cfg, "tb", cfg.get("npro2", 6), fine(24) and (lambda n: fine(24)(n).replace("v95", "v255")),
              gated=("CX",))
    P2.place_fillers()

    p(sync.check("H", S_FLG, sr(sFO), vPA2, vPV2))
    p("@need #ctxst\n s_barrier")
    p(ctx_signal(0))
    dm = []
    for grp in P2.prolog_dma:
        dm += ["\n".join(su + [ins]) for su, ins in grp]
    nfirst = cfg.get("tailfirst", 8)
    for x in dm[:nfirst]:
        p(x)
    ATT.ctx_epilogue(p, cfg, 1, dm[nfirst:])
    st()
    p(f"@need {P2.first_need}\n s_barrier")
    for t in P2.prolog_reads:
        p(t)
    if timing:
        for n in (na, na + 16):
            tq = Prog()
            stamp(tq, True, nstamp[0], sTS, 252, 254, S_WS, sStamp)
            nstamp[0] += 1
            P2.sl.before(P2.start[n], "\n".join(x.text for x in tq.ins))
    P2.sl.emit(p)
    if timing:
        p(f"v_lshlrev_b32 v254, 2, v0\n buffer_store_dword v255, v254, {sr(S_WS, 4)}, {sr(sStamp)} offen offset:512")
    st()

    p(f"""
    s_and_b32 {sr(sFO)}, {sr(sFO)}, 0xffffff80
    v_and_b32 {vr(vPA2)}, 3, v0
    v_lshlrev_b32 {vr(vPA2)}, 2, {vr(vPA2)}
    {sync.load(S_FLG, sr(sFO), vPA2, vPV2)}
    s_barrier
    """)
    for tb in range(4):
        for db in range(4):
            p(f"ds_write_b128 {vr(vWr)}, {vr(SACC + 16 * tb + 4 * db, 4)} offset:{tb * 16 * PSTR + db * 64}")
    p(sync.check("P", S_FLG, sr(sFO), vPA2, vPV2))
    PR = 112
    p(f"s_mul_i32 {sr(sT2)}, {sr(sKQ)}, {3 * 8192}\n s_add_u32 {sr(sT1)}, {sr(sT1)}, {sr(sT2)}")
    for sl_ in range(3):
        for k in range(2):
            p(f"buffer_load_dwordx4 {vr(PR + 8 * sl_ + 4 * k, 4)}, {vr(vL16)}, {sr(S_WS, 4)}, {sr(sT1)} offen "
              f"offset:{k * 1024} sc1")
        if sl_ < 2:
            p(f"s_add_u32 {sr(sT1)}, {sr(sT1)}, 8192")
    p("s_waitcnt lgkmcnt(0)\n s_barrier")
    TT = 176
    for n in range(4):
        for q in range(4):
            p(f"ds_read_b128 {vr(TT + 16 * n + 4 * q, 4)}, {vr(vRd)} offset:{q * PART + n * 4 * PSTR}")
    D, Y = 136, 140
    p(f"""
    v_lshlrev_b32 {vr(D)}, 16, {vr(XR + 8)}
    v_and_b32 {vr(D + 1)}, 0xffff0000, {vr(XR + 8)}
    v_lshlrev_b32 {vr(D + 2)}, 16, {vr(XR + 9)}
    v_and_b32 {vr(D + 3)}, 0xffff0000, {vr(XR + 9)}
    s_lshl_b32 {sr(sT0)}, {sr(sRT64)}, 2
    s_add_u32 {sr(sT0)}, {sr(sT0)}, {sr(sW)}
    s_lshl_b32 {sr(sT0)}, {sr(sT0)}, 16
    s_lshl_b32 {sr(sT2)}, {sr(sCT64)}, 8
    s_add_u32 {sr(sT0)}, {sr(sT0)}, {sr(sT2)}
    """)
    osc = " " + cfg.get("outflag", "sc1")
    for n in range(4):
        t, x = TT + 16 * n, XR + 2 * n
        p(f"""
        v_lshlrev_b32 {vr(Y)}, 16, {vr(x)}
        v_and_b32 {vr(Y + 1)}, 0xffff0000, {vr(x)}
        v_lshlrev_b32 {vr(Y + 2)}, 16, {vr(x + 1)}
        v_and_b32 {vr(Y + 3)}, 0xffff0000, {vr(x + 1)}
        """)
        for e in range(4):
            p(f"v_mul_f32 {vr(Y + e)}, {vr(Y + e)}, {vr(D + e)}")
        p(f"""
        v_cvt_pk_bf16_f32 {vr(Y + 4)}, {vr(Y)}, {vr(Y + 1)}
        v_cvt_pk_bf16_f32 {vr(Y + 5)}, {vr(Y + 2)}, {vr(Y + 3)}
        v_lshlrev_b32 {vr(Y)}, 16, {vr(Y + 4)}
        v_and_b32 {vr(Y + 1)}, 0xffff0000, {vr(Y + 4)}
        v_lshlrev_b32 {vr(Y + 2)}, 16, {vr(Y + 5)}
        v_and_b32 {vr(Y + 3)}, 0xffff0000, {vr(Y + 5)}
        """)
        for e in range(4):
            p(f"v_add_f32 {vr(t + e)}, {vr(t + e)}, {vr(t + 4 + e)}")
            p(f"v_add_f32 {vr(t + 8 + e)}, {vr(t + 8 + e)}, {vr(t + 12 + e)}")
        for e in range(4):
            p(f"v_add_f32 {vr(t + e)}, {vr(t + e)}, {vr(t + 8 + e)}")
            p(f"v_add_f32 {vr(t + e)}, {vr(t + e)}, {vr(Y + e)}")
        p(f"buffer_store_dwordx4 {vr(t, 4)}, {vr(vO)}, {sr(S_OUT, 4)}, {sr(sT0)} offen{osc}")
        if n < 3:
            p(f"s_add_u32 {sr(sT0)}, {sr(sT0)}, 16384")
    for sl_ in range(3):
        for k in range(8):
            r = PR + 8 * sl_ + k
            p(f"v_lshlrev_b32 {vr(Y)}, 16, {vr(r)}")
            p(f"v_and_b32 {vr(Y + 1)}, 0xffff0000, {vr(r)}")
            p(f"v_add_f32 {vr(OACC + 2 * k)}, {vr(OACC + 2 * k)}, {vr(Y)}")
            p(f"v_add_f32 {vr(OACC + 2 * k + 1)}, {vr(OACC + 2 * k + 1)}, {vr(Y + 1)}")
    p(f"v_add_u32 {vr(vX)}, {4 * PART}, {vr(vX)}\n v_add_u32 {vr(vRd)}, {4 * PART}, {vr(vRd)}")
    for mb in range(4):
        p(f"ds_write_b128 {vr(vX)}, {vr(OACC + 4 * mb, 4)} offset:{mb * 64}")
    p(f"""
    s_lshl_b32 {sr(sT0)}, {sr(sRT)}, 3
    s_lshr_b32 {sr(sT2)}, {sr(sW)}, 1
    s_lshl_b32 {sr(sT2)}, {sr(sT2)}, 2
    s_add_u32 {sr(sT0)}, {sr(sT0)}, {sr(sT2)}
    s_add_u32 {sr(sT0)}, {sr(sT0)}, {sr(sKQ)}
    s_lshl_b32 {sr(sT0)}, {sr(sT0)}, 16
    s_lshl_b32 {sr(sT2)}, {sr(sCT)}, 1
    s_and_b32 {sr(sT3)}, {sr(sW)}, 1
    s_add_u32 {sr(sT2)}, {sr(sT2)}, {sr(sT3)}
    s_lshl_b32 {sr(sT2)}, {sr(sT2)}, 8
    s_add_u32 {sr(sT0)}, {sr(sT0)}, {sr(sT2)}
    s_waitcnt lgkmcnt(0)
    """)
    for n in range(4):
        p(f"ds_read_b128 {vr(PR + 4 * n, 4)}, {vr(vRd)} offset:{n * 4 * PSTR}")
    for n in range(4):
        p(f"buffer_store_dwordx4 {vr(PR + 4 * n, 4)}, {vr(vO)}, {sr(S_OUT, 4)}, {sr(sT0)} offen offset:2048{osc}")
        if n < 3:
            p(f"s_add_u32 {sr(sT0)}, {sr(sT0)}, 16384")
    st()
    p.label("KA_end")
    p("s_endpgm")
    p.label("KA_codeend")
    sync.emit(p)
    ATT.gen_attention_rare(p, cfg)
    p.finish(cfg.get("verbose_nop", False))
    return p


def build(cfg):
    hdr = [l for l in open("cdna_kernels/" + NAME + ".s.ref").read().split("\n")
           if l.startswith(";") and "@launch" not in l][:19]
    ka = gen(cfg)
    out = "\n".join(hdr) + "\n"
    if cfg.get("aslist"):
        out += f"; @launch kernel={NAME}_kernel grid=(256,1,1) block=(256,1,1) lds={NBLK * BLK}\n"
    else:
        out += f"; @launch grid=(256,1,1) block=(256,1,1) lds={NBLK * BLK}\n"
    out += '.amdgcn_target "amdgcn-amd-amdhsa--gfx950"\n'
    out += kernel_text(NAME + "_kernel", ka)
    out += '.section .rodata,"a"\n.p2align 6\n'
    out += descriptor_text(NAME + "_kernel", 512, 102, 256)
    print("instrs", len(ka.ins), "maxv", ka.maxreg("v"), "maxa", ka.maxreg("a"), "maxs", ka.maxreg("s"),
          "auto nops", sum(1 for x in ka.ins if x.auto and x.cls == "nop"), file=sys.stderr)
    return out


if __name__ == "__main__":
    cfg = json.loads(sys.argv[2]) if len(sys.argv) > 2 else {}
    open(sys.argv[1], "w").write(build(cfg))
```

```python
import re

REG_RE = re.compile(r"^(-?)(?:abs\()?([vas])(?:(\d+)|\[(\d+):(\d+)\])\)?$")

TRANS = ("v_exp_f32", "v_log_f32", "v_rcp_f32", "v_rsq_f32", "v_sqrt_f32", "v_sin_f32", "v_cos_f32",
         "v_rcp_iflag_f32")


def regs_of(tok):
    tok = tok.strip()
    if tok in ("vcc",):
        return ["vcc"]
    if tok in ("vcc_lo", "vcc_hi"):
        return ["vcc"]
    if tok in ("exec", "exec_lo", "exec_hi"):
        return ["exec"]
    if tok == "m0":
        return ["m0"]
    tok = tok.replace("|", "")
    m = REG_RE.match(tok)
    if not m:
        return []
    k = m.group(2)
    if m.group(3) is not None:
        return [f"{k}{int(m.group(3))}"]
    return [f"{k}{i}" for i in range(int(m.group(4)), int(m.group(5)) + 1)]


class Ins:
    __slots__ = ("text", "op", "cls", "reads", "writes", "srcc", "srcab", "target", "nstates", "wait", "auto",
                 "wide", "comment", "tag")

    def __init__(self, text):
        self.auto = False
        self.comment = ""
        t = text.strip()
        tag = None
        if "@@" in t:
            t, tag = t.split("@@")
            t = t.strip()
            tag = "#" + tag.strip()
        self.tag = tag
        self.text = t
        self.reads = set()
        self.writes = set()
        self.srcc = set()
        self.srcab = set()
        self.target = None
        self.nstates = 1
        self.wait = None
        self.wide = False
        if t.endswith(":"):
            self.op = "label"
            self.cls = "label"
            self.target = t[:-1]
            self.nstates = 0
            return
        if t.startswith("."):
            self.op = "dir"
            self.cls = "dir"
            self.nstates = 0
            return
        if t.startswith("@need"):
            self.op = "@need"
            self.cls = "pseudo"
            self.nstates = 0
            for tok in t.split()[1:]:
                tok = tok.rstrip(",")
                r = [tok] if tok.startswith("#") else regs_of(tok)
                assert r, t
                self.reads.update(r)
            return
        parts = t.split(None, 1)
        op = parts[0]
        self.op = op
        rest = parts[1] if len(parts) > 1 else ""
        ops = []
        mods = []
        if rest:
            raw = re.split(r",\s*(?![^\[]*\])", rest)
            for idx, r in enumerate(raw):
                r = r.strip()
                if idx == len(raw) - 1:
                    sp = r.split()
                    ops.append(sp[0])
                    mods = sp[1:]
                else:
                    ops.append(r)
        R = [regs_of(o) for o in ops]
        base = re.sub(r"_(e32|e64|dpp|sdwa)$", "", op)

        def rd(lst):
            for x in lst:
                self.reads.update(x)

        if op.startswith("v_mfma"):
            self.cls = "mfma8" if "32x32x16" in op else "mfma4"
            assert "32x32x16" in op or "16x16x32" in op, t
            self.writes.update(R[0])
            rd(R[1:4])
            self.srcab.update(R[1])
            self.srcab.update(R[2])
            self.srcc.update(R[3])
        elif op.startswith("ds_read") or op.startswith("ds_bpermute") or op.startswith("ds_swizzle"):
            self.cls = "ds_read"
            self.writes.update(R[0])
            rd(R[1:])
        elif op.startswith("ds_write") or op.startswith("ds_add"):
            self.cls = "ds_write"
            rd(R)
        elif op.startswith("buffer_load"):
            if "lds" in mods:
                self.cls = "vm_dma"
                rd(R)
                self.reads.add("m0")
            else:
                self.cls = "vm_load"
                self.writes.update(R[0])
                rd(R[1:])
                if "d16" in op:
                    rd(R[:1])
        elif op.startswith("global_load"):
            self.cls = "vm_load"
            self.writes.update(R[0])
            rd(R[1:])
        elif op.startswith("buffer_store"):
            self.cls = "vm_store"
            rd(R)
            self.wide = op.endswith("x4") or op.endswith("x3")
            self.srcab.update(R[0])
        elif op.startswith("buffer_atomic"):
            if "sc0" in mods:
                self.cls = "vm_load"
                self.writes.update(R[0])
            else:
                self.cls = "vm_store"
            rd(R)
        elif op in ("buffer_inv", "buffer_wbl2"):
            self.cls = "vm_store"
        elif op.startswith("s_load") or op in ("s_memtime", "s_memrealtime"):
            self.cls = "smem"
            self.writes.update(R[0])
            rd(R[1:])
        elif op == "s_waitcnt":
            self.cls = "wait"
            w = {}
            for m in re.finditer(r"(vmcnt|lgkmcnt)\((\d+)\)", t):
                w[m.group(1)] = int(m.group(2))
            self.wait = w
        elif op == "s_barrier":
            self.cls = "barrier"
        elif op == "s_nop":
            self.cls = "nop"
            self.nstates = int(ops[0], 0) + 1
        elif op == "s_endpgm":
            self.cls = "end"
        elif op == "s_branch":
            self.cls = "branch"
            self.target = ops[0]
        elif op.startswith("s_cbranch"):
            self.cls = "cbranch"
            self.target = ops[0]
            if "vcc" in op:
                self.reads.add("vcc")
            if "scc" in op:
                self.reads.add("scc")
            if "exec" in op:
                self.reads.add("exec")
        elif op == "s_call_b64":
            self.cls = "call"
            self.writes.update(R[0])
            self.target = ops[1]
        elif op == "s_setpc_b64":
            self.cls = "ret"
            rd(R)
        elif op in ("s_setprio", "s_sleep"):
            self.cls = "salu"
        elif op.startswith("s_cmp") or op.startswith("s_bitcmp"):
            self.cls = "salu"
            rd(R)
            self.writes.add("scc")
        elif op.startswith("s_"):
            self.cls = "salu"
            self.writes.update(R[0])
            rd(R[1:])
            if op.startswith("s_cselect") or op.startswith("s_addc") or op.startswith("s_subb"):
                self.reads.add("scc")
            if op in ("s_addk_i32", "s_mulk_i32"):
                rd(R[:1])
            if "saveexec" in op:
                self.reads.add("exec")
                self.writes.add("exec")
            if not (op.startswith("s_mov") or op.startswith("s_cselect") or op.startswith("s_mul")
                    or op.startswith("s_getreg") or op.startswith("s_getpc")):
                self.writes.add("scc")
        elif op.startswith("v_"):
            self.cls = "trans" if base in TRANS else "valu"
            if base.startswith("v_permlane") and "swap" in base:
                self.writes.update(R[0])
                self.writes.update(R[1])
                rd(R)
            elif base in ("v_add_co_u32", "v_sub_co_u32", "v_addc_co_u32", "v_subb_co_u32", "v_subrev_co_u32"):
                self.writes.update(R[0])
                self.writes.update(R[1])
                rd(R[2:])
            else:
                self.writes.update(R[0])
                rd(R[1:])
                if base.startswith("v_fmac") or base.startswith("v_pk_fmac") or base.startswith("v_dot2c") \
                        or base == "v_writelane_b32" or op.endswith("_dpp"):
                    rd(R[:1])
                if base.startswith("v_cmpx"):
                    self.writes.add("exec")
        else:
            raise ValueError("unknown instruction: " + t)

    def is_valu(self):
        return self.cls in ("valu", "trans")

    def is_mfma(self):
        return self.cls in ("mfma4", "mfma8")

    def is_vm(self):
        return self.cls in ("vm_load", "vm_dma", "vm_store")

    def is_ds(self):
        return self.cls in ("ds_read", "ds_write")


def vregs(s):
    return {r for r in s if r[0] in "va" and r != "vcc"}


def sregs(s):
    return {r for r in s if (r[0] == "s" and r != "scc") or r == "vcc"}


def required_states(p, c):
    need = 0
    pw = p.writes
    if p.is_valu():
        vw = vregs(pw)
        if c.is_mfma() and vw & c.reads:
            need = max(need, 2)
        if p.cls == "trans" and c.cls == "valu" and vw & c.reads:
            need = max(need, 1)
        if c.is_valu() and (c.op.startswith("v_permlane") or c.op.endswith("_dpp")) and vw & c.reads:
            need = max(need, 2)
        if c.is_valu() and (c.op.startswith("v_readlane") or c.op.startswith("v_readfirstlane")) and vw & c.reads:
            need = max(need, 1)
        sw = sregs(pw)
        if sw:
            if c.is_valu() and sw & c.reads:
                need = max(need, 4 if (c.op.startswith("v_readlane") or c.op.startswith("v_writelane")) else 2)
            if c.is_vm() and sw & c.reads:
                need = max(need, 5)
            if c.cls in ("salu", "cbranch", "smem") and sw & c.reads:
                need = max(need, 1)
        if "exec" in pw:
            if c.is_mfma() or c.op.startswith("v_permlane") or c.op.startswith("v_read"):
                need = max(need, 4)
            if c.op.endswith("_dpp"):
                need = max(need, 5)
        if "op_sel" in p.text and not p.op.startswith("v_pk") and c.is_valu() and vw & (c.reads | c.writes):
            need = max(need, 1)
    if p.is_mfma():
        big = 12 if p.cls == "mfma8" else 8
        ovl = 10 if p.cls == "mfma8" else 6
        war = 7 if p.cls == "mfma8" else 3
        if c.is_mfma():
            if pw & c.srcab:
                need = max(need, big)
            if pw & c.srcc:
                if not (pw == c.srcc and p.cls == c.cls):
                    need = max(need, ovl)
            elif pw & c.writes:
                need = max(need, ovl)
        elif c.is_valu() or c.is_vm() or c.is_ds():
            if pw & (c.reads | c.writes):
                need = max(need, big)
            if c.is_valu() and p.srcc & c.writes:
                need = max(need, war)
            if (c.is_vm() or c.is_ds()) and p.srcc & c.writes:
                need = max(need, war)
    if p.cls == "salu" and "m0" in pw and c.cls == "vm_dma":
        need = max(need, 1)
    if p.cls == "vm_store" and p.wide and p.srcab & c.writes:
        need = max(need, 2 if c.is_valu() else 1)
    return need


MAXCNT = {"vmcnt": 63, "lgkmcnt": 15}


class Prog:
    def __init__(self):
        self.ins = []
        self.uid = 0

    def __call__(self, text):
        for line in text.split("\n"):
            line = line.split(";")[0].strip()
            if line:
                self.ins.append(Ins(line))

    def label(self, name):
        self.ins.append(Ins(name + ":"))

    def newlabel(self, base):
        self.uid += 1
        return f"{base}_{self.uid}"

    def _succ(self):
        labels = {x.target: i for i, x in enumerate(self.ins) if x.cls == "label"}
        n = len(self.ins)
        succ = [[] for _ in range(n)]
        calls = {}
        for i, x in enumerate(self.ins):
            if x.cls == "call":
                calls.setdefault(x.target, []).append(i + 1)
        retmap = {}
        for tgt, rets in calls.items():
            j = labels[tgt]
            while self.ins[j].cls != "ret":
                j += 1
            retmap.setdefault(j, []).extend(rets)
        for i, x in enumerate(self.ins):
            if x.cls == "end":
                continue
            if x.cls == "branch" or x.cls == "call":
                succ[i].append(labels[x.target])
            elif x.cls == "cbranch":
                succ[i].append(labels[x.target])
                succ[i].append(i + 1)
            elif x.cls == "ret":
                succ[i].extend(retmap.get(i, []))
            elif i + 1 < n:
                succ[i].append(i + 1)
        return succ

    def insert_waits(self, verbose=False):
        for _round in range(10000):
            succ = self._succ()
            n = len(self.ins)
            states = [None] * n
            states[0] = {}
            work = [0]
            while work:
                i = work.pop()
                st = dict(states[i])
                x = self.ins[i]
                if x.cls == "wait":
                    for cn, val in x.wait.items():
                        st = {r: e for r, e in st.items() if not (e[0] == cn and e[1] >= val)}
                    if x.wait.get("lgkmcnt") == 0:
                        st = {r: e for r, e in st.items() if e[0] != "smem"}
                else:
                    used = (x.reads | x.writes) & st.keys()
                    if used:
                        mins = {}
                        for r in used:
                            cn, y = st[r]
                            mins[cn] = min(mins.get(cn, 99), y)
                        for cn, val in mins.items():
                            if cn == "smem":
                                st = {r: e for r, e in st.items() if e[0] not in ("smem", "lgkmcnt")}
                            else:
                                st = {r: e for r, e in st.items() if not (e[0] == cn and e[1] >= val)}
                    cn = None
                    if x.is_vm():
                        cn = "vmcnt"
                    elif x.is_ds():
                        cn = "lgkmcnt"
                    if cn:
                        st = {r: ((e[0], min(e[1] + 1, 99)) if e[0] == cn else e) for r, e in st.items()}
                        if x.cls in ("vm_load", "ds_read"):
                            for r in x.writes:
                                st[r] = (cn, 0)
                        if x.tag:
                            st[x.tag] = (cn, 0)
                    if x.cls == "smem":
                        for r in x.writes:
                            st[r] = ("smem", 0)
                        st["__smem__"] = ("smem", 0)
                for j in succ[i]:
                    if states[j] is None:
                        states[j] = dict(st)
                        work.append(j)
                    else:
                        old = states[j]
                        ch = False
                        for r, e in st.items():
                            if r not in old:
                                old[r] = e
                                ch = True
                            elif old[r][0] != e[0]:
                                raise RuntimeError(f"register {r} pending on two counters at {self.ins[j].text}")
                            elif e[1] < old[r][1]:
                                old[r] = e
                                ch = True
                        if ch:
                            work.append(j)
            new = []
            added = 0
            for i, x in enumerate(self.ins):
                st = states[i]
                if st is not None and x.cls != "wait":
                    used = (x.reads | x.writes) & st.keys()
                    if used:
                        w = {}
                        for r in used:
                            cn, y = st[r]
                            if cn == "smem":
                                w["lgkmcnt"] = 0
                            else:
                                if cn == "lgkmcnt" and "__smem__" in st:
                                    y = 0
                                w[cn] = min(w.get(cn, 99), min(y, MAXCNT[cn]))
                        wi = Ins("s_waitcnt " + " ".join(f"{k}({v})" for k, v in sorted(w.items(), reverse=True)))
                        wi.auto = True
                        new.append(wi)
                        added += 1
                if x.cls != "pseudo" or added == 0 and False:
                    new.append(x)
                elif x.cls == "pseudo":
                    pass
            self.ins = new
            if added == 0:
                return
        raise RuntimeError("waitcnt insertion did not converge")

    def insert_nops(self, verbose=False):
        total = 0
        for _round in range(1000):
            succ = self._succ()
            n = len(self.ins)
            pred = [[] for _ in range(n)]
            for i in range(n):
                for j in succ[i]:
                    pred[j].append(i)
            fixes = {}
            for i, c in enumerate(self.ins):
                if c.cls in ("label", "dir", "nop", "wait", "barrier", "end", "branch"):
                    continue
                best = {}
                stack = [(p, 0) for p in pred[i]]
                short = 0
                why = None
                while stack:
                    j, d = stack.pop()
                    if j in best and best[j] <= d:
                        continue
                    best[j] = d
                    p = self.ins[j]
                    need = required_states(p, c)
                    if need - d > short:
                        short = need - d
                        why = p
                    d2 = d + p.nstates
                    if d2 < 12:
                        for q in pred[j]:
                            stack.append((q, d2))
                if short > 0:
                    fixes[i] = (short, why)
            if not fixes:
                return total
            new = []
            last = -100
            for i, x in enumerate(self.ins):
                if i in fixes and i - last > 14:
                    s, why = fixes[i]
                    ni = Ins(f"s_nop {s - 1}")
                    ni.auto = True
                    ni.comment = f"hazard: {why.text}"
                    if verbose:
                        print(f"  pad {s} before [{x.text}] after [{why.text}]")
                    new.append(ni)
                    total += s
                    last = i
                new.append(x)
            self.ins = new
        raise RuntimeError("nop insertion did not converge")

    def merge_waits(self):
        new = []
        for x in self.ins:
            if x.cls == "wait" and new and new[-1].cls == "wait":
                w = dict(new[-1].wait)
                for k, v in x.wait.items():
                    w[k] = min(w.get(k, 99), v)
                new[-1] = Ins("s_waitcnt " + " ".join(f"{k}({v})" for k, v in sorted(w.items(), reverse=True)))
            else:
                new.append(x)
        self.ins = new

    def finish(self, verbose=False):
        self.insert_waits(verbose)
        self.merge_waits()
        self.insert_nops(verbose)

    def sizes(self):
        import subprocess, tempfile, os
        d = tempfile.mkdtemp()
        src = '.amdgcn_target "amdgcn-amd-amdhsa--gfx950"\n.text\n' + "\n".join(
            x.text for x in self.ins if x.cls != "dir") + "\n"
        open(d + "/a.s", "w").write(src)
        subprocess.run(["clang", "-x", "assembler", "-target", "amdgcn-amd-amdhsa", "-mcpu=gfx950",
                        "-c", d + "/a.s", "-o", d + "/a.o"], check=True)
        out = subprocess.run(["llvm-objdump", "-d", "-z", "--mcpu=gfx950", d + "/a.o"],
                             capture_output=True, text=True, check=True).stdout
        sz = []
        for line in out.split("\n"):
            m = re.search(r"// [0-9A-F]{12}: ([0-9A-F ]+)", line)
            if m:
                sz.append(4 * len(m.group(1).split()))
        real = [x for x in self.ins if x.cls not in ("dir", "label")]
        assert len(sz) == len(real), (len(sz), len(real))
        return {id(x): n for x, n in zip(real, sz)}

    def align8(self, verbose=False):
        sz = self.sizes()
        off = 0
        run = []
        bad = fixed = 0
        for x in self.ins:
            if x.cls == "label":
                continue
            if x.cls == "dir":
                m = re.match(r"\.p2align (\d+)", x.text)
                a = 1 << int(m.group(1))
                off = (off + a - 1) // a * a
                run = []
                continue
            n = sz[id(x)]
            if n == 4:
                run.append((x, off))
                off += 4
                continue
            if off % 8:
                cand = [y for y, o in run if o % 8 == 0 and y.is_valu() and not y.op.endswith("_e64")
                        and not y.op.startswith("v_readfirstlane") and not y.op.startswith("v_permlane")
                        and not y.op.startswith("v_accvgpr")]
                if cand:
                    y = cand[-1]
                    y.text = y.text.replace(y.op, y.op + "_e64", 1)
                    y.op += "_e64"
                    off += 4
                    fixed += 1
                else:
                    bad += 1
            off += n
            run = []
        if verbose:
            print(f"align8: widened {fixed}, still misaligned {bad}")

    def maxreg(self, kind):
        m = -1
        for x in self.ins:
            for r in x.reads | x.writes:
                if r[0] == kind and r[1:].isdigit():
                    m = max(m, int(r[1:]))
        return m

    def text(self):
        out = []
        for x in self.ins:
            if x.cls in ("label", "dir"):
                out.append(x.text)
            else:
                out.append("    " + x.text + (("    ; " + x.comment) if x.comment else ""))
        return "\n".join(out) + "\n"


def kernel_text(name, prog, vgpr=512, sgpr=96, accum=256):
    s = [f".text\n.globl {name}\n.p2align 8\n.type {name},@function\n{name}:\n"]
    s.append(prog.text())
    return "".join(s)


def descriptor_text(name, vgpr=512, sgpr=96, accum=256, extra=""):
    return f""".amdhsa_kernel {name}
  .amdhsa_next_free_vgpr {vgpr}
  .amdhsa_next_free_sgpr {sgpr}
  .amdhsa_accum_offset {accum}
  .amdhsa_group_segment_fixed_size 0
  .amdhsa_kernarg_size 144
  .amdhsa_user_sgpr_count 2
  .amdhsa_user_sgpr_kernarg_segment_ptr 1
  .amdhsa_system_sgpr_workgroup_id_x 1
{extra}.end_amdhsa_kernel
"""


def vr(b, n=1):
    return f"v{b}" if n == 1 else f"v[{b}:{b + n - 1}]"


def ar(b, n=1):
    return f"a{b}" if n == 1 else f"a[{b}:{b + n - 1}]"


def sr(b, n=1):
    return f"s{b}" if n == 1 else f"s[{b}:{b + n - 1}]"


class Slots:
    def __init__(self, backbone):
        self.bb = list(backbone)
        self.fill = [[] for _ in self.bb]
        self.pre = [[] for _ in self.bb]

    def after(self, i, text):
        self.fill[i].append(text)

    def before(self, i, text):
        self.pre[i].append(text)

    def spread(self, items, lo, hi):
        n = len(items)
        for k, it in enumerate(items):
            self.fill[lo + (k * (hi - lo)) // n].append(it)

    def emit(self, p):
        for b, pre, f in zip(self.bb, self.pre, self.fill):
            for x in pre:
                p(x)
            p(b)
            for x in f:
                p(x)
```

```python
from gen_common import *
from regs import *
from pipesched import Sched, split_items, cost

BIG = 2.0 ** 100
LDSEND = 163840
vBASE = vMT + 7
vW2 = vK
vSC = [vMT + 5, vMT + 6]
LOOK = 8

LAG = [1]
sites = []


def fr(f):
    return ar(FRING + 4 * (f % NFR), 4)


def sm_ops(g, par, masked, tb):
    S, P, lu = SREG[g][par], PREG[g][par], vLU[g]
    ops = []

    def t(k):
        return vr(vET + (k & 7))

    def post(j):
        if j == 1:
            ops.append(f"v_add_f32 {vr(lu)}, {t(0)}, {t(1)}")
        elif j > 1:
            ops.append(f"v_add_f32 {vr(lu)}, {vr(lu)}, {t(j)}")
        if j & 1:
            ops.append(f"v_cvt_pk_bf16_f32 {vr(P + j // 2)}, {t(j - 1)}, {t(j)}")

    for k in range(16):
        if masked:
            ops += mask_ops(g, S, k)
        ops.append(f"v_exp_f32 {t(k)}, {vr(S + k)}")
        if k >= LAG[0]:
            post(k - LAG[0])
    if masked:
        ops.append(f"v_add_f32 {vr(vTHR[g])}, {f32hex(-32 * BIG)}, {vr(vTHR[g])}")
    for k in range(16 - LAG[0], 16):
        post(k)
    return ops


def mask_ops(g, S, k):
    c = 8 * (k >> 2) + (k & 3)
    if c == 0:
        return [f"v_min_f32 {vr(S + k)}, {vr(S + k)}, {vr(vTHR[g])}"]
    return [f"v_add_f32 {vr(vMT)}, {f32hex(-c * BIG)}, {vr(vTHR[g])}",
            f"v_min_f32 {vr(S + k)}, {vr(S + k)}, {vr(vMT)}"]


def dma_ops():
    out = []
    for j in range(8):
        if j == 4:
            out.append("s_add_u32 m0, m0, 4096")
        out.append(f"buffer_load_dwordx4 {vr(vW if j < 4 else vW2)}, {sr(S_KVR, 4)}, {sr(sKVOFF)} offen "
                   f"offset:{(j % 4) * 1024} sc1 lds")
    out += [f"s_add_u32 {sr(sKVOFF)}, {sr(sKVOFF)}, 32768",
            f"s_add_u32 m0, m0, {32768 - 4096}",
            f"s_cmp_eq_u32 m0, {sr(sM0)}\n s_cselect_b32 m0, {sr(sW8K)}, m0"]
    return out


def slot_adv():
    return [f"s_add_u32 {sr(sSLOT)}, {sr(sSLOT)}, 32768",
            f"s_cmp_eq_u32 {sr(sSLOT)}, {LDSEND}\n s_cselect_b32 {sr(sSLOT)}, 0, {sr(sSLOT)}"]


def body(p, cfg, name, its, last=False, loop=None, extra=None):
    mf = []
    fuse = {}
    bounds = []
    for it, d in enumerate(its):
        b0 = len(mf)
        for s in range(8):
            for g in d["qk"]:
                S = SREG[g][it]
                c = NEGM[g] if s == 0 else S
                f = 16 * it + s
                fuse[f] = (fuse.get(f, (len(mf),))[0], len(mf))
                mf.append(f"v_mfma_f32_32x32x16_bf16 {vr(S, 16)}, {fr(f)}, {vr(QREG[g] + 4 * s, 4)}, {vr(c, 16)}")
        for x in range(8):
            for g in d["pv"]:
                f = 16 * it + 8 + x
                o = OREG[g] + 16 * (x & 3)
                fuse[f] = (fuse.get(f, (len(mf),))[0], len(mf))
                mf.append(f"v_mfma_f32_32x32x16_bf16 {ar(o, 16)}, {fr(f)}, {vr(PREG[g][it] + 4 * (x >> 2), 4)}, {ar(o, 16)}")
        bounds.append((b0, len(mf)))
    n = len(mf)
    sc = Sched(mf, cfg.get("attcap", 24), cfg.get("attvm", 8))
    pre = []
    used = sorted(fuse)
    seq = list(used)
    if not last:
        seq += [32 + k for k in range(LOOK)]
    GR, LAT, AHEAD = cfg.get("attgr", 4), cfg.get("attlat", 3), cfg.get("attahead", 11)
    ch = []
    barslot = None
    for idx, f in enumerate(seq):
        if f < LOOK:
            continue
        t = f"ds_read_b128 {fr(f)}, {vr(vRD)} offset:{(f % 32) * 1024}"
        if idx < LOOK:
            pre.append(t)
            continue
        rel = fuse[seq[idx - AHEAD]][0] if idx >= AHEAD else 0
        if f - NFR in fuse:
            rel = max(rel, fuse[f - NFR][1])
        if f < 32:
            dl = fuse[f - f % GR][0] - 1 - LAT
        else:
            dl = n - 1 - (LAT if f - 32 < GR else 0)
        dl = min(dl, fuse[seq[idx - LOOK]][1] + cfg.get("attslack", 1))
        if f == 32:
            barslot = max(rel, fuse[seq[idx - LOOK - 1]][0])
            ch.append((f"s_waitcnt vmcnt(16)\n s_barrier", barslot, barslot))
            ch.append((f"v_add_u32 {vr(vRD)}, {sr(sSLOT)}, {vr(vL16)}", barslot, barslot))
            sc.cap[barslot] -= cfg.get("barcost", 8)
        if f >= 32:
            rel = max(rel, barslot + 1)
        ch.append((t, rel, max(rel, dl)))
    for k in range(len(ch) - 2, -1, -1):
        ch[k] = (ch[k][0], ch[k][1], max(ch[k][1], min(ch[k][2], ch[k + 1][2])))
    sc.chains.append([list(x) for x in ch])
    before = {}
    for f in used:
        if f % GR == 0:
            s0 = fuse[f][0]
            before[s0] = "@need " + " ".join(fr(f + k) for k in range(GR))
            sc.cap[(s0 - 1) % n] -= 4
    if not last:
        sc.spread(dma_ops() + slot_adv(), 0, barslot, early=1, late=2)
    for it, d in enumerate(its):
        b0, b1 = bounds[it]
        par = it ^ 1
        ops = [f"v_add_f32 {vr(vLSUM[g])}, {vr(vLSUM[g])}, {vr(vLU[g])}" for g in d["acc"]]
        for g in d["sm"]:
            ops += sm_ops(g, par, g in d["mask"], vET + 4 * g)
        if d["sm"]:
            if len(d["sm"]) == 2:
                ops.append(f"v_max_f32 {vr(vMT + 1)}, {vr(vLU[0])}, {vr(vLU[1])}")
                ops.append(f"v_cmp_lt_f32 vcc, {sr(sTHR)}, {vr(vMT + 1)}")
            else:
                ops.append(f"v_cmp_lt_f32 vcc, {sr(sTHR)}, {vr(vLU[d['sm'][0]])}")
        if ops:
            sc.spread(ops, b0, b1 - 1, early=cfg.get("smearly", 1), late=cfg.get("smlate", 1))
        if extra and extra[0] == it:
            sc.spread(extra[1], b0, b1)
        if d["sm"]:
            lab = f"FIX_{name}_{it}"
            sc.fix(b1 - 1, f"s_cbranch_vccnz {lab}\n {lab}_ret:")
            sites.append((lab, par, d["sm"]))
    if loop:
        sc.fix(n - 1, f"s_sub_u32 {sr(sCNT)}, {sr(sCNT)}, 1\n s_cbranch_scc0 {loop}")
    sc.run()
    if cfg.get("verbose"):
        print(f"  body {name}: {n} slots, over {sum(sc.over)}: {sc.over}")
    for x in pre:
        p(x)
    sc.emit(p, before)


def rowmax(S, t0, t1):
    out = [f"v_max3_f32 {vr(t0)}, {vr(S)}, {vr(S + 1)}, {vr(S + 2)}"]
    for k in range(3, 15, 2):
        out.append(f"v_max3_f32 {vr(t0)}, {vr(t0)}, {vr(S + k)}, {vr(S + k + 1)}")
    out += [f"v_max_f32 {vr(t0)}, {vr(t0)}, {vr(S + 15)}",
            f"v_mov_b32 {vr(t1)}, {vr(t0)}",
            f"v_permlane32_swap_b32 {vr(t0)}, {vr(t1)}",
            f"v_max_f32 {vr(t0)}, {vr(t0)}, {vr(t1)}"]
    return out


def gen_attention(p, cfg, slot0, st, pre, hst, rest, hsig, touch, pre_last, last_fill):
    global sites
    sites.clear()
    LAG[0] = cfg.get("smlag", 1)
    BIAS = cfg.get("bias", 0.0)
    THR = cfg.get("thr", 40.0)
    slot4 = (slot0 + 4 * 32768) % LDSEND
    slot1 = (slot0 + 32768) % LDSEND
    p(f"v_add_u32 {vr(vRD)}, {slot0}, {vr(vL16)}")
    for f in range(8):
        p(f"ds_read_b128 {fr(f)}, {vr(vRD)} offset:{f * 1024}")
    for x in hst:
        p(x)
    for x in pre:
        p(x)
    setup = f"""
    v_and_b32 {vr(vX0)}, 31, v0
    v_lshrrev_b32 {vr(vX1)}, 5, v0
    v_lshlrev_b32 {vr(vX1)}, 2, {vr(vX1)}
    v_sub_u32 {vr(vX0)}, {vr(vX0)}, {vr(vX1)}
    s_lshl_b32 {sr(sT0)}, {sr(sW)}, 5
    v_add_u32 {vr(vX0)}, {sr(sT0)}, {vr(vX0)}
    s_lshl_b32 {sr(sT0)}, {sr(sI)}, 7
    v_add_u32 {vr(vTHR[0])}, {sr(sT0)}, {vr(vX0)}
    s_lshl_b32 {sr(sT0)}, {sr(sI)}, 8
    s_sub_u32 {sr(sT0)}, {14 * 128}, {sr(sT0)}
    v_add_u32 {vr(vTHR[1])}, {sr(sT0)}, {vr(vX0)}
    v_add_u32 {vr(vBASE)}, 32, {vr(vX0)}
    """.strip().split("\n")
    for r in (vTHR[0], vTHR[1], vBASE):
        setup += [f"v_cvt_f32_i32 {vr(r)}, {vr(r)}", f"v_add_f32 {vr(r)}, 0.5, {vr(r)}",
                  f"v_mul_f32 {vr(r)}, {f32hex(BIG)}, {vr(r)}"]
    ZQ = 248
    setup += [f"v_mov_b32 {vr(vLSUM[0])}, 0", f"v_mov_b32 {vr(vLSUM[1])}, 0"]
    setup += [f"v_mov_b32 {vr(ZQ + k)}, 0" for k in range(4)]
    setup += [f"s_add_u32 {sr(sM0)}, {sr(sW8K)}, {LDSEND}", f"s_mov_b32 {sr(sSLOT)}, {slot1}",
              f"v_add_u32 {vr(vW2)}, 4096, {vr(vW)}",
              f"s_mov_b32 {sr(sKVOFF)}, {4 * 32768}", f"s_mov_b32 {sr(sTHR)}, {f32hex(2.0 ** (THR - BIAS))}"]

    mf = []

    def qk(g, par, f0):
        for s in range(8):
            S = SREG[g][par]
            c = ("0" if par == 0 else vr(NEGM[g], 16)) if s == 0 else vr(S, 16)
            mf.append(f"v_mfma_f32_32x32x16_bf16 {vr(S, 16)}, {fr(f0 + s)}, {vr(QREG[g] + 4 * s, 4)}, {c}")

    def zero(k):
        mf.append(f"v_mfma_f32_32x32x16_bf16 {ar(16 * k, 16)}, {vr(ZQ, 4)}, {vr(ZQ, 4)}, 0")

    qk(0, 0, 0)
    qk(1, 0, 0)
    for k in range(3):
        zero(k)
    qk(0, 1, 8)
    qk(1, 1, 8)
    for k in range(3, 8):
        zero(k)
    sl = Slots(mf)

    def first(g):
        S = SREG[g][0]
        o = []
        if g == 0:
            for k in range(16):
                o += mask_ops(0, S, k)
            o.append(f"v_add_f32 {vr(vTHR[0])}, {f32hex(-32 * BIG)}, {vr(vTHR[0])}")
        o += rowmax(S, vMT + 1, vMT + 2)
        o.append(f"v_sub_f32 {vr(NEGM[g])}, {f32hex(-BIAS) if BIAS else '0'}, {vr(vMT + 1)}")
        o += [f"v_mov_b32 {vr(NEGM[g] + k)}, {vr(NEGM[g])}" for k in range(1, 16)]
        return o

    def shift(g):
        S = SREG[g][0]
        return [f"v_add_f32 {vr(S + k)}, {vr(S + k)}, {vr(NEGM[g])}" for k in range(16)]

    for f in range(8):
        sl.after(f, f"ds_read_b128 {fr(8 + f)}, {vr(vRD)} offset:{(16 + f) * 1024}")
    sl.spread(setup, 0, 10)
    sl.spread(first(0), 10, 19)
    sl.spread(first(1) + shift(0), 19, 27)
    sl.spread(sm_ops(0, 0, False, vET) + shift(1) + sm_ops(1, 0, False, vET + 4), 27, 40)
    if rest:
        sl.spread(rest, 2, 30)
    sl.after(30, f"@need #tile1 #hst\n s_barrier\n v_add_u32 {vr(vRD)}, {sr(sSLOT)}, {vr(vL16)}\n" + hsig)
    for k in range(8):
        sl.after(31 + k, f"ds_read_b128 {fr(k)}, {vr(vRD)} offset:{k * 1024}")
    sl.after(39, f"s_add_u32 m0, {sr(sW8K)}, {slot4}")
    if touch:
        sl.spread(touch, 32, 39)
    sl.emit(p)
    st()

    AB, B = [0, 1], [1]

    def it(qk, sm, pv, acc, mask=()):
        return dict(qk=qk, sm=sm, pv=pv, acc=acc, mask=set(mask))

    def head(lab):
        p(f".p2align {cfg.get('loopalign', 6)}")
        for _ in range(cfg.get("looppad", 2)):
            p("s_nop 0")
        p.label(lab)

    p(f"""
    s_mov_b32 {sr(sCNT)}, 0
    s_cmp_eq_u32 {sr(sI)}, 0
    s_cbranch_scc1 ATT_D2
    s_lshl_b32 {sr(sCNT)}, {sr(sI)}, 1
    s_sub_u32 {sr(sCNT)}, {sr(sCNT)}, 2
    v_mov_b32 {vr(vTHR[0])}, {vr(vBASE)}
    """)
    head("ATT_DL")
    body(p, cfg, "DL", [it(AB, AB, AB, AB), it(AB, AB, AB, AB)], loop="ATT_DL")
    p(f"s_mov_b32 {sr(sCNT)}, 1")
    p.label("ATT_D2")
    body(p, cfg, "D2", [it(AB, AB, AB, AB, [0]), it(AB, AB, AB, AB, [0])], loop="ATT_D2")
    body(p, cfg, "D3", [it(B, AB, AB, AB, [0]), it(B, B, AB, AB, [1])], extra=(1, ctx_addr()))
    ctx_epilogue(p, cfg, 0, [])
    st()
    p(f"""
    s_mov_b32 {sr(sCNT)}, 0
    s_cmp_eq_u32 {sr(sI)}, 7
    s_cbranch_scc1 ATT_S2
    s_lshl_b32 {sr(sCNT)}, {sr(sI)}, 2
    s_sub_u32 {sr(sCNT)}, 26, {sr(sCNT)}
    v_mov_b32 {vr(vTHR[1])}, {vr(vBASE)}
    """)
    head("ATT_SL")
    body(p, cfg, "SL", [it(B, B, B, B), it(B, B, B, B)], loop="ATT_SL")
    p(f"s_mov_b32 {sr(sCNT)}, 1")
    p.label("ATT_S2")
    body(p, cfg, "S2", [it(B, B, B, B, [1]), it(B, B, B, B, [1])], loop="ATT_S2")
    pre_last()
    body(p, cfg, "S3", [it([], B, B, B, [1]), it([], [], B, B)], last=True, extra=(1, last_fill))
    st()


def ctx_addr():
    return [f"""
    v_bfe_u32 {vr(vX0)}, v0, 4, 1
    s_and_b32 {sr(sT0)}, {sr(sW)}, 1
    s_lshl_b32 {sr(sT0)}, {sr(sT0)}, 1
    s_lshr_b32 {sr(sT1)}, {sr(sH)}, 3
    s_sub_u32 {sr(sT0)}, {sr(sT0)}, {sr(sT1)}
    v_add_u32 {vr(vX0)}, {sr(sT0)}, {vr(vX0)}
    v_and_b32 {vr(vX0)}, 3, {vr(vX0)}
    v_lshlrev_b32 {vr(vCST)}, 10, {vr(vX0)}
    v_lshrrev_b32 {vr(vX1)}, 5, v0
    v_lshl_add_u32 {vr(vCST)}, {vr(vX1)}, 8, {vr(vCST)}
    v_and_b32 {vr(vX1)}, 15, v0
    v_lshl_add_u32 {vr(vCST)}, {vr(vX1)}, 4, {vr(vCST)}
    s_lshr_b32 {sr(sT0)}, {sr(sW)}, 1
    s_lshl_b32 {sr(sT0)}, {sr(sT0)}, 12
    s_lshl_b32 {sr(sT1)}, {sr(sH)}, 15
    s_add_u32 {sr(sT0)}, {sr(sT0)}, {sr(sT1)}
    s_add_u32 {sr(sT0)}, {sr(sT0)}, {WS_CTX}
    v_add_u32 {vr(vCST)}, {sr(sT0)}, {vr(vCST)}
    s_lshl_b32 {sr(sST)}, {sr(sI)}, 20
    """]


def ctx_epilogue(p, cfg, g, extra):
    VSC = cfg.get("vscale", 0)
    if g == 1:
        p(f"s_lshl_b32 {sr(sST)}, {sr(sI)}, 20\n s_sub_u32 {sr(sST)}, {15 << 20}, {sr(sST)}")
    T = 32 if g == 0 else 96
    l = vLSUM[g]
    p(f"""
    v_mov_b32 {vr(vMT)}, {vr(l)}
    v_permlane32_swap_b32 {vr(l)}, {vr(vMT)}
    v_add_f32 {vr(l)}, {vr(l)}, {vr(vMT)}
    """)
    if VSC:
        p(f"v_ldexp_f32 {vr(l)}, {vr(l)}, {VSC}")
    p(f"v_rcp_f32 {vr(l)}, {vr(l)}")
    extra = list(extra)
    per = (len(extra) + 7) // 8
    for n in range(8):
        db, gp = n >> 1, n & 1
        t = T + 12 * (n & 1)
        for k in range(8):
            p(f"v_accvgpr_read_b32 {vr(t + k)}, {ar(OREG[g] + 16 * db + 8 * gp + k)}")
        if cfg.get("pkmul", False):
            for k in range(0, 8, 2):
                p(f"v_pk_mul_f32 {vr(t + k, 2)}, {vr(t + k, 2)}, {vr(vLSUM[0], 2)} op_sel:[0,{g}] op_sel_hi:[1,{g}]")
        else:
            for k in range(8):
                p(f"v_mul_f32 {vr(t + k)}, {vr(t + k)}, {vr(l)}")
        for k in range(4):
            p(f"v_cvt_pk_bf16_f32 {vr(t + 8 + k)}, {vr(t + 2 * k)}, {vr(t + 2 * k + 1)}")
        p(f"buffer_store_dwordx4 {vr(t + 8, 4)}, {vr(vCST)}, {sr(S_WS, 4)}, {sr(sST)} offen offset:{gp * 512} sc1 @@ctxst")
        if gp == 1 and db < 3:
            p(f"s_add_u32 {sr(sST)}, {sr(sST)}, 8192")
        if cfg.get("tailmix", False):
            for x in extra[:per]:
                p(x)
            del extra[:per]
    for x in extra:
        p(x)


def gen_attention_rare(p, cfg):
    BIAS = cfg.get("bias", 0.0)
    for lab, par, groups in sites:
        p.label(lab)
        p("s_waitcnt vmcnt(0) lgkmcnt(0)")
        for g in groups:
            p(f"s_call_b64 {sr(sRET, 2)}, FIXS_{g}_{par}")
            p(f"s_call_b64 {sr(sRET, 2)}, FIXO_{g}")
        p(f"s_branch {lab}_ret")
    for g in range(2):
        for par in range(2):
            p.label(f"FIXS_{g}_{par}")
            S, S2 = SREG[g][par], SREG[g][par ^ 1]
            d = vMT + 1
            for x in rowmax(S, d, vMT + 2):
                p(x)
            if BIAS:
                p(f"v_add_f32 {vr(d)}, {f32hex(BIAS)}, {vr(d)}")
            p(f"v_max_f32 {vr(d)}, 0, {vr(d)}")
            p(f"v_exp_f32 {vr(vSC[g])}, -{vr(d)}")
            for base in (NEGM[g], S, S2):
                for k in range(16):
                    p(f"v_sub_f32 {vr(base + k)}, {vr(base + k)}, {vr(d)}")
            p(f"v_mul_f32 {vr(vLSUM[g])}, {vr(vLSUM[g])}, {vr(vSC[g])}")
            for x in sm_ops(g, par, False, vET + 4 * g):
                p(x)
            p(f"s_setpc_b64 {sr(sRET, 2)}")
        p.label(f"FIXO_{g}")
        for b in range(0, 64, 4):
            for k in range(4):
                p(f"v_accvgpr_read_b32 {vr(vET + k)}, {ar(OREG[g] + b + k)}")
            for k in range(4):
                p(f"v_mul_f32 {vr(vET + k)}, {vr(vET + k)}, {vr(vSC[g])}")
            for k in range(4):
                p(f"v_accvgpr_write_b32 {ar(OREG[g] + b + k)}, {vr(vET + k)}")
        p(f"s_setpc_b64 {sr(sRET, 2)}")
```

```python
from asmlib import *

BLK = 16384
NBLK = 10


def ldsaddr(vbase, addr):
    return vr(vbase + addr // 65536), addr % 65536


def lines(text):
    return [x.strip() for x in text.split("\n") if x.strip()]


def cost(text, vmcost=4):
    c = 0
    for x in lines(text):
        if x.startswith("@") or x.endswith(":"):
            continue
        op = x.split()[0]
        if op.startswith(TRANS):
            c += 8
        elif op.startswith("buffer_") or op.startswith("global_"):
            c += vmcost
        else:
            c += 4
    return c


def split_items(items):
    out = []
    for it in items:
        for x in lines(it):
            op = x.split()[0]
            if out and (op.startswith("s_cselect") or op.startswith("s_addc") or op.startswith("s_cbranch")
                        or x.endswith(":")):
                out[-1] += "\n" + x
            else:
                out.append(x)
    return out


class Sched:
    def __init__(self, backbone, cap, vmcost=4):
        self.bb = list(backbone)
        self.n = len(self.bb)
        self.cap = [cap] * self.n
        self.fixed = [[] for _ in self.bb]
        self.front = [[] for _ in self.bb]
        self.chains = []
        self.vmcost = vmcost
        self.place = {}

    def fix(self, slot, text, c=None, front=False):
        (self.front if front else self.fixed)[slot].append(text)
        self.cap[slot] -= cost(text, self.vmcost) if c is None else c

    def chain(self, items):
        if items:
            it = [list(x) for x in items]
            for k in range(len(it) - 2, -1, -1):
                it[k][2] = min(it[k][2], it[k + 1][2])
            self.chains.append(it)

    def spread(self, items, lo, hi, early=2, late=3):
        items = split_items(items)
        tot = sum(cost(x, self.vmcost) for x in items)
        acc = 0
        ch = []
        for x in items:
            t = lo + (acc * (hi - lo)) // max(tot, 1)
            acc += cost(x, self.vmcost)
            ch.append((x, max(lo, t - early), min(hi - 1, t + late)))
        self.chain(ch)

    def run(self):
        pos = [0] * len(self.chains)
        self.out = [[] for _ in self.bb]
        self.over = [0] * self.n

        def ismem(t):
            return t.startswith(("ds_", "buffer_", "global_"))

        def hasvalu(t):
            return any(x.startswith("v_") for x in lines(t))

        for s in range(self.n):
            room = self.cap[s]
            blocked = set()
            valu = set()
            head, rest = [], []
            while True:
                best = None
                for ci, ch in enumerate(self.chains):
                    if ci in blocked or pos[ci] >= len(ch):
                        continue
                    it = ch[pos[ci]]
                    if it[1] > s and it[2] > s:
                        continue
                    c = cost(it[0], self.vmcost)
                    if ismem(it[0]) and ci in valu:
                        if it[2] > s:
                            continue
                        c += 8
                    if c > room and it[2] > s:
                        continue
                    if best is None or it[2] < best[0]:
                        best = (it[2], ci, c)
                if best is None:
                    break
                _, ci, c = best
                it = self.chains[ci][pos[ci]]
                if hasvalu(it[0]):
                    valu.add(ci)
                (rest if ci in valu else head).append(it[0])
                assert s >= (it[4] if len(it) > 4 else it[1]), ("placed before release", it, s)
                if len(it) > 3 and it[3] is not None:
                    self.place[it[3]] = s
                room -= c
                pos[ci] += 1
                if " m0," in it[0] and pos[ci] < len(self.chains[ci]) and self.chains[ci][pos[ci]][2] > s:
                    blocked.add(ci)
            self.out[s] = head + rest
            self.over[s] = max(0, -room)
        for ci, ch in enumerate(self.chains):
            assert pos[ci] == len(ch), ("unplaced", ch[pos[ci]])

    def emit(self, p, before=None):
        for s in range(self.n):
            if before and s in before:
                p(before[s])
            p(self.bb[s])
            for x in self.front[s] + self.out[s] + self.fixed[s]:
                p(x)


class Stage:
    def __init__(self, name, lb):
        self.name = name
        self.blocks = []
        self.mf = []
        self.reads = []
        self.fill = []
        self.at_barrier = []
        self.after_barrier = []
        self.lb = lb
        self.gate = None
        self.frac = None
        self.maxpace = None
        self.group = 8


class Pipe:
    def __init__(self, stages, dma_group, cfg, tag, npro, stampfn=None, gated=(), order=None):
        self.stages, self.cfg, self.tag = stages, cfg, tag
        nst = len(stages)
        start, mf = [], []
        for S in stages:
            start.append(len(mf))
            mf += S.mf
        total = len(mf)
        start.append(total)
        self.start, self.total, self.mf = start, total, mf
        bar = [start[n] - stages[n].lb - 1 for n in range(nst)]
        bar[0] = -1
        bar.append(total - 1)
        self.bar = bar
        blocks = [(n, j) for n, S in enumerate(stages) for j in range(len(S.blocks))]
        if order:
            blocks = order(blocks)
        free_at = [0] * NBLK
        seq = list(range(NBLK))
        self.saddr = saddr = [[None] * len(S.blocks) for S in stages]
        self.prolog_dma = []
        byb = {}
        fbmin = 0
        tags = [[] for _ in stages]
        for k, (n, j) in enumerate(blocks):
            kind, par = stages[n].blocks[j]
            slot = min(seq, key=lambda q: free_at[q])
            seq.remove(slot)
            seq.append(slot)
            fb = free_at[slot]
            free_at[slot] = (n + 1 if kind == "SCR" else n) + 1
            saddr[n][j] = slot * BLK
            if kind == "SCR":
                assert bar[fb] + 1 <= start[n], "scratch block not free in time"
                continue
            tags[n].append(f"#{tag}{k}")
            grp = dma_group(kind, par, slot * BLK, f"{tag}{k}")
            if k < npro:
                assert kind not in gated and fb == 0
                self.prolog_dma.append(grp)
                continue
            if kind in gated and stages[n].gate is not None:
                fb = max(fb, stages[n].gate + 1)
            fb = max(fb, fbmin)
            fbmin = fb
            byb.setdefault(fb, []).append((n, grp))
        self.free_at = free_at
        self.first_need = " ".join(tags[0])
        self.tags, self.stampfn = tags, stampfn
        self.dma = []
        self.dcur = 0
        for fb in sorted(byb):
            cnt = sum(len(g[1]) for g in byb[fb])
            S = stages[fb]
            frac = S.frac if S.frac is not None else cfg.get("spread", 0.9)
            mp = S.maxpace if S.maxpace is not None else cfg.get("maxpace", 8)
            lo = max(bar[fb] + 1, self.dcur)
            span = max(bar[fb + 1] - lo, 1)
            pace = min(max(1.0, span * frac / cnt), mp)
            for n, grp in byb[fb]:
                self.add_dma(grp, lo, pace, bar[n] - 1)
        self.extra_fixed = []

    def add_dma(self, grp, earliest, pace, limit):
        for setup, ins in grp:
            s = max(self.dcur, earliest)
            r = int(s)
            assert earliest <= limit, "DMA cannot be issued before its barrier"
            for x in setup:
                self.dma.append((x, max(earliest, r - 2), min(r + 2, limit), None, earliest))
            self.dma.append((ins, min(r, limit), min(r + 3, limit), None, earliest))
            self.dcur = s + pace

    def schedule(self):
        stages, start, bar, total, cfg = self.stages, self.start, self.bar, self.total, self.cfg
        nst = len(stages)
        mfins = [Ins(t) for t in self.mf]
        LAT = cfg.get("ldslat", 5)
        reads = []
        for n, S in enumerate(stages):
            for fn, fu in sorted(S.reads, key=lambda r: r[1]):
                t = fn(self.saddr[n])
                dst = Ins(t).writes
                g0 = start[n] + (fu // S.group) * S.group
                fu += start[n]
                e = fu - 1
                while e >= 0 and not (mfins[e].reads & dst):
                    e -= 1
                reads.append((t, n, e, fu, g0))
        void = set()
        for attempt in range(3):
            sc = Sched(self.mf, 8, cfg.get("vmcost", 4))
            self.prolog_reads = []
            ch = []
            for k, (t, n, e, fu, g0) in enumerate(reads):
                if n == 0 and e < 0 and len(self.prolog_reads) < 14:
                    self.prolog_reads.append(t)
                    sc.place[k] = -1
                    continue
                rel = max(e, bar[n] + 1, 0)
                dl = g0 - 1 - LAT
                if n < nst - 1:
                    dl = min(dl, bar[n + 1] - LAT)
                    assert rel < bar[n + 1], (stages[n].name, "read after next barrier", t)
                assert rel < fu, (stages[n].name, t)
                ch.append((t, rel, max(dl, rel), k))
            for k in range(len(ch) - 2, -1, -1):
                ch[k] = (ch[k][0], ch[k][1], max(ch[k][1], min(ch[k][2], ch[k + 1][2])), ch[k][3])
            for k in range(1, len(ch)):
                if ch[k][2] < ch[k - 1][2]:
                    ch[k] = (ch[k][0], ch[k][1], ch[k - 1][2], ch[k][3])
            sc.chains.append([list(x) for x in ch])
            sc.chain(self.dma)
            for n in range(1, nst):
                txt = "".join(x + "\n" for x in stages[n - 1].at_barrier)
                txt += f"@need {' '.join(self.tags[n])}\n s_waitcnt lgkmcnt(0)\n s_barrier\n"
                if self.stampfn:
                    txt += self.stampfn(n)
                sc.fix(bar[n], txt)
                ab = split_items(stages[n - 1].after_barrier)
                sc.chain([(x, bar[n] + 1, min(bar[n] + 2 + k, total - 1)) for k, x in enumerate(ab)])
            for slot, txt in self.extra_fixed:
                sc.fix(slot, txt)
            groups = sorted({r[4] for r in reads})
            for g0 in groups:
                if g0 > 0 and g0 not in void:
                    sc.cap[g0 - 1] -= 4
            for n, S in enumerate(stages):
                for items, lo, hi in S.fill:
                    if callable(items):
                        items = items(self.saddr[n])
                    sc.spread(items, lo + start[n], min(hi + start[n], total))
            sc.run()
            self.before = {}
            newvoid = set()
            for g0 in groups:
                lastbar = max(b for b in bar[:-1] if b < g0)
                regs = [Ins(r[0]).text.split()[1].rstrip(",") for k, r in enumerate(reads)
                        if r[4] == g0 and (sc.place[k] > lastbar or lastbar < 0) and sc.place[k] <= g0 - 3]
                if regs:
                    self.before[g0] = "@need " + " ".join(regs)
                else:
                    newvoid.add(g0)
            if newvoid == void:
                break
            void = newvoid
        for k, (t, n, e, fu, g0) in enumerate(reads):
            assert sc.place[k] < fu and (n == nst - 1 or sc.place[k] <= bar[n + 1])
            if cfg.get("verbose") and 0 <= sc.place[k] > g0 - 3:
                print(f"  late read {stages[n].name}: {t} at {sc.place[k] - start[n]} use {fu - start[n]}")
        self.sc = sc
        if cfg.get("verbose"):
            print("  over: " + " ".join(f"{S.name}={sum(sc.over[start[n]:start[n + 1]])}" for n, S in enumerate(stages)))

    def emit(self, p, extra_before=None):
        before = dict(self.before)
        for k, v in (extra_before or {}).items():
            before[k] = v + "\n" + before.get(k, "")
        self.sc.emit(p, before)
```

```python
import sys, json
from gen_common import *
from regs import *
from pipesched import *
import gen_att2 as ATT

PSTR = 272
PART = 64 * PSTR


def cexp(n, outre, outim, t0, t1):
    return [
        f"v_mul_f32 {vr(t0)}, {n}, {vr(vZA)}",
        f"v_mul_f32 {vr(t1)}, {n}, {vr(vZB)}",
        f"v_exp_f32 {vr(t0)}, {vr(t0)}",
        f"v_fract_f32 {vr(t1)}, {vr(t1)}",
        f"v_cos_f32 {vr(outre)}, {vr(t1)}",
        f"v_sin_f32 {vr(outim)}, {vr(t1)}",
        f"v_mul_f32 {vr(outre)}, {vr(outre)}, {vr(t0)}",
        f"v_mul_f32 {vr(outim)}, {vr(outim)}, {vr(t0)}",
    ]


def cmadd(dre, dim, lre, lim, hre, him, ure, uim):
    return [
        f"v_fma_f32 {vr(dre)}, {vr(lre)}, {vr(hre)}, {vr(ure)}",
        f"v_fma_f32 {vr(dim)}, {vr(lre)}, {vr(him)}, {vr(uim)}",
        f"v_fma_f32 {vr(dre)}, -{vr(lim)}, {vr(him)}, {vr(dre)}",
        f"v_fma_f32 {vr(dim)}, {vr(lim)}, {vr(hre)}, {vr(dim)}",
    ]


class Sync:
    def __init__(self, cfg):
        self.spins = []
        self.cfg = cfg

    def load(self, srd, soff, pa, pv):
        return f"buffer_load_dword {vr(pv)}, {vr(pa)}, {sr(srd, 4)}, {soff} offen sc1"

    def check(self, name, srd, soff, pa, pv):
        self.spins.append((name, srd, soff, pa, pv))
        return f"""
        POLL_{name}:
        v_cmp_ne_u32 vcc, 1, {vr(pv)}
        s_cbranch_vccnz SPIN_{name}
        POLLOK_{name}:
        """

    def emit(self, p):
        for name, srd, soff, pa, pv in self.spins:
            p(f"""
            SPIN_{name}:
            s_add_u32 {sr(sSPIN)}, {sr(sSPIN)}, 1
            s_cmp_gt_u32 {sr(sSPIN)}, 0x100000
            s_cbranch_scc1 POLLOK_{name}
            s_sleep {self.cfg.get('sleep', 2)}
            {self.load(srd, soff, pa, pv)}
            s_waitcnt vmcnt(0)
            s_branch POLL_{name}
            """)


def frag_read(dst, vb, blk, off):
    def fn(addrs):
        r, imm = ldsaddr(vb, addrs[blk] + off)
        return f"ds_read_b128 {dst}, {r} offset:{imm}"
    return fn


def tr_read(dst, vb, blk, off):
    def fn(addrs):
        r, imm = ldsaddr(vb, addrs[blk] + off)
        return f"ds_read_b64_tr_b16 {dst}, {r} offset:{imm}"
    return fn


def adv(r, step, mask=1023):
    return [f"s_add_u32 {sr(r)}, {sr(r)}, {step}", f"s_and_b32 {sr(r)}, {sr(r)}, {mask}"]


def dma_group(kind, par, addr, tag):
    out = []

    def one(pos, setup, vpat, srd, imm, flags="", linear=False):
        s = list(setup)
        if not linear or pos == 0:
            s.append(f"s_add_u32 m0, {sr(sWLDS)}, {addr + pos * 1024 - imm}")
        off = f" offset:{imm}" if imm else ""
        out.append((s, f"buffer_load_dwordx4 {vr(vpat)}, {sr(srd, 4)}, {sr(sD0)} offen{off}{flags} lds @@{tag}"))

    if kind == "C1":
        for pos in range(4):
            su = []
            if pos == 0:
                su = (adv(sRK, 128) if par else []) + [f"s_add_u32 {sr(sD0)}, {sr(sCKV)}, {sr(sRK)}"]
            if pos == 2:
                su = [f"s_add_u32 {sr(sD0)}, {sr(sD0)}, 8192"]
            one(pos, su, vK, S_CKV, (pos & 1) * 64)
    elif kind == "W":
        srd, rot, same = par
        for pos in range(4):
            su = []
            if pos == 0 and not same:
                su = [f"s_lshl_b32 {sr(sD0)}, {sr(rot)}, 12", f"s_add_u32 {sr(sD0)}, {sr(sD0)}, {sr(sWOFF)}"]
            one(pos, su, vW, srd, pos * 64)
    elif kind == "C2":
        u, xy = par
        for pos in range(4):
            su = []
            if pos % 2 == 0:
                su = [f"s_add_u32 {sr(sD0)}, {sr(sCKV2b if pos else sCKV2a)}, {(u - 4) * 32768 + xy * 8192}"]
            one(pos, su, vK, S_CKV, (pos & 1) * 64)
    elif kind == "SX":
        for pos in range(4):
            su = []
            if pos == 0:
                su = (adv(sRS, 256) if (par and par % 2 == 0) else []) + [f"s_add_u32 {sr(sD0)}, {sr(sXA)}, {sr(sRS)}"]
                if par & 1:
                    su.append(f"s_add_u32 {sr(sD0)}, {sr(sD0)}, 128")
            if pos == 2:
                su = [f"s_add_u32 {sr(sD0)}, {sr(sD0)}, 4096"]
            one(pos, su, vS, S_XA, (pos & 1) * 64)
    elif kind == "SB":
        for pos in range(4):
            su = [f"s_add_u32 {sr(sD0)}, {sr(sBOFF)}, {sr(sRS)}"] if pos == 0 else []
            one(pos, su, vN, S_BSEL, pos * 64)
    elif kind == "X":
        g, stg = par
        for pos in range(4):
            su = []
            if pos == 0:
                su = (adv(sRQ, 128) if (stg and g == 0) else []) + \
                    [f"s_add_u32 {sr(sD0)}, {sr(sXQB if g else sXQA)}, {sr(sRQ)}"]
            if pos == 2:
                su = [f"s_add_u32 {sr(sD0)}, {sr(sD0)}, 16384"]
            one(pos, su, vN, S_XB, (pos & 1) * 64)
    elif kind == "H":
        for pos in range(4):
            su = []
            if pos == 0:
                su = (adv(sR2, 128) if par else []) + \
                    [f"s_lshl_b32 {sr(sD0)}, {sr(sR2)}, 7", f"s_add_u32 {sr(sD0)}, {sr(sD0)}, {sr(sHO)}"]
            one(pos, su, vL16, S_WS, pos * 1024, " sc1", linear=True)
    elif kind == "C":
        for pos in range(4):
            su = []
            if pos == 0:
                su = [f"s_add_u32 {sr(sD0)}, {sr(sCO)}, {sr(sR2)}"]
            if pos == 2:
                su = [f"s_add_u32 {sr(sD0)}, {sr(sD0)}, 16384"]
            one(pos, su, vN, S_CSEL, (pos & 1) * 64)
    elif kind == "WO":
        for pos in range(4):
            su = []
            if pos == 0:
                su = (adv(sRO, 65536, 0xfffff) if par else []) + [f"s_add_u32 {sr(sD0)}, {sr(sRO)}, {sr(sWOO)}"]
            one(pos, su, vN, S_WO, pos * 64)
    elif kind == "CX":
        for pos in range(4):
            su = []
            if pos == 0:
                su = (adv(sRO2, 16384, 0x3ffff) if par else []) + [f"s_add_u32 {sr(sD0)}, {sr(sCTXO)}, {sr(sRO2)}"]
            one(pos, su, vL16, S_WS, pos * 1024, " sc1", linear=True)
    elif kind == "SCR":
        pass
    else:
        raise ValueError(kind)
    return out


def gen(cfg):
    timing = cfg.get("timing", False)
    p = Prog()
    sync = Sync(cfg)
    nstamp = [0]

    def st(va=vS):
        stamp(p, timing, nstamp[0], sTS, vX0, va, S_WS, sStamp)
        nstamp[0] += 1

    def fine(base):
        if not timing:
            return None
        return lambda n: f"s_memtime {sr(sTS, 2)}\n s_waitcnt lgkmcnt(0)\n v_writelane_b32 v95, {sr(sTS)}, {base + n}\n"

    def touch_code(srd, label, dst):
        p(f"""
        s_getpc_b64 {sr(srd, 2)}
        {label}:
        s_mov_b32 {sr(srd + 2)}, KA_codeend-{label}
        s_mov_b32 {sr(srd + 3)}, {SRD3}
        s_lshr_b32 {sr(sT0)}, s2, 3
        s_lshl_b32 {sr(sT0)}, {sr(sT0)}, 2
        s_add_u32 {sr(sT0)}, {sr(sT0)}, {sr(sW)}
        s_lshl_b32 {sr(sT0)}, {sr(sT0)}, 7
        v_lshlrev_b32 {vr(vX0)}, 14, v0
        buffer_load_dword {vr(dst)}, {vr(vX0)}, {sr(srd, 4)}, {sr(sT0)} offen
        """)

    p(f"""
    s_cmp_ge_u32 s2, 256
    s_cbranch_scc1 KA_end
    {"s_memrealtime " + sr(sRET, 2) if timing else ""}
    s_load_dwordx2 {sr(S_CKV, 2)}, s[0:1], {KA['CKV']}
    s_load_dwordx2 {sr(S_WUK, 2)}, s[0:1], {KA['WUK']}
    s_load_dwordx2 {sr(S_WUV, 2)}, s[0:1], {KA['WUV']}
    s_load_dwordx2 {sr(S_XA, 2)}, s[0:1], {KA['XA']}
    s_load_dwordx4 {sr(S_BSEL, 4)}, s[0:1], {KA['BRE']}
    s_load_dwordx2 {sr(S_XB, 2)}, s[0:1], {KA['XB']}
    s_load_dwordx2 {sr(S_WQ, 2)}, s[0:1], {KA['WQ']}
    s_load_dwordx2 {sr(S_WO, 2)}, s[0:1], {KA['WO']}
    s_load_dwordx4 {sr(S_CSEL, 4)}, s[0:1], {KA['CRE']}
    s_load_dwordx2 {sr(S_WS, 2)}, s[0:1], {KA['WS']}
    s_load_dwordx2 {sr(sDBGP, 2)}, s[0:1], {KA['DBG']}
    s_load_dwordx4 {sr(S_LRE, 4)}, s[0:1], {KA['LRE']}
    s_load_dwordx2 {sr(S_LDT, 2)}, s[0:1], {KA['LDT']}
    v_lshlrev_b32 {vr(vSIG)}, 16, v0
    v_lshrrev_b32 {vr(vX0)}, 6, v0
    v_and_b32 v0, 63, v0
    v_readfirstlane_b32 {sr(sW)}, {vr(vX0)}
    """)
    if cfg.get("pretouch", True):
        touch_code(S_E, "KA_pc", TMP)
    hs = 1 if cfg.get("hswap", True) else 0
    rk = cfg.get("rotk", (4, 4, 0))
    rq = cfg.get("rotq", (1, 2, 1))
    p(f"""
    s_and_b32 {sr(sT0)}, s2, 7
    s_lshr_b32 {sr(sT1)}, s2, 3
    s_and_b32 {sr(sT2)}, {sr(sT1)}, 3
    s_lshl_b32 {sr(sH)}, {sr(sT0)}, 2
    s_add_u32 {sr(sH)}, {sr(sH)}, {sr(sT2)}
    s_lshr_b32 {sr(sI)}, {sr(sT1)}, 2
    s_lshl_b32 {sr(sWLDS)}, {sr(sW)}, 12
    v_lshrrev_b32 {vr(vX0)}, 5, v0
    v_lshlrev_b32 {vr(vX0)}, 1, {vr(vX0)}
    v_and_b32 {vr(vX1)}, 3, v0
    v_xor_b32 {vr(vX0)}, {vr(vX0)}, {vr(vX1)}
    v_lshlrev_b32 {vr(vX0)}, 4, {vr(vX0)}
    v_lshrrev_b32 {vr(vX1)}, 2, v0
    v_lshl_add_u32 {vr(vW)}, {vr(vX1)}, 13, {vr(vX0)}
    v_lshl_add_u32 {vr(vN)}, {vr(vX1)}, 10, {vr(vX0)}
    v_lshrrev_b32 {vr(vK)}, 5, v0
    v_lshl_add_u32 {vr(vK)}, {vr(vK)}, 13, {vr(vN)}
    s_and_b32 {sr(sT0)}, {sr(sH)}, {hs}
    s_lshl_b32 {sr(sT0)}, {sr(sT0)}, 17
    s_lshl_b32 {sr(sCKV)}, {sr(sI)}, 18
    s_add_u32 {sr(sCKV)}, {sr(sCKV)}, {sr(sT0)}
    s_xor_b32 {sr(sCKV2b)}, {sr(sCKV)}, 0x20000
    s_lshl_b32 {sr(sT0)}, {sr(sW)}, 15
    s_add_u32 {sr(sCKV)}, {sr(sCKV)}, {sr(sT0)}
    s_lshl_b32 {sr(sWOFF)}, {sr(sW)}, 17
    s_lshl_b32 {sr(sT0)}, {sr(sH)}, 8
    s_add_u32 {sr(sWOFF)}, {sr(sWOFF)}, {sr(sT0)}
    s_mul_i32 {sr(sRK)}, {sr(sI)}, {rk[0]}
    s_bfe_u32 {sr(sT0)}, {sr(sH)}, 0x10001
    s_mul_i32 {sr(sT0)}, {sr(sT0)}, {rk[1]}
    s_add_u32 {sr(sRK)}, {sr(sRK)}, {sr(sT0)}
    s_lshr_b32 {sr(sT0)}, {sr(sH)}, 2
    s_mul_i32 {sr(sT0)}, {sr(sT0)}, {rk[2]}
    s_add_u32 {sr(sRK)}, {sr(sRK)}, {sr(sT0)}
    s_and_b32 {sr(sRK)}, {sr(sRK)}, 7
    s_lshl_b32 {sr(sRK)}, {sr(sRK)}, 7
    s_lshl_b32 {sr(sT0)}, {sr(sW)}, 8
    s_add_u32 {sr(sT0)}, {sr(sT0)}, {sr(sRK)}
    s_and_b32 {sr(sT1)}, {sr(sT0)}, 1023
    s_add_u32 {sr(sCKV2a)}, {sr(sCKV2b)}, {sr(sT1)}
    s_add_u32 {sr(sT0)}, {sr(sT0)}, 128
    s_and_b32 {sr(sT0)}, {sr(sT0)}, 1023
    s_add_u32 {sr(sCKV2b)}, {sr(sCKV2b)}, {sr(sT0)}
    """)
    for s, n in ((S_CKV, 2048 * 1024), (S_WUK, 512 * 8192), (S_WUV, 512 * 8192)):
        p(f"s_mov_b32 {sr(s + 2)}, {n}")
        p(f"s_mov_b32 {sr(s + 3)}, {SRD3}")
    p("s_waitcnt lgkmcnt(0)")

    late = f"""
    s_and_b32 {sr(sT0)}, s2, 7
    s_lshr_b32 {sr(sT1)}, s2, 3
    s_lshr_b32 {sr(sC)}, {sr(sT0)}, 1
    s_lshl_b32 {sr(sC)}, {sr(sC)}, 2
    s_lshr_b32 {sr(sT2)}, {sr(sT1)}, 3
    s_add_u32 {sr(sC)}, {sr(sC)}, {sr(sT2)}
    s_and_b32 {sr(sPG)}, {sr(sT0)}, 1
    s_lshl_b32 {sr(sPG)}, {sr(sPG)}, 3
    s_and_b32 {sr(sT2)}, {sr(sT1)}, 7
    s_add_u32 {sr(sPG)}, {sr(sPG)}, {sr(sT2)}
    v_and_b32 {vr(vX0)}, 15, v0
    s_and_b32 {sr(sT2)}, {sr(sW)}, 1
    s_lshl_b32 {sr(sT2)}, {sr(sT2)}, 4
    s_lshl_b32 {sr(sT3)}, {sr(sPG)}, 5
    s_add_u32 {sr(sT2)}, {sr(sT2)}, {sr(sT3)}
    v_add_lshl_u32 {vr(vX1)}, {vr(vX0)}, {sr(sT2)}, 1
    global_load_ushort {vr(vLA)}, {vr(vX1)}, {sr(S_LRE, 2)}
    global_load_ushort {vr(vLB)}, {vr(vX1)}, {sr(S_LIM, 2)}
    global_load_ushort {vr(vZA)}, {vr(vX1)}, {sr(S_LDT, 2)}
    s_add_u32 {sr(S_FLG)}, {sr(S_WS)}, {WS_FLG}
    s_addc_u32 {sr(S_FLG + 1)}, {sr(S_WS + 1)}, 0
    s_mov_b32 {sr(S_FLG + 2)}, 32768
    s_mov_b32 {sr(S_FLG + 3)}, {SRD3}
    v_lshlrev_b32 {vr(vL16)}, 4, v0
    v_mov_b32 {vr(DT)}, 0
    v_mov_b32 {vr(DT + 1)}, 0
    v_mov_b32 {vr(DT + 2)}, 0
    v_mov_b32 {vr(DT + 3)}, 0
    s_lshl_b32 {sr(sT0)}, s2, 2
    s_add_u32 {sr(sT0)}, {sr(sT0)}, {sr(sW)}
    s_lshl_b32 {sr(sT0)}, {sr(sT0)}, 10
    buffer_store_dwordx4 {vr(DT, 4)}, {vr(vL16)}, {sr(S_FLG, 4)}, {sr(sT0)} offen sc1 @@zero
    s_mov_b32 {sr(S_DBG)}, {sr(sDBGP)}
    s_mov_b32 {sr(S_DBG + 1)}, {sr(sDBGP + 1)}
    s_mov_b32 {sr(S_DBG + 2)}, 32
    s_mov_b32 {sr(S_DBG + 3)}, {SRD3}
    v_mov_b32 {vr(vONE)}, 1
    s_mov_b32 {sr(sSPIN)}, 0
    s_cmp_ge_u32 {sr(sW)}, 2
    s_cselect_b32 {sr(S_BSEL)}, {sr(S_BSEL + 2)}, {sr(S_BSEL)}
    s_cselect_b32 {sr(S_BSEL + 1)}, {sr(S_BSEL + 3)}, {sr(S_BSEL + 1)}
    s_bitcmp1_b32 {sr(sW)}, 0
    s_cselect_b32 {sr(S_CSEL)}, {sr(S_CSEL + 2)}, {sr(S_CSEL)}
    s_cselect_b32 {sr(S_CSEL + 1)}, {sr(S_CSEL + 3)}, {sr(S_CSEL + 1)}
    """
    for s, n in ((S_XA, 2048 * 1024), (S_BSEL, 512 * 1024), (S_XB, 2048 * 1024), (S_WQ, 512 * 8192),
                 (S_WO, 4096 * 1024), (S_CSEL, 512 * 1024), (S_WS, WS_END + (1 << 20 if timing else 0)),
                 (S_E, 65536)):
        late += f"s_mov_b32 {sr(s + 2)}, {n}\n s_mov_b32 {sr(s + 3)}, {SRD3}\n"
    late += f"""
    s_add_u32 {sr(S_E)}, {sr(S_WS)}, {WS_E}
    s_addc_u32 {sr(S_E + 1)}, {sr(S_WS + 1)}, 0
    s_mul_i32 {sr(sKVST)}, {sr(sH)}, {HEADSTRIDE}
    s_add_u32 {sr(S_KVR)}, {sr(S_WS)}, {sr(sKVST)}
    s_addc_u32 {sr(S_KVR + 1)}, {sr(S_WS + 1)}, 0
    s_lshl_b32 {sr(sT0)}, {sr(sI)}, 16
    s_sub_u32 {sr(S_KVR + 2)}, {33 * 32768}, {sr(sT0)}
    s_mov_b32 {sr(S_KVR + 3)}, {SRD3}
    s_lshl_b32 {sr(sT0)}, {sr(sI)}, 17
    s_add_u32 {sr(sKVST)}, {sr(sKVST)}, {sr(sT0)}
    s_and_b32 {sr(sT0)}, {sr(sH)}, {hs}
    s_lshl_b32 {sr(sT0)}, {sr(sT0)}, 16
    s_sub_u32 {sr(sKVST2)}, {sr(sKVST)}, {sr(sT0)}
    s_add_u32 {sr(sKVST)}, {sr(sKVST)}, {sr(sT0)}
    s_add_u32 {sr(sRS)}, {sr(sC)}, {sr(sPG)}
    s_mul_i32 {sr(sRS)}, {sr(sRS)}, {cfg.get("rots", 1)}
    s_and_b32 {sr(sRS)}, {sr(sRS)}, 3
    s_lshl_b32 {sr(sRS)}, {sr(sRS)}, 8
    s_mul_i32 {sr(sRQ)}, {sr(sI)}, {rq[0]}
    s_mul_i32 {sr(sT0)}, {sr(sH)}, {rq[1]}
    s_add_u32 {sr(sRQ)}, {sr(sRQ)}, {sr(sT0)}
    s_lshr_b32 {sr(sT0)}, {sr(sH)}, 2
    s_mul_i32 {sr(sT0)}, {sr(sT0)}, {rq[2]}
    s_add_u32 {sr(sRQ)}, {sr(sRQ)}, {sr(sT0)}
    s_and_b32 {sr(sRQ)}, {sr(sRQ)}, 7
    s_lshl_b32 {sr(sRQ)}, {sr(sRQ)}, 7
    s_lshl_b32 {sr(sXA)}, {sr(sC)}, 17
    s_lshr_b32 {sr(sT0)}, {sr(sW)}, 1
    s_lshl_b32 {sr(sT0)}, {sr(sT0)}, 16
    s_add_u32 {sr(sXA)}, {sr(sXA)}, {sr(sT0)}
    s_and_b32 {sr(sT0)}, {sr(sW)}, 1
    s_lshl_b32 {sr(sT1)}, {sr(sT0)}, 13
    s_add_u32 {sr(sXA)}, {sr(sXA)}, {sr(sT1)}
    s_lshl_b32 {sr(sBOFF)}, {sr(sPG)}, 15
    s_lshl_b32 {sr(sT1)}, {sr(sT0)}, 14
    s_add_u32 {sr(sBOFF)}, {sr(sBOFF)}, {sr(sT1)}
    s_lshl_b32 {sr(sT0)}, {sr(sW)}, 15
    s_lshl_b32 {sr(sXQA)}, {sr(sI)}, 17
    s_sub_u32 {sr(sXQB)}, {15 << 17}, {sr(sXQA)}
    s_add_u32 {sr(sXQA)}, {sr(sXQA)}, {sr(sT0)}
    s_add_u32 {sr(sXQB)}, {sr(sXQB)}, {sr(sT0)}
    s_mov_b32 {sr(sQS)}, {f32hex(QSCALE)}
    """
    if timing:
        late += f"s_lshl_b32 {sr(sStamp)}, s2, 10\n s_add_u32 {sr(sStamp)}, {sr(sStamp)}, {WS_STAMP}\n"
    late += f"""
    v_lshrrev_b32 {vr(vX1)}, 4, v0
    v_mul_u32_u24 {vr(vS)}, {12 * 1024}, {vr(vX1)}
    v_add_u32 {vr(vS)}, {vr(vS)}, {vr(vN)}
    s_lshr_b32 {sr(sT0)}, {sr(sW)}, 1
    s_lshl_b32 {sr(sT0)}, {sr(sT0)}, 2
    v_add_u32 {vr(vSEG)}, {sr(sT0)}, {vr(vX1)}
    v_bfe_u32 {vr(vF)}, v0, 3, 1
    v_lshlrev_b32 {vr(vF)}, 1, {vr(vF)}
    v_xor_b32 {vr(vF)}, {vr(vF)}, {vr(vX1)}
    v_lshl_add_u32 {vr(vF)}, {vr(vX0)}, 2, {vr(vF)}
    v_lshlrev_b32 {vr(vF)}, 4, {vr(vF)}
    v_add_u32 {vr(vF + 1)}, 0x10000, {vr(vF)}
    v_add_u32 {vr(vF + 2)}, 0x20000, {vr(vF)}
    v_lshrrev_b32 {vr(vT)}, 5, v0
    v_lshlrev_b32 {vr(vT)}, 12, {vr(vT)}
    v_bfe_u32 {vr(vT + 1)}, v0, 4, 1
    v_mul_u32_u24 {vr(vT + 1)}, {512 + 32}, {vr(vT + 1)}
    v_add_u32 {vr(vT)}, {vr(vT)}, {vr(vT + 1)}
    v_bfe_u32 {vr(vT + 1)}, v0, 2, 2
    v_lshl_add_u32 {vr(vT)}, {vr(vT + 1)}, 6, {vr(vT)}
    v_and_b32 {vr(vT + 1)}, 3, v0
    v_lshl_add_u32 {vr(vT)}, {vr(vT + 1)}, 3, {vr(vT)}
    s_lshl_b32 {sr(sT0)}, {sr(sW)}, 10
    v_add_u32 {vr(vT)}, {sr(sT0)}, {vr(vT)}
    v_add_u32 {vr(vT + 1)}, 0x10000, {vr(vT)}
    v_add_u32 {vr(vT + 2)}, 0x20000, {vr(vT)}
    v_xor_b32 {vr(vT + 3)}, 32, {vr(vT)}
    v_xor_b32 {vr(vT + 4)}, 32, {vr(vT + 1)}
    v_xor_b32 {vr(vT + 5)}, 32, {vr(vT + 2)}
    s_lshr_b32 {sr(sT0)}, {sr(sW)}, 1
    s_lshl_b32 {sr(sT0)}, {sr(sT0)}, 13
    v_add_u32 {vr(vFA)}, {sr(sT0)}, {vr(vF)}
    v_add_u32 {vr(vFA + 1)}, {sr(sT0)}, {vr(vF + 1)}
    v_add_u32 {vr(vFA + 2)}, {sr(sT0)}, {vr(vF + 2)}
    s_and_b32 {sr(sT0)}, {sr(sW)}, 1
    s_lshl_b32 {sr(sT0)}, {sr(sT0)}, 12
    v_add_u32 {vr(vFB)}, {sr(sT0)}, {vr(vF)}
    v_add_u32 {vr(vFB + 1)}, {sr(sT0)}, {vr(vF + 1)}
    v_add_u32 {vr(vFB + 2)}, {sr(sT0)}, {vr(vF + 2)}
    v_bfe_u32 {vr(vKST)}, v0, 4, 1
    v_lshlrev_b32 {vr(vVST)}, 9, {vr(vKST)}
    v_lshlrev_b32 {vr(vKST)}, 10, {vr(vKST)}
    v_lshrrev_b32 {vr(vX1)}, 5, v0
    v_lshl_add_u32 {vr(vKST)}, {vr(vX1)}, 9, {vr(vKST)}
    v_lshl_add_u32 {vr(vVST)}, {vr(vX1)}, 12, {vr(vVST)}
    v_lshl_add_u32 {vr(vKST)}, {vr(vX0)}, 4, {vr(vKST)}
    v_bfe_u32 {vr(vX1)}, v0, 3, 1
    v_lshl_add_u32 {vr(vKST)}, {vr(vX1)}, 7, {vr(vKST)}
    v_lshl_add_u32 {vr(vVST)}, {vr(vX1)}, 6, {vr(vVST)}
    v_bfe_u32 {vr(vX1)}, v0, 2, 1
    v_lshl_add_u32 {vr(vVST)}, {vr(vX1)}, 7, {vr(vVST)}
    v_and_b32 {vr(vX1)}, 3, v0
    v_lshl_add_u32 {vr(vVST)}, {vr(vX1)}, 4, {vr(vVST)}
    s_lshl_b32 {sr(sT0)}, {sr(sW)}, 11
    v_add_u32 {vr(vKST)}, {sr(sT0)}, {vr(vKST)}
    s_lshl_b32 {sr(sT0)}, {sr(sW)}, 10
    s_add_u32 {sr(sT0)}, {sr(sT0)}, {5 * 8192}
    v_add_u32 {vr(vVST)}, {sr(sT0)}, {vr(vVST)}
    """

    stages = []
    ringpos = [0]

    def ring_alloc(size):
        r = RING + 4 * (ringpos[0] % size)
        ringpos[0] += 1
        return vr(r, 4)

    def kv_mfmas(S, ks, R, X, Y):
        w = [ar(16 * ks + 4 * j, 4) for j in range(4)]
        for a, b, d in ((w[0], X, 0), (w[0], Y, 8), (w[1], X, 4), (w[1], Y, 12),
                        (X, w[2], 16), (Y, w[2], 20), (X, w[3], 24), (Y, w[3], 28)):
            c = "0" if ks == 0 else vr(R + d, 4)
            S.mf.append(f"v_mfma_f32_16x16x32_bf16 {vr(R + d, 4)}, {a}, {b}, {c}")

    VSC = cfg.get("vscale", 0)

    def drain(unit, R, tmp=None):
        cv, stv = [], []
        for n in range(4):
            t = R + 8 * n if tmp is None else tmp + 4 * n
            for k in range(4):
                a, b = R + 8 * n + 2 * k, R + 8 * n + 2 * k + 1
                if n < 2:
                    cv += [f"v_mul_f32 {vr(a)}, {sr(sQS)}, {vr(a)}", f"v_mul_f32 {vr(b)}, {sr(sQS)}, {vr(b)}"]
                elif VSC:
                    cv += [f"v_ldexp_f32 {vr(a)}, {vr(a)}, {VSC}", f"v_ldexp_f32 {vr(b)}, {vr(b)}, {VSC}"]
                cv.append(f"v_cvt_pk_bf16_f32 {vr(t + k)}, {vr(a)}, {vr(b)}")
            va = vKST if n < 2 else vVST
            imm = (n & 1) * (128 if n < 2 else 256)
            s = f"buffer_store_dwordx4 {vr(t, 4)}, {vr(va)}, {sr(S_WS, 4)}, {sr(sST)} offen offset:{imm} sc1 @@kvst"
            if n == 0:
                s = f"s_add_u32 {sr(sST)}, {sr(sKVST if unit < 4 else sKVST2)}, {unit * 16384}\n" + s
            if cfg.get("nokvst") and not (unit == 7 and n == 0):
                s = "s_nop 0"
            if cfg.get("kvplain"):
                s = s.replace(" sc1 @@", " @@")
            stv.append(s)
        return cv, stv

    for n in range(8):
        S = Stage(f"kv1_{n}", 18)
        S.blocks = [("C1", n), ("W", (S_WUK, sRK, False)), ("W", (S_WUV, sRK, True))]
        for kk in range(2):
            ks = 2 * n + kk
            for j in range(4):
                for x in range(2):
                    S.reads.append((tr_read(ar(16 * ks + 4 * j + 2 * x, 2), vT + 3 * (j & 1), 1 + (j >> 1),
                                            kk * 8192 + x * 256), len(S.mf) + 2 * j))
            for u in range(4):
                X, Y = ring_alloc(8), ring_alloc(8)
                S.reads.append((frag_read(X, vF, 0, (4 * u + kk) * 1024), len(S.mf)))
                S.reads.append((frag_read(Y, vF, 0, (4 * u + 2 + kk) * 1024), len(S.mf) + 1))
                kv_mfmas(S, ks, RSET[u], X, Y)
        stages.append(S)

    def kv2_stage(u, R):
        S = Stage(f"kv2_{u}", 18)
        S.blocks = [("C2", (u, 0)), ("C2", (u, 1))]
        for ks in range(16):
            X, Y = ring_alloc(8), ring_alloc(8)
            S.reads.append((frag_read(X, vF, 0, ks * 1024), len(S.mf)))
            S.reads.append((frag_read(Y, vF, 1, ks * 1024), len(S.mf) + 1))
            kv_mfmas(S, ks, R, X, Y)
        return S

    def ssm_stage(n, R):
        S = Stage(f"ssm_{n}", 8)
        S.blocks = [("SX", 2 * n), ("SB", n), ("SX", 2 * n + 1)]
        for k4 in range(4):
            kh, kk = k4 >> 1, k4 & 1
            B = []
            for reim in range(2):
                r = ring_alloc(12)
                B.append(r)
                S.reads.append((frag_read(r, vFB, 1, reim * 8192 + k4 * 1024), len(S.mf) + reim))
            for rb in range(4):
                r = ring_alloc(12)
                S.reads.append((frag_read(r, vFA, 2 * kh, (2 * rb + kk) * 1024), len(S.mf)))
                for reim in range(2):
                    d = R + 16 * reim + 4 * rb
                    c = "0" if (n == 0 and k4 == 0) else vr(d, 4)
                    S.mf.append(f"v_mfma_f32_16x16x32_bf16 {vr(d, 4)}, {r}, {B[reim]}, {c}")
        return S

    QACC = [RSET[0], RSET[2], RSET[4], RSET[3]]
    RB = RSET[1]

    def qacc(db, qb):
        return QACC[db >> 1] + 16 * (db & 1) + 4 * qb

    qring = [0, 0]

    def q_stage(n):
        S = Stage(f"q_{n}", 14)
        S.blocks = [("X", (0, n)), ("W", (S_WQ, sRQ, False)), ("X", (1, n))]
        for kk in range(2):
            xs = []
            base = len(S.mf)
            for qb in range(4):
                r = ar(128 + 4 * (qring[0] % 12), 4)
                qring[0] += 1
                xs.append(r)
                S.reads.append((frag_read(r, vFA, 2 * (qb >> 1), (2 * (qb & 1) + kk) * 1024), base + qb))
            for db in range(8):
                rr = 192 + 4 * (qring[1] % 8)
                qring[1] += 1
                for x in range(2):
                    S.reads.append((tr_read(ar(rr + 2 * x, 2), vT + 3 * (db & 1), 1,
                                            kk * 8192 + (db >> 1) * 1024 + x * 256), len(S.mf)))
                for qb in range(4):
                    d = qacc(db, qb)
                    c = "0" if (n == 0 and kk == 0) else vr(d, 4)
                    S.mf.append(f"v_mfma_f32_16x16x32_bf16 {vr(d, 4)}, {ar(rr, 4)}, {xs[qb]}, {c}")
        return S

    U4 = kv2_stage(4, RSET[4])
    U5 = kv2_stage(5, RSET[0])
    ringpos[0] = 0
    SS = [ssm_stage(n, RB) for n in range(4)]
    ringpos[0] = 0
    U6 = kv2_stage(6, RSET[2])
    U7 = kv2_stage(7, RSET[3])
    U6.lb = 7
    SS[0].lb = 14
    QS = [q_stage(n) for n in range(8)]
    stages += [U4, U5] + SS + [U6, U7] + QS
    for k, v in cfg.get("frac", {}).items():
        stages[int(k)].frac = v
    for k, v in cfg.get("mpace", {}).items():
        stages[int(k)].maxpace = v

    UR = [RSET[0], RSET[1], RSET[2], RSET[3], RSET[4], RSET[0], RSET[2], RSET[3]]
    byname = {"U4": U4, "U5": U5, "U6": U6, "U7": U7, "S0": SS[0]}
    dplan = cfg.get("drains", [["U4", 4, 36, 36, 44], ["U4", 64, 96, 96, 104], ["U5", 4, 36, 36, 44],
                               ["U5", 64, 96, 96, 104], ["U6", 2, 30, 30, 38], ["U6", 64, 96, 96, 104],
                               ["U7", 64, 96, 96, 104]])
    for u, (nm, a, b, c, d) in enumerate(dplan):
        cv, stv = drain(u, UR[u])
        byname[nm].fill.append((cv, a, b))
        byname[nm].fill.append((stv, c, d))
    cv7, st7 = drain(7, RSET[3], RING)
    QS[0].fill.append((cv7, 2, 22))
    QS[0].fill.append((st7, *cfg.get("st7", (24, 32))))

    def signal(line_sgpr_setup, sig=vSIG, one=vONE):
        return line_sgpr_setup + f"\n buffer_store_dword {vr(one)}, {vr(sig)}, {sr(S_FLG, 4)}, {sr(sFO)} offen sc1"

    stages[0].at_barrier.append("@need #zero")
    stages[0].after_barrier.append(f"v_lshl_add_u32 {vr(vPA)}, s2, 2, {vr(vSIG)}\n"
                                   f"buffer_store_dword {vr(vONE)}, {vr(vPA)}, {sr(S_DBG, 4)}, 0 offen sc1")
    tch = cfg.get("touch1")
    if tch:
        gw = f"s_lshl_b32 {sr(sT0)}, s2, 2\n s_add_u32 {sr(sT0)}, {sr(sT0)}, {sr(sW)}\n s_lshl_b32 {sr(sT0)}, {sr(sT0)}, 7"
        tl = [[gw, f"v_lshlrev_b32 {vr(vX0)}, 17, v0",
               f"buffer_load_dword {vr(TMP + 1)}, {vr(vX0)}, {sr(S_XA, 4)}, {sr(sT0)} offen"],
              [f"s_lshl_b32 {sr(sT0)}, s2, 1\n s_and_b32 {sr(sT1)}, {sr(sW)}, 1",
               f"s_add_u32 {sr(sT0)}, {sr(sT0)}, {sr(sT1)}\n s_lshl_b32 {sr(sT0)}, {sr(sT0)}, 7",
               f"v_lshlrev_b32 {vr(vX0)}, 16, v0",
               f"buffer_load_dword {vr(TMP + 2)}, {vr(vX0)}, {sr(S_BSEL, 4)}, {sr(sT0)} offen"],
              [f"s_lshl_b32 {sr(sT0)}, {sr(sI)}, 2\n s_add_u32 {sr(sT0)}, {sr(sT0)}, {sr(sW)}",
               f"s_lshl_b32 {sr(sT0)}, {sr(sT0)}, 13\n s_lshl_b32 {sr(sT1)}, {sr(sH)}, 8",
               f"s_add_u32 {sr(sT0)}, {sr(sT0)}, {sr(sT1)}\n v_and_b32 {vr(vX0)}, 1, v0",
               f"v_lshlrev_b32 {vr(vX0)}, 7, {vr(vX0)}\n v_lshrrev_b32 {vr(vX1)}, 1, v0",
               f"v_lshl_add_u32 {vr(vX0)}, {vr(vX1)}, 18, {vr(vX0)}",
               f"buffer_load_dword {vr(TMP + 3)}, {vr(vX0)}, {sr(S_WQ, 4)}, {sr(sT0)} offen"],
              [gw, f"v_lshlrev_b32 {vr(vX0)}, 17, v0",
               f"buffer_load_dword {vr(TMP + 4)}, {vr(vX0)}, {sr(S_XB, 4)}, {sr(sT0)} offen"]]
        for (stg, slot), items in zip(tch, tl):
            if stg >= 0:
                stages[stg].fill.append((items, slot, slot + len(items)))
    U5.fill.append(([f"v_lshlrev_b32 {vr(vLA)}, 16, {vr(vLA)}",
                     f"v_lshlrev_b32 {vr(vLB)}, 16, {vr(vLB)}",
                     f"v_lshlrev_b32 {vr(vZA)}, 16, {vr(vZA)}",
                     f"v_mul_f32 {vr(vZA)}, {f32hex(LOG2E)}, {vr(vZA)}",
                     f"v_exp_f32 {vr(vZA)}, {vr(vZA)}",
                     f"v_and_b32 {vr(vPA)}, 7, v0",
                     f"v_cvt_pk_bf16_f32 {vr(vZA)}, {vr(vZA)}, {vr(vZA)}",
                     f"v_lshlrev_b32 {vr(vZA)}, 16, {vr(vZA)}",
                     f"v_mul_f32 {vr(vZB)}, {vr(vZA)}, {vr(vLB)}",
                     f"v_mul_f32 {vr(vZA)}, {vr(vZA)}, {vr(vLA)}",
                     f"v_mul_f32 {vr(vZB)}, {f32hex(1.0 / (2 * math.pi))}, {vr(vZB)}",
                     f"v_mul_f32 {vr(vZA)}, {f32hex(LOG2E)}, {vr(vZA)}",
                     f"v_lshlrev_b32 {vr(vPA)}, 2, {vr(vPA)}",
                     sync.load(S_DBG, "0", vPA, vPV)], 44, 64))
    U6.at_barrier.append(sync.check("Z", S_DBG, "0", vPA, vPV))

    U6.blocks.append(("SCR", None))
    E0 = TMP

    def scan1(addrs):
        a = addrs[2]
        lr, li = E0, E0 + 1
        out = cexp("1.0", lr, li, E0 + 2, E0 + 3)
        cur = (RB, RB + 16)
        for t in range(1, 16):
            d = (E0 + 4 + 2 * (t & 1), E0 + 5 + 2 * (t & 1))
            out += cmadd(d[0], d[1], lr, li, cur[0], cur[1], RB + t, RB + 16 + t)
            cur = d
        assert cur == (E0 + 6, E0 + 7)
        out += [f"v_and_b32 {vr(vX0)}, 15, v0",
                f"s_and_b32 {sr(sT0)}, {sr(sW)}, 1\n s_lshl_b32 {sr(sT0)}, {sr(sT0)}, 7",
                f"s_add_u32 {sr(sT0)}, {sr(sT0)}, {a}",
                f"v_lshl_add_u32 {vr(E0 + 8)}, {vr(vX0)}, 3, {sr(sT0)}",
                f"v_lshl_add_u32 {vr(vX1)}, {vr(vSEG)}, 8, {vr(E0 + 8)}",
                f"ds_write_b64 {vr(vX1)}, {vr(E0 + 6, 2)}"]
        return out

    U6.fill.append((scan1, 6, 100))

    ER = RSET[4]
    vEA = vFB
    scan2 = [f"ds_read_b64 {vr(ER + 2 * s, 2)}, {vr(E0 + 8)} offset:{256 * s}" for s in range(8)]
    lr, li = E0, E0 + 1
    scan2 += cexp(f32hex(16.0), lr, li, E0 + 2, E0 + 3)
    scan2 += [f"v_mov_b32 {vr(vPRE)}, 0", f"v_mov_b32 {vr(vPRE + 1)}, 0",
              f"v_and_b32 {vr(vX0)}, 15, v0",
              f"s_and_b32 {sr(sT0)}, {sr(sW)}, 1\n s_lshl_b32 {sr(sT0)}, {sr(sT0)}, 7",
              f"s_lshl_b32 {sr(sT2)}, {sr(sPG)}, 8\n s_add_u32 {sr(sT0)}, {sr(sT0)}, {sr(sT2)}",
              f"v_lshl_add_u32 {vr(vEA)}, {vr(vX0)}, 3, {sr(sT0)}",
              f"v_lshl_add_u32 {vr(vX0)}, {vr(vSEG)}, 16, {vr(vEA)}",
              f"s_lshl_b32 {sr(sT0)}, {sr(sC)}, 12"]
    cur = (ER, ER + 1)
    for s in range(1, 8):
        scan2 += [f"v_cmp_eq_u32 vcc, {s}, {vr(vSEG)}"]
        d = (E0 + 4 + 2 * (s & 1), E0 + 5 + 2 * (s & 1))
        scan2 += cmadd(d[0], d[1], lr, li, cur[0], cur[1], ER + 2 * s, ER + 2 * s + 1)
        scan2 += [f"v_cndmask_b32 {vr(vPRE)}, {vr(vPRE)}, {vr(cur[0])}, vcc",
                  f"v_cndmask_b32 {vr(vPRE + 1)}, {vr(vPRE + 1)}, {vr(cur[1])}, vcc"]
        cur = d
    scan2 += [f"buffer_store_dwordx2 {vr(E0 + 6, 2)}, {vr(vX0)}, {sr(S_E, 4)}, {sr(sT0)} offen sc1 @@est"]
    U7.fill.append((scan2, 0, 58))
    U7.at_barrier.append("@need #est")
    U7.after_barrier.append(signal(f"s_lshl_b32 {sr(sFO)}, {sr(sPG)}, 5\n s_add_u32 {sr(sFO)}, {sr(sFO)}, {sr(sC)}\n"
                                   f"s_lshl_b32 {sr(sFO)}, {sr(sFO)}, 2\n s_add_u32 {sr(sFO)}, {sr(sFO)}, {FL_E * 128}"))
    U7.fill.append(([f"v_add_u32 {vr(vFA + k)}, {sr(sWLDS)}, {vr(vF + k)}" for k in range(3)] +
                    [f"s_lshl_b32 {sr(sT1)}, {sr(sW)}, 10"] +
                    [f"v_subrev_u32 {vr(vT + k)}, {sr(sT1)}, {vr(vT + k)}" for k in range(6)], 58, 70))

    kvsig = cfg.get("kvsig", 1)
    QS[kvsig].at_barrier.append("@need #kvst")
    QS[kvsig].after_barrier.append(signal(f"s_lshl_b32 {sr(sFO)}, {sr(sH)}, 5\n s_add_u32 {sr(sFO)}, {sr(sFO)}, {sr(sI)}\n"
                                      f"s_lshl_b32 {sr(sFO)}, {sr(sFO)}, 2"))

    EV = 48
    LAM, L128, LSEG, COEF, CT = 78, 80, 82, 84, 86
    s2a = cexp("1.0", LAM, LAM + 1, CT, CT + 1) + [
        f"v_add_f32 {vr(CT)}, -1.0, {vr(LAM)}",
        f"v_mul_f32 {vr(CT + 1)}, {vr(vLA)}, {vr(vLA)}",
        f"v_fmac_f32 {vr(CT + 1)}, {vr(vLB)}, {vr(vLB)}",
        f"v_rcp_f32 {vr(CT + 1)}, {vr(CT + 1)}",
        f"v_mul_f32 {vr(COEF)}, {vr(CT)}, {vr(vLA)}",
        f"v_fmac_f32 {vr(COEF)}, {vr(LAM + 1)}, {vr(vLB)}",
        f"v_mul_f32 {vr(COEF + 1)}, {vr(LAM + 1)}, {vr(vLA)}",
        f"v_fma_f32 {vr(COEF + 1)}, -{vr(CT)}, {vr(vLB)}, {vr(COEF + 1)}",
        f"v_add_f32 {vr(CT + 1)}, {vr(CT + 1)}, {vr(CT + 1)}",
        f"v_mul_f32 {vr(COEF)}, {vr(COEF)}, {vr(CT + 1)}",
        f"v_mul_f32 {vr(COEF + 1)}, {vr(COEF + 1)}, {vr(CT + 1)}"]
    s2a += cexp(f32hex(128.0), L128, L128 + 1, CT, CT + 1)
    s2a += [f"v_cvt_f32_u32 {vr(vX0)}, {vr(vSEG)}", f"v_mul_f32 {vr(vX0)}, {f32hex(16.0)}, {vr(vX0)}"]
    s2a += cexp(vr(vX0), LSEG, LSEG + 1, CT, CT + 1)
    epoll = cfg.get("epoll", 2)
    s2a += [f"v_and_b32 {vr(vPA)}, 15, v0", f"v_lshlrev_b32 {vr(vPA)}, 2, {vr(vPA)}"]
    QS[1].fill.append((s2a, 0, 48))
    QS[epoll].fill.append(([f"s_lshl_b32 {sr(sFO)}, {sr(sPG)}, 7\n s_add_u32 {sr(sFO)}, {sr(sFO)}, {FL_E * 128}",
                            sync.load(S_FLG, sr(sFO), vPA, vPV)], 4, 8))
    QS[epoll].at_barrier.append(sync.check("E", S_FLG, sr(sFO), vPA, vPV))
    eload = []
    for k in range(15):
        eload.append(f"s_add_i32 {sr(sT0)}, {sr(sC)}, {k - 15}\n s_min_u32 {sr(sT0)}, {sr(sT0)}, 16")
        eload.append(f"s_lshl_b32 {sr(sT0)}, {sr(sT0)}, 12\n"
                     f"buffer_load_dwordx2 {vr(EV + 2 * k, 2)}, {vr(vEA)}, {sr(S_E, 4)}, {sr(sT0)} offen sc1")
    QS[epoll].fill.append((eload, 51, 64 + 30))
    A = RING
    s2b = []
    cur = (EV, EV + 1)
    for k in range(1, 15):
        d = (A + 2 * (k & 1), A + 1 + 2 * (k & 1))
        s2b += cmadd(d[0], d[1], L128, L128 + 1, cur[0], cur[1], EV + 2 * k, EV + 2 * k + 1)
        cur = d
    s2b += cmadd(A + 2, A + 3, LSEG, LSEG + 1, cur[0], cur[1], vPRE, vPRE + 1)
    assert cur == (A, A + 1)
    cur = (A + 2, A + 3)
    for t in range(16):
        d = (A + 2 * (t & 1), A + 1 + 2 * (t & 1))
        o = (A + 4 + (t & 1), A + 6 + (t & 1))
        s2b += cmadd(d[0], d[1], LAM, LAM + 1, cur[0], cur[1], RB + t, RB + 16 + t)
        cur = d
        s2b += [f"v_mul_f32 {vr(o[0])}, {vr(COEF)}, {vr(d[0])}",
                f"v_mul_f32 {vr(o[1])}, {vr(COEF)}, {vr(d[1])}",
                f"v_fma_f32 {vr(o[0])}, -{vr(COEF + 1)}, {vr(d[1])}, {vr(o[0])}",
                f"v_fma_f32 {vr(o[1])}, -{vr(COEF + 1)}, {vr(d[0])}, -{vr(o[1])}"]
        if t & 1:
            s2b += [f"v_cvt_pk_bf16_f32 {vr(RB + t // 2)}, {vr(A + 4)}, {vr(A + 5)}",
                    f"v_cvt_pk_bf16_f32 {vr(RB + 16 + t // 2)}, {vr(A + 6)}, {vr(A + 7)}"]
    s2b += [f"s_lshl_b32 {sr(sT1)}, {sr(sC)}, 18\n s_lshr_b32 {sr(sT2)}, {sr(sW)}, 1",
            f"s_lshl_b32 {sr(sT2)}, {sr(sT2)}, 17\n s_add_u32 {sr(sT1)}, {sr(sT1)}, {sr(sT2)}",
            f"s_lshl_b32 {sr(sT2)}, {sr(sPG)}, 13\n s_add_u32 {sr(sT1)}, {sr(sT1)}, {sr(sT2)}",
            f"s_and_b32 {sr(sT2)}, {sr(sW)}, 1\n s_lshl_b32 {sr(sT2)}, {sr(sT2)}, 11",
            f"s_add_u32 {sr(sT1)}, {sr(sT1)}, {sr(sT2)}\n s_add_u32 {sr(sT1)}, {sr(sT1)}, {WS_HF}",
            f"v_mov_b32 {vr(vSIG2)}, {vr(vSIG)}", f"v_mov_b32 {vr(vONE2)}, 1"]
    hst = []
    for reim in range(2):
        for half in range(2):
            hst.append(f"buffer_store_dwordx4 {vr(RB + 16 * reim + 4 * half, 4)}, {vr(vL16)}, {sr(S_WS, 4)}, {sr(sT1)} "
                       f"offen offset:{half * 1024} sc1 @@hst")
        if reim == 0:
            hst.append(f"s_add_u32 {sr(sT1)}, {sr(sT1)}, 4096")
    s2lo = 64 * (epoll + 2) - 10
    QS[0].fill.append((s2b, s2lo, 64 * 7 + 36))

    QS[6].fill.append(([f"v_and_b32 {vr(vPA)}, 7, v0", f"v_lshlrev_b32 {vr(vPA)}, 2, {vr(vPA)}",
                        f"s_lshl_b32 {sr(sFO)}, {sr(sH)}, 7", sync.load(S_FLG, sr(sFO), vPA, vPV)], 6, 14))
    QS[6].at_barrier.append(sync.check("KV", S_FLG, sr(sFO), vPA, vPV))

    def qpack(cg):
        out = []
        for g in range(2):
            for hq in range(2):
                qb = 2 * g + hq
                dst = QREG[g] + 4 * (2 * cg + hq)
                src = [qacc(2 * cg, qb) + k for k in range(4)] + [qacc(2 * cg + 1, qb) + k for k in range(4)]
                out += [f"v_cvt_pk_bf16_f32 {vr(dst + k)}, {vr(src[2 * k])}, {vr(src[2 * k + 1])}" for k in range(4)]
        for g in range(2):
            d = QREG[g] + 8 * cg
            out += [f"v_permlane16_swap_b32 {vr(d + k)}, {vr(d + 4 + k)}" for k in range(4)]
        return out

    QS[7].fill.append((qpack(0), 42, 52))
    QS[7].fill.append((qpack(1), 52, 63))

    P1 = Pipe(stages, dma_group, cfg, "blk", cfg.get("npro", 6), fine(0))
    pairfree = [max(P1.free_at[2 * q], P1.free_at[2 * q + 1]) for q in range(5)]
    r0 = min(range(5), key=lambda q: [pairfree[(q + t) % 5] for t in range(4)])

    def tile_dma(tile, addr):
        out = []
        for j in range(8):
            su = []
            if j % 4 == 0:
                su = [f"s_mov_b32 {sr(sD0)}, {tile * 32768 + j * 1024}", f"s_add_u32 m0, {sr(sW8K)}, {addr + j * 1024}"]
            out.append((su, f"buffer_load_dwordx4 {vr(vW)}, {sr(S_KVR, 4)}, {sr(sD0)} offen offset:{(j % 4) * 1024} "
                            f"sc1 lds @@tile{tile}"))
        return out

    def tile_addr(t):
        return ((r0 + t) % 5) * 2 * BLK

    poll_bar = P1.bar[len(stages) - 1]
    P1.extra_fixed.append((poll_bar, f"s_lshl_b32 {sr(sW8K)}, {sr(sW)}, 13\n v_add_u32 {vr(vW)}, {sr(sW8K)}, {vr(vL16)}"))
    ntile_pre = 0
    tp = cfg.get("tilepace", 4)
    for t in range(cfg.get("ntilepre", 2)):
        e = max(P1.bar[pairfree[(r0 + t) % 5]], poll_bar) + 1
        if max(P1.dcur, e) + 8 * tp + 1 >= P1.total:
            break
        P1.add_dma(tile_dma(t, tile_addr(t)), e, tp, P1.total - 1)
        ntile_pre += 1
    P1.schedule()

    for gi, grp in enumerate(P1.prolog_dma):
        for setup, ins in grp:
            p("\n".join(setup))
            p(ins)
        if gi == 2:
            p(late)
            tlb = cfg.get("tlb", 0)
            if tlb:
                p(f"v_lshlrev_b32 {vr(vX0)}, {tlb}, v0\n s_lshl_b32 {sr(sT0)}, {sr(sW)}, {tlb - 2}")
                for k, srd in enumerate((S_WS, S_XA, S_BSEL, S_XB, S_WQ, S_WO, S_CSEL)):
                    p(f"buffer_load_dword {vr(TMP + 1 + k)}, {vr(vX0)}, {sr(srd, 4)}, {sr(sT0)} offen offset:8")
    if timing:
        p(f"v_mov_b32 {vr(vX0)}, {sr(sRET)}\n v_mov_b32 {vr(vX1)}, {sr(sRET)}\n v_mov_b32 v94, {63 * 8}")
        p(f"buffer_store_dwordx2 {vr(vX0, 2)}, v94, {sr(S_WS, 4)}, {sr(sStamp)} offen")
    st(94)
    p(f"@need {P1.first_need}\n s_barrier")
    st(94)
    for t in P1.prolog_reads:
        p(t)
    xb = {}
    if timing:
        for n in (8, 10, 14, 16):
            tq = Prog()
            stamp(tq, True, nstamp[0], sTS, 92, 94, S_WS, sStamp)
            nstamp[0] += 1
            xb[P1.start[n]] = "\n".join(x.text for x in tq.ins)
    P1.emit(p, xb)
    if timing:
        p(f"v_lshlrev_b32 v94, 2, v0\n buffer_store_dword v95, v94, {sr(S_WS, 4)}, {sr(sStamp)} offen offset:768")
    st()

    p("@need #tile0\n s_barrier")
    rest = []
    for t in range(ntile_pre, 4):
        rest += ["\n".join(su + [ins]) for su, ins in tile_dma(t, tile_addr(t))]
    hsig = signal(f"s_lshl_b32 {sr(sFO)}, {sr(sC)}, 5\n s_add_u32 {sr(sFO)}, {sr(sFO)}, {sr(sPG)}\n"
                  f"s_lshl_b32 {sr(sFO)}, {sr(sFO)}, 2\n s_add_u32 {sr(sFO)}, {sr(sFO)}, {FL_H * 128}", vSIG2, vONE2)

    SACC, OACC = 32, 96
    vH = vFB
    vCF = vFA
    vCX = vF
    ro, r2 = cfg.get("roto", (8, 8)), cfg.get("rot2", (1, 2))
    tail1 = [f"""
    s_and_b32 {sr(sT0)}, s2, 7
    s_lshr_b32 {sr(sT1)}, s2, 3
    s_lshl_b32 {sr(sRT64)}, {sr(sT0)}, 2
    s_lshr_b32 {sr(sT2)}, {sr(sT1)}, 3
    s_add_u32 {sr(sRT64)}, {sr(sRT64)}, {sr(sT2)}
    s_and_b32 {sr(sCT64)}, {sr(sT1)}, 7
    s_mul_i32 {sr(sR2)}, {sr(sCT64)}, {r2[0]}
    s_mul_i32 {sr(sT2)}, {sr(sT2)}, {r2[1]}
    s_add_u32 {sr(sR2)}, {sr(sR2)}, {sr(sT2)}
    s_and_b32 {sr(sR2)}, {sr(sR2)}, 7
    s_lshl_b32 {sr(sR2)}, {sr(sR2)}, 7
    s_lshl_b32 {sr(sHO)}, {sr(sRT64)}, 17
    s_add_u32 {sr(sHO)}, {sr(sHO)}, {sr(sWLDS)}
    s_add_u32 {sr(sHO)}, {sr(sHO)}, {WS_HF}
    s_lshl_b32 {sr(sCO)}, {sr(sCT64)}, 16
    s_lshr_b32 {sr(sT2)}, {sr(sW)}, 1
    s_lshl_b32 {sr(sT3)}, {sr(sT2)}, 15
    s_add_u32 {sr(sCO)}, {sr(sCO)}, {sr(sT3)}
    s_lshr_b32 {sr(sKQ)}, {sr(sT0)}, 1
    s_lshr_b32 {sr(sRT)}, {sr(sT1)}, 2
    s_and_b32 {sr(sCT)}, {sr(sT1)}, 3
    s_mul_i32 {sr(sRO)}, {sr(sRT)}, {ro[0]}
    s_mul_i32 {sr(sT2)}, {sr(sCT)}, {ro[1]}
    s_add_u32 {sr(sRO)}, {sr(sRO)}, {sr(sT2)}
    s_and_b32 {sr(sRO)}, {sr(sRO)}, 15
    s_lshl_b32 {sr(sRO2)}, {sr(sRO)}, 14
    s_lshl_b32 {sr(sRO)}, {sr(sRO)}, 16
    s_lshl_b32 {sr(sRT)}, {sr(sRT)}, 1
    s_and_b32 {sr(sT2)}, {sr(sT0)}, 1
    s_add_u32 {sr(sRT)}, {sr(sRT)}, {sr(sT2)}
    s_lshl_b32 {sr(sCTXO)}, {sr(sRT)}, 20
    s_lshl_b32 {sr(sT2)}, {sr(sKQ)}, 18
    s_add_u32 {sr(sCTXO)}, {sr(sCTXO)}, {sr(sT2)}
    s_add_u32 {sr(sCTXO)}, {sr(sCTXO)}, {sr(sWLDS)}
    s_add_u32 {sr(sCTXO)}, {sr(sCTXO)}, {WS_CTX}
    s_lshl_b32 {sr(sWOO)}, {sr(sKQ)}, 20
    s_lshl_b32 {sr(sT2)}, {sr(sW)}, 14
    s_add_u32 {sr(sWOO)}, {sr(sWOO)}, {sr(sT2)}
    s_lshl_b32 {sr(sT2)}, {sr(sCT)}, 8
    s_add_u32 {sr(sWOO)}, {sr(sWOO)}, {sr(sT2)}
    """]
    tail2 = f"""
    s_lshr_b32 {sr(sT2)}, {sr(sW)}, 1
    s_and_b32 {sr(sT0)}, {sr(sW)}, 1
    s_lshl_b32 {sr(sT1)}, {sr(sT0)}, 12
    s_lshl_b32 {sr(sT3)}, {sr(sT2)}, 10
    s_add_u32 {sr(sT1)}, {sr(sT1)}, {sr(sT3)}
    v_add_u32 {vr(vCF)}, {sr(sT1)}, {vr(vF)}
    v_add_u32 {vr(vCF + 1)}, {sr(sT1)}, {vr(vF + 1)}
    v_add_u32 {vr(vCF + 2)}, {sr(sT1)}, {vr(vF + 2)}
    s_lshl_b32 {sr(sT3)}, {sr(sT2)}, 12
    v_add_u32 {vr(vCX)}, {sr(sT3)}, {vr(vL16)}
    v_add_u32 {vr(vCX + 1)}, 0x10000, {vr(vCX)}
    v_add_u32 {vr(vCX + 2)}, 0x20000, {vr(vCX)}
    s_lshl_b32 {sr(sT1)}, {sr(sT0)}, 11
    """
    tail2 += "".join(f"v_add_u32 {vr(vT + k)}, {sr(sT1)}, {vr(vT + k)}\n" for k in range(6))
    tail2 += f"""
    v_lshrrev_b32 {vr(vX0)}, 5, v0
    v_lshl_add_u32 {vr(vH)}, {vr(vX0)}, 11, {sr(sWLDS)}
    v_bfe_u32 {vr(vX0)}, v0, 1, 1
    v_lshl_add_u32 {vr(vH)}, {vr(vX0)}, 10, {vr(vH)}
    v_bfe_u32 {vr(vX0)}, v0, 4, 1
    v_lshl_add_u32 {vr(vH)}, {vr(vX0)}, 7, {vr(vH)}
    v_bfe_u32 {vr(vX0)}, v0, 2, 2
    v_lshl_add_u32 {vr(vH)}, {vr(vX0)}, 4, {vr(vH)}
    v_and_b32 {vr(vX0)}, 1, v0
    v_lshl_add_u32 {vr(vH)}, {vr(vX0)}, 3, {vr(vH)}
    v_add_u32 {vr(vH + 1)}, 0x10000, {vr(vH)}
    v_add_u32 {vr(vH + 2)}, 0x20000, {vr(vH)}
    s_waitcnt lgkmcnt(0)
    s_mov_b32 {sr(S_OUT + 2)}, {2048 * 4096}
    s_mov_b32 {sr(S_OUT + 3)}, {SRD3}
    s_mov_b32 {sr(S_DSK + 2)}, 1024
    s_mov_b32 {sr(S_DSK + 3)}, {SRD3}
    """
    touch2 = lines(f"""
    v_lshlrev_b32 {vr(vX0)}, 7, v0
    s_lshl_b32 {sr(sT0)}, s2, 1
    s_and_b32 {sr(sT1)}, {sr(sW)}, 1
    s_add_u32 {sr(sT0)}, {sr(sT0)}, {sr(sT1)}
    s_lshr_b32 {sr(sT1)}, {sr(sW)}, 1
    s_lshl_b32 {sr(sT2)}, {sr(sT1)}, 9
    s_add_u32 {sr(sT0)}, {sr(sT0)}, {sr(sT2)}
    s_lshl_b32 {sr(sT0)}, {sr(sT0)}, 13
    buffer_load_dword {vr(vMT + 3)}, {vr(vX0)}, {sr(S_WO, 4)}, {sr(sT0)} offen
    v_lshlrev_b32 {vr(vX0)}, 16, v0
    s_lshl_b32 {sr(sT0)}, s2, 1
    s_add_u32 {sr(sT0)}, {sr(sT0)}, {sr(sT1)}
    s_lshl_b32 {sr(sT0)}, {sr(sT0)}, 7
    buffer_load_dword {vr(vMT + 4)}, {vr(vX0)}, {sr(S_CSEL, 4)}, {sr(sT0)} offen
    """) if cfg.get("touch2", True) else []

    def ctx_signal(g):
        rt = f"s_mov_b32 {sr(sFO)}, {sr(sI)}" if g == 0 else f"s_sub_u32 {sr(sFO)}, 15, {sr(sI)}"
        return signal(f"""{rt}
        s_lshl_b32 {sr(sFO)}, {sr(sFO)}, 2
        s_lshr_b32 {sr(sT0)}, {sr(sH)}, 3
        s_add_u32 {sr(sFO)}, {sr(sFO)}, {sr(sT0)}
        s_lshl_b32 {sr(sFO)}, {sr(sFO)}, 5
        s_and_b32 {sr(sT0)}, {sr(sH)}, 7
        s_add_u32 {sr(sFO)}, {sr(sFO)}, {sr(sT0)}
        s_lshl_b32 {sr(sFO)}, {sr(sFO)}, 2
        s_add_u32 {sr(sFO)}, {sr(sFO)}, {FL_CTX * 128}""", vSIG2, vONE2)

    def pre_last():
        if cfg.get("touch3", True):
            touch_code(S_CODE, "KA_pc2", 237)
        p(f"""
        v_and_b32 {vr(vPA2)}, 15, v0
        v_lshlrev_b32 {vr(vPA2)}, 2, {vr(vPA2)}
        s_and_b32 {sr(sFO)}, s2, 7
        s_lshl_b32 {sr(sFO)}, {sr(sFO)}, 8
        s_and_b32 {sr(sT0)}, s2, 128
        s_add_u32 {sr(sFO)}, {sr(sFO)}, {sr(sT0)}
        s_add_u32 {sr(sFO)}, {sr(sFO)}, {FL_H * 128}
        {sync.load(S_FLG, sr(sFO), vPA2, vPV2)}
        """)

    ATT.gen_attention(p, cfg, tile_addr(0), st, pre=qpack(2) + qpack(3), hst=hst, rest=rest, hsig=hsig,
                      touch=touch2, pre_last=pre_last, last_fill=tail1)

    tring = [0, 0]

    def s2_stage(n):
        S = Stage(f"s2_{n}", 9)
        S.frac = 0.8
        S.blocks = [("H", n), ("C", n)]
        cf = []
        for db in range(4):
            r = ar(128 + 4 * (tring[0] % 12), 4)
            tring[0] += 1
            cf.append(r)
            S.reads.append((frag_read(r, vCF, 1, (db >> 1) * 8192 + (db & 1) * 2048), db))
        for tb in range(4):
            rr = 192 + 4 * (tring[1] % 12)
            tring[1] += 1
            for x in range(2):
                S.reads.append((tr_read(ar(rr + 2 * x, 2), vH, 0, tb * 256 + x * 64), len(S.mf)))
            for db in range(4):
                d = SACC + 16 * tb + 4 * db
                c = "0" if n == 0 else vr(d, 4)
                S.mf.append(f"v_mfma_f32_16x16x32_bf16 {vr(d, 4)}, {cf[db]}, {ar(rr, 4)}, {c}")
        return S

    def o_stage(n):
        S = Stage(f"o_{n}", 12)
        S.blocks = [("WO", n), ("CX", n)]
        for kk in range(2):
            xs = []
            base = len(S.mf)
            for tb in range(4):
                r = ar(128 + 4 * (tring[0] % 12), 4)
                tring[0] += 1
                xs.append(r)
                S.reads.append((frag_read(r, vCX, 1, kk * 8192 + tb * 1024), base + tb))
            for mb in range(4):
                rr = 192 + 4 * (tring[1] % 12)
                tring[1] += 1
                for x in range(2):
                    S.reads.append((tr_read(ar(rr + 2 * x, 2), vT + 3 * (mb & 1), 0,
                                            kk * 8192 + (mb >> 1) * 1024 + x * 256), len(S.mf)))
                for tb in range(4):
                    d = OACC + 16 * tb + 4 * mb
                    c = "0" if (n == 0 and kk == 0) else vr(d, 4)
                    S.mf.append(f"v_mfma_f32_16x16x32_bf16 {vr(d, 4)}, {ar(rr, 4)}, {xs[tb]}, {c}")
        return S

    na = cfg.get("s2a", 2)
    T2a = [s2_stage(n) for n in range(na)]
    TO = [o_stage(n) for n in range(16)]
    T2b = [s2_stage(n) for n in range(na, 8)]
    TO[0].lb = 9
    tst = T2a + TO + T2b
    pollst = cfg.get("ctxpoll", na - 2)
    cpl = f"""
    v_and_b32 {vr(vPA2)}, 7, v0
    v_lshlrev_b32 {vr(vPA2)}, 2, {vr(vPA2)}
    s_lshl_b32 {sr(sFO)}, {sr(sRT)}, 2
    s_add_u32 {sr(sFO)}, {sr(sFO)}, {sr(sKQ)}
    s_lshl_b32 {sr(sFO)}, {sr(sFO)}, 7
    s_add_u32 {sr(sFO)}, {sr(sFO)}, {FL_CTX * 128}
    {sync.load(S_FLG, sr(sFO), vPA2, vPV2)}
    """
    T2a[pollst].at_barrier.append(sync.check("CTX", S_FLG, sr(sFO), vPA2, vPV2))
    for S in TO:
        S.gate = pollst

    XR = 160
    vX, vO, vWr, vRd = 170, 171, 172, 173
    pst = [f"s_lshl_b32 {sr(sT1)}, {sr(sRT)}, 2\n s_add_u32 {sr(sT1)}, {sr(sT1)}, {sr(sCT)}",
           f"s_mul_i32 {sr(sT1)}, {sr(sT1)}, {12 * 8192}\n s_lshl_b32 {sr(sT2)}, {sr(sW)}, 11",
           f"s_add_u32 {sr(sT1)}, {sr(sT1)}, {sr(sT2)}\n s_add_u32 {sr(sT1)}, {sr(sT1)}, {WS_PX}"]
    TO[15].fill.append((pst, 2, 10))
    pcv = []
    for tb in range(1, 4):
        r = OACC + 16 * tb
        pcv.append(f"s_add_u32 {sr(sT2)}, {sr(sKQ)}, {tb}\n s_and_b32 {sr(sT2)}, {sr(sT2)}, 3")
        pcv.append(f"s_mul_i32 {sr(sT2)}, {sr(sT2)}, {3 * 8192}\n s_add_u32 {sr(sT2)}, {sr(sT2)}, {sr(sT1)}")
        if tb > 1:
            pcv.append(f"s_add_u32 {sr(sT2)}, {sr(sT2)}, {(tb - 1) * 8192}")
        pcv += [f"v_cvt_pk_bf16_f32 {vr(r + k)}, {vr(r + 2 * k)}, {vr(r + 2 * k + 1)}" for k in range(8)]
        pcv += [f"buffer_store_dwordx4 {vr(r + 4 * k, 4)}, {vr(vL16)}, {sr(S_WS, 4)}, {sr(sT2)} offen offset:{k * 1024} sc1 @@pst"
                for k in range(2)]
    psig = signal(f"""s_lshl_b32 {sr(sFO)}, {sr(sRT)}, 2
    s_add_u32 {sr(sFO)}, {sr(sFO)}, {sr(sCT)}
    s_lshl_b32 {sr(sFO)}, {sr(sFO)}, 5
    s_add_u32 {sr(sFO)}, {sr(sFO)}, {sr(sKQ)}
    s_lshl_b32 {sr(sFO)}, {sr(sFO)}, 2
    s_add_u32 {sr(sFO)}, {sr(sFO)}, {FL_P * 128}""", vSIG2, vONE2)
    T2b[0].fill.append((pcv, 2, 15))
    psg, ppl = cfg.get("psig", 1), cfg.get("ppoll", len(T2b) - 2)
    assert ppl >= psg + 2
    T2b[psg].at_barrier.append("@need #pst")
    T2b[psg].after_barrier.append(psig)
    PR = 112
    T2b[ppl].fill.append(([f"""
    s_and_b32 {sr(sFO)}, {sr(sFO)}, 0xffffff80
    v_and_b32 {vr(vPA2)}, 3, v0
    v_lshlrev_b32 {vr(vPA2)}, 2, {vr(vPA2)}
    {sync.load(S_FLG, sr(sFO), vPA2, vPV2)}
    s_mul_i32 {sr(sT2)}, {sr(sKQ)}, {3 * 8192}
    s_add_u32 {sr(sT1)}, {sr(sT1)}, {sr(sT2)}
    """], -8, -2))
    T2b[ppl].at_barrier.append(sync.check("P", S_FLG, sr(sFO), vPA2, vPV2))
    for sl_ in range(3):
        for k in range(2):
            T2b[ppl].after_barrier.append(f"buffer_load_dwordx4 {vr(PR + 8 * sl_ + 4 * k, 4)}, {vr(vL16)}, {sr(S_WS, 4)}, "
                                          f"{sr(sT1)} offen offset:{k * 1024} sc1")
        if sl_ < 2:
            T2b[ppl].after_barrier.append(f"s_add_u32 {sr(sT1)}, {sr(sT1)}, 8192")
    epi = [f"v_lshrrev_b32 {vr(vX0)}, 4, v0", f"v_and_b32 {vr(vX1)}, 15, v0",
           f"v_lshlrev_b32 {vr(vX)}, 10, {vr(vX0)}", f"v_lshl_add_u32 {vr(vX)}, {vr(vX1)}, 3, {vr(vX)}",
           f"v_lshlrev_b32 {vr(vO)}, 12, {vr(vX0)}", f"v_lshl_add_u32 {vr(vO)}, {vr(vX1)}, 4, {vr(vO)}",
           f"s_lshl_b32 {sr(sT0)}, {sr(sRT64)}, 2\n s_add_u32 {sr(sT0)}, {sr(sT0)}, {sr(sW)}",
           f"s_lshl_b32 {sr(sT0)}, {sr(sT0)}, 14\n s_lshl_b32 {sr(sT2)}, {sr(sCT64)}, 7",
           f"s_add_u32 {sr(sT0)}, {sr(sT0)}, {sr(sT2)}"]
    for n in range(4):
        epi.append(f"buffer_load_dwordx2 {vr(XR + 2 * n, 2)}, {vr(vX)}, {sr(S_XA, 4)}, {sr(sT0)} offen\n"
                   f"s_add_u32 {sr(sT0)}, {sr(sT0)}, 4096")
    epi += [f"v_lshlrev_b32 {vr(vX)}, 3, {vr(vX1)}",
            f"buffer_load_dwordx2 {vr(XR + 8, 2)}, {vr(vX)}, {sr(S_DSK, 4)}, {sr(sT2)} offen",
            f"v_mul_u32_u24 {vr(vRd)}, {PSTR}, {vr(vX0)}", f"v_lshl_add_u32 {vr(vRd)}, {vr(vX1)}, 4, {vr(vRd)}",
            f"s_mul_i32 {sr(sT0)}, {sr(sW)}, {16 * PSTR}", f"v_add_u32 {vr(vRd)}, {sr(sT0)}, {vr(vRd)}",
            f"v_mul_u32_u24 {vr(vWr)}, {PSTR}, {vr(vX1)}", f"v_lshl_add_u32 {vr(vWr)}, {vr(vX0)}, 4, {vr(vWr)}",
            f"v_add_u32 {vr(vX)}, {sr(sT0)}, {vr(vWr)}",
            f"s_mul_i32 {sr(sT0)}, {sr(sW)}, {PART}", f"v_add_u32 {vr(vWr)}, {sr(sT0)}, {vr(vWr)}"]
    TO[2].fill.append((epi, 0, 60))

    wa = cfg.get("wahead", 3)

    def tail_order(blocks):
        pre_, post = [x for x in blocks if x[0] < na], [x for x in blocks if x[0] >= na + 16]
        mid = [(na + k, 0) for k in range(wa)]
        for k in range(16):
            mid.append((na + k, 1))
            if k + wa < 16:
                mid.append((na + k + wa, 0))
        return pre_ + mid + post

    P2 = Pipe(tst, dma_group, cfg, "tb", cfg.get("npro2", 2 * na + wa), fine(24) and (lambda n: fine(24)(n).replace("v95", "v255")),
              gated=("CX",), order=tail_order)
    P2.schedule()

    p(sync.check("H", S_FLG, sr(sFO), vPA2, vPV2))
    p("@need #ctxst\n s_barrier")
    p(f"s_load_dwordx2 {sr(S_OUT, 2)}, s[0:1], {KA['OUT']}\n s_load_dwordx2 {sr(S_DSK, 2)}, s[0:1], {KA['DSK']}")
    dm = []
    for grp in P2.prolog_dma:
        dm += ["\n".join(su + [ins]) for su, ins in grp]
    nfirst = cfg.get("tailfirst", 8)
    for x in dm[:nfirst]:
        p(x)
    ATT.ctx_epilogue(p, cfg, 1, [])
    p(ctx_signal(0))
    nsec = nfirst + cfg.get("tailsecond", 4)
    for x in dm[nfirst:nsec]:
        p(x)
    p(tail2)
    sg = lines(ctx_signal(1))
    p("\n".join(sg[:-1]))
    p(f"@need {P2.first_need} #ctxst\n s_barrier")
    p(sg[-1])
    st()
    nthird = nsec + cfg.get("tailthird", 4)
    for x in dm[nsec:nthird]:
        p(x)
    p(cpl)
    for x in dm[nthird:]:
        p(x)
    for t in P2.prolog_reads:
        p(t)
    xb = {}
    if timing:
        for n in (na, na + 16):
            tq = Prog()
            stamp(tq, True, nstamp[0], sTS, 252, 254, S_WS, sStamp)
            nstamp[0] += 1
            xb[P2.start[n]] = "\n".join(x.text for x in tq.ins)
    P2.emit(p, xb)
    if timing:
        p(f"v_lshlrev_b32 v254, 2, v0\n buffer_store_dword v255, v254, {sr(S_WS, 4)}, {sr(sStamp)} offen offset:512")
    st()

    p("s_barrier")
    for tb in range(4):
        for db in range(4):
            p(f"ds_write_b128 {vr(vWr)}, {vr(SACC + 16 * tb + 4 * db, 4)} offset:{tb * 16 * PSTR + db * 64}")
    D, Y = 136, 140
    osc = " " + cfg.get("outflag", "sc1")
    for sl_ in range(3):
        for k in range(8):
            r = PR + 8 * sl_ + k
            p(f"v_lshlrev_b32 {vr(Y)}, 16, {vr(r)}")
            p(f"v_and_b32 {vr(Y + 1)}, 0xffff0000, {vr(r)}")
            p(f"v_add_f32 {vr(OACC + 2 * k)}, {vr(OACC + 2 * k)}, {vr(Y)}")
            p(f"v_add_f32 {vr(OACC + 2 * k + 1)}, {vr(OACC + 2 * k + 1)}, {vr(Y + 1)}")
    p(f"v_add_u32 {vr(vX)}, {4 * PART}, {vr(vX)}\n v_add_u32 {vr(vWr)}, {4 * PART}, {vr(vRd)}")
    for mb in range(4):
        p(f"ds_write_b128 {vr(vX)}, {vr(OACC + 4 * mb, 4)} offset:{mb * 64}")
    p(f"""
    s_lshl_b32 {sr(sT1)}, {sr(sRT)}, 3
    s_lshr_b32 {sr(sT2)}, {sr(sW)}, 1
    s_lshl_b32 {sr(sT2)}, {sr(sT2)}, 2
    s_add_u32 {sr(sT1)}, {sr(sT1)}, {sr(sT2)}
    s_add_u32 {sr(sT1)}, {sr(sT1)}, {sr(sKQ)}
    s_lshl_b32 {sr(sT1)}, {sr(sT1)}, 16
    s_lshl_b32 {sr(sT2)}, {sr(sCT)}, 1
    s_and_b32 {sr(sT3)}, {sr(sW)}, 1
    s_add_u32 {sr(sT2)}, {sr(sT2)}, {sr(sT3)}
    s_lshl_b32 {sr(sT2)}, {sr(sT2)}, 8
    s_add_u32 {sr(sT1)}, {sr(sT1)}, {sr(sT2)}
    s_waitcnt lgkmcnt(0)
    s_barrier
    """)
    for n in range(4):
        p(f"ds_read_b128 {vr(PR + 4 * n, 4)}, {vr(vWr)} offset:{n * 4 * PSTR}")
    TT = 176
    for n in range(4):
        for q in range(4):
            p(f"ds_read_b128 {vr(TT + 16 * n + 4 * q, 4)}, {vr(vRd)} offset:{q * PART + n * 4 * PSTR}")
    for n in range(4):
        p(f"buffer_store_dwordx4 {vr(PR + 4 * n, 4)}, {vr(vO)}, {sr(S_OUT, 4)}, {sr(sT1)} offen offset:2048{osc}")
        if n < 3:
            p(f"s_add_u32 {sr(sT1)}, {sr(sT1)}, 16384")
    p(f"""
    v_lshlrev_b32 {vr(D)}, 16, {vr(XR + 8)}
    v_and_b32 {vr(D + 1)}, 0xffff0000, {vr(XR + 8)}
    v_lshlrev_b32 {vr(D + 2)}, 16, {vr(XR + 9)}
    v_and_b32 {vr(D + 3)}, 0xffff0000, {vr(XR + 9)}
    s_lshl_b32 {sr(sT0)}, {sr(sRT64)}, 2
    s_add_u32 {sr(sT0)}, {sr(sT0)}, {sr(sW)}
    s_lshl_b32 {sr(sT0)}, {sr(sT0)}, 16
    s_lshl_b32 {sr(sT2)}, {sr(sCT64)}, 8
    s_add_u32 {sr(sT0)}, {sr(sT0)}, {sr(sT2)}
    """)
    for n in range(4):
        t, x = TT + 16 * n, XR + 2 * n
        p(f"""
        v_lshlrev_b32 {vr(Y)}, 16, {vr(x)}
        v_and_b32 {vr(Y + 1)}, 0xffff0000, {vr(x)}
        v_lshlrev_b32 {vr(Y + 2)}, 16, {vr(x + 1)}
        v_and_b32 {vr(Y + 3)}, 0xffff0000, {vr(x + 1)}
        """)
        for e in range(4):
            p(f"v_mul_f32 {vr(Y + e)}, {vr(Y + e)}, {vr(D + e)}")
        p(f"""
        v_cvt_pk_bf16_f32 {vr(Y + 4)}, {vr(Y)}, {vr(Y + 1)}
        v_cvt_pk_bf16_f32 {vr(Y + 5)}, {vr(Y + 2)}, {vr(Y + 3)}
        v_lshlrev_b32 {vr(Y)}, 16, {vr(Y + 4)}
        v_and_b32 {vr(Y + 1)}, 0xffff0000, {vr(Y + 4)}
        v_lshlrev_b32 {vr(Y + 2)}, 16, {vr(Y + 5)}
        v_and_b32 {vr(Y + 3)}, 0xffff0000, {vr(Y + 5)}
        """)
        for e in range(4):
            p(f"v_add_f32 {vr(t + e)}, {vr(t + e)}, {vr(t + 4 + e)}")
            p(f"v_add_f32 {vr(t + 8 + e)}, {vr(t + 8 + e)}, {vr(t + 12 + e)}")
        for e in range(4):
            p(f"v_add_f32 {vr(t + e)}, {vr(t + e)}, {vr(t + 8 + e)}")
            p(f"v_add_f32 {vr(t + e)}, {vr(t + e)}, {vr(Y + e)}")
        p(f"buffer_store_dwordx4 {vr(t, 4)}, {vr(vO)}, {sr(S_OUT, 4)}, {sr(sT0)} offen{osc}")
        if n < 3:
            p(f"s_add_u32 {sr(sT0)}, {sr(sT0)}, 16384")
    st()
    p.label("KA_end")
    p("s_endpgm")
    p.label("KA_codeend")
    sync.emit(p)
    ATT.gen_attention_rare(p, cfg)
    p.finish(cfg.get("verbose_nop", False))
    if cfg.get("align8"):
        p.align8(True)
    return p


def build(cfg):
    hdr = [l for l in open("cdna_kernels/" + NAME + ".s.ref").read().split("\n")
           if l.startswith(";") and "@launch" not in l][:19]
    ka = gen(cfg)
    out = "\n".join(hdr) + "\n"
    if cfg.get("aslist"):
        out += f"; @launch kernel={NAME}_kernel grid=(256,1,1) block=(256,1,1) lds={NBLK * BLK}\n"
    else:
        out += f"; @launch grid=(256,1,1) block=(256,1,1) lds={NBLK * BLK}\n"
    out += '.amdgcn_target "amdgcn-amd-amdhsa--gfx950"\n'
    out += kernel_text(NAME + "_kernel", ka)
    out += '.section .rodata,"a"\n.p2align 6\n'
    out += descriptor_text(NAME + "_kernel", 512, 102, 256)
    print("instrs", len(ka.ins), "maxv", ka.maxreg("v"), "maxa", ka.maxreg("a"), "maxs", ka.maxreg("s"),
          "auto nops", sum(1 for x in ka.ins if x.auto and x.cls == "nop"), file=sys.stderr)
    return out


if __name__ == "__main__":
    cfg = json.loads(sys.argv[2]) if len(sys.argv) > 2 else {}
    open(sys.argv[1], "w").write(build(cfg))
```

```python
import sys, json
from gen_common import *
from regs import *
from pipesched import *
import gen_att2 as ATT

PSTR = 272
PART = 64 * PSTR


def cexp(n, outre, outim, t0, t1):
    return [
        f"v_mul_f32 {vr(t0)}, {n}, {vr(vZA)}",
        f"v_mul_f32 {vr(t1)}, {n}, {vr(vZB)}",
        f"v_exp_f32 {vr(t0)}, {vr(t0)}",
        f"v_fract_f32 {vr(t1)}, {vr(t1)}",
        f"v_cos_f32 {vr(outre)}, {vr(t1)}",
        f"v_sin_f32 {vr(outim)}, {vr(t1)}",
        f"v_mul_f32 {vr(outre)}, {vr(outre)}, {vr(t0)}",
        f"v_mul_f32 {vr(outim)}, {vr(outim)}, {vr(t0)}",
    ]


def cmadd(dre, dim, lre, lim, hre, him, ure, uim):
    return [
        f"v_fma_f32 {vr(dre)}, {vr(lre)}, {vr(hre)}, {vr(ure)}",
        f"v_fma_f32 {vr(dim)}, {vr(lre)}, {vr(him)}, {vr(uim)}",
        f"v_fma_f32 {vr(dre)}, -{vr(lim)}, {vr(him)}, {vr(dre)}",
        f"v_fma_f32 {vr(dim)}, {vr(lim)}, {vr(hre)}, {vr(dim)}",
    ]


class Sync:
    def __init__(self, cfg):
        self.spins = []
        self.cfg = cfg

    def load(self, srd, soff, pa, pv):
        return f"buffer_load_dword {vr(pv)}, {vr(pa)}, {sr(srd, 4)}, {soff} offen sc1"

    def check(self, name, srd, soff, pa, pv):
        self.spins.append((name, srd, soff, pa, pv))
        return f"""
        POLL_{name}:
        v_cmp_ne_u32 vcc, 1, {vr(pv)}
        s_cbranch_vccnz SPIN_{name}
        POLLOK_{name}:
        """

    def emit(self, p):
        for name, srd, soff, pa, pv in self.spins:
            p(f"""
            SPIN_{name}:
            s_add_u32 {sr(sSPIN)}, {sr(sSPIN)}, 1
            s_cmp_gt_u32 {sr(sSPIN)}, 0x100000
            s_cbranch_scc1 POLLOK_{name}
            s_sleep {self.cfg.get('sleep', 2)}
            {self.load(srd, soff, pa, pv)}
            s_waitcnt vmcnt(0)
            s_branch POLL_{name}
            """)


def frag_read(dst, vb, blk, off):
    def fn(addrs):
        r, imm = ldsaddr(vb, addrs[blk] + off)
        return f"ds_read_b128 {dst}, {r} offset:{imm}"
    return fn


def tr_read(dst, vb, blk, off):
    def fn(addrs):
        r, imm = ldsaddr(vb, addrs[blk] + off)
        return f"ds_read_b64_tr_b16 {dst}, {r} offset:{imm}"
    return fn


def adv(r, step, mask=1023):
    return [f"s_add_u32 {sr(r)}, {sr(r)}, {step}", f"s_and_b32 {sr(r)}, {sr(r)}, {mask}"]


def dma_group(kind, par, addr, tag):
    out = []

    def one(pos, setup, vpat, srd, imm, flags="", linear=False):
        s = list(setup)
        if not linear or pos == 0:
            s.append(f"s_add_u32 m0, {sr(sWLDS)}, {addr + pos * 1024 - imm}")
        off = f" offset:{imm}" if imm else ""
        out.append((s, f"buffer_load_dwordx4 {vr(vpat)}, {sr(srd, 4)}, {sr(sD0)} offen{off}{flags} lds @@{tag}"))

    if kind == "C1":
        for pos in range(4):
            su = []
            if pos == 0:
                su = (adv(sRK, 128) if par else []) + [f"s_add_u32 {sr(sD0)}, {sr(sCKV)}, {sr(sRK)}"]
            if pos == 2:
                su = [f"s_add_u32 {sr(sD0)}, {sr(sD0)}, 8192"]
            one(pos, su, vK, S_CKV, (pos & 1) * 64)
    elif kind == "W":
        srd, rot, same = par
        for pos in range(4):
            su = []
            if pos == 0 and not same:
                su = [f"s_lshl_b32 {sr(sD0)}, {sr(rot)}, 12", f"s_add_u32 {sr(sD0)}, {sr(sD0)}, {sr(sWOFF)}"]
            one(pos, su, vW, srd, pos * 64)
    elif kind == "C2":
        u, xy = par
        for pos in range(4):
            su = []
            if pos % 2 == 0:
                su = [f"s_add_u32 {sr(sD0)}, {sr(sCKV2b if pos else sCKV2a)}, {(u - 4) * 32768 + xy * 8192}"]
            one(pos, su, vK, S_CKV, (pos & 1) * 64)
    elif kind == "SX":
        for pos in range(4):
            su = []
            if pos == 0:
                su = (adv(sRS, 256) if (par and par % 2 == 0) else []) + [f"s_add_u32 {sr(sD0)}, {sr(sXA)}, {sr(sRS)}"]
                if par & 1:
                    su.append(f"s_add_u32 {sr(sD0)}, {sr(sD0)}, 128")
            if pos == 2:
                su = [f"s_add_u32 {sr(sD0)}, {sr(sD0)}, 4096"]
            one(pos, su, vS, S_XA, (pos & 1) * 64)
    elif kind == "SB":
        for pos in range(4):
            su = [f"s_add_u32 {sr(sD0)}, {sr(sBOFF)}, {sr(sRS)}"] if pos == 0 else []
            one(pos, su, vN, S_BSEL, pos * 64)
    elif kind == "X":
        g, stg = par
        for pos in range(4):
            su = []
            if pos == 0:
                su = (adv(sRQ, 128) if (stg and g == 0) else []) + \
                    [f"s_add_u32 {sr(sD0)}, {sr(sXQB if g else sXQA)}, {sr(sRQ)}"]
            if pos == 2:
                su = [f"s_add_u32 {sr(sD0)}, {sr(sD0)}, 16384"]
            one(pos, su, vN, S_XB, (pos & 1) * 64)
    elif kind == "H":
        for pos in range(4):
            su = []
            if pos == 0:
                su = (adv(sR2, 128) if par else []) + \
                    [f"s_lshl_b32 {sr(sD0)}, {sr(sR2)}, 7", f"s_add_u32 {sr(sD0)}, {sr(sD0)}, {sr(sHO)}"]
            one(pos, su, vL16, S_WS, pos * 1024, " sc1", linear=True)
    elif kind == "C":
        for pos in range(4):
            su = []
            if pos == 0:
                su = [f"s_add_u32 {sr(sD0)}, {sr(sCO)}, {sr(sR2)}"]
            if pos == 2:
                su = [f"s_add_u32 {sr(sD0)}, {sr(sD0)}, 16384"]
            one(pos, su, vN, S_CSEL, (pos & 1) * 64)
    elif kind == "WO":
        for pos in range(4):
            su = []
            if pos == 0:
                su = (adv(sRO, 65536, 0xfffff) if par else []) + [f"s_add_u32 {sr(sD0)}, {sr(sRO)}, {sr(sWOO)}"]
            one(pos, su, vN, S_WO, pos * 64)
    elif kind == "CX":
        for pos in range(4):
            su = []
            if pos == 0:
                su = (adv(sRO2, 16384, 0x3ffff) if par else []) + [f"s_add_u32 {sr(sD0)}, {sr(sCTXO)}, {sr(sRO2)}"]
            one(pos, su, vL16, S_WS, pos * 1024, " sc1", linear=True)
    elif kind == "SCR":
        pass
    else:
        raise ValueError(kind)
    return out


def gen(cfg):
    timing = cfg.get("timing", False)
    p = Prog()
    sync = Sync(cfg)
    nstamp = [0]

    def st(va=vS):
        stamp(p, timing, nstamp[0], sTS, vX0, va, S_WS, sStamp)
        nstamp[0] += 1

    def fine(base):
        if not timing:
            return None
        return lambda n: f"s_memtime {sr(sTS, 2)}\n s_waitcnt lgkmcnt(0)\n v_writelane_b32 v95, {sr(sTS)}, {base + n}\n"

    def touch_code(srd, label, dst):
        p(f"""
        s_getpc_b64 {sr(srd, 2)}
        {label}:
        s_mov_b32 {sr(srd + 2)}, KA_codeend-{label}
        s_mov_b32 {sr(srd + 3)}, {SRD3}
        s_lshr_b32 {sr(sT0)}, s2, 3
        s_lshl_b32 {sr(sT0)}, {sr(sT0)}, 2
        s_add_u32 {sr(sT0)}, {sr(sT0)}, {sr(sW)}
        s_lshl_b32 {sr(sT0)}, {sr(sT0)}, 7
        v_lshlrev_b32 {vr(vX0)}, 14, v0
        buffer_load_dword {vr(dst)}, {vr(vX0)}, {sr(srd, 4)}, {sr(sT0)} offen
        """)

    p(f"""
    s_cmp_ge_u32 s2, 256
    s_cbranch_scc1 KA_end
    {"s_memrealtime " + sr(sRET, 2) if timing else ""}
    s_load_dwordx2 {sr(S_CKV, 2)}, s[0:1], {KA['CKV']}
    s_load_dwordx2 {sr(S_WUK, 2)}, s[0:1], {KA['WUK']}
    s_load_dwordx2 {sr(S_WUV, 2)}, s[0:1], {KA['WUV']}
    s_load_dwordx2 {sr(S_XA, 2)}, s[0:1], {KA['XA']}
    s_load_dwordx4 {sr(S_BSEL, 4)}, s[0:1], {KA['BRE']}
    s_load_dwordx2 {sr(S_XB, 2)}, s[0:1], {KA['XB']}
    s_load_dwordx2 {sr(S_WQ, 2)}, s[0:1], {KA['WQ']}
    s_load_dwordx2 {sr(S_WO, 2)}, s[0:1], {KA['WO']}
    s_load_dwordx4 {sr(S_CSEL, 4)}, s[0:1], {KA['CRE']}
    s_load_dwordx2 {sr(S_WS, 2)}, s[0:1], {KA['WS']}
    s_load_dwordx2 {sr(sDBGP, 2)}, s[0:1], {KA['DBG']}
    s_load_dwordx4 {sr(S_LRE, 4)}, s[0:1], {KA['LRE']}
    s_load_dwordx2 {sr(S_LDT, 2)}, s[0:1], {KA['LDT']}
    v_lshlrev_b32 {vr(vSIG)}, 16, v0
    v_lshrrev_b32 {vr(vX0)}, 6, v0
    v_and_b32 v0, 63, v0
    v_readfirstlane_b32 {sr(sW)}, {vr(vX0)}
    """)
    if cfg.get("pretouch", True):
        touch_code(S_E, "KA_pc", TMP)
    hs = 1 if cfg.get("hswap", True) else 0
    rk = cfg.get("rotk", (4, 4, 0))
    rq = cfg.get("rotq", (1, 2, 1))
    p(f"""
    s_and_b32 {sr(sT0)}, s2, 7
    s_lshr_b32 {sr(sT1)}, s2, 3
    s_and_b32 {sr(sT2)}, {sr(sT1)}, 3
    s_lshl_b32 {sr(sH)}, {sr(sT0)}, 2
    s_add_u32 {sr(sH)}, {sr(sH)}, {sr(sT2)}
    s_lshr_b32 {sr(sI)}, {sr(sT1)}, 2
    s_lshl_b32 {sr(sWLDS)}, {sr(sW)}, 12
    v_lshrrev_b32 {vr(vX0)}, 5, v0
    v_lshlrev_b32 {vr(vX0)}, 1, {vr(vX0)}
    v_and_b32 {vr(vX1)}, 3, v0
    v_xor_b32 {vr(vX0)}, {vr(vX0)}, {vr(vX1)}
    v_lshlrev_b32 {vr(vX0)}, 4, {vr(vX0)}
    v_lshrrev_b32 {vr(vX1)}, 2, v0
    v_lshl_add_u32 {vr(vW)}, {vr(vX1)}, 13, {vr(vX0)}
    v_lshl_add_u32 {vr(vN)}, {vr(vX1)}, 10, {vr(vX0)}
    v_lshrrev_b32 {vr(vK)}, 5, v0
    v_lshl_add_u32 {vr(vK)}, {vr(vK)}, 13, {vr(vN)}
    s_and_b32 {sr(sT0)}, {sr(sH)}, {hs}
    s_lshl_b32 {sr(sT0)}, {sr(sT0)}, 17
    s_lshl_b32 {sr(sCKV)}, {sr(sI)}, 18
    s_add_u32 {sr(sCKV)}, {sr(sCKV)}, {sr(sT0)}
    s_xor_b32 {sr(sCKV2b)}, {sr(sCKV)}, 0x20000
    s_lshl_b32 {sr(sT0)}, {sr(sW)}, 15
    s_add_u32 {sr(sCKV)}, {sr(sCKV)}, {sr(sT0)}
    s_lshl_b32 {sr(sWOFF)}, {sr(sW)}, 17
    s_lshl_b32 {sr(sT0)}, {sr(sH)}, 8
    s_add_u32 {sr(sWOFF)}, {sr(sWOFF)}, {sr(sT0)}
    s_mul_i32 {sr(sRK)}, {sr(sI)}, {rk[0]}
    s_bfe_u32 {sr(sT0)}, {sr(sH)}, 0x10001
    s_mul_i32 {sr(sT0)}, {sr(sT0)}, {rk[1]}
    s_add_u32 {sr(sRK)}, {sr(sRK)}, {sr(sT0)}
    s_lshr_b32 {sr(sT0)}, {sr(sH)}, 2
    s_mul_i32 {sr(sT0)}, {sr(sT0)}, {rk[2]}
    s_add_u32 {sr(sRK)}, {sr(sRK)}, {sr(sT0)}
    s_and_b32 {sr(sRK)}, {sr(sRK)}, 7
    s_lshl_b32 {sr(sRK)}, {sr(sRK)}, 7
    s_lshl_b32 {sr(sT0)}, {sr(sW)}, 8
    s_add_u32 {sr(sT0)}, {sr(sT0)}, {sr(sRK)}
    s_and_b32 {sr(sT1)}, {sr(sT0)}, 1023
    s_add_u32 {sr(sCKV2a)}, {sr(sCKV2b)}, {sr(sT1)}
    s_add_u32 {sr(sT0)}, {sr(sT0)}, 128
    s_and_b32 {sr(sT0)}, {sr(sT0)}, 1023
    s_add_u32 {sr(sCKV2b)}, {sr(sCKV2b)}, {sr(sT0)}
    """)
    for s, n in ((S_CKV, 2048 * 1024), (S_WUK, 512 * 8192), (S_WUV, 512 * 8192)):
        p(f"s_mov_b32 {sr(s + 2)}, {n}")
        p(f"s_mov_b32 {sr(s + 3)}, {SRD3}")
    p("s_waitcnt lgkmcnt(0)")

    late = f"""
    s_and_b32 {sr(sT0)}, s2, 7
    s_lshr_b32 {sr(sT1)}, s2, 3
    s_lshr_b32 {sr(sC)}, {sr(sT0)}, 1
    s_lshl_b32 {sr(sC)}, {sr(sC)}, 2
    s_lshr_b32 {sr(sT2)}, {sr(sT1)}, 3
    s_add_u32 {sr(sC)}, {sr(sC)}, {sr(sT2)}
    s_and_b32 {sr(sPG)}, {sr(sT0)}, 1
    s_lshl_b32 {sr(sPG)}, {sr(sPG)}, 3
    s_and_b32 {sr(sT2)}, {sr(sT1)}, 7
    s_add_u32 {sr(sPG)}, {sr(sPG)}, {sr(sT2)}
    v_and_b32 {vr(vX0)}, 15, v0
    s_and_b32 {sr(sT2)}, {sr(sW)}, 1
    s_lshl_b32 {sr(sT2)}, {sr(sT2)}, 4
    s_lshl_b32 {sr(sT3)}, {sr(sPG)}, 5
    s_add_u32 {sr(sT2)}, {sr(sT2)}, {sr(sT3)}
    v_add_lshl_u32 {vr(vX1)}, {vr(vX0)}, {sr(sT2)}, 1
    global_load_ushort {vr(vLA)}, {vr(vX1)}, {sr(S_LRE, 2)}
    global_load_ushort {vr(vLB)}, {vr(vX1)}, {sr(S_LIM, 2)}
    global_load_ushort {vr(vZA)}, {vr(vX1)}, {sr(S_LDT, 2)}
    s_add_u32 {sr(S_FLG)}, {sr(S_WS)}, {WS_FLG}
    s_addc_u32 {sr(S_FLG + 1)}, {sr(S_WS + 1)}, 0
    s_mov_b32 {sr(S_FLG + 2)}, 32768
    s_mov_b32 {sr(S_FLG + 3)}, {SRD3}
    v_lshlrev_b32 {vr(vL16)}, 4, v0
    v_mov_b32 {vr(DT)}, 0
    v_mov_b32 {vr(DT + 1)}, 0
    v_mov_b32 {vr(DT + 2)}, 0
    v_mov_b32 {vr(DT + 3)}, 0
    s_lshl_b32 {sr(sT0)}, s2, 2
    s_add_u32 {sr(sT0)}, {sr(sT0)}, {sr(sW)}
    s_lshl_b32 {sr(sT0)}, {sr(sT0)}, 10
    buffer_store_dwordx4 {vr(DT, 4)}, {vr(vL16)}, {sr(S_FLG, 4)}, {sr(sT0)} offen sc1 @@zero
    s_mov_b32 {sr(S_DBG)}, {sr(sDBGP)}
    s_mov_b32 {sr(S_DBG + 1)}, {sr(sDBGP + 1)}
    s_mov_b32 {sr(S_DBG + 2)}, 32
    s_mov_b32 {sr(S_DBG + 3)}, {SRD3}
    v_mov_b32 {vr(vONE)}, 1
    s_mov_b32 {sr(sSPIN)}, 0
    s_cmp_ge_u32 {sr(sW)}, 2
    s_cselect_b32 {sr(S_BSEL)}, {sr(S_BSEL + 2)}, {sr(S_BSEL)}
    s_cselect_b32 {sr(S_BSEL + 1)}, {sr(S_BSEL + 3)}, {sr(S_BSEL + 1)}
    s_bitcmp1_b32 {sr(sW)}, 0
    s_cselect_b32 {sr(S_CSEL)}, {sr(S_CSEL + 2)}, {sr(S_CSEL)}
    s_cselect_b32 {sr(S_CSEL + 1)}, {sr(S_CSEL + 3)}, {sr(S_CSEL + 1)}
    """
    for s, n in ((S_XA, 2048 * 1024), (S_BSEL, 512 * 1024), (S_XB, 2048 * 1024), (S_WQ, 512 * 8192),
                 (S_WO, 4096 * 1024), (S_CSEL, 512 * 1024), (S_WS, WS_END + (1 << 20 if timing else 0)),
                 (S_E, 65536)):
        late += f"s_mov_b32 {sr(s + 2)}, {n}\n s_mov_b32 {sr(s + 3)}, {SRD3}\n"
    late += f"""
    s_add_u32 {sr(S_E)}, {sr(S_WS)}, {WS_E}
    s_addc_u32 {sr(S_E + 1)}, {sr(S_WS + 1)}, 0
    s_mul_i32 {sr(sKVST)}, {sr(sH)}, {HEADSTRIDE}
    s_add_u32 {sr(S_KVR)}, {sr(S_WS)}, {sr(sKVST)}
    s_addc_u32 {sr(S_KVR + 1)}, {sr(S_WS + 1)}, 0
    s_lshl_b32 {sr(sT0)}, {sr(sI)}, 16
    s_sub_u32 {sr(S_KVR + 2)}, {33 * 32768}, {sr(sT0)}
    s_mov_b32 {sr(S_KVR + 3)}, {SRD3}
    s_lshl_b32 {sr(sT0)}, {sr(sI)}, 17
    s_add_u32 {sr(sKVST)}, {sr(sKVST)}, {sr(sT0)}
    s_and_b32 {sr(sT0)}, {sr(sH)}, {hs}
    s_lshl_b32 {sr(sT0)}, {sr(sT0)}, 16
    s_sub_u32 {sr(sKVST2)}, {sr(sKVST)}, {sr(sT0)}
    s_add_u32 {sr(sKVST)}, {sr(sKVST)}, {sr(sT0)}
    s_add_u32 {sr(sRS)}, {sr(sC)}, {sr(sPG)}
    s_mul_i32 {sr(sRS)}, {sr(sRS)}, {cfg.get("rots", 1)}
    s_and_b32 {sr(sRS)}, {sr(sRS)}, 3
    s_lshl_b32 {sr(sRS)}, {sr(sRS)}, 8
    s_mul_i32 {sr(sRQ)}, {sr(sI)}, {rq[0]}
    s_mul_i32 {sr(sT0)}, {sr(sH)}, {rq[1]}
    s_add_u32 {sr(sRQ)}, {sr(sRQ)}, {sr(sT0)}
    s_lshr_b32 {sr(sT0)}, {sr(sH)}, 2
    s_mul_i32 {sr(sT0)}, {sr(sT0)}, {rq[2]}
    s_add_u32 {sr(sRQ)}, {sr(sRQ)}, {sr(sT0)}
    s_and_b32 {sr(sRQ)}, {sr(sRQ)}, 7
    s_lshl_b32 {sr(sRQ)}, {sr(sRQ)}, 7
    s_lshl_b32 {sr(sXA)}, {sr(sC)}, 17
    s_lshr_b32 {sr(sT0)}, {sr(sW)}, 1
    s_lshl_b32 {sr(sT0)}, {sr(sT0)}, 16
    s_add_u32 {sr(sXA)}, {sr(sXA)}, {sr(sT0)}
    s_and_b32 {sr(sT0)}, {sr(sW)}, 1
    s_lshl_b32 {sr(sT1)}, {sr(sT0)}, 13
    s_add_u32 {sr(sXA)}, {sr(sXA)}, {sr(sT1)}
    s_lshl_b32 {sr(sBOFF)}, {sr(sPG)}, 15
    s_lshl_b32 {sr(sT1)}, {sr(sT0)}, 14
    s_add_u32 {sr(sBOFF)}, {sr(sBOFF)}, {sr(sT1)}
    s_lshl_b32 {sr(sT0)}, {sr(sW)}, 15
    s_lshl_b32 {sr(sXQA)}, {sr(sI)}, 17
    s_sub_u32 {sr(sXQB)}, {15 << 17}, {sr(sXQA)}
    s_add_u32 {sr(sXQA)}, {sr(sXQA)}, {sr(sT0)}
    s_add_u32 {sr(sXQB)}, {sr(sXQB)}, {sr(sT0)}
    s_mov_b32 {sr(sQS)}, {f32hex(QSCALE)}
    """
    if timing:
        late += f"s_lshl_b32 {sr(sStamp)}, s2, 10\n s_add_u32 {sr(sStamp)}, {sr(sStamp)}, {WS_STAMP}\n"
    late += f"""
    v_lshrrev_b32 {vr(vX1)}, 4, v0
    v_mul_u32_u24 {vr(vS)}, {12 * 1024}, {vr(vX1)}
    v_add_u32 {vr(vS)}, {vr(vS)}, {vr(vN)}
    s_lshr_b32 {sr(sT0)}, {sr(sW)}, 1
    s_lshl_b32 {sr(sT0)}, {sr(sT0)}, 2
    v_add_u32 {vr(vSEG)}, {sr(sT0)}, {vr(vX1)}
    v_bfe_u32 {vr(vF)}, v0, 3, 1
    v_lshlrev_b32 {vr(vF)}, 1, {vr(vF)}
    v_xor_b32 {vr(vF)}, {vr(vF)}, {vr(vX1)}
    v_lshl_add_u32 {vr(vF)}, {vr(vX0)}, 2, {vr(vF)}
    v_lshlrev_b32 {vr(vF)}, 4, {vr(vF)}
    v_add_u32 {vr(vF + 1)}, 0x10000, {vr(vF)}
    v_add_u32 {vr(vF + 2)}, 0x20000, {vr(vF)}
    v_lshrrev_b32 {vr(vT)}, 5, v0
    v_lshlrev_b32 {vr(vT)}, 12, {vr(vT)}
    v_bfe_u32 {vr(vT + 1)}, v0, 4, 1
    v_mul_u32_u24 {vr(vT + 1)}, {512 + 32}, {vr(vT + 1)}
    v_add_u32 {vr(vT)}, {vr(vT)}, {vr(vT + 1)}
    v_bfe_u32 {vr(vT + 1)}, v0, 2, 2
    v_lshl_add_u32 {vr(vT)}, {vr(vT + 1)}, 6, {vr(vT)}
    v_and_b32 {vr(vT + 1)}, 3, v0
    v_lshl_add_u32 {vr(vT)}, {vr(vT + 1)}, 3, {vr(vT)}
    s_lshl_b32 {sr(sT0)}, {sr(sW)}, 10
    v_add_u32 {vr(vT)}, {sr(sT0)}, {vr(vT)}
    v_add_u32 {vr(vT + 1)}, 0x10000, {vr(vT)}
    v_add_u32 {vr(vT + 2)}, 0x20000, {vr(vT)}
    v_xor_b32 {vr(vT + 3)}, 32, {vr(vT)}
    v_xor_b32 {vr(vT + 4)}, 32, {vr(vT + 1)}
    v_xor_b32 {vr(vT + 5)}, 32, {vr(vT + 2)}
    s_lshr_b32 {sr(sT0)}, {sr(sW)}, 1
    s_lshl_b32 {sr(sT0)}, {sr(sT0)}, 13
    v_add_u32 {vr(vFA)}, {sr(sT0)}, {vr(vF)}
    v_add_u32 {vr(vFA + 1)}, {sr(sT0)}, {vr(vF + 1)}
    v_add_u32 {vr(vFA + 2)}, {sr(sT0)}, {vr(vF + 2)}
    s_and_b32 {sr(sT0)}, {sr(sW)}, 1
    s_lshl_b32 {sr(sT0)}, {sr(sT0)}, 12
    v_add_u32 {vr(vFB)}, {sr(sT0)}, {vr(vF)}
    v_add_u32 {vr(vFB + 1)}, {sr(sT0)}, {vr(vF + 1)}
    v_add_u32 {vr(vFB + 2)}, {sr(sT0)}, {vr(vF + 2)}
    v_bfe_u32 {vr(vKST)}, v0, 4, 1
    v_lshlrev_b32 {vr(vVST)}, 9, {vr(vKST)}
    v_lshlrev_b32 {vr(vKST)}, 10, {vr(vKST)}
    v_lshrrev_b32 {vr(vX1)}, 5, v0
    v_lshl_add_u32 {vr(vKST)}, {vr(vX1)}, 9, {vr(vKST)}
    v_lshl_add_u32 {vr(vVST)}, {vr(vX1)}, 12, {vr(vVST)}
    v_lshl_add_u32 {vr(vKST)}, {vr(vX0)}, 4, {vr(vKST)}
    v_bfe_u32 {vr(vX1)}, v0, 3, 1
    v_lshl_add_u32 {vr(vKST)}, {vr(vX1)}, 7, {vr(vKST)}
    v_lshl_add_u32 {vr(vVST)}, {vr(vX1)}, 6, {vr(vVST)}
    v_bfe_u32 {vr(vX1)}, v0, 2, 1
    v_lshl_add_u32 {vr(vVST)}, {vr(vX1)}, 7, {vr(vVST)}
    v_and_b32 {vr(vX1)}, 3, v0
    v_lshl_add_u32 {vr(vVST)}, {vr(vX1)}, 4, {vr(vVST)}
    s_lshl_b32 {sr(sT0)}, {sr(sW)}, 11
    v_add_u32 {vr(vKST)}, {sr(sT0)}, {vr(vKST)}
    s_lshl_b32 {sr(sT0)}, {sr(sW)}, 10
    s_add_u32 {sr(sT0)}, {sr(sT0)}, {5 * 8192}
    v_add_u32 {vr(vVST)}, {sr(sT0)}, {vr(vVST)}
    """

    stages = []
    ringpos = [0]

    def ring_alloc(size):
        r = RING + 4 * (ringpos[0] % size)
        ringpos[0] += 1
        return vr(r, 4)

    def kv_mfmas(S, ks, R, X, Y):
        w = [ar(16 * ks + 4 * j, 4) for j in range(4)]
        for a, b, d in ((w[0], X, 0), (w[0], Y, 8), (w[1], X, 4), (w[1], Y, 12),
                        (X, w[2], 16), (Y, w[2], 20), (X, w[3], 24), (Y, w[3], 28)):
            c = "0" if ks == 0 else vr(R + d, 4)
            S.mf.append(f"v_mfma_f32_16x16x32_bf16 {vr(R + d, 4)}, {a}, {b}, {c}")

    VSC = cfg.get("vscale", 0)

    def drain(unit, R, tmp=None):
        cv, stv = [], []
        for n in range(4):
            t = R + 8 * n if tmp is None else tmp + 4 * n
            for k in range(4):
                a, b = R + 8 * n + 2 * k, R + 8 * n + 2 * k + 1
                if n < 2:
                    cv += [f"v_mul_f32 {vr(a)}, {sr(sQS)}, {vr(a)}", f"v_mul_f32 {vr(b)}, {sr(sQS)}, {vr(b)}"]
                elif VSC:
                    cv += [f"v_ldexp_f32 {vr(a)}, {vr(a)}, {VSC}", f"v_ldexp_f32 {vr(b)}, {vr(b)}, {VSC}"]
                cv.append(f"v_cvt_pk_bf16_f32 {vr(t + k)}, {vr(a)}, {vr(b)}")
            va = vKST if n < 2 else vVST
            imm = (n & 1) * (128 if n < 2 else 256)
            s = f"buffer_store_dwordx4 {vr(t, 4)}, {vr(va)}, {sr(S_WS, 4)}, {sr(sST)} offen offset:{imm} sc1 @@kvst"
            if n == 0:
                s = f"s_add_u32 {sr(sST)}, {sr(sKVST if unit < 4 else sKVST2)}, {unit * 16384}\n" + s
            if cfg.get("nokvst") and not (unit == 7 and n == 0):
                s = "s_nop 0"
            if cfg.get("kvplain"):
                s = s.replace(" sc1 @@", " @@")
            stv.append(s)
        return cv, stv

    for n in range(8):
        S = Stage(f"kv1_{n}", 18)
        S.blocks = [("C1", n), ("W", (S_WUK, sRK, False)), ("W", (S_WUV, sRK, True))]
        for kk in range(2):
            ks = 2 * n + kk
            for j in range(4):
                for x in range(2):
                    S.reads.append((tr_read(ar(16 * ks + 4 * j + 2 * x, 2), vT + 3 * (j & 1), 1 + (j >> 1),
                                            kk * 8192 + x * 256), len(S.mf) + 2 * j))
            for u in range(4):
                X, Y = ring_alloc(8), ring_alloc(8)
                S.reads.append((frag_read(X, vF, 0, (4 * u + kk) * 1024), len(S.mf)))
                S.reads.append((frag_read(Y, vF, 0, (4 * u + 2 + kk) * 1024), len(S.mf) + 1))
                kv_mfmas(S, ks, RSET[u], X, Y)
        stages.append(S)

    def kv2_stage(u, R):
        S = Stage(f"kv2_{u}", 18)
        S.blocks = [("C2", (u, 0)), ("C2", (u, 1))]
        for ks in range(16):
            X, Y = ring_alloc(8), ring_alloc(8)
            S.reads.append((frag_read(X, vF, 0, ks * 1024), len(S.mf)))
            S.reads.append((frag_read(Y, vF, 1, ks * 1024), len(S.mf) + 1))
            kv_mfmas(S, ks, R, X, Y)
        return S

    def ssm_stage(n, R):
        S = Stage(f"ssm_{n}", 8)
        S.blocks = [("SX", 2 * n), ("SB", n), ("SX", 2 * n + 1)]
        for k4 in range(4):
            kh, kk = k4 >> 1, k4 & 1
            B = []
            for reim in range(2):
                r = ring_alloc(12)
                B.append(r)
                S.reads.append((frag_read(r, vFB, 1, reim * 8192 + k4 * 1024), len(S.mf) + reim))
            for rb in range(4):
                r = ring_alloc(12)
                S.reads.append((frag_read(r, vFA, 2 * kh, (2 * rb + kk) * 1024), len(S.mf)))
                for reim in range(2):
                    d = R + 16 * reim + 4 * rb
                    c = "0" if (n == 0 and k4 == 0) else vr(d, 4)
                    S.mf.append(f"v_mfma_f32_16x16x32_bf16 {vr(d, 4)}, {r}, {B[reim]}, {c}")
        return S

    QACC = [RSET[0], RSET[2], RSET[4], RSET[3]]
    RB = RSET[1]

    def qacc(db, qb):
        return QACC[db >> 1] + 16 * (db & 1) + 4 * qb

    qring = [0, 0]

    def q_stage(n):
        S = Stage(f"q_{n}", 14)
        S.blocks = [("X", (0, n)), ("W", (S_WQ, sRQ, False)), ("X", (1, n))]
        for kk in range(2):
            xs = []
            base = len(S.mf)
            for qb in range(4):
                r = ar(128 + 4 * (qring[0] % 12), 4)
                qring[0] += 1
                xs.append(r)
                S.reads.append((frag_read(r, vFA, 2 * (qb >> 1), (2 * (qb & 1) + kk) * 1024), base + qb))
            for db in range(8):
                rr = 192 + 4 * (qring[1] % 8)
                qring[1] += 1
                for x in range(2):
                    S.reads.append((tr_read(ar(rr + 2 * x, 2), vT + 3 * (db & 1), 1,
                                            kk * 8192 + (db >> 1) * 1024 + x * 256), len(S.mf)))
                for qb in range(4):
                    d = qacc(db, qb)
                    c = "0" if (n == 0 and kk == 0) else vr(d, 4)
                    S.mf.append(f"v_mfma_f32_16x16x32_bf16 {vr(d, 4)}, {ar(rr, 4)}, {xs[qb]}, {c}")
        return S

    U4 = kv2_stage(4, RSET[4])
    U5 = kv2_stage(5, RSET[0])
    ringpos[0] = 0
    SS = [ssm_stage(n, RB) for n in range(4)]
    ringpos[0] = 0
    U6 = kv2_stage(6, RSET[2])
    U7 = kv2_stage(7, RSET[3])
    U6.lb = 7
    SS[0].lb = 14
    QS = [q_stage(n) for n in range(8)]
    stages += [U4, U5] + SS + [U6, U7] + QS
    for k, v in cfg.get("frac", {}).items():
        stages[int(k)].frac = v
    for k, v in cfg.get("mpace", {}).items():
        stages[int(k)].maxpace = v

    UR = [RSET[0], RSET[1], RSET[2], RSET[3], RSET[4], RSET[0], RSET[2], RSET[3]]
    byname = {"U4": U4, "U5": U5, "U6": U6, "U7": U7, "S0": SS[0]}
    dplan = cfg.get("drains", [["U4", 4, 36, 36, 44], ["U4", 64, 96, 96, 104], ["U5", 4, 36, 36, 44],
                               ["U5", 64, 96, 96, 104], ["U6", 2, 30, 30, 38], ["U6", 64, 96, 96, 104],
                               ["U7", 64, 96, 96, 104]])
    for u, (nm, a, b, c, d) in enumerate(dplan):
        cv, stv = drain(u, UR[u])
        byname[nm].fill.append((cv, a, b))
        byname[nm].fill.append((stv, c, d))
    cv7, st7 = drain(7, RSET[3], RING)
    QS[0].fill.append((cv7, 2, 22))
    QS[0].fill.append((st7, *cfg.get("st7", (24, 32))))

    def signal(line_sgpr_setup, sig=vSIG, one=vONE):
        return line_sgpr_setup + f"\n buffer_store_dword {vr(one)}, {vr(sig)}, {sr(S_FLG, 4)}, {sr(sFO)} offen sc1"

    stages[0].at_barrier.append("@need #zero")
    stages[0].after_barrier.append(f"v_lshl_add_u32 {vr(vPA)}, s2, 2, {vr(vSIG)}\n"
                                   f"buffer_store_dword {vr(vONE)}, {vr(vPA)}, {sr(S_DBG, 4)}, 0 offen sc1")
    tch = cfg.get("touch1")
    if tch:
        gw = f"s_lshl_b32 {sr(sT0)}, s2, 2\n s_add_u32 {sr(sT0)}, {sr(sT0)}, {sr(sW)}\n s_lshl_b32 {sr(sT0)}, {sr(sT0)}, 7"
        tl = [[gw, f"v_lshlrev_b32 {vr(vX0)}, 17, v0",
               f"buffer_load_dword {vr(TMP + 1)}, {vr(vX0)}, {sr(S_XA, 4)}, {sr(sT0)} offen"],
              [f"s_lshl_b32 {sr(sT0)}, s2, 1\n s_and_b32 {sr(sT1)}, {sr(sW)}, 1",
               f"s_add_u32 {sr(sT0)}, {sr(sT0)}, {sr(sT1)}\n s_lshl_b32 {sr(sT0)}, {sr(sT0)}, 7",
               f"v_lshlrev_b32 {vr(vX0)}, 16, v0",
               f"buffer_load_dword {vr(TMP + 2)}, {vr(vX0)}, {sr(S_BSEL, 4)}, {sr(sT0)} offen"],
              [f"s_lshl_b32 {sr(sT0)}, {sr(sI)}, 2\n s_add_u32 {sr(sT0)}, {sr(sT0)}, {sr(sW)}",
               f"s_lshl_b32 {sr(sT0)}, {sr(sT0)}, 13\n s_lshl_b32 {sr(sT1)}, {sr(sH)}, 8",
               f"s_add_u32 {sr(sT0)}, {sr(sT0)}, {sr(sT1)}\n v_and_b32 {vr(vX0)}, 1, v0",
               f"v_lshlrev_b32 {vr(vX0)}, 7, {vr(vX0)}\n v_lshrrev_b32 {vr(vX1)}, 1, v0",
               f"v_lshl_add_u32 {vr(vX0)}, {vr(vX1)}, 18, {vr(vX0)}",
               f"buffer_load_dword {vr(TMP + 3)}, {vr(vX0)}, {sr(S_WQ, 4)}, {sr(sT0)} offen"],
              [gw, f"v_lshlrev_b32 {vr(vX0)}, 17, v0",
               f"buffer_load_dword {vr(TMP + 4)}, {vr(vX0)}, {sr(S_XB, 4)}, {sr(sT0)} offen"]]
        for (stg, slot), items in zip(tch, tl):
            if stg >= 0:
                stages[stg].fill.append((items, slot, slot + len(items)))
    U5.fill.append(([f"v_lshlrev_b32 {vr(vLA)}, 16, {vr(vLA)}",
                     f"v_lshlrev_b32 {vr(vLB)}, 16, {vr(vLB)}",
                     f"v_lshlrev_b32 {vr(vZA)}, 16, {vr(vZA)}",
                     f"v_mul_f32 {vr(vZA)}, {f32hex(LOG2E)}, {vr(vZA)}",
                     f"v_exp_f32 {vr(vZA)}, {vr(vZA)}",
                     f"v_and_b32 {vr(vPA)}, 7, v0",
                     f"v_cvt_pk_bf16_f32 {vr(vZA)}, {vr(vZA)}, {vr(vZA)}",
                     f"v_lshlrev_b32 {vr(vZA)}, 16, {vr(vZA)}",
                     f"v_mul_f32 {vr(vZB)}, {vr(vZA)}, {vr(vLB)}",
                     f"v_mul_f32 {vr(vZA)}, {vr(vZA)}, {vr(vLA)}",
                     f"v_mul_f32 {vr(vZB)}, {f32hex(1.0 / (2 * math.pi))}, {vr(vZB)}",
                     f"v_mul_f32 {vr(vZA)}, {f32hex(LOG2E)}, {vr(vZA)}",
                     f"v_lshlrev_b32 {vr(vPA)}, 2, {vr(vPA)}",
                     sync.load(S_DBG, "0", vPA, vPV)], 44, 64))
    U6.at_barrier.append(sync.check("Z", S_DBG, "0", vPA, vPV))

    U6.blocks.append(("SCR", None))
    E0 = TMP

    def scan1(addrs):
        a = addrs[2]
        lr, li = E0, E0 + 1
        out = cexp("1.0", lr, li, E0 + 2, E0 + 3)
        cur = (RB, RB + 16)
        for t in range(1, 16):
            d = (E0 + 4 + 2 * (t & 1), E0 + 5 + 2 * (t & 1))
            out += cmadd(d[0], d[1], lr, li, cur[0], cur[1], RB + t, RB + 16 + t)
            cur = d
        assert cur == (E0 + 6, E0 + 7)
        out += [f"v_and_b32 {vr(vX0)}, 15, v0",
                f"s_and_b32 {sr(sT0)}, {sr(sW)}, 1\n s_lshl_b32 {sr(sT0)}, {sr(sT0)}, 7",
                f"s_add_u32 {sr(sT0)}, {sr(sT0)}, {a}",
                f"v_lshl_add_u32 {vr(E0 + 8)}, {vr(vX0)}, 3, {sr(sT0)}",
                f"v_lshl_add_u32 {vr(vX1)}, {vr(vSEG)}, 8, {vr(E0 + 8)}",
                f"ds_write_b64 {vr(vX1)}, {vr(E0 + 6, 2)}"]
        return out

    U6.fill.append((scan1, 6, 100))

    ER = RSET[4]
    vEA = vFB
    scan2 = [f"ds_read_b64 {vr(ER + 2 * s, 2)}, {vr(E0 + 8)} offset:{256 * s}" for s in range(8)]
    lr, li = E0, E0 + 1
    scan2 += cexp(f32hex(16.0), lr, li, E0 + 2, E0 + 3)
    scan2 += [f"v_mov_b32 {vr(vPRE)}, 0", f"v_mov_b32 {vr(vPRE + 1)}, 0",
              f"v_and_b32 {vr(vX0)}, 15, v0",
              f"s_and_b32 {sr(sT0)}, {sr(sW)}, 1\n s_lshl_b32 {sr(sT0)}, {sr(sT0)}, 7",
              f"s_lshl_b32 {sr(sT2)}, {sr(sPG)}, 8\n s_add_u32 {sr(sT0)}, {sr(sT0)}, {sr(sT2)}",
              f"v_lshl_add_u32 {vr(vEA)}, {vr(vX0)}, 3, {sr(sT0)}",
              f"v_lshl_add_u32 {vr(vX0)}, {vr(vSEG)}, 16, {vr(vEA)}",
              f"s_lshl_b32 {sr(sT0)}, {sr(sC)}, 12"]
    cur = (ER, ER + 1)
    for s in range(1, 8):
        scan2 += [f"v_cmp_eq_u32 vcc, {s}, {vr(vSEG)}"]
        d = (E0 + 4 + 2 * (s & 1), E0 + 5 + 2 * (s & 1))
        scan2 += cmadd(d[0], d[1], lr, li, cur[0], cur[1], ER + 2 * s, ER + 2 * s + 1)
        scan2 += [f"v_cndmask_b32 {vr(vPRE)}, {vr(vPRE)}, {vr(cur[0])}, vcc",
                  f"v_cndmask_b32 {vr(vPRE + 1)}, {vr(vPRE + 1)}, {vr(cur[1])}, vcc"]
        cur = d
    scan2 += [f"buffer_store_dwordx2 {vr(E0 + 6, 2)}, {vr(vX0)}, {sr(S_E, 4)}, {sr(sT0)} offen sc1 @@est"]
    U7.fill.append((scan2, 0, 58))
    U7.at_barrier.append("@need #est")
    U7.after_barrier.append(signal(f"s_lshl_b32 {sr(sFO)}, {sr(sPG)}, 5\n s_add_u32 {sr(sFO)}, {sr(sFO)}, {sr(sC)}\n"
                                   f"s_lshl_b32 {sr(sFO)}, {sr(sFO)}, 2\n s_add_u32 {sr(sFO)}, {sr(sFO)}, {FL_E * 128}"))
    U7.fill.append(([f"v_add_u32 {vr(vFA + k)}, {sr(sWLDS)}, {vr(vF + k)}" for k in range(3)] +
                    [f"s_lshl_b32 {sr(sT1)}, {sr(sW)}, 10"] +
                    [f"v_subrev_u32 {vr(vT + k)}, {sr(sT1)}, {vr(vT + k)}" for k in range(6)], 58, 70))

    kvsig = cfg.get("kvsig", 1)
    QS[kvsig].at_barrier.append("@need #kvst")
    QS[kvsig].after_barrier.append(signal(f"s_lshl_b32 {sr(sFO)}, {sr(sH)}, 5\n s_add_u32 {sr(sFO)}, {sr(sFO)}, {sr(sI)}\n"
                                      f"s_lshl_b32 {sr(sFO)}, {sr(sFO)}, 2"))

    EV = 48
    LAM, L128, LSEG, COEF, CT = 78, 80, 82, 84, 86
    s2a = cexp("1.0", LAM, LAM + 1, CT, CT + 1) + [
        f"v_add_f32 {vr(CT)}, -1.0, {vr(LAM)}",
        f"v_mul_f32 {vr(CT + 1)}, {vr(vLA)}, {vr(vLA)}",
        f"v_fmac_f32 {vr(CT + 1)}, {vr(vLB)}, {vr(vLB)}",
        f"v_rcp_f32 {vr(CT + 1)}, {vr(CT + 1)}",
        f"v_mul_f32 {vr(COEF)}, {vr(CT)}, {vr(vLA)}",
        f"v_fmac_f32 {vr(COEF)}, {vr(LAM + 1)}, {vr(vLB)}",
        f"v_mul_f32 {vr(COEF + 1)}, {vr(LAM + 1)}, {vr(vLA)}",
        f"v_fma_f32 {vr(COEF + 1)}, -{vr(CT)}, {vr(vLB)}, {vr(COEF + 1)}",
        f"v_add_f32 {vr(CT + 1)}, {vr(CT + 1)}, {vr(CT + 1)}",
        f"v_mul_f32 {vr(COEF)}, {vr(COEF)}, {vr(CT + 1)}",
        f"v_mul_f32 {vr(COEF + 1)}, {vr(COEF + 1)}, {vr(CT + 1)}"]
    s2a += cexp(f32hex(128.0), L128, L128 + 1, CT, CT + 1)
    s2a += [f"v_cvt_f32_u32 {vr(vX0)}, {vr(vSEG)}", f"v_mul_f32 {vr(vX0)}, {f32hex(16.0)}, {vr(vX0)}"]
    s2a += cexp(vr(vX0), LSEG, LSEG + 1, CT, CT + 1)
    epoll = cfg.get("epoll", 2)
    s2a += [f"v_and_b32 {vr(vPA)}, 15, v0", f"v_lshlrev_b32 {vr(vPA)}, 2, {vr(vPA)}"]
    QS[1].fill.append((s2a, 0, 48))
    QS[epoll].fill.append(([f"s_lshl_b32 {sr(sFO)}, {sr(sPG)}, 7\n s_add_u32 {sr(sFO)}, {sr(sFO)}, {FL_E * 128}",
                            sync.load(S_FLG, sr(sFO), vPA, vPV)], 4, 8))
    QS[epoll].at_barrier.append(sync.check("E", S_FLG, sr(sFO), vPA, vPV))
    eload = []
    for k in range(15):
        eload.append(f"s_add_i32 {sr(sT0)}, {sr(sC)}, {k - 15}\n s_min_u32 {sr(sT0)}, {sr(sT0)}, 16")
        eload.append(f"s_lshl_b32 {sr(sT0)}, {sr(sT0)}, 12\n"
                     f"buffer_load_dwordx2 {vr(EV + 2 * k, 2)}, {vr(vEA)}, {sr(S_E, 4)}, {sr(sT0)} offen sc1")
    QS[epoll].fill.append((eload, 51, 64 + 30))
    A = RING
    s2b = []
    cur = (EV, EV + 1)
    for k in range(1, 15):
        d = (A + 2 * (k & 1), A + 1 + 2 * (k & 1))
        s2b += cmadd(d[0], d[1], L128, L128 + 1, cur[0], cur[1], EV + 2 * k, EV + 2 * k + 1)
        cur = d
    s2b += cmadd(A + 2, A + 3, LSEG, LSEG + 1, cur[0], cur[1], vPRE, vPRE + 1)
    assert cur == (A, A + 1)
    cur = (A + 2, A + 3)
    for t in range(16):
        d = (A + 2 * (t & 1), A + 1 + 2 * (t & 1))
        o = (A + 4 + (t & 1), A + 6 + (t & 1))
        s2b += cmadd(d[0], d[1], LAM, LAM + 1, cur[0], cur[1], RB + t, RB + 16 + t)
        cur = d
        s2b += [f"v_mul_f32 {vr(o[0])}, {vr(COEF)}, {vr(d[0])}",
                f"v_mul_f32 {vr(o[1])}, {vr(COEF)}, {vr(d[1])}",
                f"v_fma_f32 {vr(o[0])}, -{vr(COEF + 1)}, {vr(d[1])}, {vr(o[0])}",
                f"v_fma_f32 {vr(o[1])}, -{vr(COEF + 1)}, {vr(d[0])}, -{vr(o[1])}"]
        if t & 1:
            s2b += [f"v_cvt_pk_bf16_f32 {vr(RB + t // 2)}, {vr(A + 4)}, {vr(A + 5)}",
                    f"v_cvt_pk_bf16_f32 {vr(RB + 16 + t // 2)}, {vr(A + 6)}, {vr(A + 7)}"]
    s2b += [f"s_lshl_b32 {sr(sT1)}, {sr(sC)}, 18\n s_lshr_b32 {sr(sT2)}, {sr(sW)}, 1",
            f"s_lshl_b32 {sr(sT2)}, {sr(sT2)}, 17\n s_add_u32 {sr(sT1)}, {sr(sT1)}, {sr(sT2)}",
            f"s_lshl_b32 {sr(sT2)}, {sr(sPG)}, 13\n s_add_u32 {sr(sT1)}, {sr(sT1)}, {sr(sT2)}",
            f"s_and_b32 {sr(sT2)}, {sr(sW)}, 1\n s_lshl_b32 {sr(sT2)}, {sr(sT2)}, 11",
            f"s_add_u32 {sr(sT1)}, {sr(sT1)}, {sr(sT2)}\n s_add_u32 {sr(sT1)}, {sr(sT1)}, {WS_HF}",
            f"v_mov_b32 {vr(vSIG2)}, {vr(vSIG)}", f"v_mov_b32 {vr(vONE2)}, 1"]
    hst = []
    for reim in range(2):
        for half in range(2):
            hst.append(f"buffer_store_dwordx4 {vr(RB + 16 * reim + 4 * half, 4)}, {vr(vL16)}, {sr(S_WS, 4)}, {sr(sT1)} "
                       f"offen offset:{half * 1024} sc1 @@hst")
        if reim == 0:
            hst.append(f"s_add_u32 {sr(sT1)}, {sr(sT1)}, 4096")
    s2lo = 64 * (epoll + 2) - 10
    QS[0].fill.append((s2b, s2lo, 64 * 7 + 36))

    QS[6].fill.append(([f"v_and_b32 {vr(vPA)}, 7, v0", f"v_lshlrev_b32 {vr(vPA)}, 2, {vr(vPA)}",
                        f"s_lshl_b32 {sr(sFO)}, {sr(sH)}, 7", sync.load(S_FLG, sr(sFO), vPA, vPV)], 6, 14))
    QS[6].at_barrier.append(sync.check("KV", S_FLG, sr(sFO), vPA, vPV))

    def qpack(cg):
        out = []
        for g in range(2):
            for hq in range(2):
                qb = 2 * g + hq
                dst = QREG[g] + 4 * (2 * cg + hq)
                src = [qacc(2 * cg, qb) + k for k in range(4)] + [qacc(2 * cg + 1, qb) + k for k in range(4)]
                out += [f"v_cvt_pk_bf16_f32 {vr(dst + k)}, {vr(src[2 * k])}, {vr(src[2 * k + 1])}" for k in range(4)]
        for g in range(2):
            d = QREG[g] + 8 * cg
            out += [f"v_permlane16_swap_b32 {vr(d + k)}, {vr(d + 4 + k)}" for k in range(4)]
        return out

    QS[7].fill.append((qpack(0), 42, 52))
    QS[7].fill.append((qpack(1), 52, 63))

    P1 = Pipe(stages, dma_group, cfg, "blk", cfg.get("npro", 6), fine(0))
    pairfree = [max(P1.free_at[2 * q], P1.free_at[2 * q + 1]) for q in range(5)]
    r0 = min(range(5), key=lambda q: [pairfree[(q + t) % 5] for t in range(4)])

    def tile_dma(tile, addr):
        out = []
        for j in range(8):
            su = []
            if j % 4 == 0:
                su = [f"s_mov_b32 {sr(sD0)}, {tile * 32768 + j * 1024}", f"s_add_u32 m0, {sr(sW8K)}, {addr + j * 1024}"]
            out.append((su, f"buffer_load_dwordx4 {vr(vW)}, {sr(S_KVR, 4)}, {sr(sD0)} offen offset:{(j % 4) * 1024} "
                            f"sc1 lds @@tile{tile}"))
        return out

    def tile_addr(t):
        return ((r0 + t) % 5) * 2 * BLK

    poll_bar = P1.bar[len(stages) - 1]
    P1.extra_fixed.append((poll_bar, f"s_lshl_b32 {sr(sW8K)}, {sr(sW)}, 13\n v_add_u32 {vr(vW)}, {sr(sW8K)}, {vr(vL16)}"))
    ntile_pre = 0
    tp = cfg.get("tilepace", 4)
    for t in range(cfg.get("ntilepre", 2)):
        e = max(P1.bar[pairfree[(r0 + t) % 5]], poll_bar) + 1
        if max(P1.dcur, e) + 8 * tp + 1 >= P1.total:
            break
        P1.add_dma(tile_dma(t, tile_addr(t)), e, tp, P1.total - 1)
        ntile_pre += 1
    P1.schedule()

    for gi, grp in enumerate(P1.prolog_dma):
        for setup, ins in grp:
            p("\n".join(setup))
            p(ins)
        if gi == 2:
            p(late)
            tlb = cfg.get("tlb", 0)
            if tlb:
                p(f"v_lshlrev_b32 {vr(vX0)}, {tlb}, v0\n s_lshl_b32 {sr(sT0)}, {sr(sW)}, {tlb - 2}")
                for k, srd in enumerate((S_WS, S_XA, S_BSEL, S_XB, S_WQ, S_WO, S_CSEL)):
                    p(f"buffer_load_dword {vr(TMP + 1 + k)}, {vr(vX0)}, {sr(srd, 4)}, {sr(sT0)} offen offset:8")
    if timing:
        p(f"v_mov_b32 {vr(vX0)}, {sr(sRET)}\n v_mov_b32 {vr(vX1)}, {sr(sRET)}\n v_mov_b32 v94, {63 * 8}")
        p(f"buffer_store_dwordx2 {vr(vX0, 2)}, v94, {sr(S_WS, 4)}, {sr(sStamp)} offen")
    st(94)
    p(f"@need {P1.first_need}\n s_barrier")
    st(94)
    for t in P1.prolog_reads:
        p(t)
    xb = {}
    if timing:
        for n in (8, 10, 14, 16):
            tq = Prog()
            stamp(tq, True, nstamp[0], sTS, 92, 94, S_WS, sStamp)
            nstamp[0] += 1
            xb[P1.start[n]] = "\n".join(x.text for x in tq.ins)
    P1.emit(p, xb)
    if timing:
        p(f"v_lshlrev_b32 v94, 2, v0\n buffer_store_dword v95, v94, {sr(S_WS, 4)}, {sr(sStamp)} offen offset:768")
    st()

    p("@need #tile0\n s_barrier")
    rest = []
    for t in range(ntile_pre, 4):
        rest += ["\n".join(su + [ins]) for su, ins in tile_dma(t, tile_addr(t))]
    hsig = signal(f"s_lshl_b32 {sr(sFO)}, {sr(sC)}, 5\n s_add_u32 {sr(sFO)}, {sr(sFO)}, {sr(sPG)}\n"
                  f"s_lshl_b32 {sr(sFO)}, {sr(sFO)}, 2\n s_add_u32 {sr(sFO)}, {sr(sFO)}, {FL_H * 128}", vSIG2, vONE2)

    SACC, OACC = 32, 96
    vH = vFB
    vCF = vFA
    vCX = vF
    ro, r2 = cfg.get("roto", (8, 8)), cfg.get("rot2", (1, 2))
    tail1 = [f"""
    s_and_b32 {sr(sT0)}, s2, 7
    s_lshr_b32 {sr(sT1)}, s2, 3
    s_lshl_b32 {sr(sRT64)}, {sr(sT0)}, 2
    s_lshr_b32 {sr(sT2)}, {sr(sT1)}, 3
    s_add_u32 {sr(sRT64)}, {sr(sRT64)}, {sr(sT2)}
    s_and_b32 {sr(sCT64)}, {sr(sT1)}, 7
    s_mul_i32 {sr(sR2)}, {sr(sCT64)}, {r2[0]}
    s_mul_i32 {sr(sT2)}, {sr(sT2)}, {r2[1]}
    s_add_u32 {sr(sR2)}, {sr(sR2)}, {sr(sT2)}
    s_and_b32 {sr(sR2)}, {sr(sR2)}, 7
    s_lshl_b32 {sr(sR2)}, {sr(sR2)}, 7
    s_lshl_b32 {sr(sHO)}, {sr(sRT64)}, 17
    s_add_u32 {sr(sHO)}, {sr(sHO)}, {sr(sWLDS)}
    s_add_u32 {sr(sHO)}, {sr(sHO)}, {WS_HF}
    s_lshl_b32 {sr(sCO)}, {sr(sCT64)}, 16
    s_lshr_b32 {sr(sT2)}, {sr(sW)}, 1
    s_lshl_b32 {sr(sT3)}, {sr(sT2)}, 15
    s_add_u32 {sr(sCO)}, {sr(sCO)}, {sr(sT3)}
    s_lshr_b32 {sr(sKQ)}, {sr(sT0)}, 1
    s_lshr_b32 {sr(sRT)}, {sr(sT1)}, 2
    s_and_b32 {sr(sCT)}, {sr(sT1)}, 3
    s_mul_i32 {sr(sRO)}, {sr(sRT)}, {ro[0]}
    s_mul_i32 {sr(sT2)}, {sr(sCT)}, {ro[1]}
    s_add_u32 {sr(sRO)}, {sr(sRO)}, {sr(sT2)}
    s_and_b32 {sr(sRO)}, {sr(sRO)}, 15
    s_lshl_b32 {sr(sRO2)}, {sr(sRO)}, 14
    s_lshl_b32 {sr(sRO)}, {sr(sRO)}, 16
    s_lshl_b32 {sr(sRT)}, {sr(sRT)}, 1
    s_and_b32 {sr(sT2)}, {sr(sT0)}, 1
    s_add_u32 {sr(sRT)}, {sr(sRT)}, {sr(sT2)}
    s_lshl_b32 {sr(sCTXO)}, {sr(sRT)}, 20
    s_lshl_b32 {sr(sT2)}, {sr(sKQ)}, 18
    s_add_u32 {sr(sCTXO)}, {sr(sCTXO)}, {sr(sT2)}
    s_add_u32 {sr(sCTXO)}, {sr(sCTXO)}, {sr(sWLDS)}
    s_add_u32 {sr(sCTXO)}, {sr(sCTXO)}, {WS_CTX}
    s_lshl_b32 {sr(sWOO)}, {sr(sKQ)}, 20
    s_lshl_b32 {sr(sT2)}, {sr(sW)}, 14
    s_add_u32 {sr(sWOO)}, {sr(sWOO)}, {sr(sT2)}
    s_lshl_b32 {sr(sT2)}, {sr(sCT)}, 8
    s_add_u32 {sr(sWOO)}, {sr(sWOO)}, {sr(sT2)}
    """]
    tail2 = f"""
    s_lshr_b32 {sr(sT2)}, {sr(sW)}, 1
    s_and_b32 {sr(sT0)}, {sr(sW)}, 1
    s_lshl_b32 {sr(sT1)}, {sr(sT0)}, 12
    s_lshl_b32 {sr(sT3)}, {sr(sT2)}, 10
    s_add_u32 {sr(sT1)}, {sr(sT1)}, {sr(sT3)}
    v_add_u32 {vr(vCF)}, {sr(sT1)}, {vr(vF)}
    v_add_u32 {vr(vCF + 1)}, {sr(sT1)}, {vr(vF + 1)}
    v_add_u32 {vr(vCF + 2)}, {sr(sT1)}, {vr(vF + 2)}
    s_lshl_b32 {sr(sT3)}, {sr(sT2)}, 12
    v_add_u32 {vr(vCX)}, {sr(sT3)}, {vr(vL16)}
    v_add_u32 {vr(vCX + 1)}, 0x10000, {vr(vCX)}
    v_add_u32 {vr(vCX + 2)}, 0x20000, {vr(vCX)}
    s_lshl_b32 {sr(sT1)}, {sr(sT0)}, 11
    """
    tail2 += "".join(f"v_add_u32 {vr(vT + k)}, {sr(sT1)}, {vr(vT + k)}\n" for k in range(6))
    tail2 += f"""
    v_lshrrev_b32 {vr(vX0)}, 5, v0
    v_lshl_add_u32 {vr(vH)}, {vr(vX0)}, 11, {sr(sWLDS)}
    v_bfe_u32 {vr(vX0)}, v0, 1, 1
    v_lshl_add_u32 {vr(vH)}, {vr(vX0)}, 10, {vr(vH)}
    v_bfe_u32 {vr(vX0)}, v0, 4, 1
    v_lshl_add_u32 {vr(vH)}, {vr(vX0)}, 7, {vr(vH)}
    v_bfe_u32 {vr(vX0)}, v0, 2, 2
    v_lshl_add_u32 {vr(vH)}, {vr(vX0)}, 4, {vr(vH)}
    v_and_b32 {vr(vX0)}, 1, v0
    v_lshl_add_u32 {vr(vH)}, {vr(vX0)}, 3, {vr(vH)}
    v_add_u32 {vr(vH + 1)}, 0x10000, {vr(vH)}
    v_add_u32 {vr(vH + 2)}, 0x20000, {vr(vH)}
    s_waitcnt lgkmcnt(0)
    s_mov_b32 {sr(S_OUT + 2)}, {2048 * 4096}
    s_mov_b32 {sr(S_OUT + 3)}, {SRD3}
    s_mov_b32 {sr(S_DSK + 2)}, 1024
    s_mov_b32 {sr(S_DSK + 3)}, {SRD3}
    """
    touch2 = lines(f"""
    v_lshlrev_b32 {vr(vX0)}, 7, v0
    s_lshl_b32 {sr(sT0)}, s2, 1
    s_and_b32 {sr(sT1)}, {sr(sW)}, 1
    s_add_u32 {sr(sT0)}, {sr(sT0)}, {sr(sT1)}
    s_lshr_b32 {sr(sT1)}, {sr(sW)}, 1
    s_lshl_b32 {sr(sT2)}, {sr(sT1)}, 9
    s_add_u32 {sr(sT0)}, {sr(sT0)}, {sr(sT2)}
    s_lshl_b32 {sr(sT0)}, {sr(sT0)}, 13
    buffer_load_dword {vr(vMT + 3)}, {vr(vX0)}, {sr(S_WO, 4)}, {sr(sT0)} offen
    v_lshlrev_b32 {vr(vX0)}, 16, v0
    s_lshl_b32 {sr(sT0)}, s2, 1
    s_add_u32 {sr(sT0)}, {sr(sT0)}, {sr(sT1)}
    s_lshl_b32 {sr(sT0)}, {sr(sT0)}, 7
    buffer_load_dword {vr(vMT + 4)}, {vr(vX0)}, {sr(S_CSEL, 4)}, {sr(sT0)} offen
    """) if cfg.get("touch2", True) else []

    def ctx_signal(g):
        rt = f"s_mov_b32 {sr(sFO)}, {sr(sI)}" if g == 0 else f"s_sub_u32 {sr(sFO)}, 15, {sr(sI)}"
        return signal(f"""{rt}
        s_lshl_b32 {sr(sFO)}, {sr(sFO)}, 2
        s_lshr_b32 {sr(sT0)}, {sr(sH)}, 3
        s_add_u32 {sr(sFO)}, {sr(sFO)}, {sr(sT0)}
        s_lshl_b32 {sr(sFO)}, {sr(sFO)}, 5
        s_and_b32 {sr(sT0)}, {sr(sH)}, 7
        s_add_u32 {sr(sFO)}, {sr(sFO)}, {sr(sT0)}
        s_lshl_b32 {sr(sFO)}, {sr(sFO)}, 2
        s_add_u32 {sr(sFO)}, {sr(sFO)}, {FL_CTX * 128}""", vSIG2, vONE2)

    def pre_last():
        if cfg.get("touch3", True):
            touch_code(S_CODE, "KA_pc2", 237)
        p(f"""
        v_and_b32 {vr(vPA2)}, 15, v0
        v_lshlrev_b32 {vr(vPA2)}, 2, {vr(vPA2)}
        s_and_b32 {sr(sFO)}, s2, 7
        s_lshl_b32 {sr(sFO)}, {sr(sFO)}, 8
        s_and_b32 {sr(sT0)}, s2, 128
        s_add_u32 {sr(sFO)}, {sr(sFO)}, {sr(sT0)}
        s_add_u32 {sr(sFO)}, {sr(sFO)}, {FL_H * 128}
        {sync.load(S_FLG, sr(sFO), vPA2, vPV2)}
        """)

    ATT.gen_attention(p, cfg, tile_addr(0), st, pre=qpack(2) + qpack(3), hst=hst, rest=rest, hsig=hsig,
                      touch=touch2, pre_last=pre_last, last_fill=tail1)

    tring = [0, 0]

    def s2_stage(n):
        S = Stage(f"s2_{n}", 9)
        S.frac = 0.8
        S.blocks = [("H", n), ("C", n)]
        cf = []
        for db in range(4):
            r = ar(128 + 4 * (tring[0] % 12), 4)
            tring[0] += 1
            cf.append(r)
            S.reads.append((frag_read(r, vCF, 1, (db >> 1) * 8192 + (db & 1) * 2048), db))
        for tb in range(4):
            rr = 192 + 4 * (tring[1] % 12)
            tring[1] += 1
            for x in range(2):
                S.reads.append((tr_read(ar(rr + 2 * x, 2), vH, 0, tb * 256 + x * 64), len(S.mf)))
            for db in range(4):
                d = SACC + 16 * tb + 4 * db
                c = "0" if n == 0 else vr(d, 4)
                S.mf.append(f"v_mfma_f32_16x16x32_bf16 {vr(d, 4)}, {cf[db]}, {ar(rr, 4)}, {c}")
        return S

    def o_stage(n):
        S = Stage(f"o_{n}", 12)
        S.blocks = [("WO", n), ("CX", n)]
        for kk in range(2):
            xs = []
            base = len(S.mf)
            for tb in range(4):
                r = ar(128 + 4 * (tring[0] % 12), 4)
                tring[0] += 1
                xs.append(r)
                S.reads.append((frag_read(r, vCX, 1, kk * 8192 + tb * 1024), base + tb))
            for mb in range(4):
                rr = 192 + 4 * (tring[1] % 12)
                tring[1] += 1
                for x in range(2):
                    S.reads.append((tr_read(ar(rr + 2 * x, 2), vT + 3 * (mb & 1), 0,
                                            kk * 8192 + (mb >> 1) * 1024 + x * 256), len(S.mf)))
                for tb in range(4):
                    d = OACC + 16 * tb + 4 * mb
                    c = "0" if (n == 0 and kk == 0) else vr(d, 4)
                    S.mf.append(f"v_mfma_f32_16x16x32_bf16 {vr(d, 4)}, {ar(rr, 4)}, {xs[tb]}, {c}")
        return S

    na = cfg.get("s2a", 2)
    T2a = [s2_stage(n) for n in range(na)]
    TO = [o_stage(n) for n in range(16)]
    T2b = [s2_stage(n) for n in range(na, 8)]
    TO[0].lb = 9
    tst = T2a + TO + T2b
    pollst = cfg.get("ctxpoll", na - 2)
    cpl = f"""
    v_and_b32 {vr(vPA2)}, 7, v0
    v_lshlrev_b32 {vr(vPA2)}, 2, {vr(vPA2)}
    s_lshl_b32 {sr(sFO)}, {sr(sRT)}, 2
    s_add_u32 {sr(sFO)}, {sr(sFO)}, {sr(sKQ)}
    s_lshl_b32 {sr(sFO)}, {sr(sFO)}, 7
    s_add_u32 {sr(sFO)}, {sr(sFO)}, {FL_CTX * 128}
    {sync.load(S_FLG, sr(sFO), vPA2, vPV2)}
    """
    T2a[pollst].at_barrier.append(sync.check("CTX", S_FLG, sr(sFO), vPA2, vPV2))
    for S in TO:
        S.gate = pollst

    XR = 160
    vX, vO, vWr, vRd = 170, 171, 172, 173
    pst = [f"s_lshl_b32 {sr(sT1)}, {sr(sRT)}, 2\n s_add_u32 {sr(sT1)}, {sr(sT1)}, {sr(sCT)}",
           f"s_mul_i32 {sr(sT1)}, {sr(sT1)}, {12 * 8192}\n s_lshl_b32 {sr(sT2)}, {sr(sW)}, 11",
           f"s_add_u32 {sr(sT1)}, {sr(sT1)}, {sr(sT2)}\n s_add_u32 {sr(sT1)}, {sr(sT1)}, {WS_PX}"]
    TO[15].fill.append((pst, 2, 10))
    pcv = []
    for tb in range(1, 4):
        r = OACC + 16 * tb
        pcv.append(f"s_add_u32 {sr(sT2)}, {sr(sKQ)}, {tb}\n s_and_b32 {sr(sT2)}, {sr(sT2)}, 3")
        pcv.append(f"s_mul_i32 {sr(sT2)}, {sr(sT2)}, {3 * 8192}\n s_add_u32 {sr(sT2)}, {sr(sT2)}, {sr(sT1)}")
        if tb > 1:
            pcv.append(f"s_add_u32 {sr(sT2)}, {sr(sT2)}, {(tb - 1) * 8192}")
        pcv += [f"v_cvt_pk_bf16_f32 {vr(r + k)}, {vr(r + 2 * k)}, {vr(r + 2 * k + 1)}" for k in range(8)]
        pcv += [f"buffer_store_dwordx4 {vr(r + 4 * k, 4)}, {vr(vL16)}, {sr(S_WS, 4)}, {sr(sT2)} offen offset:{k * 1024} sc1 @@pst"
                for k in range(2)]
    psig = signal(f"""s_lshl_b32 {sr(sFO)}, {sr(sRT)}, 2
    s_add_u32 {sr(sFO)}, {sr(sFO)}, {sr(sCT)}
    s_lshl_b32 {sr(sFO)}, {sr(sFO)}, 5
    s_add_u32 {sr(sFO)}, {sr(sFO)}, {sr(sKQ)}
    s_lshl_b32 {sr(sFO)}, {sr(sFO)}, 2
    s_add_u32 {sr(sFO)}, {sr(sFO)}, {FL_P * 128}""", vSIG2, vONE2)
    T2b[0].fill.append((pcv, 2, 15))
    psg, ppl = cfg.get("psig", 1), cfg.get("ppoll", len(T2b) - 2)
    assert ppl >= psg + 2
    T2b[psg].at_barrier.append("@need #pst")
    T2b[psg].after_barrier.append(psig)
    PR = 112
    T2b[ppl].fill.append(([f"""
    s_and_b32 {sr(sFO)}, {sr(sFO)}, 0xffffff80
    v_and_b32 {vr(vPA2)}, 3, v0
    v_lshlrev_b32 {vr(vPA2)}, 2, {vr(vPA2)}
    {sync.load(S_FLG, sr(sFO), vPA2, vPV2)}
    s_mul_i32 {sr(sT2)}, {sr(sKQ)}, {3 * 8192}
    s_add_u32 {sr(sT1)}, {sr(sT1)}, {sr(sT2)}
    """], -8, -2))
    T2b[ppl].at_barrier.append(sync.check("P", S_FLG, sr(sFO), vPA2, vPV2))
    for sl_ in range(3):
        for k in range(2):
            T2b[ppl].after_barrier.append(f"buffer_load_dwordx4 {vr(PR + 8 * sl_ + 4 * k, 4)}, {vr(vL16)}, {sr(S_WS, 4)}, "
                                          f"{sr(sT1)} offen offset:{k * 1024} sc1")
        if sl_ < 2:
            T2b[ppl].after_barrier.append(f"s_add_u32 {sr(sT1)}, {sr(sT1)}, 8192")
    epi = [f"v_lshrrev_b32 {vr(vX0)}, 4, v0", f"v_and_b32 {vr(vX1)}, 15, v0",
           f"v_lshlrev_b32 {vr(vX)}, 10, {vr(vX0)}", f"v_lshl_add_u32 {vr(vX)}, {vr(vX1)}, 3, {vr(vX)}",
           f"v_lshlrev_b32 {vr(vO)}, 12, {vr(vX0)}", f"v_lshl_add_u32 {vr(vO)}, {vr(vX1)}, 4, {vr(vO)}",
           f"s_lshl_b32 {sr(sT0)}, {sr(sRT64)}, 2\n s_add_u32 {sr(sT0)}, {sr(sT0)}, {sr(sW)}",
           f"s_lshl_b32 {sr(sT0)}, {sr(sT0)}, 14\n s_lshl_b32 {sr(sT2)}, {sr(sCT64)}, 7",
           f"s_add_u32 {sr(sT0)}, {sr(sT0)}, {sr(sT2)}"]
    for n in range(4):
        epi.append(f"buffer_load_dwordx2 {vr(XR + 2 * n, 2)}, {vr(vX)}, {sr(S_XA, 4)}, {sr(sT0)} offen\n"
                   f"s_add_u32 {sr(sT0)}, {sr(sT0)}, 4096")
    epi += [f"v_lshlrev_b32 {vr(vX)}, 3, {vr(vX1)}",
            f"buffer_load_dwordx2 {vr(XR + 8, 2)}, {vr(vX)}, {sr(S_DSK, 4)}, {sr(sT2)} offen",
            f"v_mul_u32_u24 {vr(vRd)}, {PSTR}, {vr(vX0)}", f"v_lshl_add_u32 {vr(vRd)}, {vr(vX1)}, 4, {vr(vRd)}",
            f"s_mul_i32 {sr(sT0)}, {sr(sW)}, {16 * PSTR}", f"v_add_u32 {vr(vRd)}, {sr(sT0)}, {vr(vRd)}",
            f"v_mul_u32_u24 {vr(vWr)}, {PSTR}, {vr(vX1)}", f"v_lshl_add_u32 {vr(vWr)}, {vr(vX0)}, 4, {vr(vWr)}",
            f"v_add_u32 {vr(vX)}, {sr(sT0)}, {vr(vWr)}",
            f"s_mul_i32 {sr(sT0)}, {sr(sW)}, {PART}", f"v_add_u32 {vr(vWr)}, {sr(sT0)}, {vr(vWr)}"]
    TO[2].fill.append((epi, 0, 60))

    wa = cfg.get("wahead", 3)

    def tail_order(blocks):
        pre_, post = [x for x in blocks if x[0] < na], [x for x in blocks if x[0] >= na + 16]
        mid = [(na + k, 0) for k in range(wa)]
        for k in range(16):
            mid.append((na + k, 1))
            if k + wa < 16:
                mid.append((na + k + wa, 0))
        return pre_ + mid + post

    P2 = Pipe(tst, dma_group, cfg, "tb", cfg.get("npro2", 2 * na + wa), fine(24) and (lambda n: fine(24)(n).replace("v95", "v255")),
              gated=("CX",), order=tail_order)
    P2.schedule()

    p(sync.check("H", S_FLG, sr(sFO), vPA2, vPV2))
    p("@need #ctxst\n s_barrier")
    p(f"s_load_dwordx2 {sr(S_OUT, 2)}, s[0:1], {KA['OUT']}\n s_load_dwordx2 {sr(S_DSK, 2)}, s[0:1], {KA['DSK']}")
    dm = []
    for grp in P2.prolog_dma:
        dm += ["\n".join(su + [ins]) for su, ins in grp]
    nfirst = cfg.get("tailfirst", 8)
    for x in dm[:nfirst]:
        p(x)
    ATT.ctx_epilogue(p, cfg, 1, [])
    p(ctx_signal(0))
    nsec = nfirst + cfg.get("tailsecond", 4)
    for x in dm[nfirst:nsec]:
        p(x)
    p(tail2)
    sg = lines(ctx_signal(1))
    p("\n".join(sg[:-1]))
    p(f"@need {P2.first_need} #ctxst\n s_barrier")
    p(sg[-1])
    st()
    nthird = nsec + cfg.get("tailthird", 4)
    for x in dm[nsec:nthird]:
        p(x)
    p(cpl)
    for x in dm[nthird:]:
        p(x)
    for t in P2.prolog_reads:
        p(t)
    xb = {}
    if timing:
        for n in (na, na + 16):
            tq = Prog()
            stamp(tq, True, nstamp[0], sTS, 252, 254, S_WS, sStamp)
            nstamp[0] += 1
            xb[P2.start[n]] = "\n".join(x.text for x in tq.ins)
    P2.emit(p, xb)
    if timing:
        p(f"v_lshlrev_b32 v254, 2, v0\n buffer_store_dword v255, v254, {sr(S_WS, 4)}, {sr(sStamp)} offen offset:512")
    st()

    p("s_barrier")
    for tb in range(4):
        for db in range(4):
            p(f"ds_write_b128 {vr(vWr)}, {vr(SACC + 16 * tb + 4 * db, 4)} offset:{tb * 16 * PSTR + db * 64}")
    D, Y = 136, 140
    osc = " " + cfg.get("outflag", "sc1")
    for sl_ in range(3):
        for k in range(8):
            r = PR + 8 * sl_ + k
            p(f"v_lshlrev_b32 {vr(Y)}, 16, {vr(r)}")
            p(f"v_and_b32 {vr(Y + 1)}, 0xffff0000, {vr(r)}")
            p(f"v_add_f32 {vr(OACC + 2 * k)}, {vr(OACC + 2 * k)}, {vr(Y)}")
            p(f"v_add_f32 {vr(OACC + 2 * k + 1)}, {vr(OACC + 2 * k + 1)}, {vr(Y + 1)}")
    p(f"v_add_u32 {vr(vX)}, {4 * PART}, {vr(vX)}\n v_add_u32 {vr(vWr)}, {4 * PART}, {vr(vRd)}")
    for mb in range(4):
        p(f"ds_write_b128 {vr(vX)}, {vr(OACC + 4 * mb, 4)} offset:{mb * 64}")
    p(f"""
    s_lshl_b32 {sr(sT1)}, {sr(sRT)}, 3
    s_lshr_b32 {sr(sT2)}, {sr(sW)}, 1
    s_lshl_b32 {sr(sT2)}, {sr(sT2)}, 2
    s_add_u32 {sr(sT1)}, {sr(sT1)}, {sr(sT2)}
    s_add_u32 {sr(sT1)}, {sr(sT1)}, {sr(sKQ)}
    s_lshl_b32 {sr(sT1)}, {sr(sT1)}, 16
    s_lshl_b32 {sr(sT2)}, {sr(sCT)}, 1
    s_and_b32 {sr(sT3)}, {sr(sW)}, 1
    s_add_u32 {sr(sT2)}, {sr(sT2)}, {sr(sT3)}
    s_lshl_b32 {sr(sT2)}, {sr(sT2)}, 8
    s_add_u32 {sr(sT1)}, {sr(sT1)}, {sr(sT2)}
    s_waitcnt lgkmcnt(0)
    s_barrier
    """)
    for n in range(4):
        p(f"ds_read_b128 {vr(PR + 4 * n, 4)}, {vr(vWr)} offset:{n * 4 * PSTR}")
    TT = 176
    for n in range(4):
        for q in range(4):
            p(f"ds_read_b128 {vr(TT + 16 * n + 4 * q, 4)}, {vr(vRd)} offset:{q * PART + n * 4 * PSTR}")
    for n in range(4):
        p(f"buffer_store_dwordx4 {vr(PR + 4 * n, 4)}, {vr(vO)}, {sr(S_OUT, 4)}, {sr(sT1)} offen offset:2048{osc}")
        if n < 3:
            p(f"s_add_u32 {sr(sT1)}, {sr(sT1)}, 16384")
    p(f"""
    v_lshlrev_b32 {vr(D)}, 16, {vr(XR + 8)}
    v_and_b32 {vr(D + 1)}, 0xffff0000, {vr(XR + 8)}
    v_lshlrev_b32 {vr(D + 2)}, 16, {vr(XR + 9)}
    v_and_b32 {vr(D + 3)}, 0xffff0000, {vr(XR + 9)}
    s_lshl_b32 {sr(sT0)}, {sr(sRT64)}, 2
    s_add_u32 {sr(sT0)}, {sr(sT0)}, {sr(sW)}
    s_lshl_b32 {sr(sT0)}, {sr(sT0)}, 16
    s_lshl_b32 {sr(sT2)}, {sr(sCT64)}, 8
    s_add_u32 {sr(sT0)}, {sr(sT0)}, {sr(sT2)}
    """)
    for n in range(4):
        t, x = TT + 16 * n, XR + 2 * n
        p(f"""
        v_lshlrev_b32 {vr(Y)}, 16, {vr(x)}
        v_and_b32 {vr(Y + 1)}, 0xffff0000, {vr(x)}
        v_lshlrev_b32 {vr(Y + 2)}, 16, {vr(x + 1)}
        v_and_b32 {vr(Y + 3)}, 0xffff0000, {vr(x + 1)}
        """)
        for e in range(4):
            p(f"v_mul_f32 {vr(Y + e)}, {vr(Y + e)}, {vr(D + e)}")
        p(f"""
        v_cvt_pk_bf16_f32 {vr(Y + 4)}, {vr(Y)}, {vr(Y + 1)}
        v_cvt_pk_bf16_f32 {vr(Y + 5)}, {vr(Y + 2)}, {vr(Y + 3)}
        v_lshlrev_b32 {vr(Y)}, 16, {vr(Y + 4)}
        v_and_b32 {vr(Y + 1)}, 0xffff0000, {vr(Y + 4)}
        v_lshlrev_b32 {vr(Y + 2)}, 16, {vr(Y + 5)}
        v_and_b32 {vr(Y + 3)}, 0xffff0000, {vr(Y + 5)}
        """)
        for e in range(4):
            p(f"v_add_f32 {vr(t + e)}, {vr(t + e)}, {vr(t + 4 + e)}")
            p(f"v_add_f32 {vr(t + 8 + e)}, {vr(t + 8 + e)}, {vr(t + 12 + e)}")
        for e in range(4):
            p(f"v_add_f32 {vr(t + e)}, {vr(t + e)}, {vr(t + 8 + e)}")
            p(f"v_add_f32 {vr(t + e)}, {vr(t + e)}, {vr(Y + e)}")
        p(f"buffer_store_dwordx4 {vr(t, 4)}, {vr(vO)}, {sr(S_OUT, 4)}, {sr(sT0)} offen{osc}")
        if n < 3:
            p(f"s_add_u32 {sr(sT0)}, {sr(sT0)}, 16384")
    st()
    if timing and cfg.get("dbgout") is not None:
        p(f"""
        s_cmp_lg_u32 s2, {cfg["dbgout"]}
        s_cbranch_scc1 KA_end
        s_waitcnt vmcnt(0)
        s_barrier
        v_lshlrev_b32 v1, 4, v0
        v_mov_b32 v2, {63 * 8}
        buffer_load_dword v3, v1, {sr(S_WS, 4)}, {sr(sStamp)} offen offset:4 sc1
        buffer_load_dword v5, v1, {sr(S_WS, 4)}, {sr(sStamp)} offen offset:12 sc1
        buffer_load_dword v4, v2, {sr(S_WS, 4)}, {sr(sStamp)} offen sc1
        s_mov_b32 {sr(S_DBG + 2)}, 64
        v_lshlrev_b32 v1, 2, v0
        v_sub_u32 v3, v3, v4
        v_sub_u32 v5, v5, v4
        v_and_b32 v5, 0xffff, v5
        v_mul_u32_u24 v3, 100000, v3
        v_add_u32 v3, v3, v5
        buffer_store_dword v3, v1, {sr(S_DBG, 4)}, 0 offen offset:32
        """)
    p.label("KA_end")
    p("s_endpgm")
    p.label("KA_codeend")
    sync.emit(p)
    ATT.gen_attention_rare(p, cfg)
    p.finish(cfg.get("verbose_nop", False))
    if cfg.get("align8"):
        p.align8(True)
    return p


def build(cfg):
    hdr = [l for l in open("cdna_kernels/" + NAME + ".s.ref").read().split("\n")
           if l.startswith(";") and "@launch" not in l][:19]
    ka = gen(cfg)
    out = "\n".join(hdr) + "\n"
    if cfg.get("aslist"):
        out += f"; @launch kernel={NAME}_kernel grid=(256,1,1) block=(256,1,1) lds={NBLK * BLK}\n"
    else:
        out += f"; @launch grid=(256,1,1) block=(256,1,1) lds={NBLK * BLK}\n"
    out += '.amdgcn_target "amdgcn-amd-amdhsa--gfx950"\n'
    out += kernel_text(NAME + "_kernel", ka)
    out += '.section .rodata,"a"\n.p2align 6\n'
    out += descriptor_text(NAME + "_kernel", 512, 102, 256)
    print("instrs", len(ka.ins), "maxv", ka.maxreg("v"), "maxa", ka.maxreg("a"), "maxs", ka.maxreg("s"),
          "auto nops", sum(1 for x in ka.ins if x.auto and x.cls == "nop"), file=sys.stderr)
    return out


if __name__ == "__main__":
    cfg = json.loads(sys.argv[2]) if len(sys.argv) > 2 else {}
    open(sys.argv[1], "w").write(build(cfg))
```

```python
from gen_common import *
from regs import *
from pipesched import Sched, split_items, cost

BIG = 2.0 ** 100
LDSEND = 163840
vBASE = vMT + 7
vW2 = vK
vSC = [vMT + 5, vMT + 6]
LOOK = 8

LAG = [1]
late_blocks = []
sites = []


def fr(f):
    return ar(FRING + 4 * (f % NFR), 4)


def sm_ops(g, par, masked, tb):
    S, P, lu = SREG[g][par], PREG[g][par], vLU[g]
    ops = []

    def t(k):
        return vr(vET + (k & 7))

    def post(j):
        if j == 1:
            ops.append(f"v_add_f32 {vr(lu)}, {t(0)}, {t(1)}")
        elif j > 1:
            ops.append(f"v_add_f32 {vr(lu)}, {vr(lu)}, {t(j)}")
        if j & 1:
            ops.append(f"v_cvt_pk_bf16_f32 {vr(P + j // 2)}, {t(j - 1)}, {t(j)}")

    for k in range(16):
        if masked:
            ops += mask_ops(g, S, k)
        ops.append(f"v_exp_f32 {t(k)}, {vr(S + k)}")
        if k >= LAG[0]:
            post(k - LAG[0])
    if masked:
        ops.append(f"v_add_f32 {vr(vTHR[g])}, {f32hex(-32 * BIG)}, {vr(vTHR[g])}")
    for k in range(16 - LAG[0], 16):
        post(k)
    return ops


def mask_ops(g, S, k):
    c = 8 * (k >> 2) + (k & 3)
    if c == 0:
        return [f"v_min_f32 {vr(S + k)}, {vr(S + k)}, {vr(vTHR[g])}"]
    return [f"v_add_f32 {vr(vMT)}, {f32hex(-c * BIG)}, {vr(vTHR[g])}",
            f"v_min_f32 {vr(S + k)}, {vr(S + k)}, {vr(vMT)}"]


def dma_ops():
    out = []
    for j in range(8):
        if j == 4:
            out.append("s_add_u32 m0, m0, 4096")
        out.append(f"buffer_load_dwordx4 {vr(vW if j < 4 else vW2)}, {sr(S_KVR, 4)}, {sr(sKVOFF)} offen "
                   f"offset:{(j % 4) * 1024} sc1 lds")
    out += [f"s_add_u32 {sr(sKVOFF)}, {sr(sKVOFF)}, 32768",
            f"s_add_u32 m0, m0, {32768 - 4096}",
            f"s_cmp_eq_u32 m0, {sr(sM0)}\n s_cselect_b32 m0, {sr(sW8K)}, m0"]
    return out


def slot_adv():
    return [f"s_add_u32 {sr(sSLOT)}, {sr(sSLOT)}, 32768",
            f"s_cmp_eq_u32 {sr(sSLOT)}, {LDSEND}\n s_cselect_b32 {sr(sSLOT)}, 0, {sr(sSLOT)}"]


def body(p, cfg, name, its, last=False, loop=None, extra=(), dma=None, vmwait=16, post_bar=None, lookv=False,
         prebar=None):
    if last:
        fr = lambda f: ar(FRING + 4 * ((f & 7) + 8 * (f >> 4)), 4)
    else:
        fr = globals()["fr"]
    mf = []
    fuse = {}
    bounds = []
    for it, d in enumerate(its):
        b0 = len(mf)
        for s in range(8):
            for g in d["qk"]:
                S = SREG[g][it]
                c = NEGM[g] if s == 0 else S
                f = 16 * it + s
                fuse[f] = (fuse.get(f, (len(mf),))[0], len(mf))
                mf.append(f"v_mfma_f32_32x32x16_bf16 {vr(S, 16)}, {fr(f)}, {vr(QREG[g] + 4 * s, 4)}, {vr(c, 16)}")
        for x in range(8):
            for g in d["pv"]:
                f = 16 * it + 8 + x
                o = OREG[g] + 16 * (x & 3)
                fuse[f] = (fuse.get(f, (len(mf),))[0], len(mf))
                mf.append(f"v_mfma_f32_32x32x16_bf16 {ar(o, 16)}, {fr(f)}, {vr(PREG[g][it] + 4 * (x >> 2), 4)}, {ar(o, 16)}")
        bounds.append((b0, len(mf)))
    n = len(mf)
    sc = Sched(mf, cfg.get("attcap", 24), cfg.get("attvm", 8))
    pre = []
    used = sorted(fuse)
    seq = list(used)
    if not last:
        seq += [32 + k for k in range(LOOK)]
    GR, LAT, AHEAD = cfg.get("attgr", 4), cfg.get("attlat", 3), cfg.get("attahead", 11)
    ch = []
    barslot = None
    for idx, f in enumerate(seq):
        if idx < LOOK:
            continue
        t = f"ds_read_b128 {fr(f)}, {vr(vRD)} offset:{(f % 32 + (8 if lookv and f >= 32 else 0)) * 1024}"
        rel = fuse[seq[idx - AHEAD]][0] if idx >= AHEAD else 0
        if f - NFR in fuse and not last:
            rel = max(rel, fuse[f - NFR][1])
        if f < 32:
            dl = fuse[f - f % GR][0] - 1 - LAT
        else:
            dl = n - 1 - (LAT if f - 32 < GR else 0)
        dl = min(dl, fuse[seq[idx - LOOK]][1] + cfg.get("attslack", 1))
        if f == 32:
            barslot = max(rel, fuse[seq[idx - LOOK - 1]][0])
            ch.append(((prebar or "") + f"\n s_waitcnt vmcnt({vmwait})\n s_barrier", barslot, barslot))
            ch.append((f"v_add_u32 {vr(vRD)}, {sr(sSLOT)}, {vr(vL16)}", barslot, barslot))
            sc.cap[barslot] -= cfg.get("barcost", 8)
        if f >= 32:
            rel = max(rel, barslot + 1)
        ch.append((t, rel, max(rel, dl)))
    for k in range(len(ch) - 2, -1, -1):
        ch[k] = (ch[k][0], ch[k][1], max(ch[k][1], min(ch[k][2], ch[k + 1][2])))
    sc.chains.append([list(x) for x in ch])
    before = {}
    for f in used:
        if f % GR == 0:
            s0 = fuse[f][0]
            before[s0] = "@need " + " ".join(fr(f + k) for k in range(GR))
            sc.cap[(s0 - 1) % n] -= 4
    if not last:
        sc.spread((dma_ops() if dma is None else dma) + slot_adv(), 0, barslot, early=1, late=2)
        if post_bar:
            sc.spread(post_bar, barslot + 1, n, early=1, late=2)
    for it, d in enumerate(its):
        b0, b1 = bounds[it]
        par = it ^ 1
        ops = [f"v_add_f32 {vr(vLSUM[g])}, {vr(vLSUM[g])}, {vr(vLU[g])}" for g in d["acc"]]
        for g in d["sm"]:
            ops += sm_ops(g, par, g in d["mask"], vET + 4 * g)
        if d["sm"]:
            if len(d["sm"]) == 2:
                ops.append(f"v_max_f32 {vr(vMT + 1)}, {vr(vLU[0])}, {vr(vLU[1])}")
                ops.append(f"v_cmp_lt_f32 vcc, {sr(sTHR)}, {vr(vMT + 1)}")
            else:
                ops.append(f"v_cmp_lt_f32 vcc, {sr(sTHR)}, {vr(vLU[d['sm'][0]])}")
        if ops:
            sc.spread(ops, b0, b1 - 1, early=cfg.get("smearly", 1), late=cfg.get("smlate", 1))
        for xi, items in extra:
            if xi == it:
                sc.spread(items, b0, b1)
        if d["sm"]:
            lab = f"FIX_{name}_{it}"
            sc.fix(b1 - 1, f"s_cbranch_vccnz {lab}\n {lab}_ret:")
            sites.append((lab, par, d["sm"]))
    if loop:
        sc.fix(n - 1, f"s_sub_u32 {sr(sCNT)}, {sr(sCNT)}, 1\n s_cbranch_scc0 {loop}")
    sc.run()
    if cfg.get("verbose"):
        print(f"  body {name}: {n} slots, over {sum(sc.over)}: {sc.over}")
    for x in pre:
        p(x)
    sc.emit(p, before)


def rowmax(S, t0, t1):
    out = [f"v_max3_f32 {vr(t0)}, {vr(S)}, {vr(S + 1)}, {vr(S + 2)}"]
    for k in range(3, 15, 2):
        out.append(f"v_max3_f32 {vr(t0)}, {vr(t0)}, {vr(S + k)}, {vr(S + k + 1)}")
    out += [f"v_max_f32 {vr(t0)}, {vr(t0)}, {vr(S + 15)}",
            f"v_mov_b32 {vr(t1)}, {vr(t0)}",
            f"v_permlane32_swap_b32 {vr(t0)}, {vr(t1)}",
            f"v_max_f32 {vr(t0)}, {vr(t0)}, {vr(t1)}"]
    return out


def gen_attention(p, cfg, slot0, st, pre, hst, rest, hsig, touch, T):
    global sites
    sites.clear()
    late_blocks.clear()
    LAG[0] = cfg.get("smlag", 1)
    BIAS = cfg.get("bias", 0.0)
    THR = cfg.get("thr", 40.0)
    slot4 = (slot0 + 4 * 32768) % LDSEND
    slot1 = (slot0 + 32768) % LDSEND
    p(f"v_add_u32 {vr(vRD)}, {slot0}, {vr(vL16)}")
    for f in range(8):
        p(f"ds_read_b128 {fr(f)}, {vr(vRD)} offset:{f * 1024}")
    for x in hst:
        p(x)
    for x in pre:
        p(x)
    setup = f"""
    v_and_b32 {vr(vX0)}, 31, v0
    v_lshrrev_b32 {vr(vX1)}, 5, v0
    v_lshlrev_b32 {vr(vX1)}, 2, {vr(vX1)}
    v_sub_u32 {vr(vX0)}, {vr(vX0)}, {vr(vX1)}
    s_lshl_b32 {sr(sT0)}, {sr(sW)}, 5
    v_add_u32 {vr(vX0)}, {sr(sT0)}, {vr(vX0)}
    s_lshl_b32 {sr(sT0)}, {sr(sI)}, 7
    v_add_u32 {vr(vTHR[0])}, {sr(sT0)}, {vr(vX0)}
    s_lshl_b32 {sr(sT0)}, {sr(sI)}, 8
    s_sub_u32 {sr(sT0)}, {14 * 128}, {sr(sT0)}
    v_add_u32 {vr(vTHR[1])}, {sr(sT0)}, {vr(vX0)}
    v_add_u32 {vr(vBASE)}, 32, {vr(vX0)}
    """.strip().split("\n")
    for r in (vTHR[0], vTHR[1], vBASE):
        setup += [f"v_cvt_f32_i32 {vr(r)}, {vr(r)}", f"v_add_f32 {vr(r)}, 0.5, {vr(r)}",
                  f"v_mul_f32 {vr(r)}, {f32hex(BIG)}, {vr(r)}"]
    ZQ = 248
    setup += [f"v_mov_b32 {vr(vLSUM[0])}, 0", f"v_mov_b32 {vr(vLSUM[1])}, 0"]
    setup += [f"v_mov_b32 {vr(ZQ + k)}, 0" for k in range(4)]
    setup += [f"s_add_u32 {sr(sM0)}, {sr(sW8K)}, {LDSEND}", f"s_mov_b32 {sr(sSLOT)}, {slot1}",
              f"v_add_u32 {vr(vW2)}, 4096, {vr(vW)}",
              f"s_mov_b32 {sr(sKVOFF)}, {4 * 32768}", f"s_mov_b32 {sr(sTHR)}, {f32hex(2.0 ** (THR - BIAS))}"]

    mf = []

    def qk(g, par, f0):
        for s in range(8):
            S = SREG[g][par]
            c = ("0" if par == 0 else vr(NEGM[g], 16)) if s == 0 else vr(S, 16)
            mf.append(f"v_mfma_f32_32x32x16_bf16 {vr(S, 16)}, {fr(f0 + s)}, {vr(QREG[g] + 4 * s, 4)}, {c}")

    def zero(k):
        mf.append(f"v_mfma_f32_32x32x16_bf16 {ar(16 * k, 16)}, {vr(ZQ, 4)}, {vr(ZQ, 4)}, 0")

    qk(0, 0, 0)
    qk(1, 0, 0)
    for k in range(3):
        zero(k)
    qk(0, 1, 8)
    qk(1, 1, 8)
    for k in range(3, 8):
        zero(k)
    sl = Slots(mf)

    def first(g):
        S = SREG[g][0]
        o = []
        if g == 0:
            for k in range(16):
                o += mask_ops(0, S, k)
            o.append(f"v_add_f32 {vr(vTHR[0])}, {f32hex(-32 * BIG)}, {vr(vTHR[0])}")
        o += rowmax(S, vMT + 1, vMT + 2)
        o.append(f"v_sub_f32 {vr(NEGM[g])}, {f32hex(-BIAS) if BIAS else '0'}, {vr(vMT + 1)}")
        o += [f"v_mov_b32 {vr(NEGM[g] + k)}, {vr(NEGM[g])}" for k in range(1, 16)]
        return o

    def shift(g):
        S = SREG[g][0]
        return [f"v_add_f32 {vr(S + k)}, {vr(S + k)}, {vr(NEGM[g])}" for k in range(16)]

    for f in range(8):
        sl.after(f, f"ds_read_b128 {fr(8 + f)}, {vr(vRD)} offset:{(16 + f) * 1024}")
    sl.spread(setup, 0, 10)
    sl.spread(first(0), 10, 19)
    sl.spread(first(1) + shift(0), 19, 27)
    sl.spread(sm_ops(0, 0, False, vET) + shift(1) + sm_ops(1, 0, False, vET + 4), 27, 40)
    if rest:
        sl.spread(rest, 2, 30)
    sl.after(30, f"@need #tile1 #hst\n s_barrier\n v_add_u32 {vr(vRD)}, {sr(sSLOT)}, {vr(vL16)}\n" + hsig)
    for k in range(8):
        sl.after(31 + k, f"ds_read_b128 {fr(k)}, {vr(vRD)} offset:{k * 1024}")
    sl.after(39, f"s_add_u32 m0, {sr(sW8K)}, {slot4}")
    if touch:
        sl.spread(touch, 32, 39)
    sl.emit(p)
    st()

    AB, B = [0, 1], [1]

    def it(qk, sm, pv, acc, mask=()):
        return dict(qk=qk, sm=sm, pv=pv, acc=acc, mask=set(mask))

    def head(lab):
        p(f".p2align {cfg.get('loopalign', 6)}")
        for _ in range(cfg.get("looppad", 2)):
            p("s_nop 0")
        p.label(lab)

    p(f"""
    s_mov_b32 {sr(sCNT)}, 0
    s_cmp_eq_u32 {sr(sI)}, 0
    s_cbranch_scc1 ATT_D2
    s_lshl_b32 {sr(sCNT)}, {sr(sI)}, 1
    s_sub_u32 {sr(sCNT)}, {sr(sCNT)}, 2
    v_mov_b32 {vr(vTHR[0])}, {vr(vBASE)}
    """)
    head("ATT_DL")
    body(p, cfg, "DL", [it(AB, AB, AB, AB), it(AB, AB, AB, AB)], loop="ATT_DL")
    p(f"s_mov_b32 {sr(sCNT)}, 1")
    p.label("ATT_D2")
    body(p, cfg, "D2", [it(AB, AB, AB, AB, [0]), it(AB, AB, AB, AB, [0])], loop="ATT_D2",
         extra=[(0, T["d2"][0]), (1, T["d2"][1])])
    body(p, cfg, "D3", [it(B, AB, AB, AB, [0]), it(B, B, AB, AB, [1])], extra=[(1, ctx_addr() + T["d3"])])
    for x in ctx_epilogue(cfg, 0):
        p(x)
    st()
    p(f"""
    s_cmp_eq_u32 {sr(sI)}, 7
    s_cbranch_scc1 ATT_I7
    s_lshl_b32 {sr(sCNT)}, {sr(sI)}, 2
    s_sub_u32 {sr(sCNT)}, 26, {sr(sCNT)}
    v_add_f32 {vr(vTHR[1])}, {f32hex(-32 * BIG)}, {vr(vBASE)}
    """)
    head("ATT_SL")
    body(p, cfg, "SL", [it(B, B, B, B), it(B, B, B, B)], loop="ATT_SL")
    body(p, cfg, "S1", [it(B, B, B, B), it(B, B, B, B, [1])], dma=T["s1"], vmwait=8)
    p.label("ATT_S2")
    nvm = sum(1 for x in split_items(T["s2"]) if x.startswith("buffer_"))
    body(p, cfg, "S2", [it(B, B, B, B, [1]), it(B, B, B, B, [1])], dma=T["s2"], vmwait=nvm, post_bar=T["s2post"],
         lookv=True, prebar=T["s2bar"])
    body(p, cfg, "S3", [it([], B, B, B, [1]), it([], [], B, B)], last=True, extra=[(1, T["s3"])])
    st()
    late_blocks.append("ATT_I7:\n" + T["sig7"] + "\n s_branch ATT_S2")


def ctx_addr():
    return [f"""
    v_bfe_u32 {vr(vX0)}, v0, 4, 1
    s_and_b32 {sr(sT0)}, {sr(sW)}, 1
    s_lshl_b32 {sr(sT0)}, {sr(sT0)}, 1
    s_lshr_b32 {sr(sT1)}, {sr(sH)}, 2
    s_sub_u32 {sr(sT0)}, {sr(sT0)}, {sr(sT1)}
    v_add_u32 {vr(vX0)}, {sr(sT0)}, {vr(vX0)}
    v_and_b32 {vr(vX0)}, 3, {vr(vX0)}
    v_lshlrev_b32 {vr(vCST)}, 10, {vr(vX0)}
    v_lshrrev_b32 {vr(vX1)}, 5, v0
    v_lshl_add_u32 {vr(vCST)}, {vr(vX1)}, 8, {vr(vCST)}
    v_and_b32 {vr(vX1)}, 15, v0
    v_lshl_add_u32 {vr(vCST)}, {vr(vX1)}, 4, {vr(vCST)}
    s_lshr_b32 {sr(sT0)}, {sr(sW)}, 1
    s_lshl_b32 {sr(sT0)}, {sr(sT0)}, 12
    s_lshl_b32 {sr(sT1)}, {sr(sH)}, 15
    s_add_u32 {sr(sT0)}, {sr(sT0)}, {sr(sT1)}
    s_add_u32 {sr(sT0)}, {sr(sT0)}, {WS_CTX}
    v_add_u32 {vr(vCST)}, {sr(sT0)}, {vr(vCST)}
    s_lshl_b32 {sr(sST)}, {sr(sI)}, 20
    """]


def ctx_epilogue(cfg, g, packed=None):
    VSC = cfg.get("vscale", 0)
    o = []
    if g == 1:
        o += [f"s_lshl_b32 {sr(sST)}, {sr(sI)}, 20", f"s_sub_u32 {sr(sST)}, {15 << 20}, {sr(sST)}"]
    T = 32 if g == 0 else 96
    l = vLSUM[g]
    o += [f"v_mov_b32 {vr(vMT)}, {vr(l)}", f"v_permlane32_swap_b32 {vr(l)}, {vr(vMT)}",
          f"v_add_f32 {vr(l)}, {vr(l)}, {vr(vMT)}"]
    if VSC:
        o.append(f"v_ldexp_f32 {vr(l)}, {vr(l)}, {VSC}")
    o.append(f"v_rcp_f32 {vr(l)}, {vr(l)}")
    for n in range(8):
        db, gp = n >> 1, n & 1
        t = T + 12 * (n & 1) if packed is None else T + 8 * (n & 1)
        q = t + 8 if packed is None else packed + 4 * n
        o += [f"v_accvgpr_read_b32 {vr(t + k)}, {ar(OREG[g] + 16 * db + 8 * gp + k)}" for k in range(8)]
        o += [f"v_mul_f32 {vr(t + k)}, {vr(t + k)}, {vr(l)}" for k in range(8)]
        o += [f"v_cvt_pk_bf16_f32 {vr(q + k)}, {vr(t + 2 * k)}, {vr(t + 2 * k + 1)}" for k in range(4)]
        o.append(f"buffer_store_dwordx4 {vr(q, 4)}, {vr(vCST)}, {sr(S_WS, 4)}, {sr(sST)} offen offset:{gp * 512} sc1 @@ctxst")
        if gp == 1 and db < 3:
            o.append(f"s_add_u32 {sr(sST)}, {sr(sST)}, 8192")
    return o


def gen_attention_rare(p, cfg):
    BIAS = cfg.get("bias", 0.0)
    for x in late_blocks:
        p(x)
    for lab, par, groups in sites:
        p.label(lab)
        p("s_waitcnt vmcnt(0) lgkmcnt(0)")
        for g in groups:
            p(f"s_call_b64 {sr(sRET, 2)}, FIXS_{g}_{par}")
            p(f"s_call_b64 {sr(sRET, 2)}, FIXO_{g}")
        p(f"s_branch {lab}_ret")
    for g in range(2):
        for par in range(2):
            p.label(f"FIXS_{g}_{par}")
            S, S2 = SREG[g][par], SREG[g][par ^ 1]
            d = vMT + 1
            for x in rowmax(S, d, vMT + 2):
                p(x)
            if BIAS:
                p(f"v_add_f32 {vr(d)}, {f32hex(BIAS)}, {vr(d)}")
            p(f"v_max_f32 {vr(d)}, 0, {vr(d)}")
            p(f"v_exp_f32 {vr(vSC[g])}, -{vr(d)}")
            for base in (NEGM[g], S, S2):
                for k in range(16):
                    p(f"v_sub_f32 {vr(base + k)}, {vr(base + k)}, {vr(d)}")
            p(f"v_mul_f32 {vr(vLSUM[g])}, {vr(vLSUM[g])}, {vr(vSC[g])}")
            for x in sm_ops(g, par, False, vET + 4 * g):
                p(x)
            p(f"s_setpc_b64 {sr(sRET, 2)}")
        p.label(f"FIXO_{g}")
        for b in range(0, 64, 4):
            for k in range(4):
                p(f"v_accvgpr_read_b32 {vr(vET + k)}, {ar(OREG[g] + b + k)}")
            for k in range(4):
                p(f"v_mul_f32 {vr(vET + k)}, {vr(vET + k)}, {vr(vSC[g])}")
            for k in range(4):
                p(f"v_accvgpr_write_b32 {ar(OREG[g] + b + k)}, {vr(vET + k)}")
        p(f"s_setpc_b64 {sr(sRET, 2)}")
```

```python
from asmlib import *

BLK = 16384
NBLK = 10


def ldsaddr(vbase, addr, win=65536):
    return vr(vbase + addr // win), addr % win


def lines(text):
    return [x.strip() for x in text.split("\n") if x.strip()]


def cost(text, vmcost=4):
    c = 0
    for x in lines(text):
        if x.startswith("@") or x.endswith(":"):
            continue
        op = x.split()[0]
        if op.startswith(TRANS):
            c += 8
        elif op.startswith("buffer_") or op.startswith("global_"):
            c += vmcost
        else:
            c += 4
    return c


def split_items(items):
    out = []
    for it in items:
        for x in lines(it):
            op = x.split()[0]
            if out and (op.startswith("s_cselect") or op.startswith("s_addc") or op.startswith("s_cbranch")
                        or x.endswith(":") or out[-1].split("\n")[-1].startswith("@need")):
                out[-1] += "\n" + x
            else:
                out.append(x)
    return out


class Sched:
    def __init__(self, backbone, cap, vmcost=4):
        self.bb = list(backbone)
        self.n = len(self.bb)
        self.cap = [cap] * self.n
        self.fixed = [[] for _ in self.bb]
        self.front = [[] for _ in self.bb]
        self.chains = []
        self.vmcost = vmcost
        self.place = {}

    def fix(self, slot, text, c=None, front=False):
        (self.front if front else self.fixed)[slot].append(text)
        self.cap[slot] -= cost(text, self.vmcost) if c is None else c

    def chain(self, items):
        if items:
            it = [list(x) for x in items]
            for k in range(len(it) - 2, -1, -1):
                it[k][2] = min(it[k][2], it[k + 1][2])
            self.chains.append(it)

    def spread(self, items, lo, hi, early=2, late=3):
        items = split_items(items)
        tot = sum(cost(x, self.vmcost) for x in items)
        acc = 0
        ch = []
        for x in items:
            t = lo + (acc * (hi - lo)) // max(tot, 1)
            acc += cost(x, self.vmcost)
            ch.append((x, max(lo, t - early), min(hi - 1, t + late)))
        self.chain(ch)

    def run(self):
        pos = [0] * len(self.chains)
        self.out = [[] for _ in self.bb]
        self.over = [0] * self.n

        def ismem(t):
            return t.startswith(("ds_", "buffer_", "global_"))

        def hasvalu(t):
            return any(x.startswith("v_") for x in lines(t))

        for s in range(self.n):
            room = self.cap[s]
            blocked = set()
            valu = set()
            head, rest = [], []
            while True:
                best = None
                for ci, ch in enumerate(self.chains):
                    if ci in blocked or pos[ci] >= len(ch):
                        continue
                    it = ch[pos[ci]]
                    if it[1] > s and it[2] > s:
                        continue
                    c = cost(it[0], self.vmcost)
                    if ismem(it[0]) and ci in valu:
                        if it[2] > s:
                            continue
                        c += 8
                    if c > room and it[2] > s:
                        continue
                    if best is None or it[2] < best[0]:
                        best = (it[2], ci, c)
                if best is None:
                    break
                _, ci, c = best
                it = self.chains[ci][pos[ci]]
                if hasvalu(it[0]):
                    valu.add(ci)
                (rest if ci in valu else head).append(it[0])
                assert s >= (it[4] if len(it) > 4 else it[1]), ("placed before release", it, s)
                if len(it) > 3 and it[3] is not None:
                    self.place[it[3]] = s
                room -= c
                pos[ci] += 1
                if " m0," in it[0] and pos[ci] < len(self.chains[ci]) and self.chains[ci][pos[ci]][2] > s:
                    blocked.add(ci)
            self.out[s] = head + rest
            self.over[s] = max(0, -room)
        for ci, ch in enumerate(self.chains):
            assert pos[ci] == len(ch), ("unplaced", ch[pos[ci]])

    def emit(self, p, before=None):
        for s in range(self.n):
            if before and s in before:
                p(before[s])
            p(self.bb[s])
            for x in self.front[s] + self.out[s] + self.fixed[s]:
                p(x)


class Stage:
    def __init__(self, name, lb):
        self.name = name
        self.blocks = []
        self.mf = []
        self.reads = []
        self.fill = []
        self.at_barrier = []
        self.after_barrier = []
        self.lb = lb
        self.gate = None
        self.frac = None
        self.maxpace = None
        self.minpace = None
        self.group = 8
        self.quota = None
        self.dstart = 0.0


class Pipe:
    def __init__(self, stages, dma_group, cfg, tag, npro, stampfn=None, gated=(), order=None, slots=None):
        self.stages, self.cfg, self.tag = stages, cfg, tag
        nst = len(stages)
        start, mf = [], []
        for S in stages:
            start.append(len(mf))
            mf += S.mf
        total = len(mf)
        start.append(total)
        self.start, self.total, self.mf = start, total, mf
        bar = [start[n] - stages[n].lb - 1 for n in range(nst)]
        bar[0] = -1
        bar.append(total - 1)
        self.bar = bar
        blocks = [(n, j) for n, S in enumerate(stages) for j in range(len(S.blocks))]
        if order:
            blocks = order(blocks)
        free_at = [0] * NBLK
        seq = list(slots or range(NBLK))
        self.saddr = saddr = [[None] * len(S.blocks) for S in stages]
        self.prolog_dma = []
        byb = {}
        fbmin = 0
        tags = [[] for _ in stages]
        for k, (n, j) in enumerate(blocks):
            kind, par = stages[n].blocks[j]
            slot = min(seq, key=lambda q: free_at[q])
            seq.remove(slot)
            seq.append(slot)
            fb = free_at[slot]
            free_at[slot] = (n + 1 if kind == "SCR" else n) + 1
            saddr[n][j] = slot * BLK
            if kind == "SCR":
                assert bar[fb] + 1 <= start[n], "scratch block not free in time"
                continue
            tags[n].append(f"#{tag}{k}")
            grp = dma_group(kind, par, slot * BLK, f"{tag}{k}")
            if k < npro:
                assert (kind not in gated or stages[n].gate is None) and fb == 0
                self.prolog_dma.append(grp)
                continue
            if kind in gated and stages[n].gate is not None:
                fb = max(fb, stages[n].gate + 1)
            fb = max(fb, fbmin)
            fbmin = fb
            byb.setdefault(fb, []).append((n, grp))
        self.free_at = free_at
        self.first_need = " ".join(tags[0])
        self.tags, self.stampfn = tags, stampfn
        self.dma = []
        self.dcur = 0
        carry = []
        for fb in range(nst):
            S = stages[fb]
            lst = carry + byb.get(fb, [])
            carry = []
            if S.quota is not None:
                lst, carry = lst[:S.quota], lst[S.quota:]
            if not lst:
                continue
            cnt = sum(len(g[1]) for g in lst)
            frac = S.frac if S.frac is not None else cfg.get("spread", 0.9)
            mp = S.maxpace if S.maxpace is not None else cfg.get("maxpace", 8)
            lo = bar[fb] + 1 + int(S.dstart * (bar[fb + 1] - bar[fb]))
            span = max(bar[fb + 1] - max(lo, self.dcur), 1)
            mn = S.minpace if S.minpace is not None else cfg.get("minpace", 1.0)
            pace = min(max(mn, span * frac / cnt), mp)
            for n, grp in lst:
                self.add_dma(grp, lo, pace, bar[n] - 1)
        assert not carry
        self.extra_fixed = []

    def add_dma(self, grp, earliest, pace, limit):
        for setup, ins in grp:
            s = min(max(self.dcur, earliest), limit)
            r = int(s)
            assert earliest <= limit, "DMA cannot be issued before its barrier"
            for x in setup:
                self.dma.append((x, max(earliest, r - 2), min(r + 2, limit), None, earliest))
            self.dma.append((ins, min(r, limit), min(r + 3, limit), None, earliest))
            self.dcur = s + pace

    def schedule(self):
        stages, start, bar, total, cfg = self.stages, self.start, self.bar, self.total, self.cfg
        nst = len(stages)
        mfins = [Ins(t) for t in self.mf]
        LAT = cfg.get("ldslat", 5)
        reads = []
        for n, S in enumerate(stages):
            for fn, fu in sorted(S.reads, key=lambda r: r[1]):
                t = fn(self.saddr[n])
                dst = Ins(t).writes
                g0 = start[n] + (fu // S.group) * S.group
                fu += start[n]
                e = fu - 1
                while e >= 0 and not (mfins[e].reads & dst):
                    e -= 1
                reads.append((t, n, e, fu, g0))
        void = set()
        for attempt in range(3):
            sc = Sched(self.mf, 8, cfg.get("vmcost", 4))
            self.prolog_reads = []
            ch = []
            for k, (t, n, e, fu, g0) in enumerate(reads):
                if n == 0 and e < 0 and len(self.prolog_reads) < 14:
                    self.prolog_reads.append(t)
                    sc.place[k] = -1
                    continue
                rel = max(e, bar[n] + 1, 0)
                dl = g0 - 1 - LAT
                if n < nst - 1:
                    dl = min(dl, bar[n + 1] - LAT)
                    assert rel < bar[n + 1], (stages[n].name, "read after next barrier", t)
                assert rel < fu, (stages[n].name, t)
                ch.append((t, rel, max(dl, rel), k))
            for k in range(len(ch) - 2, -1, -1):
                ch[k] = (ch[k][0], ch[k][1], max(ch[k][1], min(ch[k][2], ch[k + 1][2])), ch[k][3])
            for k in range(1, len(ch)):
                if ch[k][2] < ch[k - 1][2]:
                    ch[k] = (ch[k][0], ch[k][1], ch[k - 1][2], ch[k][3])
            sc.chains.append([list(x) for x in ch])
            sc.chain(self.dma)
            for n in range(1, nst):
                txt = "".join(x + "\n" for x in stages[n - 1].at_barrier)
                txt += f"@need {' '.join(self.tags[n])}\n s_waitcnt lgkmcnt(0)\n s_barrier\n"
                if self.stampfn:
                    txt += self.stampfn(n)
                sc.fix(bar[n], txt)
                ab = split_items(stages[n - 1].after_barrier)
                sc.chain([(x, bar[n] + 1, min(bar[n] + 2 + k, total - 1)) for k, x in enumerate(ab)])
            for slot, txt in self.extra_fixed:
                sc.fix(slot, txt)
            groups = sorted({r[4] for r in reads})
            for g0 in groups:
                if g0 > 0 and g0 not in void:
                    sc.cap[g0 - 1] -= 4
            for n, S in enumerate(stages):
                for items, lo, hi in S.fill:
                    if callable(items):
                        items = items(self.saddr[n])
                    sc.spread(items, lo + start[n], min(hi + start[n], total))
            sc.run()
            self.before = {}
            newvoid = set()
            for g0 in groups:
                lastbar = max(b for b in bar[:-1] if b < g0)
                regs = [Ins(r[0]).text.split()[1].rstrip(",") for k, r in enumerate(reads)
                        if r[4] == g0 and (sc.place[k] > lastbar or lastbar < 0) and sc.place[k] <= g0 - 3]
                if regs:
                    self.before[g0] = "@need " + " ".join(regs)
                else:
                    newvoid.add(g0)
            if newvoid == void:
                break
            void = newvoid
        for k, (t, n, e, fu, g0) in enumerate(reads):
            assert sc.place[k] < fu and (n == nst - 1 or sc.place[k] <= bar[n + 1])
            if cfg.get("verbose") and 0 <= sc.place[k] > g0 - 3:
                print(f"  late read {stages[n].name}: {t} at {sc.place[k] - start[n]} use {fu - start[n]}")
        self.sc = sc
        if cfg.get("verbose"):
            print("  over: " + " ".join(f"{S.name}={sum(sc.over[start[n]:start[n + 1]])}" for n, S in enumerate(stages)))

    def emit(self, p, extra_before=None):
        before = dict(self.before)
        for k, v in (extra_before or {}).items():
            before[k] = v + "\n" + before.get(k, "")
        n0 = len(p.ins)
        self.sc.emit(p, before)
        verify_stream(p.ins[n0:])


def merge_stages(name, lst):
    S = Stage(name, lst[0].lb)
    S.group = lst[0].group
    for T in lst:
        nb, nm = len(S.blocks), len(S.mf)
        S.blocks += T.blocks
        S.mf += T.mf
        S.reads += [((lambda f, o: (lambda a: f(a[o:])))(fn, nb), fu + nm) for fn, fu in T.reads]
    return S


def verify_stream(ins):
    nxt = {}
    for x in reversed(ins):
        if x.is_mfma():
            for r in x.writes:
                nxt[r] = "acc" if r in x.srcc else "init"
            for r in x.srcab:
                nxt[r] = "ab"
        elif x.cls == "ds_read":
            for r in x.writes:
                assert nxt.get(r) != "acc", ("load into live accumulator", x.text)
                nxt[r] = "init"
        else:
            for r in x.reads | x.writes:
                assert nxt.get(r) != "acc", ("filler touches live accumulator", x.text, r)
            for r in x.writes:
                assert nxt.get(r) != "ab", ("filler overwrites MFMA operand", x.text, r)
```

```python
import math
S_CKV, S_WUK, S_WUV, S_XA, S_BSEL, S_XB, S_WQ, S_WO, S_CSEL, S_WS, S_KVR, S_FLG, S_E = range(4, 56, 4)
S_OUT, S_DSK, S_CODE = S_CKV, S_WUK, S_WUV
S_LRE, S_LIM, S_LDT = 56, 58, 60
S_DBG = 56
sDBGP = 82
sEXP = 83
sW, sH, sI, sC, sPG = 62, 63, 64, 65, 66
sT0, sT1, sT2, sT3 = 67, 68, 69, 70
sWLDS = 71
sCKV, sWOFF, sKVST, sXA, sBOFF, sXQA, sXQB = 72, 73, 74, 75, 76, 77, 78
sD0 = 79
sST = 80
sStamp = 81
sTS = 84
sRET = 88
sM0, sKVOFF, sSLOT, sCNT, sTHR = 90, 91, 92, 93, 94
sQS = 95
sRK, sRS, sRQ = 96, 97, 98
sCKV2a, sCKV2b, sKVST2 = 99, 100, 101
sXD = sTHR
sSPIN = 3
sFO = 61
sW8K = sCKV
sKQ, sCTXH, sCT, sRT64, sCT64 = sWOFF, sKVST, sXA, sBOFF, sXQA
sMB = S_XB
sCF = 60
sCTXO, sWOO, sHO, sCO, sRO, sR2, sRO2 = sXQB, sRK, sRS, sRQ, sCKV2a, sCKV2b, sKVST2

vN, vK, vS, vW = 1, 2, 3, 4
vF = 5
vFA = 8
vFB = 11
vT = 14
vKST, vVST, vL16 = 20, 21, 22
vSEG = 23
vPRE = 24
vZA, vZB, vLA, vLB = 26, 27, 28, 29
vX0, vX1 = 30, 31
RING = 32
TMP = 64
DT = 80
vSIG, vONE, vPA, vPV = 88, 89, 90, 91
RSET = [96 + 32 * k for k in range(5)]

QREG = [32, 64]
SREG = [[96, 112], [128, 144]]
PREG = [[160, 168], [176, 184]]
NEGM = [192, 208]
vLSUM = [224, 225]
vLU = [226, 227]
vET = 228
vRD = 29
vTHR = [238, 239]
vMT = 240
vSIG2, vONE2, vPA2, vPV2 = 24, 25, 26, 27
vCST, vCST2 = 28, 236
vNa, vNb = vVST, vSEG
vC4 = vKST
OREG = [0, 64]
FRING = 128
NFR = 16

QSCALE = math.log2(math.e) / math.sqrt(128.0)
LOG2E = math.log2(math.e)
```

```python
import sys, json
from gen_common import *
from regs import *
from pipesched import *
import gen_att2 as ATT

PSTR = 272
PART = 64 * PSTR


def cexp(n, outre, outim, t0, t1):
    return [
        f"v_mul_f32 {vr(t0)}, {n}, {vr(vZA)}",
        f"v_mul_f32 {vr(t1)}, {n}, {vr(vZB)}",
        f"v_exp_f32 {vr(t0)}, {vr(t0)}",
        f"v_fract_f32 {vr(t1)}, {vr(t1)}",
        f"v_cos_f32 {vr(outre)}, {vr(t1)}",
        f"v_sin_f32 {vr(outim)}, {vr(t1)}",
        f"v_mul_f32 {vr(outre)}, {vr(outre)}, {vr(t0)}",
        f"v_mul_f32 {vr(outim)}, {vr(outim)}, {vr(t0)}",
    ]


def cmadd(dre, dim, lre, lim, hre, him, ure, uim):
    return [
        f"v_fma_f32 {vr(dre)}, {vr(lre)}, {vr(hre)}, {vr(ure)}",
        f"v_fma_f32 {vr(dim)}, {vr(lre)}, {vr(him)}, {vr(uim)}",
        f"v_fma_f32 {vr(dre)}, -{vr(lim)}, {vr(him)}, {vr(dre)}",
        f"v_fma_f32 {vr(dim)}, {vr(lim)}, {vr(hre)}, {vr(dim)}",
    ]


class Sync:
    def __init__(self, cfg):
        self.spins = []
        self.cfg = cfg

    def load(self, srd, soff, pa, pv):
        return f"buffer_load_dword {vr(pv)}, {vr(pa)}, {sr(srd, 4)}, {soff} offen sc1"

    def check(self, name, srd, soff, pa, pv):
        self.spins.append((name, srd, soff, pa, pv))
        return f"""
        POLL_{name}:
        v_cmp_ne_u32 vcc, {sr(sEXP)}, {vr(pv)}
        s_cbranch_vccnz SPIN_{name}
        POLLOK_{name}:
        """

    def emit(self, p):
        for name, srd, soff, pa, pv in self.spins:
            p(f"""
            SPIN_{name}:
            s_add_u32 {sr(sSPIN)}, {sr(sSPIN)}, 1
            s_cmp_gt_u32 {sr(sSPIN)}, 0x100000
            s_cbranch_scc1 POLLOK_{name}
            s_sleep {self.cfg.get('sleep', 2)}
            {self.load(srd, soff, pa, pv)}
            s_waitcnt vmcnt(0)
            s_branch POLL_{name}
            """)


def frag_read(dst, vb, blk, off, win=65536):
    def fn(addrs):
        r, imm = ldsaddr(vb, addrs[blk] + off, win)
        return f"ds_read_b128 {dst}, {r} offset:{imm}"
    return fn


def tr_read(dst, vb, blk, off, win=65536):
    def fn(addrs):
        r, imm = ldsaddr(vb, addrs[blk] + off, win)
        return f"ds_read_b64_tr_b16 {dst}, {r} offset:{imm}"
    return fn


KXOR = [False]


def adv(r, step, mask=1023):
    return [f"s_add_u32 {sr(r)}, {sr(r)}, {step}", f"s_and_b32 {sr(r)}, {sr(r)}, {mask}"]


def dma_group(kind, par, addr, tag):
    out = []

    def one(pos, setup, vpat, srd, imm, flags="", linear=False):
        s = list(setup)
        if not linear or pos == 0:
            if kind in ("H", "C", "WO", "CX"):
                s.append(f"s_add_u32 m0, {sr(sMB + addr // 32768)}, {addr % 32768 + pos * 1024 - imm}")
            else:
                s.append(f"s_add_u32 m0, {sr(sWLDS)}, {addr + pos * 1024 - imm}")
        off = f" offset:{imm}" if imm else ""
        out.append((s, f"buffer_load_dwordx4 {vr(vpat)}, {sr(srd, 4)}, {sr(sD0)} offen{off}{flags} lds @@{tag}"))

    if kind == "C1":
        for pos in range(4):
            su = []
            if pos == 0:
                if KXOR[0]:
                    su = [f"s_xor_b32 {sr(sRK)}, {sr(sRK)}, {(par ^ (par - 1)) * 128}"] if par else []
                else:
                    su = adv(sRK, 128) if par else []
                su = su + [f"s_add_u32 {sr(sD0)}, {sr(sCKV)}, {sr(sRK)}"]
            if pos == 2:
                su = [f"s_add_u32 {sr(sD0)}, {sr(sD0)}, 8192"]
            one(pos, su, vK, S_CKV, (pos & 1) * 64)
    elif kind == "W":
        srd, rot, same = par
        for pos in range(4):
            su = []
            if pos == 0 and not same:
                su = [f"s_lshl_b32 {sr(sD0)}, {sr(rot)}, 12", f"s_add_u32 {sr(sD0)}, {sr(sD0)}, {sr(sWOFF)}"]
            one(pos, su, vW, srd, pos * 64)
    elif kind == "C2":
        u, xy = par
        for pos in range(4):
            su = []
            if pos % 2 == 0:
                su = [f"s_add_u32 {sr(sD0)}, {sr(sCKV2b if pos else sCKV2a)}, {(u - 4) * 32768 + xy * 8192}"]
            one(pos, su, vK, S_CKV, (pos & 1) * 64)
    elif kind == "SX":
        for pos in range(4):
            su = []
            if pos == 0:
                su = (adv(sRS, 256) if (par and par % 2 == 0) else []) + [f"s_add_u32 {sr(sD0)}, {sr(sXA)}, {sr(sRS)}"]
                if par & 1:
                    su.append(f"s_add_u32 {sr(sD0)}, {sr(sD0)}, 128")
            if pos == 2:
                su = [f"s_add_u32 {sr(sD0)}, {sr(sD0)}, 4096"]
            one(pos, su, vS, S_XA, (pos & 1) * 64)
    elif kind == "SB":
        for pos in range(4):
            su = [f"s_add_u32 {sr(sD0)}, {sr(sBOFF)}, {sr(sRS)}"] if pos == 0 else []
            one(pos, su, vN, S_BSEL, pos * 64)
    elif kind == "X":
        g, stg = par
        for pos in range(4):
            su = []
            if pos == 0:
                su = (adv(sRQ, 128) if (stg and g == 0) else []) + \
                    [f"s_add_u32 {sr(sD0)}, {sr(sXQB if g else sXQA)}, {sr(sRQ)}"]
            if pos == 2:
                su = [f"s_add_u32 {sr(sD0)}, {sr(sD0)}, 16384"]
            one(pos, su, vN, S_XB, (pos & 1) * 64)
    elif kind == "H":
        for pos in range(4):
            su = []
            if pos == 0:
                su = (adv(sR2, 128) if par else []) + \
                    [f"s_lshl_b32 {sr(sD0)}, {sr(sR2)}, 7", f"s_add_u32 {sr(sD0)}, {sr(sD0)}, {sr(sHO)}"]
            one(pos, su, vL16, S_WS, pos * 1024, " sc1", linear=True)
    elif kind == "C":
        for pos in range(4):
            su = []
            if pos == 0:
                su = [f"s_add_u32 {sr(sD0)}, {sr(sCO)}, {sr(sR2)}"]
            one(pos, su, vC4, S_CSEL, (pos >> 1) * 1024 + (pos & 1) * 64)
    elif kind == "WO":
        for pos in range(4):
            su = []
            if pos == 0:
                su = (adv(sRO, 65536, 0x7ffff) if par else []) + [f"s_add_u32 {sr(sD0)}, {sr(sRO)}, {sr(sWOO)}"]
            one(pos, su, vNb if pos & 1 else vNa, S_WO, (pos >> 1) * 128)
    elif kind == "CX":
        g, stg = par
        for pos in range(4):
            su = []
            if pos == 0:
                su = (adv(sRO2, 16384, 0x1ffff) if (g or stg) else []) + \
                    [f"s_add_u32 {sr(sD0)}, {sr(sCTXH if g else sCTXO)}, {sr(sRO2)}"]
            one(pos, su, vL16, S_WS, pos * 1024, " sc1", linear=True)
    elif kind == "SCR":
        pass
    else:
        raise ValueError(kind)
    return out


def gen(cfg):
    timing = cfg.get("timing", False)
    p = Prog()
    sync = Sync(cfg)
    nstamp = [0]

    def st(va=vS):
        stamp(p, timing, nstamp[0], sTS, vX0, va, S_WS, sStamp)
        nstamp[0] += 1

    def fine(base):
        if not timing:
            return None
        return lambda n: f"s_memtime {sr(sTS, 2)}\n s_waitcnt lgkmcnt(0)\n v_writelane_b32 v95, {sr(sTS)}, {base + n}\n"

    def touch_code(srd, label, dst, q=None):
        (q or p)(f"""
        s_getpc_b64 {sr(srd, 2)}
        {label}:
        s_mov_b32 {sr(srd + 2)}, KA_codeend-{label}
        s_mov_b32 {sr(srd + 3)}, {SRD3}
        s_lshr_b32 {sr(sT0)}, s2, 3
        s_lshl_b32 {sr(sT0)}, {sr(sT0)}, 2
        s_add_u32 {sr(sT0)}, {sr(sT0)}, {sr(sW)}
        s_lshl_b32 {sr(sT0)}, {sr(sT0)}, 7
        v_lshlrev_b32 {vr(vX0)}, 14, v0
        buffer_load_dword {vr(dst)}, {vr(vX0)}, {sr(srd, 4)}, {sr(sT0)} offen
        """)

    p(f"""
    s_cmp_ge_u32 s2, 256
    s_cbranch_scc1 KA_end
    {"s_memrealtime " + sr(sRET, 2) if timing else ""}
    s_load_dwordx2 {sr(S_CKV, 2)}, s[0:1], {KA['CKV']}
    s_load_dwordx2 {sr(S_WUK, 2)}, s[0:1], {KA['WUK']}
    s_load_dwordx2 {sr(S_WUV, 2)}, s[0:1], {KA['WUV']}
    s_load_dwordx2 {sr(S_XA, 2)}, s[0:1], {KA['XA']}
    s_load_dwordx4 {sr(S_BSEL, 4)}, s[0:1], {KA['BRE']}
    s_load_dwordx2 {sr(S_XB, 2)}, s[0:1], {KA['XB']}
    s_load_dwordx2 {sr(S_WQ, 2)}, s[0:1], {KA['WQ']}
    s_load_dwordx2 {sr(S_WO, 2)}, s[0:1], {KA['WO']}
    s_load_dwordx4 {sr(S_CSEL, 4)}, s[0:1], {KA['CRE']}
    s_load_dwordx2 {sr(S_WS, 2)}, s[0:1], {KA['WS']}
    s_load_dwordx2 {sr(sDBGP, 2)}, s[0:1], {KA['DBG']}
    s_load_dwordx4 {sr(S_LRE, 4)}, s[0:1], {KA['LRE']}
    s_load_dwordx2 {sr(S_LDT, 2)}, s[0:1], {KA['LDT']}
    v_lshlrev_b32 {vr(vSIG)}, 16, v0
    v_lshrrev_b32 {vr(vX0)}, 6, v0
    v_and_b32 v0, 63, v0
    v_readfirstlane_b32 {sr(sW)}, {vr(vX0)}
    """)
    if cfg.get("pretouch", True):
        touch_code(S_E, "KA_pc", TMP)
    hs = 1 if cfg.get("hswap", True) else 0
    KXOR[0] = cfg.get("kxor", False)
    rk = cfg.get("rotk", (4, 4, 0))
    rq = cfg.get("rotq", (1, 2, 1))
    p(f"""
    s_and_b32 {sr(sT0)}, s2, 7
    s_lshr_b32 {sr(sT1)}, s2, 3
    s_add_u32 {sr(sT2)}, {sr(sT1)}, {cfg.get("hrot", 0)}
    s_and_b32 {sr(sT2)}, {sr(sT2)}, 3
    s_lshl_b32 {sr(sH)}, {sr(sT0)}, 2
    s_add_u32 {sr(sH)}, {sr(sH)}, {sr(sT2)}
    s_lshr_b32 {sr(sI)}, {sr(sT1)}, 2
    s_lshl_b32 {sr(sWLDS)}, {sr(sW)}, 12
    v_lshrrev_b32 {vr(vX0)}, 5, v0
    v_lshlrev_b32 {vr(vX0)}, 1, {vr(vX0)}
    v_and_b32 {vr(vX1)}, 3, v0
    v_xor_b32 {vr(vX0)}, {vr(vX0)}, {vr(vX1)}
    v_lshlrev_b32 {vr(vX0)}, 4, {vr(vX0)}
    v_lshrrev_b32 {vr(vX1)}, 2, v0
    v_lshl_add_u32 {vr(vW)}, {vr(vX1)}, 13, {vr(vX0)}
    v_lshl_add_u32 {vr(vN)}, {vr(vX1)}, 10, {vr(vX0)}
    v_lshrrev_b32 {vr(vK)}, 5, v0
    v_lshl_add_u32 {vr(vK)}, {vr(vK)}, 13, {vr(vN)}
    s_and_b32 {sr(sT0)}, {sr(sH)}, {hs}
    s_lshl_b32 {sr(sT0)}, {sr(sT0)}, 17
    s_lshl_b32 {sr(sCKV)}, {sr(sI)}, 18
    s_add_u32 {sr(sCKV)}, {sr(sCKV)}, {sr(sT0)}
    s_xor_b32 {sr(sCKV2b)}, {sr(sCKV)}, 0x20000
    s_lshl_b32 {sr(sT0)}, {sr(sW)}, 15
    s_add_u32 {sr(sCKV)}, {sr(sCKV)}, {sr(sT0)}
    s_lshl_b32 {sr(sWOFF)}, {sr(sW)}, 17
    s_lshl_b32 {sr(sT0)}, {sr(sH)}, 8
    s_add_u32 {sr(sWOFF)}, {sr(sWOFF)}, {sr(sT0)}
    s_mul_i32 {sr(sRK)}, {sr(sI)}, {rk[0]}
    s_bfe_u32 {sr(sT0)}, {sr(sH)}, 0x10001
    s_mul_i32 {sr(sT0)}, {sr(sT0)}, {rk[1]}
    s_add_u32 {sr(sRK)}, {sr(sRK)}, {sr(sT0)}
    s_lshr_b32 {sr(sT0)}, {sr(sH)}, 2
    s_mul_i32 {sr(sT0)}, {sr(sT0)}, {rk[2]}
    s_add_u32 {sr(sRK)}, {sr(sRK)}, {sr(sT0)}
    s_and_b32 {sr(sRK)}, {sr(sRK)}, {cfg.get("kmask", 7)}
    s_lshl_b32 {sr(sRK)}, {sr(sRK)}, 7
    s_lshl_b32 {sr(sT0)}, {sr(sW)}, 8
    {"s_xor_b32" if KXOR[0] else "s_add_u32"} {sr(sT0)}, {sr(sT0)}, {sr(sRK)}
    s_and_b32 {sr(sT1)}, {sr(sT0)}, 1023
    s_add_u32 {sr(sCKV2a)}, {sr(sCKV2b)}, {sr(sT1)}
    {"s_xor_b32" if KXOR[0] else "s_add_u32"} {sr(sT0)}, {sr(sT0)}, 128
    s_and_b32 {sr(sT0)}, {sr(sT0)}, 1023
    s_add_u32 {sr(sCKV2b)}, {sr(sCKV2b)}, {sr(sT0)}
    """)
    for s, n in ((S_CKV, 2048 * 1024), (S_WUK, 512 * 8192), (S_WUV, 512 * 8192)):
        p(f"s_mov_b32 {sr(s + 2)}, {n}")
        p(f"s_mov_b32 {sr(s + 3)}, {SRD3}")
    p("s_waitcnt lgkmcnt(0)")
    if timing:
        p("s_memrealtime s[90:91]")

    def lin_touch(srd, base, lanes, nwg, dst):
        sh = {64: 6, 32: 5, 16: 4, 8: 3}[lanes]
        t = f"""
        s_and_b32 {sr(sT0)}, s2, {nwg - 1}
        s_lshl_b32 {sr(sT0)}, {sr(sT0)}, 2
        s_add_u32 {sr(sT0)}, {sr(sT0)}, {sr(sW)}
        s_lshl_b32 {sr(sT0)}, {sr(sT0)}, {sh + 7}
        """
        if base:
            t += f"s_add_u32 {sr(sT0)}, {sr(sT0)}, {base}\n"
        t += f"v_lshlrev_b32 {vr(vX0)}, 7, v0\n"
        if lanes < 64:
            t += f"v_lshrrev_b32 {vr(vX1)}, {sh}, v0\n v_lshl_add_u32 {vr(vX0)}, {vr(vX1)}, 24, {vr(vX0)}\n"
        for k, d in enumerate(srd):
            t += f"buffer_load_dword {vr(dst + k)}, {vr(vX0)}, {sr(d, 4)}, {sr(sT0)} offen\n"
        return t

    SR = dict(ckv=S_CKV, wk=S_WUK, wv=S_WUV, xa=S_XA, xb=S_XB, wq=S_WQ, b=S_BSEL)
    for names, base, lanes in cfg.get("init_touch", []):
        p(lin_touch([SR[x] for x in names.split("+")], base, lanes, 256, TMP + 1))

    late = f"""
    s_and_b32 {sr(sT0)}, s2, 7
    s_lshr_b32 {sr(sT1)}, s2, 3
    s_lshr_b32 {sr(sC)}, {sr(sT0)}, 1
    s_lshl_b32 {sr(sC)}, {sr(sC)}, 2
    s_lshr_b32 {sr(sT2)}, {sr(sT1)}, 3
    s_add_u32 {sr(sC)}, {sr(sC)}, {sr(sT2)}
    s_and_b32 {sr(sPG)}, {sr(sT0)}, 1
    s_lshl_b32 {sr(sPG)}, {sr(sPG)}, 3
    s_and_b32 {sr(sT2)}, {sr(sT1)}, 7
    s_add_u32 {sr(sPG)}, {sr(sPG)}, {sr(sT2)}
    v_and_b32 {vr(vX0)}, 15, v0
    s_and_b32 {sr(sT2)}, {sr(sW)}, 1
    s_lshl_b32 {sr(sT2)}, {sr(sT2)}, 4
    s_lshl_b32 {sr(sT3)}, {sr(sPG)}, 5
    s_add_u32 {sr(sT2)}, {sr(sT2)}, {sr(sT3)}
    v_add_lshl_u32 {vr(vX1)}, {vr(vX0)}, {sr(sT2)}, 1
    global_load_ushort {vr(vLA)}, {vr(vX1)}, {sr(S_LRE, 2)}
    global_load_ushort {vr(vLB)}, {vr(vX1)}, {sr(S_LIM, 2)}
    global_load_ushort {vr(vZA)}, {vr(vX1)}, {sr(S_LDT, 2)}
    s_add_u32 {sr(S_FLG)}, {sr(S_WS)}, {WS_FLG}
    s_addc_u32 {sr(S_FLG + 1)}, {sr(S_WS + 1)}, 0
    s_mov_b32 {sr(S_FLG + 2)}, 32768
    s_mov_b32 {sr(S_FLG + 3)}, {SRD3}
    v_lshlrev_b32 {vr(vL16)}, 4, v0
    v_mov_b32 {vr(DT)}, 0
    v_mov_b32 {vr(DT + 1)}, 0
    v_mov_b32 {vr(DT + 2)}, 0
    v_mov_b32 {vr(DT + 3)}, 0
    s_lshl_b32 {sr(sT0)}, s2, 2
    s_add_u32 {sr(sT0)}, {sr(sT0)}, {sr(sW)}
    s_lshl_b32 {sr(sT0)}, {sr(sT0)}, 10
    buffer_store_dwordx4 {vr(DT, 4)}, {vr(vL16)}, {sr(S_FLG, 4)}, {sr(sT0)} offen sc1 @@zero
    s_mov_b32 {sr(S_DBG)}, {sr(sDBGP)}
    s_mov_b32 {sr(S_DBG + 1)}, {sr(sDBGP + 1)}
    s_cmp_eq_u32 {sr(sW)}, 0
    s_cselect_b32 {sr(sEXP)}, 1, 0
    s_cselect_b32 {sr(S_DBG + 2)}, 32, 0
    s_cselect_b32 {sr(S_FLG + 2)}, 32768, 0
    s_mov_b32 {sr(S_DBG + 3)}, {SRD3}
    v_mov_b32 {vr(vONE)}, 1
    s_mov_b32 {sr(sSPIN)}, 0
    s_cmp_ge_u32 {sr(sW)}, 2
    s_cselect_b32 {sr(S_BSEL)}, {sr(S_BSEL + 2)}, {sr(S_BSEL)}
    s_cselect_b32 {sr(S_BSEL + 1)}, {sr(S_BSEL + 3)}, {sr(S_BSEL + 1)}
    s_bitcmp1_b32 {sr(sW)}, 0
    s_cselect_b32 {sr(S_CSEL)}, {sr(S_CSEL + 2)}, {sr(S_CSEL)}
    s_cselect_b32 {sr(S_CSEL + 1)}, {sr(S_CSEL + 3)}, {sr(S_CSEL + 1)}
    """
    for s, n in ((S_XA, 2048 * 1024), (S_BSEL, 512 * 1024), (S_XB, 2048 * 1024), (S_WQ, 512 * 8192),
                 (S_WO, 4096 * 1024), (S_CSEL, 512 * 1024), (S_WS, WS_END + (1 << 20 if timing else 0)),
                 (S_E, 65536)):
        late += f"s_mov_b32 {sr(s + 2)}, {n}\n s_mov_b32 {sr(s + 3)}, {SRD3}\n"
    late += f"""
    s_add_u32 {sr(S_E)}, {sr(S_WS)}, {WS_E}
    s_addc_u32 {sr(S_E + 1)}, {sr(S_WS + 1)}, 0
    s_mul_i32 {sr(sKVST)}, {sr(sH)}, {HEADSTRIDE}
    s_add_u32 {sr(S_KVR)}, {sr(S_WS)}, {sr(sKVST)}
    s_addc_u32 {sr(S_KVR + 1)}, {sr(S_WS + 1)}, 0
    s_lshl_b32 {sr(sT0)}, {sr(sI)}, 16
    s_sub_u32 {sr(S_KVR + 2)}, {33 * 32768}, {sr(sT0)}
    s_mov_b32 {sr(S_KVR + 3)}, {SRD3}
    s_lshl_b32 {sr(sT0)}, {sr(sI)}, 17
    s_add_u32 {sr(sKVST)}, {sr(sKVST)}, {sr(sT0)}
    s_and_b32 {sr(sT0)}, {sr(sH)}, {hs}
    s_lshl_b32 {sr(sT0)}, {sr(sT0)}, 16
    s_sub_u32 {sr(sKVST2)}, {sr(sKVST)}, {sr(sT0)}
    s_add_u32 {sr(sKVST)}, {sr(sKVST)}, {sr(sT0)}
    s_add_u32 {sr(sRS)}, {sr(sC)}, {sr(sPG)}
    s_mul_i32 {sr(sRS)}, {sr(sRS)}, {cfg.get("rots", 1)}
    s_and_b32 {sr(sRS)}, {sr(sRS)}, 3
    s_lshl_b32 {sr(sRS)}, {sr(sRS)}, 8
    s_mul_i32 {sr(sRQ)}, {sr(sI)}, {rq[0]}
    s_mul_i32 {sr(sT0)}, {sr(sH)}, {rq[1]}
    s_add_u32 {sr(sRQ)}, {sr(sRQ)}, {sr(sT0)}
    s_lshr_b32 {sr(sT0)}, {sr(sH)}, 2
    s_mul_i32 {sr(sT0)}, {sr(sT0)}, {rq[2]}
    s_add_u32 {sr(sRQ)}, {sr(sRQ)}, {sr(sT0)}
    s_and_b32 {sr(sRQ)}, {sr(sRQ)}, 7
    s_lshl_b32 {sr(sRQ)}, {sr(sRQ)}, 7
    s_lshl_b32 {sr(sXA)}, {sr(sC)}, 17
    s_lshr_b32 {sr(sT0)}, {sr(sW)}, 1
    s_lshl_b32 {sr(sT0)}, {sr(sT0)}, 16
    s_add_u32 {sr(sXA)}, {sr(sXA)}, {sr(sT0)}
    s_and_b32 {sr(sT0)}, {sr(sW)}, 1
    s_lshl_b32 {sr(sT1)}, {sr(sT0)}, 13
    s_add_u32 {sr(sXA)}, {sr(sXA)}, {sr(sT1)}
    s_lshl_b32 {sr(sBOFF)}, {sr(sPG)}, 15
    s_lshl_b32 {sr(sT1)}, {sr(sT0)}, 14
    s_add_u32 {sr(sBOFF)}, {sr(sBOFF)}, {sr(sT1)}
    s_lshl_b32 {sr(sT0)}, {sr(sW)}, 15
    s_lshl_b32 {sr(sXQA)}, {sr(sI)}, 17
    s_sub_u32 {sr(sXQB)}, {15 << 17}, {sr(sXQA)}
    s_add_u32 {sr(sXQA)}, {sr(sXQA)}, {sr(sT0)}
    s_add_u32 {sr(sXQB)}, {sr(sXQB)}, {sr(sT0)}
    s_mov_b32 {sr(sQS)}, {f32hex(QSCALE)}
    """
    if timing:
        late += f"s_lshl_b32 {sr(sStamp)}, s2, 10\n s_add_u32 {sr(sStamp)}, {sr(sStamp)}, {WS_STAMP}\n"
    late += f"""
    v_lshrrev_b32 {vr(vX1)}, 4, v0
    v_mul_u32_u24 {vr(vS)}, {12 * 1024}, {vr(vX1)}
    v_add_u32 {vr(vS)}, {vr(vS)}, {vr(vN)}
    s_lshr_b32 {sr(sT0)}, {sr(sW)}, 1
    s_lshl_b32 {sr(sT0)}, {sr(sT0)}, 2
    v_add_u32 {vr(vSEG)}, {sr(sT0)}, {vr(vX1)}
    v_bfe_u32 {vr(vF)}, v0, 3, 1
    v_lshlrev_b32 {vr(vF)}, 1, {vr(vF)}
    v_xor_b32 {vr(vF)}, {vr(vF)}, {vr(vX1)}
    v_lshl_add_u32 {vr(vF)}, {vr(vX0)}, 2, {vr(vF)}
    v_lshlrev_b32 {vr(vF)}, 4, {vr(vF)}
    v_add_u32 {vr(vF + 1)}, 0x10000, {vr(vF)}
    v_add_u32 {vr(vF + 2)}, 0x20000, {vr(vF)}
    v_lshrrev_b32 {vr(vT)}, 5, v0
    v_lshlrev_b32 {vr(vT)}, 12, {vr(vT)}
    v_bfe_u32 {vr(vT + 1)}, v0, 4, 1
    v_mul_u32_u24 {vr(vT + 1)}, {512 + 32}, {vr(vT + 1)}
    v_add_u32 {vr(vT)}, {vr(vT)}, {vr(vT + 1)}
    v_bfe_u32 {vr(vT + 1)}, v0, 2, 2
    v_lshl_add_u32 {vr(vT)}, {vr(vT + 1)}, 6, {vr(vT)}
    v_and_b32 {vr(vT + 1)}, 3, v0
    v_lshl_add_u32 {vr(vT)}, {vr(vT + 1)}, 3, {vr(vT)}
    s_lshl_b32 {sr(sT0)}, {sr(sW)}, 10
    v_add_u32 {vr(vT)}, {sr(sT0)}, {vr(vT)}
    v_add_u32 {vr(vT + 1)}, 0x10000, {vr(vT)}
    v_add_u32 {vr(vT + 2)}, 0x20000, {vr(vT)}
    v_xor_b32 {vr(vT + 3)}, 32, {vr(vT)}
    v_xor_b32 {vr(vT + 4)}, 32, {vr(vT + 1)}
    v_xor_b32 {vr(vT + 5)}, 32, {vr(vT + 2)}
    s_lshr_b32 {sr(sT0)}, {sr(sW)}, 1
    s_lshl_b32 {sr(sT0)}, {sr(sT0)}, 13
    v_add_u32 {vr(vFA)}, {sr(sT0)}, {vr(vF)}
    v_add_u32 {vr(vFA + 1)}, {sr(sT0)}, {vr(vF + 1)}
    v_add_u32 {vr(vFA + 2)}, {sr(sT0)}, {vr(vF + 2)}
    s_and_b32 {sr(sT0)}, {sr(sW)}, 1
    s_lshl_b32 {sr(sT0)}, {sr(sT0)}, 12
    v_add_u32 {vr(vFB)}, {sr(sT0)}, {vr(vF)}
    v_add_u32 {vr(vFB + 1)}, {sr(sT0)}, {vr(vF + 1)}
    v_add_u32 {vr(vFB + 2)}, {sr(sT0)}, {vr(vF + 2)}
    v_bfe_u32 {vr(vKST)}, v0, 4, 1
    v_lshlrev_b32 {vr(vVST)}, 9, {vr(vKST)}
    v_lshlrev_b32 {vr(vKST)}, 10, {vr(vKST)}
    v_lshrrev_b32 {vr(vX1)}, 5, v0
    v_lshl_add_u32 {vr(vKST)}, {vr(vX1)}, 9, {vr(vKST)}
    v_lshl_add_u32 {vr(vVST)}, {vr(vX1)}, 12, {vr(vVST)}
    v_lshl_add_u32 {vr(vKST)}, {vr(vX0)}, 4, {vr(vKST)}
    v_bfe_u32 {vr(vX1)}, v0, 3, 1
    v_lshl_add_u32 {vr(vKST)}, {vr(vX1)}, 7, {vr(vKST)}
    v_lshl_add_u32 {vr(vVST)}, {vr(vX1)}, 6, {vr(vVST)}
    v_bfe_u32 {vr(vX1)}, v0, 2, 1
    v_lshl_add_u32 {vr(vVST)}, {vr(vX1)}, 7, {vr(vVST)}
    v_and_b32 {vr(vX1)}, 3, v0
    v_lshl_add_u32 {vr(vVST)}, {vr(vX1)}, 4, {vr(vVST)}
    s_lshl_b32 {sr(sT0)}, {sr(sW)}, 11
    v_add_u32 {vr(vKST)}, {sr(sT0)}, {vr(vKST)}
    s_lshl_b32 {sr(sT0)}, {sr(sW)}, 10
    s_add_u32 {sr(sT0)}, {sr(sT0)}, {5 * 8192}
    v_add_u32 {vr(vVST)}, {sr(sT0)}, {vr(vVST)}
    """

    stages = []
    ringpos = [0]

    def ring_alloc(size):
        r = RING + 4 * (ringpos[0] % size)
        ringpos[0] += 1
        return vr(r, 4)

    def kv_mfmas(S, ks, R, X, Y):
        w = [ar(16 * ks + 4 * j, 4) for j in range(4)]
        for a, b, d in ((w[0], X, 0), (w[0], Y, 8), (w[1], X, 4), (w[1], Y, 12),
                        (X, w[2], 16), (Y, w[2], 20), (X, w[3], 24), (Y, w[3], 28)):
            c = "0" if ks == 0 else vr(R + d, 4)
            S.mf.append(f"v_mfma_f32_16x16x32_bf16 {vr(R + d, 4)}, {a}, {b}, {c}")

    VSC = cfg.get("vscale", 0)

    def drain(unit, R, tmp=None):
        cv, stv = [], []
        for n in range(4):
            t = R + 8 * n if tmp is None else tmp + 4 * n
            for k in range(4):
                a, b = R + 8 * n + 2 * k, R + 8 * n + 2 * k + 1
                if n < 2:
                    cv += [f"v_mul_f32 {vr(a)}, {sr(sQS)}, {vr(a)}", f"v_mul_f32 {vr(b)}, {sr(sQS)}, {vr(b)}"]
                elif VSC:
                    cv += [f"v_ldexp_f32 {vr(a)}, {vr(a)}, {VSC}", f"v_ldexp_f32 {vr(b)}, {vr(b)}, {VSC}"]
                cv.append(f"v_cvt_pk_bf16_f32 {vr(t + k)}, {vr(a)}, {vr(b)}")
            va = vKST if n < 2 else vVST
            imm = (n & 1) * (128 if n < 2 else 256)
            s = f"buffer_store_dwordx4 {vr(t, 4)}, {vr(va)}, {sr(S_WS, 4)}, {sr(sST)} offen offset:{imm} sc1 @@kvst"
            if n == 0:
                s = f"s_add_u32 {sr(sST)}, {sr(sKVST if unit < 4 else sKVST2)}, {unit * 16384}\n" + s
            if cfg.get("nokvst") and not (unit == 7 and n == 0):
                s = "s_nop 0"
            if cfg.get("kvplain"):
                s = s.replace(" sc1 @@", " @@")
            stv.append(s)
        return cv, stv

    for n in range(8):
        S = Stage(f"kv1_{n}", 18)
        S.blocks = [("C1", n), ("W", (S_WUK, sRK, False)), ("W", (S_WUV, sRK, True))]
        for kk in range(2):
            ks = 2 * n + kk
            for j in range(4):
                for x in range(2):
                    S.reads.append((tr_read(ar(16 * ks + 4 * j + 2 * x, 2), vT + 3 * (j & 1), 1 + (j >> 1),
                                            kk * 8192 + x * 256), len(S.mf) + 2 * j))
            for u in range(4):
                X, Y = ring_alloc(8), ring_alloc(8)
                S.reads.append((frag_read(X, vF, 0, (4 * u + kk) * 1024), len(S.mf)))
                S.reads.append((frag_read(Y, vF, 0, (4 * u + 2 + kk) * 1024), len(S.mf) + 1))
                kv_mfmas(S, ks, RSET[u], X, Y)
        stages.append(S)

    def kv2_stage(u, R):
        S = Stage(f"kv2_{u}", 18)
        S.blocks = [("C2", (u, 0)), ("C2", (u, 1))]
        for ks in range(16):
            X, Y = ring_alloc(8), ring_alloc(8)
            S.reads.append((frag_read(X, vF, 0, ks * 1024), len(S.mf)))
            S.reads.append((frag_read(Y, vF, 1, ks * 1024), len(S.mf) + 1))
            kv_mfmas(S, ks, R, X, Y)
        return S

    def ssm_stage(n, R):
        S = Stage(f"ssm_{n}", 8)
        S.blocks = [("SX", 2 * n), ("SB", n), ("SX", 2 * n + 1)]
        for k4 in range(4):
            kh, kk = k4 >> 1, k4 & 1
            B = []
            for reim in range(2):
                r = ring_alloc(12)
                B.append(r)
                S.reads.append((frag_read(r, vFB, 1, reim * 8192 + k4 * 1024), len(S.mf) + reim))
            for rb in range(4):
                r = ring_alloc(12)
                S.reads.append((frag_read(r, vFA, 2 * kh, (2 * rb + kk) * 1024), len(S.mf)))
                for reim in range(2):
                    d = R + 16 * reim + 4 * rb
                    c = "0" if (n == 0 and k4 == 0) else vr(d, 4)
                    S.mf.append(f"v_mfma_f32_16x16x32_bf16 {vr(d, 4)}, {r}, {B[reim]}, {c}")
        return S

    QACC = [RSET[0], RSET[2], RSET[4], RSET[3]]
    RB = RSET[1]

    def qacc(db, qb):
        return QACC[db >> 1] + 16 * (db & 1) + 4 * qb

    qring = [0, 0]

    def q_stage(n):
        S = Stage(f"q_{n}", 14)
        S.blocks = [("X", (0, n)), ("W", (S_WQ, sRQ, False)), ("X", (1, n))]
        for kk in range(2):
            xs = []
            base = len(S.mf)
            for qb in range(4):
                r = ar(128 + 4 * (qring[0] % 12), 4)
                qring[0] += 1
                xs.append(r)
                S.reads.append((frag_read(r, vFA, 2 * (qb >> 1), (2 * (qb & 1) + kk) * 1024), base + qb))
            for db in range(8):
                rr = 192 + 4 * (qring[1] % 8)
                qring[1] += 1
                for x in range(2):
                    S.reads.append((tr_read(ar(rr + 2 * x, 2), vT + 3 * (db & 1), 1,
                                            kk * 8192 + (db >> 1) * 1024 + x * 256), len(S.mf)))
                for qb in range(4):
                    d = qacc(db, qb)
                    c = "0" if (n == 0 and kk == 0) else vr(d, 4)
                    S.mf.append(f"v_mfma_f32_16x16x32_bf16 {vr(d, 4)}, {ar(rr, 4)}, {xs[qb]}, {c}")
        return S

    made = {}
    prev = "K"
    for nm in cfg.get("order", ["U4", "U5", "S0", "S1", "S2", "S3", "U6", "U7"]):
        if nm[0] != prev[0] and "S" in (nm[0], prev[0]):
            ringpos[0] = 0
        if nm[0] == "U":
            S = kv2_stage(int(nm[1]), {4: RSET[4], 5: RSET[0], 6: RSET[2], 7: RSET[3]}[int(nm[1])])
            if prev[0] == "S":
                S.lb = 7
        else:
            S = ssm_stage(int(nm[1]), RB)
            if prev[0] == "U":
                S.lb = 14
        made[nm] = S
        stages.append(S)
        prev = nm
    U4, U5, U6, U7 = (made[f"U{k}"] for k in range(4, 8))
    QS = [q_stage(n) for n in range(8)]
    stages += QS
    for k, v in cfg.get("frac", {}).items():
        stages[int(k)].frac = v
    for k, v in cfg.get("quota", {}).items():
        stages[int(k)].quota, stages[int(k)].dstart = v
    for k, v in cfg.get("mpace", {}).items():
        stages[int(k)].maxpace = v

    UR = [RSET[0], RSET[1], RSET[2], RSET[3], RSET[4], RSET[0], RSET[2], RSET[3]]
    byname = made
    dplan = cfg.get("drains", [["U4", 4, 36, 36, 44], ["U4", 64, 96, 96, 104], ["U5", 4, 36, 36, 44],
                               ["U5", 64, 96, 96, 104], ["U6", 2, 30, 30, 38], ["U6", 64, 96, 96, 104],
                               ["U7", 64, 96, 96, 104]])
    for u, (nm, a, b, c, d) in enumerate(dplan):
        cv, stv = drain(u, UR[u])
        byname[nm].fill.append((cv, a, b))
        byname[nm].fill.append((stv, c, d))
    cv7, st7 = drain(7, RSET[3], RING)
    QS[0].fill.append((cv7, 2, 22))
    QS[0].fill.append((st7, *cfg.get("st7", (24, 32))))

    def signal(line_sgpr_setup, sig=vSIG, one=vONE):
        return line_sgpr_setup + f"\n buffer_store_dword {vr(one)}, {vr(sig)}, {sr(S_FLG, 4)}, {sr(sFO)} offen sc1"

    stages[0].at_barrier.append("@need #zero")
    stages[0].after_barrier.append(f"v_lshl_add_u32 {vr(vPA)}, s2, 2, {vr(vSIG)}\n"
                                   f"buffer_store_dword {vr(vONE)}, {vr(vPA)}, {sr(S_DBG, 4)}, 0 offen sc1")
    tch = cfg.get("touch1")
    if tch:
        gw = f"s_lshl_b32 {sr(sT0)}, s2, 2\n s_add_u32 {sr(sT0)}, {sr(sT0)}, {sr(sW)}\n s_lshl_b32 {sr(sT0)}, {sr(sT0)}, 7"
        tl = [[gw, f"v_lshlrev_b32 {vr(vX0)}, 17, v0",
               f"buffer_load_dword {vr(TMP + 1)}, {vr(vX0)}, {sr(S_XA, 4)}, {sr(sT0)} offen"],
              [f"s_lshl_b32 {sr(sT0)}, s2, 1\n s_and_b32 {sr(sT1)}, {sr(sW)}, 1",
               f"s_add_u32 {sr(sT0)}, {sr(sT0)}, {sr(sT1)}\n s_lshl_b32 {sr(sT0)}, {sr(sT0)}, 7",
               f"v_lshlrev_b32 {vr(vX0)}, 16, v0",
               f"buffer_load_dword {vr(TMP + 2)}, {vr(vX0)}, {sr(S_BSEL, 4)}, {sr(sT0)} offen"],
              [f"s_lshl_b32 {sr(sT0)}, {sr(sI)}, 2\n s_add_u32 {sr(sT0)}, {sr(sT0)}, {sr(sW)}",
               f"s_lshl_b32 {sr(sT0)}, {sr(sT0)}, 13\n s_lshl_b32 {sr(sT1)}, {sr(sH)}, 8",
               f"s_add_u32 {sr(sT0)}, {sr(sT0)}, {sr(sT1)}\n v_and_b32 {vr(vX0)}, 1, v0",
               f"v_lshlrev_b32 {vr(vX0)}, 7, {vr(vX0)}\n v_lshrrev_b32 {vr(vX1)}, 1, v0",
               f"v_lshl_add_u32 {vr(vX0)}, {vr(vX1)}, 18, {vr(vX0)}",
               f"buffer_load_dword {vr(TMP + 3)}, {vr(vX0)}, {sr(S_WQ, 4)}, {sr(sT0)} offen"],
              [gw, f"v_lshlrev_b32 {vr(vX0)}, 17, v0",
               f"buffer_load_dword {vr(TMP + 4)}, {vr(vX0)}, {sr(S_XB, 4)}, {sr(sT0)} offen"]]
        for (stg, slot), items in zip(tch, tl):
            if stg >= 0:
                stages[stg].fill.append((items, slot, slot + len(items)))
    tch = cfg.get("touchg")
    touch_fixed = []
    if tch:
        gw = f"""
        s_and_b32 {sr(sT0)}, s2, 63
        s_lshl_b32 {sr(sT0)}, {sr(sT0)}, 2
        s_add_u32 {sr(sT0)}, {sr(sT0)}, {sr(sW)}
        s_lshl_b32 {sr(sT0)}, {sr(sT0)}, 13
        v_lshlrev_b32 {vr(vX0)}, 7, v0
        """

        def wq(half):
            return f"""
            s_and_b32 {sr(sT0)}, {sr(sI)}, 1
            s_lshl_b32 {sr(sT0)}, {sr(sT0)}, 2
            s_add_u32 {sr(sT0)}, {sr(sT0)}, {sr(sW)}
            s_add_u32 {sr(sT0)}, {sr(sT0)}, {8 * half}
            s_lshl_b32 {sr(sT0)}, {sr(sT0)}, 18
            s_lshl_b32 {sr(sT1)}, {sr(sH)}, 8
            s_add_u32 {sr(sT0)}, {sr(sT0)}, {sr(sT1)}
            v_and_b32 {vr(vX0)}, 1, v0
            v_lshlrev_b32 {vr(vX0)}, 7, {vr(vX0)}
            v_lshrrev_b32 {vr(vX1)}, 1, v0
            v_lshl_add_u32 {vr(vX0)}, {vr(vX1)}, 13, {vr(vX0)}
            buffer_load_dword {vr(TMP + 1)}, {vr(vX0)}, {sr(S_WQ, 4)}, {sr(sT0)} offen
            """
        tl = [gw + f"""buffer_load_dword {vr(TMP + 1)}, {vr(vX0)}, {sr(S_XA, 4)}, {sr(sT0)} offen
              s_and_b32 {sr(sT0)}, s2, 63
              s_and_b32 {sr(sT1)}, {sr(sW)}, 1
              s_lshl_b32 {sr(sT1)}, {sr(sT1)}, 6
              s_add_u32 {sr(sT0)}, {sr(sT0)}, {sr(sT1)}
              s_lshl_b32 {sr(sT0)}, {sr(sT0)}, 13
              buffer_load_dword {vr(TMP + 2)}, {vr(vX0)}, {sr(S_BSEL, 4)}, {sr(sT0)} offen""",
              wq(0), wq(1),
              gw + f"buffer_load_dword {vr(TMP + 1)}, {vr(vX0)}, {sr(S_XB, 4)}, {sr(sT0)} offen"]
        tgrp = cfg.get("tgrp", (0, 1, 2, 3))
        for k, ((stg, slot), txt) in enumerate(zip(tch, tl)):
            if stg >= 0:
                touch_fixed.append((stg, slot, f"s_lshr_b32 {sr(sT0)}, s2, 6\n s_cmp_lg_u32 {sr(sT0)}, {tgrp[k]}\n"
                                               f"s_cbranch_scc1 TCH_{k}\n{txt}\n TCH_{k}:"))
    for k, (stg, slot, grp, names, base, lanes) in enumerate(cfg.get("touchl", [])):
        txt = lin_touch([SR[x] for x in names.split("+")], base, lanes, 64, TMP + 5)
        if names == "b":
            txt = txt.replace(f"s_lshl_b32 {sr(sT0)}, {sr(sT0)}, 2\n        s_add_u32 {sr(sT0)}, {sr(sT0)}, {sr(sW)}",
                              f"s_lshl_b32 {sr(sT0)}, {sr(sT0)}, 1\n s_and_b32 {sr(sT1)}, {sr(sW)}, 1\n"
                              f"s_add_u32 {sr(sT0)}, {sr(sT0)}, {sr(sT1)}")
        touch_fixed.append((stg, slot, f"s_lshr_b32 {sr(sT0)}, s2, 6\n s_cmp_lg_u32 {sr(sT0)}, {grp}\n"
                                       f"s_cbranch_scc1 TCL_{k}\n{txt}\n TCL_{k}:"))
    U5.fill.append(([f"v_lshlrev_b32 {vr(vLA)}, 16, {vr(vLA)}",
                     f"v_lshlrev_b32 {vr(vLB)}, 16, {vr(vLB)}",
                     f"v_lshlrev_b32 {vr(vZA)}, 16, {vr(vZA)}",
                     f"v_mul_f32 {vr(vZA)}, {f32hex(LOG2E)}, {vr(vZA)}",
                     f"v_exp_f32 {vr(vZA)}, {vr(vZA)}",
                     f"v_and_b32 {vr(vPA)}, 7, v0",
                     f"v_cvt_pk_bf16_f32 {vr(vZA)}, {vr(vZA)}, {vr(vZA)}",
                     f"v_lshlrev_b32 {vr(vZA)}, 16, {vr(vZA)}",
                     f"v_mul_f32 {vr(vZB)}, {vr(vZA)}, {vr(vLB)}",
                     f"v_mul_f32 {vr(vZA)}, {vr(vZA)}, {vr(vLA)}",
                     f"v_mul_f32 {vr(vZB)}, {f32hex(1.0 / (2 * math.pi))}, {vr(vZB)}",
                     f"v_mul_f32 {vr(vZA)}, {f32hex(LOG2E)}, {vr(vZA)}",
                     f"v_lshlrev_b32 {vr(vPA)}, 2, {vr(vPA)}",
                     sync.load(S_DBG, "0", vPA, vPV)], 44, 64))
    U6.at_barrier.append(sync.check("Z", S_DBG, "0", vPA, vPV))

    U6.blocks.append(("SCR", None))
    E0 = TMP

    def scan1(addrs):
        a = addrs[2]
        lr, li = E0, E0 + 1
        out = cexp("1.0", lr, li, E0 + 2, E0 + 3)
        cur = (RB, RB + 16)
        for t in range(1, 16):
            d = (E0 + 4 + 2 * (t & 1), E0 + 5 + 2 * (t & 1))
            out += cmadd(d[0], d[1], lr, li, cur[0], cur[1], RB + t, RB + 16 + t)
            cur = d
        assert cur == (E0 + 6, E0 + 7)
        out += [f"v_and_b32 {vr(vX0)}, 15, v0",
                f"s_and_b32 {sr(sT0)}, {sr(sW)}, 1\n s_lshl_b32 {sr(sT0)}, {sr(sT0)}, 7",
                f"s_add_u32 {sr(sT0)}, {sr(sT0)}, {a}",
                f"v_lshl_add_u32 {vr(E0 + 8)}, {vr(vX0)}, 3, {sr(sT0)}",
                f"v_lshl_add_u32 {vr(vX1)}, {vr(vSEG)}, 8, {vr(E0 + 8)}",
                f"ds_write_b64 {vr(vX1)}, {vr(E0 + 6, 2)}"]
        return out

    U6.fill.append((scan1, 6, 100))

    ER = RSET[4]
    vEA = vFB
    scan2 = [f"ds_read_b64 {vr(ER + 2 * s, 2)}, {vr(E0 + 8)} offset:{256 * s}" for s in range(8)]
    lr, li = E0, E0 + 1
    scan2 += cexp(f32hex(16.0), lr, li, E0 + 2, E0 + 3)
    scan2 += [f"v_mov_b32 {vr(vPRE)}, 0", f"v_mov_b32 {vr(vPRE + 1)}, 0",
              f"v_and_b32 {vr(vX0)}, 15, v0",
              f"s_and_b32 {sr(sT0)}, {sr(sW)}, 1\n s_lshl_b32 {sr(sT0)}, {sr(sT0)}, 7",
              f"s_lshl_b32 {sr(sT2)}, {sr(sPG)}, 8\n s_add_u32 {sr(sT0)}, {sr(sT0)}, {sr(sT2)}",
              f"v_lshl_add_u32 {vr(vEA)}, {vr(vX0)}, 3, {sr(sT0)}",
              f"v_lshl_add_u32 {vr(vX0)}, {vr(vSEG)}, 16, {vr(vEA)}",
              f"s_lshl_b32 {sr(sT0)}, {sr(sC)}, 12"]
    cur = (ER, ER + 1)
    for s in range(1, 8):
        scan2 += [f"v_cmp_eq_u32 vcc, {s}, {vr(vSEG)}"]
        d = (E0 + 4 + 2 * (s & 1), E0 + 5 + 2 * (s & 1))
        scan2 += cmadd(d[0], d[1], lr, li, cur[0], cur[1], ER + 2 * s, ER + 2 * s + 1)
        scan2 += [f"v_cndmask_b32 {vr(vPRE)}, {vr(vPRE)}, {vr(cur[0])}, vcc",
                  f"v_cndmask_b32 {vr(vPRE + 1)}, {vr(vPRE + 1)}, {vr(cur[1])}, vcc"]
        cur = d
    scan2 += [f"buffer_store_dwordx2 {vr(E0 + 6, 2)}, {vr(vX0)}, {sr(S_E, 4)}, {sr(sT0)} offen sc1 @@est"]
    U7.fill.append((scan2, 0, 58))
    U7.at_barrier.append("@need #est")
    U7.after_barrier.append(signal(f"s_lshl_b32 {sr(sFO)}, {sr(sPG)}, 5\n s_add_u32 {sr(sFO)}, {sr(sFO)}, {sr(sC)}\n"
                                   f"s_lshl_b32 {sr(sFO)}, {sr(sFO)}, 2\n s_add_u32 {sr(sFO)}, {sr(sFO)}, {FL_E * 128}"))
    U7.fill.append(([f"v_add_u32 {vr(vFA + k)}, {sr(sWLDS)}, {vr(vF + k)}" for k in range(3)] +
                    [f"s_lshl_b32 {sr(sT1)}, {sr(sW)}, 10"] +
                    [f"v_subrev_u32 {vr(vT + k)}, {sr(sT1)}, {vr(vT + k)}" for k in range(6)], 58, 70))

    kvsig = cfg.get("kvsig", 1)
    QS[kvsig].at_barrier.append("@need #kvst")
    QS[kvsig].after_barrier.append(signal(f"s_lshl_b32 {sr(sFO)}, {sr(sH)}, 5\n s_add_u32 {sr(sFO)}, {sr(sFO)}, {sr(sI)}\n"
                                      f"s_lshl_b32 {sr(sFO)}, {sr(sFO)}, 2"))

    EV = 48
    LAM, L128, LSEG, COEF, CT = 78, 80, 82, 84, 86
    s2a = cexp("1.0", LAM, LAM + 1, CT, CT + 1) + [
        f"v_add_f32 {vr(CT)}, -1.0, {vr(LAM)}",
        f"v_mul_f32 {vr(CT + 1)}, {vr(vLA)}, {vr(vLA)}",
        f"v_fmac_f32 {vr(CT + 1)}, {vr(vLB)}, {vr(vLB)}",
        f"v_rcp_f32 {vr(CT + 1)}, {vr(CT + 1)}",
        f"v_mul_f32 {vr(COEF)}, {vr(CT)}, {vr(vLA)}",
        f"v_fmac_f32 {vr(COEF)}, {vr(LAM + 1)}, {vr(vLB)}",
        f"v_mul_f32 {vr(COEF + 1)}, {vr(LAM + 1)}, {vr(vLA)}",
        f"v_fma_f32 {vr(COEF + 1)}, -{vr(CT)}, {vr(vLB)}, {vr(COEF + 1)}",
        f"v_add_f32 {vr(CT + 1)}, {vr(CT + 1)}, {vr(CT + 1)}",
        f"v_mul_f32 {vr(COEF)}, {vr(COEF)}, {vr(CT + 1)}",
        f"v_mul_f32 {vr(COEF + 1)}, {vr(COEF + 1)}, {vr(CT + 1)}"]
    s2a += cexp(f32hex(128.0), L128, L128 + 1, CT, CT + 1)
    s2a += [f"v_cvt_f32_u32 {vr(vX0)}, {vr(vSEG)}", f"v_mul_f32 {vr(vX0)}, {f32hex(16.0)}, {vr(vX0)}"]
    s2a += cexp(vr(vX0), LSEG, LSEG + 1, CT, CT + 1)
    epoll = cfg.get("epoll", 2)
    s2a += [f"v_and_b32 {vr(vPA)}, 15, v0", f"v_lshlrev_b32 {vr(vPA)}, 2, {vr(vPA)}"]
    QS[1].fill.append((s2a, 0, 48))
    QS[epoll].fill.append(([f"s_lshl_b32 {sr(sFO)}, {sr(sPG)}, 7\n s_add_u32 {sr(sFO)}, {sr(sFO)}, {FL_E * 128}",
                            sync.load(S_FLG, sr(sFO), vPA, vPV)], 4, 8))
    QS[epoll].at_barrier.append(sync.check("E", S_FLG, sr(sFO), vPA, vPV))
    eload = []
    for k in range(15):
        eload.append(f"s_add_i32 {sr(sT0)}, {sr(sC)}, {k - 15}\n s_min_u32 {sr(sT0)}, {sr(sT0)}, 16")
        eload.append(f"s_lshl_b32 {sr(sT0)}, {sr(sT0)}, 12\n"
                     f"buffer_load_dwordx2 {vr(EV + 2 * k, 2)}, {vr(vEA)}, {sr(S_E, 4)}, {sr(sT0)} offen sc1")
    QS[epoll].fill.append((eload, 51, 64 + 30))
    A = RING
    s2b = []
    cur = (EV, EV + 1)
    for k in range(1, 15):
        d = (A + 2 * (k & 1), A + 1 + 2 * (k & 1))
        s2b += cmadd(d[0], d[1], L128, L128 + 1, cur[0], cur[1], EV + 2 * k, EV + 2 * k + 1)
        cur = d
    s2b += cmadd(A + 2, A + 3, LSEG, LSEG + 1, cur[0], cur[1], vPRE, vPRE + 1)
    assert cur == (A, A + 1)
    cur = (A + 2, A + 3)
    for t in range(16):
        d = (A + 2 * (t & 1), A + 1 + 2 * (t & 1))
        o = (A + 4 + (t & 1), A + 6 + (t & 1))
        s2b += cmadd(d[0], d[1], LAM, LAM + 1, cur[0], cur[1], RB + t, RB + 16 + t)
        cur = d
        s2b += [f"v_mul_f32 {vr(o[0])}, {vr(COEF)}, {vr(d[0])}",
                f"v_mul_f32 {vr(o[1])}, {vr(COEF)}, {vr(d[1])}",
                f"v_fma_f32 {vr(o[0])}, -{vr(COEF + 1)}, {vr(d[1])}, {vr(o[0])}",
                f"v_fma_f32 {vr(o[1])}, -{vr(COEF + 1)}, {vr(d[0])}, -{vr(o[1])}"]
        if t & 1:
            s2b += [f"v_cvt_pk_bf16_f32 {vr(RB + t // 2)}, {vr(A + 4)}, {vr(A + 5)}",
                    f"v_cvt_pk_bf16_f32 {vr(RB + 16 + t // 2)}, {vr(A + 6)}, {vr(A + 7)}"]
    s2b += [f"s_lshl_b32 {sr(sT1)}, {sr(sC)}, 18\n s_lshr_b32 {sr(sT2)}, {sr(sW)}, 1",
            f"s_lshl_b32 {sr(sT2)}, {sr(sT2)}, 17\n s_add_u32 {sr(sT1)}, {sr(sT1)}, {sr(sT2)}",
            f"s_lshl_b32 {sr(sT2)}, {sr(sPG)}, 13\n s_add_u32 {sr(sT1)}, {sr(sT1)}, {sr(sT2)}",
            f"s_and_b32 {sr(sT2)}, {sr(sW)}, 1\n s_lshl_b32 {sr(sT2)}, {sr(sT2)}, 11",
            f"s_add_u32 {sr(sT1)}, {sr(sT1)}, {sr(sT2)}\n s_add_u32 {sr(sT1)}, {sr(sT1)}, {WS_HF}",
            f"v_mov_b32 {vr(vSIG2)}, {vr(vSIG)}", f"v_mov_b32 {vr(vONE2)}, 1"]
    hst = []
    for reim in range(2):
        for half in range(2):
            hst.append(f"buffer_store_dwordx4 {vr(RB + 16 * reim + 4 * half, 4)}, {vr(vL16)}, {sr(S_WS, 4)}, {sr(sT1)} "
                       f"offen offset:{half * 1024} sc1 @@hst")
        if reim == 0:
            hst.append(f"s_add_u32 {sr(sT1)}, {sr(sT1)}, 4096")
    s2lo = 64 * (epoll + 2) - 10
    QS[0].fill.append((s2b, s2lo, 64 * 7 + 36))

    QS[6].fill.append(([f"v_and_b32 {vr(vPA)}, 7, v0", f"v_lshlrev_b32 {vr(vPA)}, 2, {vr(vPA)}",
                        f"s_lshl_b32 {sr(sFO)}, {sr(sH)}, 7", sync.load(S_FLG, sr(sFO), vPA, vPV)], 6, 14))
    QS[6].at_barrier.append(sync.check("KV", S_FLG, sr(sFO), vPA, vPV))

    def qpack(cg):
        out = []
        for g in range(2):
            for hq in range(2):
                qb = 2 * g + hq
                dst = QREG[g] + 4 * (2 * cg + hq)
                src = [qacc(2 * cg, qb) + k for k in range(4)] + [qacc(2 * cg + 1, qb) + k for k in range(4)]
                out += [f"v_cvt_pk_bf16_f32 {vr(dst + k)}, {vr(src[2 * k])}, {vr(src[2 * k + 1])}" for k in range(4)]
        for g in range(2):
            d = QREG[g] + 8 * cg
            out += [f"v_permlane16_swap_b32 {vr(d + k)}, {vr(d + 4 + k)}" for k in range(4)]
        return out

    QS[7].fill.append((qpack(0), 42, 52))
    QS[7].fill.append((qpack(1), 52, 63))

    P1 = Pipe(stages, dma_group, cfg, "blk", cfg.get("npro", 6), fine(0))
    pairfree = [max(P1.free_at[2 * q], P1.free_at[2 * q + 1]) for q in range(5)]
    r0 = min(range(5), key=lambda q: [pairfree[(q + t) % 5] for t in range(4)])

    def tile_dma(tile, addr):
        out = []
        for j in range(8):
            su = []
            if j % 4 == 0:
                su = [f"s_mov_b32 {sr(sD0)}, {tile * 32768 + j * 1024}", f"s_add_u32 m0, {sr(sW8K)}, {addr + j * 1024}"]
            out.append((su, f"buffer_load_dwordx4 {vr(vW)}, {sr(S_KVR, 4)}, {sr(sD0)} offen offset:{(j % 4) * 1024} "
                            f"sc1 lds @@tile{tile}"))
        return out

    def tile_addr(t):
        return ((r0 + t) % 5) * 2 * BLK

    poll_bar = P1.bar[len(stages) - 1]
    P1.extra_fixed.append((poll_bar, f"s_lshl_b32 {sr(sW8K)}, {sr(sW)}, 13\n v_add_u32 {vr(vW)}, {sr(sW8K)}, {vr(vL16)}"))
    for stg, slot, txt in touch_fixed:
        P1.extra_fixed.append((P1.start[stg] + slot, txt))
    ntile_pre = 0
    tp = cfg.get("tilepace", 4)
    for t in range(cfg.get("ntilepre", 2)):
        e = max(P1.bar[pairfree[(r0 + t) % 5]], poll_bar) + 1
        if max(P1.dcur, e) + 8 * tp + 1 >= P1.total:
            break
        P1.add_dma(tile_dma(t, tile_addr(t)), e, tp, P1.total - 1)
        ntile_pre += 1
    P1.schedule()

    for gi, grp in enumerate(P1.prolog_dma):
        for setup, ins in grp:
            p("\n".join(setup))
            p(ins)
        if gi == 2:
            if timing:
                p("s_memrealtime s[92:93]")
            p(late)
            tlb = cfg.get("tlb", 0)
            if tlb:
                p(f"v_lshlrev_b32 {vr(vX0)}, {tlb}, v0\n s_lshl_b32 {sr(sT0)}, {sr(sW)}, {tlb - 2}")
                for k, srd in enumerate((S_WS, S_XA, S_BSEL, S_XB, S_WQ, S_WO, S_CSEL)):
                    p(f"buffer_load_dword {vr(TMP + 1 + k)}, {vr(vX0)}, {sr(srd, 4)}, {sr(sT0)} offen offset:8")
    if timing:
        p(f"v_mov_b32 {vr(vX0)}, {sr(sRET)}\n v_mov_b32 {vr(vX1)}, {sr(sRET)}\n v_mov_b32 v94, {63 * 8}")
        p(f"buffer_store_dwordx2 {vr(vX0, 2)}, v94, {sr(S_WS, 4)}, {sr(sStamp)} offen")
        p(f"v_mov_b32 v92, s90\n v_mov_b32 v93, s92\n v_mov_b32 v94, {62 * 8}")
        p(f"buffer_store_dwordx2 v[92:93], v94, {sr(S_WS, 4)}, {sr(sStamp)} offen")
    st(94)
    p(f"@need {P1.first_need}\n s_barrier")
    st(94)
    for t in P1.prolog_reads:
        p(t)
    xb = {}
    if timing:
        for n in (8, 10, 14, 16):
            tq = Prog()
            stamp(tq, True, nstamp[0], sTS, 92, 94, S_WS, sStamp)
            nstamp[0] += 1
            xb[P1.start[n]] = "\n".join(x.text for x in tq.ins)
    P1.emit(p, xb)
    if timing:
        p(f"v_lshlrev_b32 v94, 2, v0\n buffer_store_dword v95, v94, {sr(S_WS, 4)}, {sr(sStamp)} offen offset:768")
    st()

    p("@need #tile0\n s_barrier")
    rest = []
    for t in range(ntile_pre, 4):
        rest += ["\n".join(su + [ins]) for su, ins in tile_dma(t, tile_addr(t))]
    hsig = signal(f"s_lshl_b32 {sr(sFO)}, {sr(sC)}, 5\n s_add_u32 {sr(sFO)}, {sr(sFO)}, {sr(sPG)}\n"
                  f"s_lshl_b32 {sr(sFO)}, {sr(sFO)}, 2\n s_add_u32 {sr(sFO)}, {sr(sFO)}, {FL_H * 128}", vSIG2, vONE2)

    LACC, HACC, TRING, SACC, Y, XR = 32, 96, 160, 208, 224, 240
    vCX, vT5 = 192, 197
    vF5, vH = 8, 13
    W32 = 32768
    vO, vOA, vWr, vRd, vX = vVST, vSEG, vRD, vCST, 250
    sOA, sOB, sPX, sPI = sM0, sKVOFF, sSLOT, sCNT
    TSTR = 144
    ro, r2 = cfg.get("roto", (0, 0)), cfg.get("rot2", (1, 2))
    d2a = [f"""
    s_and_b32 {sr(sCT)}, {sr(sH)}, 3
    s_lshr_b32 {sr(sKQ)}, {sr(sH)}, 2
    s_mul_i32 {sr(sRO)}, {sr(sI)}, {ro[0]}
    s_mul_i32 {sr(sT2)}, {sr(sCT)}, {ro[1]}
    s_add_u32 {sr(sRO)}, {sr(sRO)}, {sr(sT2)}
    s_and_b32 {sr(sRO)}, {sr(sRO)}, 7
    s_lshl_b32 {sr(sRO2)}, {sr(sRO)}, 14
    s_lshl_b32 {sr(sRO)}, {sr(sRO)}, 16
    s_lshl_b32 {sr(sT2)}, {sr(sKQ)}, 17
    s_add_u32 {sr(sT2)}, {sr(sT2)}, {sr(sWLDS)}
    s_add_u32 {sr(sT2)}, {sr(sT2)}, {WS_CTX}
    s_lshl_b32 {sr(sT3)}, {sr(sI)}, 20
    s_add_u32 {sr(sCTXO)}, {sr(sT2)}, {sr(sT3)}
    s_add_u32 {sr(sT2)}, {sr(sT2)}, {15 << 20}
    s_sub_u32 {sr(sCTXH)}, {sr(sT2)}, {sr(sT3)}
    s_lshl_b32 {sr(sWOO)}, {sr(sKQ)}, 19
    s_lshl_b32 {sr(sT2)}, {sr(sW)}, 14
    s_add_u32 {sr(sWOO)}, {sr(sWOO)}, {sr(sT2)}
    s_lshl_b32 {sr(sT2)}, {sr(sCT)}, 8
    s_add_u32 {sr(sWOO)}, {sr(sWOO)}, {sr(sT2)}
    """]
    d2b = f"""
    s_lshl_b32 {sr(sT2)}, {sr(sI)}, 1
    s_sub_u32 {sr(sT2)}, {r0 + 33}, {sr(sT2)}
    s_mul_i32 {sr(sT3)}, {sr(sT2)}, 52
    s_lshr_b32 {sr(sT3)}, {sr(sT3)}, 8
    s_mul_i32 {sr(sT3)}, {sr(sT3)}, 5
    s_sub_u32 {sr(sT2)}, {sr(sT2)}, {sr(sT3)}
    s_lshl_b32 {sr(sT2)}, {sr(sT2)}, 15
    s_add_u32 {sr(sMB)}, {sr(sT2)}, {sr(sWLDS)}
    """
    for q in range(1, 5):
        d2b += f"""s_add_u32 {sr(sMB + q)}, {sr(sMB + q - 1)}, 32768
        s_cmp_ge_u32 {sr(sMB + q)}, {NBLK * BLK}
        s_cselect_b32 {sr(sMB + q)}, {sr(sWLDS)}, {sr(sMB + q)}
        """
    d3x = [f"""
    s_lshr_b32 {sr(sT2)}, {sr(sKQ)}, 2
    s_lshl_b32 {sr(sT2)}, {sr(sT2)}, 6
    v_add_u32 {vr(vNa)}, {sr(sT2)}, {vr(vN)}
    v_xor_b32 {vr(vNb)}, 64, {vr(vNa)}
    s_lshr_b32 {sr(sT2)}, {sr(sW)}, 1
    s_lshl_b32 {sr(sT2)}, {sr(sT2)}, 12
    s_sub_u32 {sr(sT2)}, {sr(sT2)}, {sr(sWLDS)}
    v_add_u32 {vr(vF + 1)}, {sr(sT2)}, {vr(vL16)}
    s_and_b32 {sr(sT2)}, {sr(sW)}, 1
    s_lshl_b32 {sr(sT2)}, {sr(sT2)}, 11
    s_sub_u32 {sr(sT2)}, {sr(sT2)}, {sr(sWLDS)}
    v_add_u32 {vr(vF + 2)}, {sr(sT2)}, {vr(vT)}
    """]
    tail1 = []
    for q in range(5):
        tail1 += [f"v_add_u32 {vr(vCX + q)}, {sr(sMB + q)}, {vr(vF + 1)}",
                  f"v_add_u32 {vr(vT5 + q)}, {sr(sMB + q)}, {vr(vF + 2)}",
                  f"v_xor_b32 {vr(vT5 + 5 + q)}, 32, {vr(vT5 + q)}"]
    tail2 = [f"""
    s_and_b32 {sr(sT0)}, s2, 7
    s_lshr_b32 {sr(sT1)}, s2, 3
    s_lshl_b32 {sr(sRT64)}, {sr(sT0)}, 2
    s_lshr_b32 {sr(sT2)}, {sr(sT1)}, 3
    s_add_u32 {sr(sRT64)}, {sr(sRT64)}, {sr(sT2)}
    s_and_b32 {sr(sCT64)}, {sr(sT1)}, 7
    s_mul_i32 {sr(sR2)}, {sr(sCT64)}, {r2[0]}
    s_mul_i32 {sr(sT2)}, {sr(sT2)}, {r2[1]}
    s_add_u32 {sr(sR2)}, {sr(sR2)}, {sr(sT2)}
    s_and_b32 {sr(sR2)}, {sr(sR2)}, 7
    s_lshl_b32 {sr(sR2)}, {sr(sR2)}, 7
    s_lshl_b32 {sr(sHO)}, {sr(sRT64)}, 17
    s_add_u32 {sr(sHO)}, {sr(sHO)}, {sr(sWLDS)}
    s_add_u32 {sr(sHO)}, {sr(sHO)}, {WS_HF}
    s_lshl_b32 {sr(sCO)}, {sr(sCT64)}, 16
    s_lshr_b32 {sr(sT2)}, {sr(sW)}, 1
    s_lshl_b32 {sr(sT3)}, {sr(sT2)}, 11
    s_add_u32 {sr(sCO)}, {sr(sCO)}, {sr(sT3)}
    v_lshrrev_b32 {vr(vC4)}, 2, v0
    v_mul_u32_u24 {vr(vC4)}, 3072, {vr(vC4)}
    v_add_u32 {vr(vC4)}, {vr(vC4)}, {vr(vN)}
    v_lshrrev_b32 {vr(vX0)}, 5, v0
    s_lshl_b32 {sr(sT1)}, {sr(sW)}, 8
    s_sub_u32 {sr(sT1)}, {sr(sT1)}, {sr(sWLDS)}
    v_lshl_add_u32 {vr(vX1)}, {vr(vX0)}, 11, {sr(sT1)}
    v_bfe_u32 {vr(vX0)}, v0, 1, 1
    v_lshl_add_u32 {vr(vX1)}, {vr(vX0)}, 10, {vr(vX1)}
    v_bfe_u32 {vr(vX0)}, v0, 4, 1
    v_lshl_add_u32 {vr(vX1)}, {vr(vX0)}, 7, {vr(vX1)}
    v_bfe_u32 {vr(vX0)}, v0, 2, 2
    v_lshl_add_u32 {vr(vX1)}, {vr(vX0)}, 4, {vr(vX1)}
    v_and_b32 {vr(vX0)}, 1, v0
    v_lshl_add_u32 {vr(vX1)}, {vr(vX0)}, 3, {vr(vX1)}
    v_subrev_u32 {vr(vF)}, {sr(sWLDS)}, {vr(vF)}
    """]
    for q in range(5):
        tail2 += [f"v_add_u32 {vr(vH + q)}, {sr(sMB + q)}, {vr(vX1)}", f"v_add_u32 {vr(vF5 + q)}, {sr(sMB + q)}, {vr(vF)}"]
    touch2 = lines(f"""
    v_lshlrev_b32 {vr(vX0)}, 7, v0
    s_lshl_b32 {sr(sT0)}, s2, 1
    s_and_b32 {sr(sT1)}, {sr(sW)}, 1
    s_add_u32 {sr(sT0)}, {sr(sT0)}, {sr(sT1)}
    s_lshr_b32 {sr(sT1)}, {sr(sW)}, 1
    s_lshl_b32 {sr(sT2)}, {sr(sT1)}, 9
    s_add_u32 {sr(sT0)}, {sr(sT0)}, {sr(sT2)}
    s_lshl_b32 {sr(sT0)}, {sr(sT0)}, 13
    buffer_load_dword {vr(vMT + 3)}, {vr(vX0)}, {sr(S_WO, 4)}, {sr(sT0)} offen
    v_lshlrev_b32 {vr(vX0)}, 16, v0
    s_lshl_b32 {sr(sT0)}, s2, 1
    s_add_u32 {sr(sT0)}, {sr(sT0)}, {sr(sT1)}
    s_lshl_b32 {sr(sT0)}, {sr(sT0)}, 7
    buffer_load_dword {vr(vMT + 4)}, {vr(vX0)}, {sr(S_CSEL, 4)}, {sr(sT0)} offen
    """) if cfg.get("touch2", True) else []

    mid_fill = [f"""
    s_lshr_b32 {sr(sCF)}, {sr(sH)}, 2
    s_lshl_b32 {sr(sCF)}, {sr(sCF)}, 3
    s_add_u32 {sr(sCF)}, {sr(sCF)}, {sr(sI)}
    s_lshl_b32 {sr(sCF)}, {sr(sCF)}, 7
    s_add_u32 {sr(sFO)}, {sr(sCF)}, {FL_CTX * 128}
    s_and_b32 {sr(sCF)}, {sr(sH)}, 3
    s_lshl_b32 {sr(sCF)}, {sr(sCF)}, 2
    s_add_u32 {sr(sCF)}, {sr(sCF)}, {sr(sFO)}
    v_and_b32 {vr(vPA2)}, 3, v0
    v_lshlrev_b32 {vr(vPA2)}, 2, {vr(vPA2)}
    """]

    def ctx_signal(g):
        return (f"buffer_store_dword {vr(vONE2)}, {vr(vSIG2)}, {sr(S_FLG, 4)}, {sr(sCF)} offen "
                f"offset:{64 * g} sc1")

    tring = [0]
    sring = [0, 0]

    def s2_stage(n):
        S = Stage(f"s2_{n}", 8)
        S.frac = 0.8
        S.group = 4
        S.blocks = [("H", n), ("C", n)]
        for ks in range(4):
            rr = 32 + 4 * (sring[1] % 8)
            sring[1] += 1
            for x in range(2):
                S.reads.append((tr_read(ar(rr + 2 * x, 2), vH, 0, ks * 4096 + x * 64, W32), len(S.mf)))
            for db in range(4):
                r = ar((192 + 4 * (sring[0] % 24)) % 256, 4)
                sring[0] += 1
                S.reads.append((frag_read(r, vF5, 1, (db >> 1) * 8192 + (ks & 1) * 4096 + (db & 1) * 2048 + (ks >> 1) * 1024,
                                          W32), len(S.mf)))
                d = SACC + 4 * db
                c = "0" if (n == 0 and ks == 0) else vr(d, 4)
                S.mf.append(f"v_mfma_f32_16x16x32_bf16 {vr(d, 4)}, {ar(rr, 4)}, {r}, {c}")
        return S

    def o_stage(g, n):
        S = Stage(f"o{g}_{n}", 12)
        S.blocks = [("WO", n), ("CX", (0, n))] if g == 0 else [("CX", (1, n))]
        acc = HACC if g else LACC
        for kk in range(2):
            ks = 2 * n + kk
            wb = (192, 0, 128, 64)[ks >> 2] + 16 * (ks & 3)
            if g == 0:
                for mb in range(4):
                    for x in range(2):
                        S.reads.append((tr_read(ar(wb + 4 * mb + 2 * x, 2), vT5 + 5 * (mb & 1), 0,
                                                kk * 8192 + (mb >> 1) * 1024 + x * 256, W32), len(S.mf) + mb))
            for tb in (1, 2, 3, 0):
                r = vr(TRING + 4 * (tring[0] % 8), 4)
                tring[0] += 1
                S.reads.append((frag_read(r, vCX, 1 - g, kk * 8192 + tb * 1024, W32), len(S.mf)))
                for mb in range(4):
                    d = acc + 16 * tb + 4 * mb
                    c = "0" if ks == 0 else vr(d, 4)
                    S.mf.append(f"v_mfma_f32_16x16x32_bf16 {vr(d, 4)}, {ar(wb + 4 * mb, 4)}, {r}, {c}")
        return S

    TL = [o_stage(0, n) for n in range(8)]
    TH = [merge_stages(f"oh_{n}", [o_stage(1, 2 * n), o_stage(1, 2 * n + 1)]) for n in range(4)]
    T2 = [s2_stage(n) for n in range(8)]
    if cfg.get("s2merge"):
        T2 = [merge_stages(f"s2m_{n}", T2[2 * n:2 * n + 2]) for n in range(4)]
    T2[0].lb = 14
    tst = TL + TH + T2
    n2 = len(T2)
    for S in TL + TH:
        S.minpace = cfg.get("tpace", 4.0)
    for S in T2:
        S.minpace = 1.0
    for k, v in cfg.get("tquota", {}).items():
        tst[int(k)].quota, tst[int(k)].dstart = v
    bsig, bpoll = cfg.get("bsig", 2), cfg.get("bpoll", 4)
    TL[bsig].at_barrier.append("@need #ctxst")
    TL[bsig].after_barrier.append(ctx_signal(1))
    ep = ATT.ctx_epilogue(cfg, 1, packed=HACC + 16)
    epv, eps = [x for x in ep if x.startswith("v_")], [x for x in ep if not x.startswith("v_")]
    if cfg.get("epist"):
        epv, eps = ep, []
    nexp = cfg.get("nexp", 999)
    elo, ehi, slo, shi = cfg.get("epiwin", (0, 1, 1, 16))
    if epv[nexp:]:
        TL[0].fill.append((epv[nexp:], elo, ehi))
    assert ehi <= slo and shi < 32 * (bsig + 1) - 13
    if eps:
        TL[0].fill.append((eps, slo, shi))
    TL[0].fill.append((tail2, ehi, 32 * bpoll - 4))
    TL[bpoll].fill.append(([f"""
    s_add_u32 {sr(sT0)}, {sr(sFO)}, 64
    s_lshr_b32 {sr(sT1)}, {sr(sRT64)}, 1
    s_lshl_b32 {sr(sT1)}, {sr(sT1)}, 7
    s_add_u32 {sr(sT1)}, {sr(sT1)}, {FL_H * 128}
    v_add_u32 {vr(vX0)}, {sr(sT0)}, {vr(vPA2)}
    v_and_b32 {vr(vX1)}, 15, v0
    v_lshl_add_u32 {vr(vX1)}, {vr(vX1)}, 2, {sr(sT1)}
    v_cmp_gt_u32 vcc, 32, v0
    v_cndmask_b32 {vr(vPA2)}, {vr(vX1)}, {vr(vX0)}, vcc
    {sync.load(S_FLG, "0", vPA2, vPV2)}
    """], -4, 6))
    TL[bpoll].at_barrier.append(sync.check("B", S_FLG, "0", vPA2, vPV2))
    for S in TH + T2:
        S.gate = bpoll

    def pstore(g):
        acc = HACC if g else LACC
        out = []
        for tb in (1, 2, 3, 0):
            for mp in range(2):
                u = 2 * tb + mp
                if u == 0:
                    continue
                r = acc + 8 * u
                out += [f"s_add_u32 {sr(sT2)}, {sr(sKQ)}, {tb}", f"s_and_b32 {sr(sT2)}, {sr(sT2)}, 3",
                        f"s_and_b32 {sr(sT3)}, {sr(sKQ)}, 4", f"s_or_b32 {sr(sT2)}, {sr(sT2)}, {sr(sT3)}"] \
                    if (mp == 0 or tb == 0) else []
                if mp:
                    out.append(f"s_xor_b32 {sr(sT2)}, {sr(sT2)}, 4")
                out += [f"s_mul_i32 {sr(sT3)}, {sr(sT2)}, {7 * 4096}", f"s_add_u32 {sr(sT3)}, {sr(sT3)}, {sr(sPX)}",
                        f"s_add_u32 {sr(sT3)}, {sr(sT3)}, {g * 56 * 4096 + (u - 1) * 4096}"]
                out += [f"v_cvt_pk_bf16_f32 {vr(r + k)}, {vr(r + 2 * k)}, {vr(r + 2 * k + 1)}" for k in range(4)]
                out.append(f"buffer_store_dwordx4 {vr(r, 4)}, {vr(vL16)}, {sr(S_WS, 4)}, {sr(sT3)} offen sc1 @@pst{g}")
        return out

    def psig(g):
        return (f"buffer_store_dword {vr(vONE2)}, {vr(vSIG2)}, {sr(S_FLG, 4)}, {sr(sCF)} offen "
                f"offset:{128 * g} sc1")

    def pload(g):
        pr = (HACC if g else LACC) + 8
        out = []
        for k in range(7):
            out.append(f"buffer_load_dwordx4 {vr(pr + 4 * k, 4)}, {vr(vL16)}, {sr(S_WS, 4)}, {sr(sPI)} offen sc1")
            out.append(f"s_add_u32 {sr(sPI)}, {sr(sPI)}, {4096 if k < 6 else 50 * 4096}")
        return out

    def padd(g):
        acc = HACC if g else LACC
        t = acc + 40
        out = []
        for k in range(7):
            for j in range(4):
                r = acc + 8 + 4 * k + j
                out += [f"v_lshlrev_b32 {vr(t)}, 16, {vr(r)}", f"v_and_b32 {vr(t + 1)}, 0xffff0000, {vr(r)}",
                        f"v_add_f32 {vr(acc + 2 * j)}, {vr(acc + 2 * j)}, {vr(t)}",
                        f"v_add_f32 {vr(acc + 2 * j + 1)}, {vr(acc + 2 * j + 1)}, {vr(t + 1)}"]
        return out

    D = SACC
    epi = [f"""
    s_lshl_b32 {sr(sT0)}, {sr(sI)}, 2
    s_add_u32 {sr(sT0)}, {sr(sT0)}, {sr(sCT)}
    s_lshl_b32 {sr(sFO)}, {sr(sT0)}, 8
    s_add_u32 {sr(sFO)}, {sr(sFO)}, {FL_P * 128}
    s_lshl_b32 {sr(sCF)}, {sr(sKQ)}, 2
    s_add_u32 {sr(sCF)}, {sr(sCF)}, {sr(sFO)}
    s_mul_i32 {sr(sPX)}, {sr(sT0)}, {112 * 4096}
    s_lshl_b32 {sr(sT0)}, {sr(sW)}, 10
    s_add_u32 {sr(sPX)}, {sr(sPX)}, {sr(sT0)}
    s_add_u32 {sr(sPX)}, {sr(sPX)}, {WS_PX}
    s_mul_i32 {sr(sPI)}, {sr(sKQ)}, {7 * 4096}
    s_add_u32 {sr(sPI)}, {sr(sPI)}, {sr(sPX)}
    v_and_b32 {vr(vPA2)}, 7, v0
    v_lshlrev_b32 {vr(vPA2)}, 2, {vr(vPA2)}
    v_lshrrev_b32 {vr(vX0)}, 4, v0
    v_and_b32 {vr(vX1)}, 15, v0
    v_lshlrev_b32 {vr(vX)}, 12, {vr(vX0)}
    v_lshl_add_u32 {vr(vX)}, {vr(vX1)}, 3, {vr(vX)}
    s_lshl_b32 {sr(sOA)}, {sr(sRT64)}, 2
    s_add_u32 {sr(sOA)}, {sr(sOA)}, {sr(sW)}
    s_lshl_b32 {sr(sT0)}, {sr(sOA)}, 14
    s_lshl_b32 {sr(sT1)}, {sr(sCT64)}, 7
    s_add_u32 {sr(sT0)}, {sr(sT0)}, {sr(sT1)}
    """]
    for n in range(4):
        epi.append(f"buffer_load_dwordx2 {vr(XR + 2 * n, 2)}, {vr(vX)}, {sr(S_XA, 4)}, {sr(sT0)} offen offset:{n * 1024}")
    epi.append(f"""
    v_lshlrev_b32 {vr(vX)}, 3, {vr(vX1)}
    buffer_load_dwordx2 {vr(XR + 8, 2)}, {vr(vX)}, {sr(S_DSK, 4)}, {sr(sT1)} offen
    """)
    epi2 = [f"""
    v_lshlrev_b32 {vr(vOA)}, 14, {vr(vX0)}
    v_lshl_add_u32 {vr(vOA)}, {vr(vX1)}, 4, {vr(vOA)}
    s_lshl_b32 {sr(sOA)}, {sr(sOA)}, 16
    s_lshl_b32 {sr(sT1)}, {sr(sCT64)}, 8
    s_add_u32 {sr(sOA)}, {sr(sOA)}, {sr(sT1)}
    v_mul_u32_u24 {vr(vWr)}, {TSTR}, {vr(vX1)}
    v_lshl_add_u32 {vr(vWr)}, {vr(vX0)}, 4, {vr(vWr)}
    v_lshrrev_b32 {vr(vX0)}, 3, v0
    v_and_b32 {vr(vX1)}, 7, v0
    v_mul_u32_u24 {vr(vRd)}, {TSTR}, {vr(vX0)}
    v_lshl_add_u32 {vr(vRd)}, {vr(vX1)}, 4, {vr(vRd)}
    s_add_u32 {sr(sT0)}, TRBASE
    v_add_u32 {vr(vRd)}, {sr(sT0)}, {vr(vRd)}
    v_add_u32 {vr(vWr)}, {sr(sT0)}, {vr(vWr)}
    v_lshlrev_b32 {vr(vO)}, 12, {vr(vX0)}
    v_lshl_add_u32 {vr(vO)}, {vr(vX1)}, 4, {vr(vO)}
    s_lshr_b32 {sr(sT1)}, {sr(sW)}, 1
    s_lshl_b32 {sr(sT1)}, {sr(sT1)}, 2
    s_and_b32 {sr(sT0)}, {sr(sKQ)}, 3
    s_add_u32 {sr(sT1)}, {sr(sT1)}, {sr(sT0)}
    s_lshl_b32 {sr(sOB)}, {sr(sT1)}, 16
    s_lshl_b32 {sr(sT1)}, {sr(sCT)}, 1
    s_and_b32 {sr(sT0)}, {sr(sW)}, 1
    s_add_u32 {sr(sT1)}, {sr(sT1)}, {sr(sT0)}
    s_lshl_b32 {sr(sT1)}, {sr(sT1)}, 1
    s_lshr_b32 {sr(sT0)}, {sr(sKQ)}, 2
    s_add_u32 {sr(sT1)}, {sr(sT1)}, {sr(sT0)}
    s_lshl_b32 {sr(sT1)}, {sr(sT1)}, 7
    s_add_u32 {sr(sOB)}, {sr(sOB)}, {sr(sT1)}
    v_lshlrev_b32 {vr(D)}, 16, {vr(XR + 8)}
    v_and_b32 {vr(D + 1)}, 0xffff0000, {vr(XR + 8)}
    v_lshlrev_b32 {vr(D + 2)}, 16, {vr(XR + 9)}
    v_and_b32 {vr(D + 3)}, 0xffff0000, {vr(XR + 9)}
    """]
    for n in range(4):
        y, x = Y + 4 * n, XR + 2 * n
        epi2 += [f"v_lshlrev_b32 {vr(y)}, 16, {vr(x)}", f"v_and_b32 {vr(y + 1)}, 0xffff0000, {vr(x)}",
                 f"v_lshlrev_b32 {vr(y + 2)}, 16, {vr(x + 1)}", f"v_and_b32 {vr(y + 3)}, 0xffff0000, {vr(x + 1)}"]
        epi2 += [f"v_mul_f32 {vr(y + e)}, {vr(y + e)}, {vr(D + e)}" for e in range(4)]
        epi2 += [f"v_cvt_pk_bf16_f32 {vr(x)}, {vr(y)}, {vr(y + 1)}", f"v_cvt_pk_bf16_f32 {vr(x + 1)}, {vr(y + 2)}, {vr(y + 3)}",
                 f"v_lshlrev_b32 {vr(y)}, 16, {vr(x)}", f"v_and_b32 {vr(y + 1)}, 0xffff0000, {vr(x)}",
                 f"v_lshlrev_b32 {vr(y + 2)}, 16, {vr(x + 1)}", f"v_and_b32 {vr(y + 3)}, 0xffff0000, {vr(x + 1)}"]
    trbase = [None]
    assert bsig < bpoll < 7
    TL[bpoll + 1].fill.append((epi, 0, 32 * (7 - bpoll) - 2))
    TH[0].fill.append((pstore(0), 1, cfg.get("pl_hi", 50)))
    TH[1].fill.append((lambda a_: [x.replace("TRBASE", str(trbase[0])) for x in epi2], 0, 90))
    lsig, lpoll = cfg.get("lsig", 1), cfg.get("lpoll", 7)
    hsg, hpl = cfg.get("psig", 2), cfg.get("ppoll", 99)
    R = TH + T2
    onep = cfg.get("onep", True)
    if not onep:
        R[lsig].at_barrier.append("@need #pst0")
        R[lsig].after_barrier.append(psig(0))
        R[lpoll].fill.append(([sync.load(S_FLG, sr(sFO), vPA2, vPV2)], *cfg.get("lpollat", (-6, -2))))
        R[lpoll].at_barrier.append(sync.check("PL", S_FLG, sr(sFO), vPA2, vPV2))
        R[lpoll].after_barrier += pload(0) + [f"s_add_u32 {sr(sFO)}, {sr(sFO)}, 128"]
    else:
        TH[2].fill.append(([f"s_add_u32 {sr(sFO)}, {sr(sFO)}, 128"], 0, 2))
    T2[0].fill.append((pstore(1), -10, 15))
    if hsg < n2 - 1:
        T2[hsg].at_barrier.append("@need #pst1")
        T2[hsg].after_barrier.insert(0, psig(1))
    if hpl < n2 - 1:
        T2[hpl].fill.append(([sync.load(S_FLG, sr(sFO), vPA2, vPV2)], -6, -2))
        T2[hpl].at_barrier.append(sync.check("PH", S_FLG, sr(sFO), vPA2, vPV2))
        T2[hpl].after_barrier += (pload(0) if onep else []) + pload(1)
    paddl = cfg.get("paddl")
    if paddl:
        R[paddl[0]].fill.append((padd(0), paddl[1], paddl[2]))

    def tail_order(blocks):
        first = [(0, 0), (1, 0), (0, 1), (1, 1), (2, 0), (2, 1)]
        return first + [x for x in blocks if x not in first]

    P2 = Pipe(tst, dma_group, cfg, "tb", cfg.get("npro2", 8), fine(24) and (lambda n: fine(24)(n).replace("v95", "v255")),
              gated=("CX", "H"), order=tail_order, slots=[2, 3, 0, 1, 4, 5, 6, 7, 8, 9])
    q = [q for q in range(NBLK) if P2.free_at[q] < len(tst)][0]
    trbase[0] = f"{sr(sMB + q // 2)}, {(q % 2) * BLK}"
    P2.schedule()
    dm = ["\n".join(su + [ins]) for grp in P2.prolog_dma for su, ins in grp]

    tc = Prog()
    if cfg.get("touch3", True):
        touch_code(S_CODE, "KA_pc2", 237, tc)
    tcl = [x.text for x in tc.ins]
    acheck = sync.check("A", S_FLG, sr(sFO), vPA2, vPV2)
    npost = cfg.get("npost", 8)
    T = dict(d2=(d2a, [d2b]), d3=mid_fill + d3x, s1=[ctx_signal(0)] + tcl, sig7="@need #ctxst\n s_barrier\n" + ctx_signal(0),
             s2=dm[:4] + [sync.load(S_FLG, sr(sFO), vPA2, vPV2)] + dm[4:8], s2bar=acheck,
             s2post=dm[8:8 + npost], s3=dm[8 + npost:24] + tail1)
    ATT.gen_attention(p, cfg, tile_addr(0), st, pre=qpack(2) + qpack(3), hst=hst, rest=rest, hsig=hsig,
                      touch=touch2, T=T)

    p("s_barrier")
    p(f"s_load_dwordx2 {sr(S_OUT, 2)}, s[0:1], {KA['OUT']}\n s_load_dwordx2 {sr(S_DSK, 2)}, s[0:1], {KA['DSK']}")
    rem, ev = dm[24:], epv[:nexp]
    d0 = cfg.get("remstart", 40)
    for k, x in enumerate(ev):
        p(x)
        if rem and k >= d0 and (k - d0) % max(1, (len(ev) - d0) // len(dm[24:])) == 0:
            p(rem.pop(0))
    for x in rem:
        p(x)
    p(f"""
    s_waitcnt lgkmcnt(0)
    s_mov_b32 {sr(S_OUT + 2)}, {2048 * 4096}
    s_mov_b32 {sr(S_OUT + 3)}, {SRD3}
    s_mov_b32 {sr(S_DSK + 2)}, 1024
    s_mov_b32 {sr(S_DSK + 3)}, {SRD3}
    @need {P2.first_need}
    s_barrier
    """)
    st()
    for t in P2.prolog_reads:
        p(t)
    xb = {}
    if timing:
        for n in (8, 12):
            tq = Prog()
            stamp(tq, True, nstamp[0], sTS, 252, 254, S_WS, sStamp)
            nstamp[0] += 1
            xb[P2.start[n]] = "\n".join(x.text for x in tq.ins)
    P2.emit(p, xb)
    if timing:
        p(f"v_lshlrev_b32 v254, 2, v0\n buffer_store_dword v255, v254, {sr(S_WS, 4)}, {sr(sStamp)} offen offset:512")
    st()

    osc = " " + cfg.get("outflag", "sc1")
    if hsg >= n2 - 1:
        p("@need #pst1\n s_barrier\n" + psig(1))
    if hpl >= n2 - 1:
        p(sync.load(S_FLG, sr(sFO), vPA2, vPV2))

    def out_b(g):
        acc = HACC if g else LACC
        for k in range(2):
            p(f"ds_write_b128 {vr(vWr)}, {vr(acc + 4 * k, 4)} offset:{k * 64}")
        p(f"s_lshl_b32 {sr(sT0)}, {sr(sI)}, 19")
        if g:
            p(f"s_sub_u32 {sr(sT0)}, {15 << 19}, {sr(sT0)}")
        p(f"s_add_u32 {sr(sT0)}, {sr(sT0)}, {sr(sOB)}\n s_add_u32 {sr(sT1)}, {sr(sT0)}, {8 * 4096}")
        p("s_waitcnt lgkmcnt(0)")
        for k in range(2):
            p(f"ds_read_b128 {vr(acc + 48 + 4 * k, 4)}, {vr(vRd)} offset:{k * 8 * TSTR}")

    def store_b(g):
        acc = HACC if g else LACC
        for k in range(2):
            p(f"buffer_store_dwordx4 {vr(acc + 48 + 4 * k, 4)}, {vr(vO)}, {sr(S_OUT, 4)}, {sr(sT1 if k else sT0)} offen "
              f"offset:2048{osc}")

    def fin_l():
        if not paddl:
            for x in padd(0):
                p(x)
        out_b(0)

    late_l = onep and hpl >= n2 - 1
    if not late_l:
        fin_l()
    for r in range(4):
        for db in range(4):
            p(f"v_add_f32 {vr(Y + 4 * r + db)}, {vr(Y + 4 * r + db)}, {vr(SACC + 4 * db + r)}")
    if hpl >= n2 - 1:
        p(sync.check("PH", S_FLG, sr(sFO), vPA2, vPV2))
        p("s_barrier")
        for x in (pload(0) if onep else []) + pload(1):
            p(x)
    if not late_l:
        store_b(0)
    for r in range(4):
        p(f"buffer_store_dwordx4 {vr(Y + 4 * r, 4)}, {vr(vOA)}, {sr(S_OUT, 4)}, {sr(sOA)} offen{osc}")
        if r < 3:
            p(f"s_add_u32 {sr(sOA)}, {sr(sOA)}, 4096")
    if late_l:
        fin_l()
    pa = padd(1)
    for x in pa[:16]:
        p(x)
    if late_l:
        store_b(0)
    for x in pa[16:]:
        p(x)
    out_b(1)
    store_b(1)
    st()
    if timing and cfg.get("dbgout") is not None:
        p(f"""
        s_cmp_lg_u32 s2, {cfg["dbgout"]}
        s_cbranch_scc1 KA_end
        s_waitcnt vmcnt(0)
        s_barrier
        v_lshlrev_b32 v1, 4, v0
        v_mov_b32 v2, {63 * 8}
        buffer_load_dword v3, v1, {sr(S_WS, 4)}, {sr(sStamp)} offen offset:4 sc1
        buffer_load_dword v5, v1, {sr(S_WS, 4)}, {sr(sStamp)} offen offset:12 sc1
        buffer_load_dword v4, v2, {sr(S_WS, 4)}, {sr(sStamp)} offen sc1
        s_mov_b32 {sr(S_DBG + 2)}, 64
        v_lshlrev_b32 v1, 2, v0
        v_sub_u32 v3, v3, v4
        v_sub_u32 v5, v5, v4
        v_and_b32 v5, 0xffff, v5
        v_mul_u32_u24 v3, 100000, v3
        v_add_u32 v3, v3, v5
        buffer_store_dword v3, v1, {sr(S_DBG, 4)}, 0 offen offset:32
        """)
    p.label("KA_end")
    p("s_endpgm")
    p.label("KA_codeend")
    sync.emit(p)
    ATT.gen_attention_rare(p, cfg)
    p.finish(cfg.get("verbose_nop", False))
    if cfg.get("align8"):
        p.align8(True)
    return p


def build(cfg):
    hdr = [l for l in open("cdna_kernels/" + NAME + ".s.ref").read().split("\n")
           if l.startswith(";") and "@launch" not in l][:19]
    ka = gen(cfg)
    out = "\n".join(hdr) + "\n"
    if cfg.get("aslist"):
        out += f"; @launch kernel={NAME}_kernel grid=(256,1,1) block=(256,1,1) lds={NBLK * BLK}\n"
    else:
        out += f"; @launch grid=(256,1,1) block=(256,1,1) lds={NBLK * BLK}\n"
    out += '.amdgcn_target "amdgcn-amd-amdhsa--gfx950"\n'
    out += kernel_text(NAME + "_kernel", ka)
    out += '.section .rodata,"a"\n.p2align 6\n'
    out += descriptor_text(NAME + "_kernel", 512, 102, 256)
    print("instrs", len(ka.ins), "maxv", ka.maxreg("v"), "maxa", ka.maxreg("a"), "maxs", ka.maxreg("s"),
          "auto nops", sum(1 for x in ka.ins if x.auto and x.cls == "nop"), file=sys.stderr)
    return out


if __name__ == "__main__":
    cfg = json.loads(sys.argv[2]) if len(sys.argv) > 2 else {}
    open(sys.argv[1], "w").write(build(cfg))
```

```python
from gen_common import *
from regs import *
from pipesched import Sched, split_items, cost

BIG = 2.0 ** 100
LDSEND = 163840
vBASE = vMT + 7
vW2 = vK
vSC = [vMT + 3, vMT + 4]
LREG = [216, 220]
SEL = 240
LOOK = 8
M16 = "v_mfma_f32_16x16x32_bf16"

AA, BB = [(0, 0), (0, 1)], [(1, 0), (1, 1)]
A1, B1 = [(0, 1)], [(1, 1)]
LAG = [2]
late_blocks = []
sites = []


def fr0(f):
    return ar(FRING + 4 * (f % NFR), 4)


def oreg(g, db, qb):
    return OREG[g] + 8 * db + 4 * qb


def sm_ops(blocks, par, masks=None):
    ops = []
    el = [(g, qb, k) for g, qb in blocks for k in range(8)]

    def t(n):
        return vr(vET + (n & 7))

    def post(n):
        g, qb, k = el[n]
        if k & 1:
            ops.append(f"v_cvt_pk_bf16_f32 {vr(PREG[g][par] + 4 * qb + k // 2)}, {t(n - 1)}, {t(n)}")

    for n, (g, qb, k) in enumerate(el):
        r = SREG[g][par] + 8 * qb + k
        if masks and (g, qb) in masks:
            ops += mask_ops(r, k, *masks[(g, qb)])
        ops.append(f"v_exp_f32 {t(n)}, {vr(r)}")
        if n >= LAG[0]:
            post(n - LAG[0])
    for n in range(len(el) - LAG[0], len(el)):
        post(n)
    return ops


def mask_ops(r, k, thr, key0):
    c = key0 + 16 * (k >> 2) + (k & 3)
    if c == 0:
        return [f"v_min_f32 {vr(r)}, {vr(r)}, {vr(thr)}"]
    return [f"v_add_f32 {vr(vMT)}, {f32hex(-c * BIG)}, {vr(thr)}", f"v_min_f32 {vr(r)}, {vr(r)}, {vr(vMT)}"]


def sum_mfmas(blocks, par, init=False):
    out = []
    for g, qb in blocks:
        c = vr(LREG[par], 4) if out else ("0" if init else vr(LREG[par ^ 1], 4))
        out.append(f"{M16} {vr(LREG[par], 4)}, {ar(SEL + 4 * (2 * g + qb), 4)}, {vr(PREG[g][par] + 4 * qb, 4)}, {c}")
    return out


def check_ops(blocks, par):
    L = [vr(LREG[par] + 2 * g + qb) for g, qb in blocks]
    t, o = vr(vMT + 1), []
    if len(L) >= 3:
        o.append(f"v_max3_f32 {t}, {L[0]}, {L[1]}, {L[2]}")
        L = [t] + L[3:]
    if len(L) == 2:
        o.append(f"v_max_f32 {t}, {L[0]}, {L[1]}")
        L = [t]
    return o + [f"v_cmp_nge_f32 vcc, {sr(sTHR)}, {L[0]}"]


def dma_ops():
    def ld(j):
        return (f"buffer_load_dwordx4 {vr(vW if j < 4 else vW2)}, {sr(S_KVR, 4)}, {sr(sKVOFF)} offen "
                f"offset:{(j % 4) * 1024} sc1 lds")
    return dict(pre=[f"s_add_u32 {sr(sKVOFF)}, {sr(sKVOFF)}, 32768",
                     f"s_add_u32 m0, m0, {32768 - 4096}",
                     f"s_cmp_eq_u32 m0, {sr(sM0)}\n s_cselect_b32 m0, {sr(sW8K)}, m0"],
                a=[ld(j) for j in range(4)], mid=["s_add_u32 m0, m0, 4096"], b=[ld(j) for j in range(4, 8)])


def slot_adv():
    return [f"s_add_u32 {sr(sSLOT)}, {sr(sSLOT)}, 32768",
            f"s_cmp_eq_u32 {sr(sSLOT)}, {LDSEND}\n s_cselect_b32 {sr(sSLOT)}, 0, {sr(sSLOT)}"]


def qk_mfma(g, par, ks, kb, qb, frag, zero=False):
    d = SREG[g][par] + 8 * qb + 4 * kb
    c = ("0" if zero else vr(NEGM[g] + 4 * qb, 4)) if ks == 0 else vr(d, 4)
    return f"{M16} {vr(d, 4)}, {frag}, {vr(QREG[g] + 4 * (2 * ks + qb), 4)}, {c}"


def body(p, cfg, name, its, last=False, loop=None, extra=(), dma=None, vmwait=12, post_bar=None, lookv=False,
         prebar=None, two=False, postw=999):
    if last:
        fr = lambda f: ar(FRING + 4 * ((f & 7) + 8 * (f >> 4)), 4)
    else:
        fr = fr0
    TAIL = cfg.get("sumtail", 7)
    mf, frag = [], []
    bounds = []
    for it, d in enumerate(its):
        b0 = len(mf)
        for s in range(8):
            for g, qb in d["qk"]:
                mf.append(qk_mfma(g, it, s >> 1, s & 1, qb, fr(16 * it + s)))
                frag.append(16 * it + s)
        for db in range(8):
            for g, qb in d["pv"]:
                o = ar(oreg(g, db, qb), 4)
                mf.append(f"{M16} {o}, {fr(16 * it + 8 + db)}, {vr(PREG[g][it] + 4 * qb, 4)}, {o}")
                frag.append(16 * it + 8 + db)
        sm = sum_mfmas(d["sm"], it ^ 1)
        spos = len(mf) - cfg.get("tails", {}).get(f"{name}{it}", cfg.get("sumtail2", 11) if len(mf) - b0 >= 48 else
                                                  TAIL if len(mf) - b0 >= 24 else 3)
        mf[spos:spos] = sm
        frag[spos:spos] = [None] * len(sm)
        bounds.append((b0, spos, spos + len(sm), len(mf)))
    n = len(mf)
    fuse = {}
    for s, f in enumerate(frag):
        if f is not None:
            fuse[f] = (fuse.get(f, (s,))[0], s)
    sc = Sched(mf, 8, cfg.get("attvm", 8))
    GR, LAT = cfg.get("attgr", 2), cfg.get("attlat", 6)

    def rd(f, off=None):
        return f"ds_read_b128 {fr(f)}, {vr(vRD)} offset:{(f % 32 if off is None else off) * 1024}"

    R = cfg.get("attR", 3)
    ch = []
    barslot = None
    if last:
        ch += [(rd(24 + k), k - R, k - R + 2) for k in range(R, 8)]
    else:
        for it in range(2):
            b0, s0, s1, b1 = bounds[it]
            hi = s0 - 1
            for k in range(16):
                f = 16 * it + 8 + R + k
                if k < 8:
                    rel = b0 + (k * (hi - b0)) // 8
                    dl = min(rel + (hi - b0) // 8 + 1, hi - 1)
                else:
                    rel, dl = hi, b1 - 2
                if f in fuse:
                    dl = min(dl, fuse[f - f % GR][0] - 1 - LAT)
                    rel = min(rel, dl)
                if f - NFR in fuse:
                    rel = max(rel, fuse[f - NFR][1])
                rel = max(rel, 0)
                assert f not in fuse or max(rel, dl) < fuse[f - f % GR][0] - 2, (name, f)
                if f == 32:
                    barslot = rel
                    ch.append((f"v_add_u32 {vr(vRD)}, {sr(sSLOT)}, {vr(vL16)}", barslot - 3, barslot - 1))
                    ch.append(((prebar or "") + f"\n s_waitcnt vmcnt({vmwait})\n s_barrier", barslot, barslot))
                    rel += 1
                off = None
                if f >= 32 and lookv:
                    off = f - 32 + 8 if f < 40 else f - 40 + 24
                ch.append((rd(f, off), rel, max(rel, dl)))
    sc.chain(ch)
    before = {}
    for f in sorted(fuse):
        if f % GR == 0:
            s0 = fuse[f][0]
            need = "@need " + " ".join(fr(f + k) for k in range(GR))
            if s0 == 0:
                continue
            q = s0 - 2 if any(s0 == b[3] for b in bounds) else s0 - 1
            sc.front[q].append(need)
    if not last:
        sc.front[n - 2].append("@need " + " ".join(fr0(k) for k in range(GR)))
        if dma is None:
            dm = dma_ops()
            e = cfg.get("dmaearly", 0)
            ch = []
            if two:
                x2 = dm["pre"] + dm["a"] + dm["mid"] + dm["b"]
                w = (bounds[0][1] - 10 - e) / len(x2)
                ch = [(x, int(k * w), int(k * w) + 3) for k, x in enumerate(x2)]
            ch += [(x, 0, bounds[0][1] - 4 - e) for x in dm["pre"]]
            ch += [(x, bounds[0][1] - 1 - e + 2 * k, bounds[0][3] - 2) for k, x in enumerate(dm["a"])]
            ch += [(x, bounds[0][3], barslot - 4) for x in dm["mid"] + split_items(slot_adv())]
            ch += [(x, max(barslot + 1, bounds[1][1] - 1 - e) + 2 * k, bounds[1][3] - 2) for k, x in enumerate(dm["b"])]
            sc.chain(ch)
        else:
            sc.spread(slot_adv() + dma, 0, barslot, early=3, late=5)
        if post_bar:
            sc.spread(post_bar, barslot + 1, min(n, barslot + 1 + postw), early=2, late=4)
    for it, d in enumerate(its):
        b0, s0, s1, b1 = bounds[it]
        par = it ^ 1
        ops = sm_ops(d["sm"], par, d["mask"]) if d["sm"] else []
        if ops:
            sc.spread(ops, max(b0 - 1, 0), s1 - 2 + cfg.get("smext", 0), early=cfg.get("smearly", 2), late=cfg.get("smlate", 2))
            ck = check_ops(d["sm"], par)
            sc.chain([(x, max(b1 - 4, s1), max(b1 - 3, s1)) for x in ck])
            lab = f"FIX_{name}_{it}"
            sc.fix(b1 - 1, f"s_cbranch_vccnz {lab}\n {lab}_ret:", c=0, front=True)
            sc.nomem.add(b1 - 1)
            sites.append((lab, par, d["sm"]))
        for xi, items in extra:
            if xi == it:
                sc.spread(items, b0, b1)
    if loop:
        sc.fix(n - 1, f"s_sub_u32 {sr(sCNT)}, {sr(sCNT)}, 1\n s_cbranch_scc0 {loop}")
    sc.run()
    if cfg.get("verbose"):
        print(f"  body {name}: {n} mfma, over {sum(sc.over)}")
    for b0, s0, s1, b1 in bounds:
        for q in range(s0, s1):
            src = Ins(mf[q]).srcab
            for z in range(q, b1 - 1):
                for x in sc.out[z]:
                    for y in x.split("\n"):
                        if y.strip().startswith("v_"):
                            assert not (Ins(y).writes & src), (name, y)
    sc.emit(p, before)


def body_t(p, cfg, name, tmpl, loop=None, lead=False):
    R = cfg.get("attR", 3)
    g = 1
    mf, frag = [], []
    S0, S1 = tmpl["sum"]
    for it in range(2):
        m, fg = [], []
        for s in range(8):
            for qb in range(2):
                m.append(qk_mfma(g, it, s >> 1, s & 1, qb, fr0(16 * it + s)))
                fg.append(16 * it + s)
        for db in range(8):
            for qb in range(2):
                o = ar(oreg(g, db, qb), 4)
                m.append(f"{M16} {o}, {fr0(16 * it + 8 + db)}, {vr(PREG[g][it] + 4 * qb, 4)}, {o}")
                fg.append(16 * it + 8 + db)
        for pos, x in zip((S0, S1), sum_mfmas(BB, it ^ 1)):
            m.insert(pos, x)
            fg.insert(pos, None)
        mf += m
        frag += fg
    sm = [sm_ops(BB, 1), sm_ops(BB, 0)]
    E = [x for q in sm for x in q if x.startswith("v_exp")]
    if lead:
        E = E[1:] + E[:1]
    C = [x for q in sm for x in q if x.startswith("v_cvt")]
    D = [f"ds_read_b128 {fr0(f)}, {vr(vRD)} offset:{(f % 32) * 1024}" for f in range(8 + R, 40 + R)]
    dm = dma_ops()
    G = dm["a"] + dm["b"]
    SS = [y.strip() for x in dm["pre"] + slot_adv() + dm["mid"] for y in x.split("\n")]
    if loop:
        SS.append(f"s_sub_u32 {sr(sCNT)}, {sr(sCNT)}, 1")
    K = [check_ops(BB, 1), check_ops(BB, 0)]
    gaps = tmpl["gaps"].split()
    assert len(gaps) == len(mf), len(gaps)
    nx = nd = 0
    for s, (m, gp) in enumerate(zip(mf, gaps)):
        p(m)
        for ch in gp:
            if ch == "w":
                nxt = [z for z in range(s + 1, s + 1 + len(gaps)) if "w" in gaps[z % len(gaps)]][0]
                need = sorted({frag[z % len(gaps)] for z in range(s + 1, nxt + 1)} - {None})
                p("@need " + " ".join(fr0(f) for f in need))
            elif ch == "e":
                p(E.pop(0))
            elif ch == "c":
                p(C.pop(0))
            elif ch == "d":
                p(D.pop(0))
                nd += 1
            elif ch == "g":
                p(G.pop(0))
            elif ch == "s":
                if SS:
                    p(SS.pop(0))
            elif ch == "k":
                p(K[0].pop(0))
                if not K[0]:
                    K.pop(0)
            elif ch == "x":
                lab = f"FIX_{name}_{nx}"
                p(f"s_cbranch_vccnz {lab}\n {lab}_ret:")
                sites.append((lab, nx ^ 1, BB))
                nx += 1
            elif ch == "r":
                assert nd == 24 - R
                p(f"v_add_u32 {vr(vRD)}, {sr(sSLOT)}, {vr(vL16)}")
            elif ch == "B":
                assert nd == 24 - R and len(G) == 4
                p("s_waitcnt vmcnt(12)\n s_barrier")
            else:
                assert ch == "-"
    assert not (E or C or D or G or SS or K), (E, C, D, G, SS, K)
    if loop:
        p(f"s_cbranch_scc0 {loop}")


def rowmax(regs, t0, t1):
    regs = list(regs)
    out = [f"v_max3_f32 {vr(t0)}, {vr(regs[0])}, {vr(regs[1])}, {vr(regs[2])}"]
    k = 3
    while k + 1 < len(regs):
        out.append(f"v_max3_f32 {vr(t0)}, {vr(t0)}, {vr(regs[k])}, {vr(regs[k + 1])}")
        k += 2
    out.append(f"v_max_f32 {vr(t0)}, {vr(t0)}, {vr(regs[k])}")
    for sw in ("16", "32"):
        out += [f"v_mov_b32 {vr(t1)}, {vr(t0)}", f"v_permlane{sw}_swap_b32 {vr(t0)}, {vr(t1)}",
                f"v_max_f32 {vr(t0)}, {vr(t0)}, {vr(t1)}"]
    return out


def interleave(a, b):
    out = []
    for k in range(max(len(a), len(b))):
        out += a[k:k + 1] + b[k:k + 1]
    return out


def selectors():
    o = [f"v_and_b32 {vr(vX0)}, 3, v0", f"s_mov_b32 {sr(sT3)}, 0x3f803f80"]
    for j in range(4):
        o += [f"v_xor_b32 {vr(vX1)}, {j}, {vr(vX0)}", f"v_min_u32 {vr(vX1)}, 1, {vr(vX1)}",
              f"v_xor_b32 {vr(vX1)}, 1, {vr(vX1)}", f"v_mul_lo_u32 {vr(vX1)}, {sr(sT3)}, {vr(vX1)}"]
        o += [f"v_accvgpr_write_b32 {ar(SEL + 4 * j + k)}, {vr(vX1)}" for k in range(4)]
    return o


def gen_attention(p, cfg, slot0, st, pre, rest, touch, T):
    sites.clear()
    late_blocks.clear()
    LAG[0] = cfg.get("smlag", 2)
    DEEP = cfg.get("deep", 1)
    BIAS = cfg.get("bias", 0.0)
    THR = cfg.get("thr", 40.0)
    slot4 = (slot0 + 4 * 32768) % LDSEND
    slot1 = (slot0 + 32768) % LDSEND
    p(f"v_add_u32 {vr(vRD)}, {slot0}, {vr(vL16)}")
    for f in range(8):
        p(f"ds_read_b128 {fr0(f)}, {vr(vRD)} offset:{f * 1024}")
    npre = cfg.get("qpre", 16)
    for x in pre[:npre]:
        p(x)
    setup = f"""
    v_and_b32 {vr(vX0)}, 15, v0
    v_lshrrev_b32 {vr(vX1)}, 4, v0
    v_lshlrev_b32 {vr(vX1)}, 2, {vr(vX1)}
    v_sub_u32 {vr(vX0)}, {vr(vX0)}, {vr(vX1)}
    s_sub_u32 {sr(sT0)}, 7, {sr(sW)}
    v_lshl_add_u32 {vr(vX1)}, {sr(sT0)}, 4, {vr(vX0)}
    v_lshl_add_u32 {vr(vX0)}, {sr(sW)}, 4, {vr(vX0)}
    v_cvt_f32_i32 {vr(vX0)}, {vr(vX0)}
    v_cvt_f32_i32 {vr(vX1)}, {vr(vX1)}
    v_add_f32 {vr(vX0)}, 0.5, {vr(vX0)}
    v_add_f32 {vr(vX1)}, 0.5, {vr(vX1)}
    v_mul_f32 {vr(vTHR[0])}, {f32hex(BIG)}, {vr(vX0)}
    v_mul_f32 {vr(vTHR[1])}, {f32hex(BIG)}, {vr(vX1)}
    s_cmp_eq_u32 {sr(sI)}, 7
    s_cselect_b32 {sr(sT0)}, 0, {f32hex(256 * BIG)}
    v_add_f32 {vr(vBASE)}, {sr(sT0)}, {vr(vTHR[0])}
    """
    ZQ = 248
    setup2 = [f"v_mov_b32 {vr(ZQ + k)}, 0" for k in range(4)]
    setup2 += [f"s_add_u32 {sr(sM0)}, {sr(sW8K)}, {LDSEND}", f"s_mov_b32 {sr(sSLOT)}, {slot1}",
               f"v_add_u32 {vr(vW2)}, 4096, {vr(vW)}",
               f"s_mov_b32 {sr(sKVOFF)}, {(2 + DEEP) * 32768}", f"s_mov_b32 {sr(sTHR)}, {f32hex(2.0 ** (THR - BIAS))}"]

    mf = []
    for g in range(2):
        for par in range(2):
            for s in range(8):
                for qb in range(2):
                    mf.append(qk_mfma(g, par, s >> 1, s & 1, qb, fr0(8 * par + s), zero=True))
    for k in range(8):
        mf.append(f"v_mfma_f32_32x32x16_bf16 {ar(16 * k, 16)}, {vr(ZQ, 4)}, {vr(ZQ, 4)}, 0")
    sc = Sched(mf, 8, cfg.get("attvm", 8))
    for k in range(64, 72):
        sc.cap[k] = 24

    def first(g):
        S0, S1 = SREG[g]
        mx = [rowmax([S0 + 8 * qb + k for k in range(8)] + [S1 + 8 * qb + k for k in range(8)],
                     vMT + 1 + 2 * qb, vMT + 2 + 2 * qb) for qb in range(2)]
        o = interleave(mx[0], mx[1])
        for qb in range(2):
            o.append(f"v_sub_f32 {vr(NEGM[g] + 4 * qb)}, {f32hex(-BIAS) if BIAS else '0'}, {vr(vMT + 1 + 2 * qb)}")
        o += [f"v_add_f32 {vr(S0 + k)}, {vr(S0 + k)}, {vr(NEGM[g] + 4 * (k >> 3))}" for k in range(16)]
        o += sm_ops([(g, 0), (g, 1)], 0)
        o2 = [f"v_add_f32 {vr(S1 + k)}, {vr(S1 + k)}, {vr(NEGM[g] + 4 * (k >> 3))}" for k in range(16)]
        o2 += [f"v_mov_b32 {vr(NEGM[g] + 4 * qb + k)}, {vr(NEGM[g] + 4 * qb)}" for qb in range(2) for k in range(1, 4)]
        return o, o2

    sc.chain([(f"ds_read_b128 {fr0(8 + f)}, {vr(vRD)} offset:{(16 + f) * 1024}", 0, 1 + f) for f in range(8)])
    sc.chain([(x, 0, 10) for x in pre[npre:]])
    sc.spread([setup] + setup2, 12, 34)
    mk = []
    for par in range(2):
        for k in range(8):
            mk += mask_ops(SREG[0][par] + k, k, vTHR[0], 32 * par)
    sc.fix(35, f"s_cmp_lg_u32 {sr(sI)}, 0\n s_cbranch_scc1 ATT_NOMASK0\n" + "\n".join(mk) + "\n ATT_NOMASK0:", c=8)
    a1, a2 = first(0)
    b1, b2 = first(1)
    sc.spread(a1 + a2, 36, 67)
    nb = cfg.get("prob", 30)
    sc.spread(b1[:nb], 67, 72, early=0)
    sc.spread(rest + [f"s_add_u32 m0, {sr(sW8K)}, {(slot0 + (2 + DEEP) * 32768) % LDSEND + 4096}"], *cfg.get("restwin", (4, 62)))
    bs = 52
    sc.chain([("@need #tile1\n s_barrier", bs, bs), (f"v_add_u32 {vr(vRD)}, {sr(sSLOT)}, {vr(vL16)}", bs, bs + 1)] +
             [(f"ds_read_b128 {fr0(k)}, {vr(vRD)} offset:{k * 1024}", bs + 2 + k, min(bs + 4 + 2 * k, 71))
              for k in range(8 + cfg.get("attR", 3))])
    sc.run()
    if cfg.get("verbose"):
        print(f"  prologue over {sum(sc.over)}")
    sc.emit(p)
    for x in b1[nb:] + sum_mfmas(AA + BB, 0, init=True) + b2:
        p(x)
    p("@need " + " ".join(fr0(k) for k in range(cfg.get("attgr", 2))))
    st()

    AB = AA + BB
    VW = 12 if DEEP else 4

    def fs(k):
        if cfg.get("timing") and not cfg.get("light"):
            p(f"s_memtime {sr(sTS, 2)}\n s_waitcnt lgkmcnt(0)\n v_writelane_b32 v255, {sr(sTS)}, {48 + k}")

    fs(0)
    fs(1)

    def it(qk, sm, pv, mask=None):
        return dict(qk=qk, sm=sm, pv=pv, mask=mask)

    def mk(g, mu, thr=None):
        qb = mu >> 1
        return {(g, qb): (vTHR[qb] if thr is None else thr, 32 * mu)}

    def head(lab):
        p(f".p2align {cfg.get('loopalign', 6)}")
        for _ in range(cfg.get("looppad", 0)):
            p("s_nop 0")
        p.label(lab)

    p(f"""
    s_cmp_eq_u32 {sr(sI)}, 0
    s_cbranch_scc1 ATT_D2
    s_lshl_b32 {sr(sCNT)}, {sr(sI)}, 1
    s_sub_u32 {sr(sCNT)}, {sr(sCNT)}, 2
    """)
    head("ATT_DL")
    body(p, cfg, "DL", [it(AB, AB, AB), it(AB, AB, AB)], loop="ATT_DL", vmwait=VW)
    fs(1)
    body(p, cfg, "D1", [it(AB, AB, AB), it(AB, AB, AB, mk(0, 0))], vmwait=VW, post_bar=touch, postw=cfg.get("postw", 24))
    p.label("ATT_D2")
    body(p, cfg, "D2", [it(A1 + BB, AB, AB, mk(0, 1)), it(A1 + BB, A1 + BB, AB, mk(0, 2))], vmwait=VW,
         extra=[(0, T["d2"][0]), (1, T["d2"][1] + ctx_addr())])
    fs(2)
    body(p, cfg, "D3", [it(BB, A1 + BB, A1 + BB, mk(0, 3)), it(BB, BB, A1 + BB, mk(1, 0, vBASE))],
         extra=[(1, T["d3a"])], post_bar=T["d3post"], prebar="@need #hst", two=not DEEP)
    fs(3)
    for x in ctx_epilogue(cfg, 0):
        p(x)
    st()
    fs(4)
    fs(5)
    p(f"""
    s_cmp_eq_u32 {sr(sI)}, 7
    s_cbranch_scc1 ATT_I7
    s_lshl_b32 {sr(sCNT)}, {sr(sI)}, 2
    s_sub_u32 {sr(sCNT)}, 26, {sr(sCNT)}
    s_waitcnt lgkmcnt(0)
    """)
    head("ATT_SL")
    if "sltmpl" in cfg:
        body_t(p, cfg, "SL", cfg["sltmpl"], loop="ATT_SL")
    else:
        body(p, cfg, "SL", [it(BB, BB, BB), it(BB, BB, BB)], loop="ATT_SL")
    fs(5)
    body(p, cfg, "S1", [it(BB, BB, BB), it(BB, BB, BB, mk(1, 0))], dma=T["s1"], vmwait=16)
    p.label("ATT_S2")
    fs(6)
    nvm = sum(1 for x in split_items(T["s2"]) if x.startswith("buffer_"))
    body(p, cfg, "S2", [it(B1, BB, BB, mk(1, 1)), it(B1, B1, BB, mk(1, 2))], dma=T["s2"], vmwait=nvm,
         post_bar=T["s2post"], lookv=True, prebar=T["s2bar"])
    fs(7)
    body(p, cfg, "S3", [it([], B1, B1, mk(1, 3)), it([], [], B1)], last=True, extra=[(1, T["s3"])])
    fs(8)
    st()
    late_blocks.append("ATT_I7:\n" + T["sig7"] + "\n s_branch ATT_S2")


def ctx_addr():
    return [f"""
    s_lshr_b32 {sr(sT1)}, {sr(sH)}, 2
    s_sub_u32 {sr(sT0)}, {sr(sW)}, {sr(sT1)}
    s_add_u32 {sr(sT1)}, {sr(sW)}, {sr(sT1)}
    s_sub_u32 {sr(sT1)}, 3, {sr(sT1)}
    s_and_b32 {sr(sT0)}, {sr(sT0)}, 3
    s_and_b32 {sr(sT1)}, {sr(sT1)}, 3
    s_add_u32 {sr(sT1)}, {sr(sT1)}, 4
    s_lshl_b32 {sr(sST)}, {sr(sH)}, 5
    s_add_u32 {sr(sST)}, {sr(sST)}, {WS_CTX >> 10}
    s_add_u32 {sr(sT0)}, {sr(sT0)}, {sr(sST)}
    s_add_u32 {sr(sT1)}, {sr(sT1)}, {sr(sST)}
    v_lshl_add_u32 {vr(vCST)}, {sr(sT0)}, 10, {vr(vL16)}
    v_lshl_add_u32 {vr(vCST2)}, {sr(sT1)}, 10, {vr(vL16)}
    s_lshl_b32 {sr(sST)}, {sr(sI)}, 20
    """]


def ctx_epilogue(cfg, g, packed=None):
    VSC = cfg.get("vscale", 0)
    o = []
    if g == 1:
        o += [f"s_lshl_b32 {sr(sST)}, {sr(sI)}, 20", f"s_sub_u32 {sr(sST)}, {15 << 20}, {sr(sST)}"]
    T = 32 if g == 0 else 96
    L = LREG[g] + 2 * g
    for qb in range(2):
        o.append(f"v_ldexp_f32 {vr(vMT + qb)}, {vr(L + qb)}, {VSC}")
    for qb in range(2):
        o.append(f"v_rcp_f32 {vr(vMT + qb)}, {vr(vMT + qb)}")
    for n in range(8):
        c, qb = n >> 1, n & 1
        t = T + 12 * (n & 1) if packed is None else T + 8 * (n & 1)
        q = t + 8 if packed is None else packed + 4 * n
        o += [f"v_accvgpr_read_b32 {vr(t + k)}, {ar(oreg(g, 2 * c + (k >> 2), qb) + (k & 3))}" for k in range(8)]
        o += [f"v_mul_f32 {vr(t + k)}, {vr(t + k)}, {vr(vMT + qb)}" for k in range(8)]
        o += [f"v_cvt_pk_bf16_f32 {vr(q + k)}, {vr(t + 2 * k)}, {vr(t + 2 * k + 1)}" for k in range(4)]
        o.append(f"buffer_store_dwordx4 {vr(q, 4)}, {vr(vCST2 if qb else vCST)}, {sr(S_WS, 4)}, {sr(sST)} offen sc1 @@ctxst")
        if qb == 1 and c < 3:
            o.append(f"s_add_u32 {sr(sST)}, {sr(sST)}, 8192")
    return o


def gen_attention_rare(p, cfg):
    BIAS = cfg.get("bias", 0.0)
    for x in late_blocks:
        p(x)
    for lab, par, blocks in sites:
        p.label(lab)
        p("s_waitcnt vmcnt(0) lgkmcnt(0)")
        for g, qb in blocks:
            p(f"s_call_b64 {sr(sRET, 2)}, FIXS_{g}_{qb}_{par}")
            p(f"s_call_b64 {sr(sRET, 2)}, FIXO_{g}_{qb}")
        for x in sum_mfmas(blocks, par):
            p(x)
        p("s_nop 7")
        p(f"s_branch {lab}_ret")
    for g, qb in AA + BB:
        for par in range(2):
            p.label(f"FIXS_{g}_{qb}_{par}")
            S, S2 = SREG[g][par] + 8 * qb, SREG[g][par ^ 1] + 8 * qb
            d = vMT + 1
            for x in rowmax(range(S, S + 8), d, vMT + 2):
                p(x)
            if BIAS:
                p(f"v_add_f32 {vr(d)}, {f32hex(BIAS)}, {vr(d)}")
            p(f"v_max_f32 {vr(d)}, 0, {vr(d)}")
            p(f"v_ceil_f32 {vr(d)}, {vr(d)}")
            p(f"v_cvt_i32_f32 {vr(vSC[0])}, -{vr(d)}")
            for base, cnt in ((NEGM[g] + 4 * qb, 4), (S, 8), (S2, 8)):
                for k in range(cnt):
                    p(f"v_sub_f32 {vr(base + k)}, {vr(base + k)}, {vr(d)}")
            l = LREG[par ^ 1] + 2 * g + qb
            p(f"v_ldexp_f32 {vr(l)}, {vr(l)}, {vr(vSC[0])}")
            for x in sm_ops([(g, qb)], par):
                p(x)
            p(f"s_setpc_b64 {sr(sRET, 2)}")
        p.label(f"FIXO_{g}_{qb}")
        for db in range(8):
            o = oreg(g, db, qb)
            for k in range(4):
                p(f"v_accvgpr_read_b32 {vr(vET + k)}, {ar(o + k)}")
            for k in range(4):
                p(f"v_ldexp_f32 {vr(vET + k)}, {vr(vET + k)}, {vr(vSC[0])}")
            for k in range(4):
                p(f"v_accvgpr_write_b32 {ar(o + k)}, {vr(vET + k)}")
        p(f"s_setpc_b64 {sr(sRET, 2)}")
```

```python
from asmlib import *

BLK = 16384
NBLK = 10


def ldsaddr(vbase, addr, win=65536):
    return vr(vbase + addr // win), addr % win


def lines(text):
    return [x.strip() for x in text.split("\n") if x.strip()]


def cost(text, vmcost=4):
    c = 0
    for x in lines(text):
        if x.startswith("@") or x.endswith(":"):
            continue
        op = x.split()[0]
        if op.startswith(TRANS):
            c += 8
        elif op.startswith("buffer_") or op.startswith("global_"):
            c += vmcost
        else:
            c += 4
    return c


def split_items(items):
    out = []
    for it in items:
        for x in lines(it):
            op = x.split()[0]
            if out and (op.startswith("s_cselect") or op.startswith("s_addc") or op.startswith("s_cbranch")
                        or x.endswith(":") or out[-1].split("\n")[-1].startswith("@need")):
                out[-1] += "\n" + x
            else:
                out.append(x)
    return out


class Sched:
    def __init__(self, backbone, cap, vmcost=4):
        self.bb = list(backbone)
        self.n = len(self.bb)
        self.cap = [cap] * self.n
        self.fixed = [[] for _ in self.bb]
        self.front = [[] for _ in self.bb]
        self.chains = []
        self.vmcost = vmcost
        self.place = {}
        self.cap0 = cap
        self.nomem = set()
        self.excl = True
        self.m0gap = 2

    def fix(self, slot, text, c=None, front=False):
        (self.front if front else self.fixed)[slot].append(text)
        self.cap[slot] -= cost(text, self.vmcost) if c is None else c

    def chain(self, items):
        if items:
            it = [list(x) for x in items]
            for k in range(len(it) - 2, -1, -1):
                it[k][2] = min(it[k][2], it[k + 1][2])
            self.chains.append(it)

    def spread(self, items, lo, hi, early=2, late=3):
        items = split_items(items)
        tot = sum(cost(x, self.vmcost) for x in items)
        acc = 0
        ch = []
        for x in items:
            t = lo + (acc * (hi - lo)) // max(tot, 1)
            acc += cost(x, self.vmcost)
            ch.append((x, max(lo, t - early), min(hi - 1, t + late)))
        self.chain(ch)

    def run(self):
        pos = [0] * len(self.chains)
        hold = [0] * len(self.chains)
        self.out = [[] for _ in self.bb]
        self.over = [0] * self.n

        def isvm(t):
            return lines(t)[-1].startswith(("buffer_", "global_"))

        def ismem(t):
            return t.startswith("ds_") or isvm(t)

        def hasvalu(t):
            return any(x.startswith("v_") for x in lines(t))

        for s in range(self.n):
            room = self.cap[s]
            free = not self.front[s]
            empty = not self.front[s] and not self.fixed[s] and self.cap[s] >= self.cap0
            closed = False
            valu, seen = set(), set()
            first, head, rest = [], [], []
            while True:
                best = None
                for ci, ch in enumerate(self.chains):
                    if pos[ci] >= len(ch):
                        continue
                    it = ch[pos[ci]]
                    due = it[2] <= s
                    if not due and (it[1] > s or hold[ci] > s or closed):
                        continue
                    c = cost(it[0], self.vmcost)
                    lead = free and it[0].startswith("s_") and ci not in seen and not it[0].startswith("s_barrier")
                    if lead:
                        c -= 4
                    if ismem(it[0]) and (ci in valu or s in self.nomem):
                        if not due:
                            continue
                        c += 8
                    if self.excl and isvm(it[0]) and not empty:
                        if not due:
                            continue
                        c += 4
                    if c > room and not due:
                        continue
                    key = (it[2], 0 if isvm(it[0]) else 1)
                    if best is None or key < best[0]:
                        best = (key, ci, c, lead)
                if best is None:
                    break
                _, ci, c, lead = best
                it = self.chains[ci][pos[ci]]
                if hasvalu(it[0]):
                    valu.add(ci)
                (first if lead else rest if ci in valu else head).append(it[0])
                seen.add(ci)
                if lead:
                    free = False
                if self.excl and isvm(it[0]):
                    closed = True
                    free = False
                empty = False
                assert s >= (it[4] if len(it) > 4 else it[1]), ("placed before release", it, s)
                if len(it) > 3 and it[3] is not None:
                    self.place[it[3]] = s
                room -= c
                pos[ci] += 1
                if " m0," in it[0] and pos[ci] < len(self.chains[ci]) and isvm(self.chains[ci][pos[ci]][0]):
                    hold[ci] = s + self.m0gap
            self.out[s] = first + head + rest
            self.over[s] = max(0, -room)
        for ci, ch in enumerate(self.chains):
            assert pos[ci] == len(ch), ("unplaced", ch[pos[ci]])

    def emit(self, p, before=None):
        for s in range(self.n):
            if before and s in before:
                p(before[s])
            p(self.bb[s])
            for x in self.front[s] + self.out[s] + self.fixed[s]:
                p(x)


class Stage:
    def __init__(self, name, lb):
        self.name = name
        self.blocks = []
        self.mf = []
        self.reads = []
        self.fill = []
        self.at_barrier = []
        self.after_barrier = []
        self.lb = lb
        self.gate = None
        self.frac = None
        self.maxpace = None
        self.minpace = None
        self.group = 8
        self.quota = None
        self.dstart = 0.0


class Pipe:
    def __init__(self, stages, dma_group, cfg, tag, npro, stampfn=None, gated=(), order=None, slots=None):
        self.stages, self.cfg, self.tag = stages, cfg, tag
        nst = len(stages)
        start, mf = [], []
        for S in stages:
            start.append(len(mf))
            mf += S.mf
        total = len(mf)
        start.append(total)
        self.start, self.total, self.mf = start, total, mf
        bar = [start[n] - stages[n].lb - 1 for n in range(nst)]
        bar[0] = -1
        bar.append(total - 1)
        self.bar = bar
        blocks = [(n, j) for n, S in enumerate(stages) for j in range(len(S.blocks))]
        if order:
            blocks = order(blocks)
        free_at = [0] * NBLK
        seq = list(slots or range(NBLK))
        self.saddr = saddr = [[None] * len(S.blocks) for S in stages]
        self.prolog_dma = []
        byb = {}
        fbmin = 0
        tags = [[] for _ in stages]
        for k, (n, j) in enumerate(blocks):
            kind, par = stages[n].blocks[j]
            slot = min(seq, key=lambda q: free_at[q])
            seq.remove(slot)
            seq.append(slot)
            fb = free_at[slot]
            free_at[slot] = (n + 1 if kind == "SCR" else n) + 1
            saddr[n][j] = slot * BLK
            if kind == "SCR":
                assert bar[fb] + 1 <= start[n], "scratch block not free in time"
                continue
            tags[n].append(f"#{tag}{k}")
            grp = dma_group(kind, par, slot * BLK, f"{tag}{k}")
            if k < npro:
                assert (kind not in gated or stages[n].gate is None) and fb == 0
                self.prolog_dma.append(grp)
                continue
            if kind in gated and stages[n].gate is not None:
                fb = max(fb, stages[n].gate + 1)
            fb = max(fb, fbmin)
            fbmin = fb
            byb.setdefault(fb, []).append((n, grp))
        self.free_at = free_at
        self.first_need = " ".join(tags[0])
        self.tags, self.stampfn = tags, stampfn
        self.dma = []
        self.dcur = 0
        carry = []
        for fb in range(nst):
            S = stages[fb]
            lst = carry + byb.get(fb, [])
            carry = []
            if S.quota is not None:
                lst, carry = lst[:S.quota], lst[S.quota:]
            if not lst:
                continue
            cnt = sum(len(g[1]) for g in lst)
            frac = S.frac if S.frac is not None else cfg.get("spread", 0.9)
            mp = S.maxpace if S.maxpace is not None else cfg.get("maxpace", 8)
            lo = bar[fb] + 1 + int(S.dstart * (bar[fb + 1] - bar[fb]))
            span = max(bar[fb + 1] - max(lo, self.dcur), 1)
            mn = S.minpace if S.minpace is not None else cfg.get("minpace", 1.0)
            pace = min(max(mn, span * frac / cnt), mp)
            for n, grp in lst:
                self.add_dma(grp, lo, pace, bar[n] - 1)
        assert not carry
        self.extra_fixed = []

    def add_dma(self, grp, earliest, pace, limit):
        for setup, ins in grp:
            s = min(max(self.dcur, earliest), limit)
            r = int(s)
            assert earliest <= limit, "DMA cannot be issued before its barrier"
            for x in setup:
                self.dma.append((x, max(earliest, r - 4), min(r + 1, limit), None, earliest))
            self.dma.append((ins, min(r, limit), min(r + 4, limit), None, earliest))
            self.dcur = s + pace

    def schedule(self):
        stages, start, bar, total, cfg = self.stages, self.start, self.bar, self.total, self.cfg
        nst = len(stages)
        mfins = [Ins(t) for t in self.mf]
        LAT = cfg.get("ldslat", 5)
        reads = []
        for n, S in enumerate(stages):
            for fn, fu in sorted(S.reads, key=lambda r: r[1]):
                t = fn(self.saddr[n])
                dst = Ins(t).writes
                g0 = start[n] + (fu // S.group) * S.group
                fu += start[n]
                e = fu - 1
                while e >= 0 and not (mfins[e].reads & dst):
                    e -= 1
                reads.append((t, n, e, fu, g0))
        void = set()
        for attempt in range(3):
            sc = Sched(self.mf, 8, cfg.get("vmcost", 8))
            sc.excl, sc.m0gap = cfg.get("excl", True), cfg.get("m0gap", 2)
            self.prolog_reads = []
            ch = []
            for k, (t, n, e, fu, g0) in enumerate(reads):
                if n == 0 and e < 0 and len(self.prolog_reads) < 14:
                    self.prolog_reads.append(t)
                    sc.place[k] = -1
                    continue
                rel = max(e, bar[n] + 1, 0)
                dl = g0 - 1 - LAT
                if n < nst - 1:
                    dl = min(dl, bar[n + 1] - LAT)
                    assert rel < bar[n + 1], (stages[n].name, "read after next barrier", t)
                assert rel < fu, (stages[n].name, t)
                ch.append((t, rel, max(dl, rel), k))
            for k in range(len(ch) - 2, -1, -1):
                ch[k] = (ch[k][0], ch[k][1], max(ch[k][1], min(ch[k][2], ch[k + 1][2])), ch[k][3])
            for k in range(1, len(ch)):
                if ch[k][2] < ch[k - 1][2]:
                    ch[k] = (ch[k][0], ch[k][1], ch[k - 1][2], ch[k][3])
            sc.chains.append([list(x) for x in ch])
            sc.chain(self.dma)
            for n in range(1, nst):
                txt = "".join(x + "\n" for x in stages[n - 1].at_barrier)
                txt += f"@need {' '.join(self.tags[n])}\n s_waitcnt lgkmcnt(0)\n s_barrier\n"
                if self.stampfn:
                    txt += self.stampfn(n)
                sc.fix(bar[n], txt)
                ab = split_items(stages[n - 1].after_barrier)
                sc.chain([(x, bar[n] + 1, min(bar[n] + 2 + k, total - 1)) for k, x in enumerate(ab)])
            for slot, txt in self.extra_fixed:
                sc.fix(slot, txt)
            groups = sorted({r[4] for r in reads})
            for g0 in groups:
                if g0 > 0 and g0 not in void:
                    sc.front[g0 - 1].append("@")
            for n, S in enumerate(stages):
                for items, lo, hi in S.fill:
                    if callable(items):
                        items = items(self.saddr[n])
                    sc.spread(items, lo + start[n], min(hi + start[n], total))
            sc.run()
            self.before = {}
            newvoid = set()
            for g0 in groups:
                lastbar = max(b for b in bar[:-1] if b < g0)
                regs = [Ins(r[0]).text.split()[1].rstrip(",") for k, r in enumerate(reads)
                        if r[4] == g0 and (sc.place[k] > lastbar or lastbar < 0) and sc.place[k] <= g0 - 3]
                if g0 > 0:
                    sc.front[g0 - 1] = [x for x in sc.front[g0 - 1] if x != "@"]
                if not regs:
                    newvoid.add(g0)
                elif g0 > 0:
                    sc.front[g0 - 1].append("@need " + " ".join(regs))
                else:
                    self.before[g0] = "@need " + " ".join(regs)
            if newvoid == void:
                break
            void = newvoid
        for k, (t, n, e, fu, g0) in enumerate(reads):
            assert sc.place[k] < fu and (n == nst - 1 or sc.place[k] <= bar[n + 1])
            if cfg.get("verbose") and 0 <= sc.place[k] > g0 - 3:
                print(f"  late read {stages[n].name}: {t} at {sc.place[k] - start[n]} use {fu - start[n]}")
        self.sc = sc
        if cfg.get("verbose"):
            print("  over: " + " ".join(f"{S.name}={sum(sc.over[start[n]:start[n + 1]])}" for n, S in enumerate(stages)))

    def emit(self, p, extra_before=None):
        before = dict(self.before)
        for k, v in (extra_before or {}).items():
            before[k] = v + "\n" + before.get(k, "")
        n0 = len(p.ins)
        self.sc.emit(p, before)
        verify_stream(p.ins[n0:])


def merge_stages(name, lst):
    S = Stage(name, lst[0].lb)
    S.group = lst[0].group
    for T in lst:
        nb, nm = len(S.blocks), len(S.mf)
        S.blocks += T.blocks
        S.mf += T.mf
        S.reads += [((lambda f, o: (lambda a: f(a[o:])))(fn, nb), fu + nm) for fn, fu in T.reads]
    return S


def verify_stream(ins):
    nxt = {}
    for x in reversed(ins):
        if x.is_mfma():
            for r in x.writes:
                nxt[r] = "acc" if r in x.srcc else "init"
            for r in x.srcab:
                nxt[r] = "ab"
        elif x.cls == "ds_read":
            for r in x.writes:
                assert nxt.get(r) != "acc", ("load into live accumulator", x.text)
                nxt[r] = "init"
        else:
            for r in x.reads | x.writes:
                assert nxt.get(r) != "acc", ("filler touches live accumulator", x.text, r)
            for r in x.writes:
                assert nxt.get(r) != "ab", ("filler overwrites MFMA operand", x.text, r)
```

```python
import sys, json
from gen_common import *
from regs import *
from pipesched import *
import gen_att3 as ATT

PSTR = 272
PART = 64 * PSTR


def cexp(n, outre, outim, t0, t1):
    return [
        f"v_mul_f32 {vr(t0)}, {n}, {vr(vZA)}",
        f"v_mul_f32 {vr(t1)}, {n}, {vr(vZB)}",
        f"v_exp_f32 {vr(t0)}, {vr(t0)}",
        f"v_fract_f32 {vr(t1)}, {vr(t1)}",
        f"v_cos_f32 {vr(outre)}, {vr(t1)}",
        f"v_sin_f32 {vr(outim)}, {vr(t1)}",
        f"v_mul_f32 {vr(outre)}, {vr(outre)}, {vr(t0)}",
        f"v_mul_f32 {vr(outim)}, {vr(outim)}, {vr(t0)}",
    ]


def cmadd(dre, dim, lre, lim, hre, him, ure, uim):
    return [
        f"v_fma_f32 {vr(dre)}, {vr(lre)}, {vr(hre)}, {vr(ure)}",
        f"v_fma_f32 {vr(dim)}, {vr(lre)}, {vr(him)}, {vr(uim)}",
        f"v_fma_f32 {vr(dre)}, -{vr(lim)}, {vr(him)}, {vr(dre)}",
        f"v_fma_f32 {vr(dim)}, {vr(lim)}, {vr(hre)}, {vr(dim)}",
    ]


class Sync:
    def __init__(self, cfg):
        self.spins = []
        self.cfg = cfg

    def load(self, srd, soff, pa, pv):
        return f"buffer_load_dword {vr(pv)}, {vr(pa)}, {sr(srd, 4)}, {soff} offen sc1"

    def check(self, name, srd, soff, pa, pv):
        self.spins.append((name, srd, soff, pa, pv))
        return f"""
        POLL_{name}:
        v_cmp_ne_u32 vcc, {sr(sEXP)}, {vr(pv)}
        s_cbranch_vccnz SPIN_{name}
        POLLOK_{name}:
        """

    def emit(self, p):
        for name, srd, soff, pa, pv in self.spins:
            p(f"""
            SPIN_{name}:
            s_add_u32 {sr(sSPIN)}, {sr(sSPIN)}, 1
            s_cmp_gt_u32 {sr(sSPIN)}, 0x100000
            s_cbranch_scc1 POLLOK_{name}
            s_sleep {self.cfg.get('sleep', 2)}
            {self.load(srd, soff, pa, pv)}
            s_waitcnt vmcnt(0)
            s_branch POLL_{name}
            """)


def frag_read(dst, vb, blk, off, win=65536):
    def fn(addrs):
        r, imm = ldsaddr(vb, addrs[blk] + off, win)
        return f"ds_read_b128 {dst}, {r} offset:{imm}"
    return fn


def tr_read(dst, vb, blk, off, win=65536):
    def fn(addrs):
        r, imm = ldsaddr(vb, addrs[blk] + off, win)
        return f"ds_read_b64_tr_b16 {dst}, {r} offset:{imm}"
    return fn


KXOR = [False]


def adv(r, step, mask=1023):
    return [f"s_add_u32 {sr(r)}, {sr(r)}, {step}", f"s_and_b32 {sr(r)}, {sr(r)}, {mask}"]


def dma_group(kind, par, addr, tag):
    out = []

    def one(pos, setup, vpat, srd, imm, flags="", linear=False):
        s = list(setup)
        if not linear or pos == 0:
            if kind in ("H", "C", "WO", "CX"):
                s.append(f"s_add_u32 m0, {sr(sMB + addr // 32768)}, {addr % 32768 + pos * 1024 - imm}")
            else:
                s.append(f"s_add_u32 m0, {sr(sWLDS)}, {addr + pos * 1024 - imm}")
        off = f" offset:{imm}" if imm else ""
        out.append((s, f"buffer_load_dwordx4 {vr(vpat)}, {sr(srd, 4)}, {sr(sD0)} offen{off}{flags} lds @@{tag}"))

    if kind == "C1":
        for pos in range(4):
            su = []
            if pos == 0:
                if KXOR[0]:
                    su = [f"s_xor_b32 {sr(sRK)}, {sr(sRK)}, {(par ^ (par - 1)) * 128}"] if par else []
                else:
                    su = adv(sRK, 128) if par else []
                su = su + [f"s_add_u32 {sr(sD0)}, {sr(sCKV)}, {sr(sRK)}"]
            if pos == 2:
                su = [f"s_add_u32 {sr(sD0)}, {sr(sD0)}, 16384"]
            one(pos, su, vN, S_CKV, (pos & 1) * 64)
    elif kind == "W":
        srd, rot, same = par
        for pos in range(4):
            su = []
            if pos == 0 and not same:
                su = [f"s_lshl_b32 {sr(sD0)}, {sr(rot)}, 12", f"s_add_u32 {sr(sD0)}, {sr(sD0)}, {sr(sWOFF)}"]
            one(pos, su, vW, srd, pos * 64)
    elif kind == "C2":
        u, xy = par
        for pos in range(4):
            su = []
            if pos % 2 == 0:
                su = [f"s_add_u32 {sr(sD0)}, {sr(sCKV2b if pos else sCKV2a)}, {(u - 4) * 32768 + xy * 16384}"]
            one(pos, su, vN, S_CKV, (pos & 1) * 64)
    elif kind == "SX":
        for pos in range(4):
            su = []
            if pos == 0:
                su = (adv(sRS, 256) if (par and par % 2 == 0) else []) + [f"s_add_u32 {sr(sD0)}, {sr(sXA)}, {sr(sRS)}"]
                if par & 1:
                    su.append(f"s_add_u32 {sr(sD0)}, {sr(sD0)}, 128")
            if pos == 2:
                su = [f"s_add_u32 {sr(sD0)}, {sr(sD0)}, 4096"]
            one(pos, su, vS, S_XA, (pos & 1) * 64)
    elif kind == "SB":
        for pos in range(4):
            su = [f"s_add_u32 {sr(sD0)}, {sr(sBOFF)}, {sr(sRS)}"] if pos == 0 else []
            one(pos, su, vN, S_BSEL, pos * 64)
    elif kind == "X":
        g, stg = par
        for pos in range(4):
            su = []
            if pos == 0:
                su = (adv(sRQ, 128) if (stg and g == 0) else []) + \
                    [f"s_add_u32 {sr(sD0)}, {sr(sXQB if g else sXQA)}, {sr(sRQ)}"]
            if pos == 2:
                su = [f"s_add_u32 {sr(sD0)}, {sr(sD0)}, {sr(sXD)}"]
            one(pos, su, vN, S_XB, (pos & 1) * 64)
    elif kind == "H":
        for pos in range(4):
            su = []
            if pos == 0:
                su = (adv(sR2, 128) if par else []) + \
                    [f"s_lshl_b32 {sr(sD0)}, {sr(sR2)}, 7", f"s_add_u32 {sr(sD0)}, {sr(sD0)}, {sr(sHO)}"]
            one(pos, su, vL16, S_WS, pos * 1024, " sc1", linear=True)
    elif kind == "C":
        for pos in range(4):
            su = []
            if pos == 0:
                su = [f"s_add_u32 {sr(sD0)}, {sr(sCO)}, {sr(sR2)}"]
            one(pos, su, vC4, S_CSEL, (pos >> 1) * 1024 + (pos & 1) * 64)
    elif kind == "WO":
        for pos in range(4):
            su = []
            if pos == 0:
                su = (adv(sRO, 65536, 0x7ffff) if par else []) + [f"s_add_u32 {sr(sD0)}, {sr(sRO)}, {sr(sWOO)}"]
            one(pos, su, vNb if pos & 1 else vNa, S_WO, (pos >> 1) * 128)
    elif kind == "CX":
        g, stg = par
        for pos in range(4):
            su = []
            if pos == 0:
                su = (adv(sRO2, 16384, 0x1ffff) if (g or stg) else []) + \
                    [f"s_add_u32 {sr(sD0)}, {sr(sCTXH if g else sCTXO)}, {sr(sRO2)}"]
            one(pos, su, vL16, S_WS, pos * 1024, " sc1", linear=True)
    elif kind == "SCR":
        pass
    else:
        raise ValueError(kind)
    return out


def gen(cfg):
    timing = cfg.get("timing", False)
    p = Prog()
    sync = Sync(cfg)
    nstamp = [0]

    def st(va=vS):
        stamp(p, timing, nstamp[0], sTS, vX0, va, S_WS, sStamp)
        nstamp[0] += 1

    def fine(base):
        if not timing:
            return None
        return lambda n: f"s_memtime {sr(sTS, 2)}\n s_waitcnt lgkmcnt(0)\n v_writelane_b32 v95, {sr(sTS)}, {base + n}\n"

    def touch_code(srd, label, dst, q=None):
        (q or p)(f"""
        s_getpc_b64 {sr(srd, 2)}
        {label}:
        s_mov_b32 {sr(srd + 2)}, KA_codeend-{label}
        s_mov_b32 {sr(srd + 3)}, {SRD3}
        s_lshr_b32 {sr(sT0)}, s2, 3
        s_lshl_b32 {sr(sT0)}, {sr(sT0)}, 2
        s_add_u32 {sr(sT0)}, {sr(sT0)}, {sr(sW)}
        s_lshl_b32 {sr(sT0)}, {sr(sT0)}, 7
        v_lshlrev_b32 {vr(vX0)}, 14, v0
        buffer_load_dword {vr(dst)}, {vr(vX0)}, {sr(srd, 4)}, {sr(sT0)} offen
        """)

    p(f"""
    s_cmp_ge_u32 s2, 256
    s_cbranch_scc1 KA_end
    {"s_memrealtime " + sr(sRET, 2) if timing else ""}
    s_load_dwordx2 {sr(S_CKV, 2)}, s[0:1], {KA['CKV']}
    s_load_dwordx2 {sr(S_WUK, 2)}, s[0:1], {KA['WUK']}
    s_load_dwordx2 {sr(S_WUV, 2)}, s[0:1], {KA['WUV']}
    s_load_dwordx2 {sr(S_XA, 2)}, s[0:1], {KA['XA']}
    s_load_dwordx4 {sr(S_BSEL, 4)}, s[0:1], {KA['BRE']}
    s_load_dwordx2 {sr(S_XB, 2)}, s[0:1], {KA['XB']}
    s_load_dwordx2 {sr(S_WQ, 2)}, s[0:1], {KA['WQ']}
    s_load_dwordx2 {sr(S_WO, 2)}, s[0:1], {KA['WO']}
    s_load_dwordx4 {sr(S_CSEL, 4)}, s[0:1], {KA['CRE']}
    s_load_dwordx2 {sr(S_WS, 2)}, s[0:1], {KA['WS']}
    s_load_dwordx2 {sr(sDBGP, 2)}, s[0:1], {KA['DBG']}
    s_load_dwordx4 {sr(S_LRE, 4)}, s[0:1], {KA['LRE']}
    s_load_dwordx2 {sr(S_LDT, 2)}, s[0:1], {KA['LDT']}
    v_lshlrev_b32 {vr(vSIG)}, 16, v0
    v_lshrrev_b32 {vr(vX0)}, 6, v0
    v_and_b32 v0, 63, v0
    v_readfirstlane_b32 {sr(sW)}, {vr(vX0)}
    """)
    if cfg.get("pretouch", True):
        touch_code(S_E, "KA_pc", TMP)
    hs = 1 if cfg.get("hswap", True) else 0
    KXOR[0] = cfg.get("kxor", False)
    rk = cfg.get("rotk", (4, 4, 0))
    rq = cfg.get("rotq", (1, 2, 1))
    p(f"""
    s_and_b32 {sr(sT0)}, s2, 7
    s_lshr_b32 {sr(sT1)}, s2, 3
    s_add_u32 {sr(sT2)}, {sr(sT1)}, {cfg.get("hrot", 0)}
    s_and_b32 {sr(sT2)}, {sr(sT2)}, 3
    s_lshl_b32 {sr(sH)}, {sr(sT0)}, 2
    s_add_u32 {sr(sH)}, {sr(sH)}, {sr(sT2)}
    s_lshr_b32 {sr(sI)}, {sr(sT1)}, 2
    s_lshl_b32 {sr(sWLDS)}, {sr(sW)}, 12
    v_lshrrev_b32 {vr(vX0)}, 5, v0
    v_lshlrev_b32 {vr(vX0)}, 1, {vr(vX0)}
    v_and_b32 {vr(vX1)}, 3, v0
    v_xor_b32 {vr(vX0)}, {vr(vX0)}, {vr(vX1)}
    v_lshlrev_b32 {vr(vX0)}, 4, {vr(vX0)}
    v_lshrrev_b32 {vr(vX1)}, 2, v0
    v_lshl_add_u32 {vr(vW)}, {vr(vX1)}, 13, {vr(vX0)}
    v_lshl_add_u32 {vr(vN)}, {vr(vX1)}, 10, {vr(vX0)}
    s_and_b32 {sr(sT0)}, {sr(sH)}, {hs}
    s_lshl_b32 {sr(sT0)}, {sr(sT0)}, 17
    s_lshl_b32 {sr(sCKV)}, {sr(sI)}, 18
    s_add_u32 {sr(sCKV)}, {sr(sCKV)}, {sr(sT0)}
    s_xor_b32 {sr(sCKV2b)}, {sr(sCKV)}, 0x20000
    s_lshl_b32 {sr(sT0)}, {sr(sW)}, 15
    s_add_u32 {sr(sCKV)}, {sr(sCKV)}, {sr(sT0)}
    s_lshl_b32 {sr(sWOFF)}, {sr(sW)}, 17
    s_lshl_b32 {sr(sT0)}, {sr(sH)}, 8
    s_add_u32 {sr(sWOFF)}, {sr(sWOFF)}, {sr(sT0)}
    s_and_b32 {sr(sT0)}, {sr(sH)}, 3
    s_cmp_eq_u32 {sr(sT0)}, 1
    s_cselect_b32 {sr(sT0)}, {cfg.get("rotk1", rk[0])}, {rk[0]}
    s_mul_i32 {sr(sRK)}, {sr(sI)}, {sr(sT0)}
    s_bfe_u32 {sr(sT0)}, {sr(sH)}, 0x10001
    s_mul_i32 {sr(sT0)}, {sr(sT0)}, {rk[1]}
    s_add_u32 {sr(sRK)}, {sr(sRK)}, {sr(sT0)}
    s_lshr_b32 {sr(sT0)}, {sr(sH)}, 2
    s_mul_i32 {sr(sT0)}, {sr(sT0)}, {rk[2]}
    s_add_u32 {sr(sRK)}, {sr(sRK)}, {sr(sT0)}
    s_and_b32 {sr(sRK)}, {sr(sRK)}, {cfg.get("kmask", 7)}
    s_lshl_b32 {sr(sRK)}, {sr(sRK)}, 7
    s_lshl_b32 {sr(sT0)}, {sr(sW)}, 8
    {"s_xor_b32" if KXOR[0] else "s_add_u32"} {sr(sT0)}, {sr(sT0)}, {sr(sRK)}
    s_and_b32 {sr(sT1)}, {sr(sT0)}, 1023
    s_add_u32 {sr(sCKV2a)}, {sr(sCKV2b)}, {sr(sT1)}
    {"s_xor_b32" if KXOR[0] else "s_add_u32"} {sr(sT0)}, {sr(sT0)}, 128
    s_and_b32 {sr(sT0)}, {sr(sT0)}, 1023
    s_add_u32 {sr(sCKV2b)}, {sr(sCKV2b)}, {sr(sT0)}
    """)
    for s, n in ((S_CKV, 2048 * 1024), (S_WUK, 512 * 8192), (S_WUV, 512 * 8192)):
        p(f"s_mov_b32 {sr(s + 2)}, {n}")
        p(f"s_mov_b32 {sr(s + 3)}, {SRD3}")
    p("s_waitcnt lgkmcnt(0)")
    if timing:
        p("s_memrealtime s[90:91]")

    def lin_touch(srd, base, lanes, nwg, dst):
        sh = {64: 6, 32: 5, 16: 4, 8: 3}[lanes]
        t = f"""
        s_and_b32 {sr(sT0)}, s2, {nwg - 1}
        s_lshl_b32 {sr(sT0)}, {sr(sT0)}, 2
        s_add_u32 {sr(sT0)}, {sr(sT0)}, {sr(sW)}
        s_lshl_b32 {sr(sT0)}, {sr(sT0)}, {sh + 7}
        """
        if base:
            t += f"s_add_u32 {sr(sT0)}, {sr(sT0)}, {base}\n"
        t += f"v_lshlrev_b32 {vr(vX0)}, 7, v0\n"
        if lanes < 64:
            t += f"v_lshrrev_b32 {vr(vX1)}, {sh}, v0\n v_lshl_add_u32 {vr(vX0)}, {vr(vX1)}, 24, {vr(vX0)}\n"
        for k, d in enumerate(srd):
            t += f"buffer_load_dword {vr(dst + k)}, {vr(vX0)}, {sr(d, 4)}, {sr(sT0)} offen\n"
        return t

    SR = dict(ckv=S_CKV, wk=S_WUK, wv=S_WUV, xa=S_XA, xb=S_XB, wq=S_WQ, b=S_BSEL)
    for names, base, lanes in cfg.get("init_touch", []):
        p(lin_touch([SR[x] for x in names.split("+")], base, lanes, 256, TMP + 1))

    late = f"""
    s_and_b32 {sr(sT0)}, s2, 7
    s_lshr_b32 {sr(sT1)}, s2, 3
    s_lshr_b32 {sr(sC)}, {sr(sT0)}, 1
    s_lshl_b32 {sr(sC)}, {sr(sC)}, 2
    s_lshr_b32 {sr(sT2)}, {sr(sT1)}, 3
    s_add_u32 {sr(sC)}, {sr(sC)}, {sr(sT2)}
    s_and_b32 {sr(sPG)}, {sr(sT0)}, 1
    s_lshl_b32 {sr(sPG)}, {sr(sPG)}, 3
    s_and_b32 {sr(sT2)}, {sr(sT1)}, 7
    s_add_u32 {sr(sPG)}, {sr(sPG)}, {sr(sT2)}
    v_and_b32 {vr(vX0)}, 15, v0
    s_and_b32 {sr(sT2)}, {sr(sW)}, 1
    s_lshl_b32 {sr(sT2)}, {sr(sT2)}, 4
    s_lshl_b32 {sr(sT3)}, {sr(sPG)}, 5
    s_add_u32 {sr(sT2)}, {sr(sT2)}, {sr(sT3)}
    v_add_lshl_u32 {vr(vX1)}, {vr(vX0)}, {sr(sT2)}, 1
    global_load_ushort {vr(vLA)}, {vr(vX1)}, {sr(S_LRE, 2)}
    global_load_ushort {vr(vLB)}, {vr(vX1)}, {sr(S_LIM, 2)}
    global_load_ushort {vr(vZA)}, {vr(vX1)}, {sr(S_LDT, 2)}
    s_add_u32 {sr(S_FLG)}, {sr(S_WS)}, {WS_FLG}
    s_addc_u32 {sr(S_FLG + 1)}, {sr(S_WS + 1)}, 0
    s_mov_b32 {sr(S_FLG + 2)}, 32768
    s_mov_b32 {sr(S_FLG + 3)}, {SRD3}
    v_lshlrev_b32 {vr(vL16)}, 4, v0
    v_mov_b32 {vr(DT)}, 0
    v_mov_b32 {vr(DT + 1)}, 0
    v_mov_b32 {vr(DT + 2)}, 0
    v_mov_b32 {vr(DT + 3)}, 0
    s_lshl_b32 {sr(sT0)}, s2, 2
    s_add_u32 {sr(sT0)}, {sr(sT0)}, {sr(sW)}
    s_lshl_b32 {sr(sT0)}, {sr(sT0)}, 10
    buffer_store_dwordx4 {vr(DT, 4)}, {vr(vL16)}, {sr(S_FLG, 4)}, {sr(sT0)} offen sc1 @@zero
    s_mov_b32 {sr(S_DBG)}, {sr(sDBGP)}
    s_mov_b32 {sr(S_DBG + 1)}, {sr(sDBGP + 1)}
    s_cmp_eq_u32 {sr(sW)}, 0
    s_cselect_b32 {sr(sEXP)}, 1, 0
    s_cselect_b32 {sr(S_DBG + 2)}, 32, 0
    s_cselect_b32 {sr(S_FLG + 2)}, 32768, 0
    s_mov_b32 {sr(S_DBG + 3)}, {SRD3}
    v_mov_b32 {vr(vONE)}, 1
    s_mov_b32 {sr(sSPIN)}, 0
    s_cmp_ge_u32 {sr(sW)}, 2
    s_cselect_b32 {sr(S_BSEL)}, {sr(S_BSEL + 2)}, {sr(S_BSEL)}
    s_cselect_b32 {sr(S_BSEL + 1)}, {sr(S_BSEL + 3)}, {sr(S_BSEL + 1)}
    s_bitcmp1_b32 {sr(sW)}, 0
    s_cselect_b32 {sr(S_CSEL)}, {sr(S_CSEL + 2)}, {sr(S_CSEL)}
    s_cselect_b32 {sr(S_CSEL + 1)}, {sr(S_CSEL + 3)}, {sr(S_CSEL + 1)}
    """
    for s, n in ((S_XA, 2048 * 1024), (S_BSEL, 512 * 1024), (S_XB, 2048 * 1024), (S_WQ, 512 * 8192),
                 (S_WO, 4096 * 1024), (S_CSEL, 512 * 1024), (S_WS, WS_END + (1 << 20 if timing else 0)),
                 (S_E, 65536)):
        late += f"s_mov_b32 {sr(s + 2)}, {n}\n s_mov_b32 {sr(s + 3)}, {SRD3}\n"
    late += f"""
    s_add_u32 {sr(S_E)}, {sr(S_WS)}, {WS_E}
    s_addc_u32 {sr(S_E + 1)}, {sr(S_WS + 1)}, 0
    s_mul_i32 {sr(sKVST)}, {sr(sH)}, {HEADSTRIDE}
    s_add_u32 {sr(S_KVR)}, {sr(S_WS)}, {sr(sKVST)}
    s_addc_u32 {sr(S_KVR + 1)}, {sr(S_WS + 1)}, 0
    s_lshl_b32 {sr(sT0)}, {sr(sI)}, 16
    s_sub_u32 {sr(S_KVR + 2)}, {32 * 32768}, {sr(sT0)}
    s_and_b32 {sr(sT0)}, {sr(sW)}, 1
    s_lshl_b32 {sr(sT0)}, {sr(sT0)}, 15
    s_add_u32 {sr(S_KVR + 2)}, {sr(S_KVR + 2)}, {sr(sT0)}
    s_mov_b32 {sr(S_KVR + 3)}, {SRD3}
    s_lshl_b32 {sr(sT0)}, {sr(sI)}, 17
    s_add_u32 {sr(sKVST)}, {sr(sKVST)}, {sr(sT0)}
    s_and_b32 {sr(sT0)}, {sr(sH)}, {hs}
    s_lshl_b32 {sr(sT0)}, {sr(sT0)}, 16
    s_sub_u32 {sr(sKVST2)}, {sr(sKVST)}, {sr(sT0)}
    s_add_u32 {sr(sKVST)}, {sr(sKVST)}, {sr(sT0)}
    s_add_u32 {sr(sRS)}, {sr(sC)}, {sr(sPG)}
    s_mul_i32 {sr(sRS)}, {sr(sRS)}, {cfg.get("rots", 1)}
    s_and_b32 {sr(sRS)}, {sr(sRS)}, 3
    s_lshl_b32 {sr(sRS)}, {sr(sRS)}, 8
    s_mul_i32 {sr(sRQ)}, {sr(sI)}, {rq[0]}
    s_mul_i32 {sr(sT0)}, {sr(sH)}, {rq[1]}
    s_add_u32 {sr(sRQ)}, {sr(sRQ)}, {sr(sT0)}
    s_lshr_b32 {sr(sT0)}, {sr(sH)}, 2
    s_mul_i32 {sr(sT0)}, {sr(sT0)}, {rq[2]}
    s_add_u32 {sr(sRQ)}, {sr(sRQ)}, {sr(sT0)}
    s_and_b32 {sr(sRQ)}, {sr(sRQ)}, 7
    s_lshl_b32 {sr(sRQ)}, {sr(sRQ)}, 7
    s_lshl_b32 {sr(sXA)}, {sr(sC)}, 17
    s_lshr_b32 {sr(sT0)}, {sr(sW)}, 1
    s_lshl_b32 {sr(sT0)}, {sr(sT0)}, 16
    s_add_u32 {sr(sXA)}, {sr(sXA)}, {sr(sT0)}
    s_and_b32 {sr(sT0)}, {sr(sW)}, 1
    s_lshl_b32 {sr(sT1)}, {sr(sT0)}, 13
    s_add_u32 {sr(sXA)}, {sr(sXA)}, {sr(sT1)}
    s_lshl_b32 {sr(sBOFF)}, {sr(sPG)}, 15
    s_lshl_b32 {sr(sT1)}, {sr(sT0)}, 14
    s_add_u32 {sr(sBOFF)}, {sr(sBOFF)}, {sr(sT1)}
    s_lshl_b32 {sr(sT0)}, {sr(sW)}, 15
    s_sub_u32 {sr(sXD)}, {7 << 14}, {sr(sT0)}
    s_lshl_b32 {sr(sT0)}, {sr(sW)}, 14
    s_lshl_b32 {sr(sXQA)}, {sr(sI)}, 17
    s_sub_u32 {sr(sXQB)}, {15 << 17}, {sr(sXQA)}
    s_add_u32 {sr(sXQA)}, {sr(sXQA)}, {sr(sT0)}
    s_add_u32 {sr(sXQB)}, {sr(sXQB)}, {sr(sT0)}
    s_mov_b32 {sr(sQS)}, {f32hex(QSCALE)}
    """
    if timing:
        late += f"s_lshl_b32 {sr(sStamp)}, s2, 10\n s_add_u32 {sr(sStamp)}, {sr(sStamp)}, {WS_STAMP}\n"
    late += f"""
    v_lshrrev_b32 {vr(vX1)}, 4, v0
    v_mul_u32_u24 {vr(vS)}, {12 * 1024}, {vr(vX1)}
    v_add_u32 {vr(vS)}, {vr(vS)}, {vr(vN)}
    s_lshr_b32 {sr(sT0)}, {sr(sW)}, 1
    s_lshl_b32 {sr(sT0)}, {sr(sT0)}, 2
    v_add_u32 {vr(vSEG)}, {sr(sT0)}, {vr(vX1)}
    v_bfe_u32 {vr(vF)}, v0, 3, 1
    v_lshlrev_b32 {vr(vF)}, 1, {vr(vF)}
    v_xor_b32 {vr(vF)}, {vr(vF)}, {vr(vX1)}
    v_lshl_add_u32 {vr(vF)}, {vr(vX0)}, 2, {vr(vF)}
    v_lshlrev_b32 {vr(vF)}, 4, {vr(vF)}
    v_add_u32 {vr(vF + 1)}, 0x10000, {vr(vF)}
    v_add_u32 {vr(vF + 2)}, 0x20000, {vr(vF)}
    v_lshrrev_b32 {vr(vT)}, 5, v0
    v_lshlrev_b32 {vr(vT)}, 12, {vr(vT)}
    v_bfe_u32 {vr(vT + 1)}, v0, 4, 1
    v_mul_u32_u24 {vr(vT + 1)}, {512 + 32}, {vr(vT + 1)}
    v_add_u32 {vr(vT)}, {vr(vT)}, {vr(vT + 1)}
    v_bfe_u32 {vr(vT + 1)}, v0, 2, 2
    v_lshl_add_u32 {vr(vT)}, {vr(vT + 1)}, 6, {vr(vT)}
    v_and_b32 {vr(vT + 1)}, 3, v0
    v_lshl_add_u32 {vr(vT)}, {vr(vT + 1)}, 3, {vr(vT)}
    s_lshl_b32 {sr(sT0)}, {sr(sW)}, 10
    v_add_u32 {vr(vT)}, {sr(sT0)}, {vr(vT)}
    v_add_u32 {vr(vT + 1)}, 0x10000, {vr(vT)}
    v_add_u32 {vr(vT + 2)}, 0x20000, {vr(vT)}
    v_xor_b32 {vr(vT + 3)}, 32, {vr(vT)}
    v_xor_b32 {vr(vT + 4)}, 32, {vr(vT + 1)}
    v_xor_b32 {vr(vT + 5)}, 32, {vr(vT + 2)}
    s_lshr_b32 {sr(sT0)}, {sr(sW)}, 1
    s_lshl_b32 {sr(sT0)}, {sr(sT0)}, 13
    v_add_u32 {vr(vFA)}, {sr(sT0)}, {vr(vF)}
    v_add_u32 {vr(vFA + 1)}, {sr(sT0)}, {vr(vF + 1)}
    v_add_u32 {vr(vFA + 2)}, {sr(sT0)}, {vr(vF + 2)}
    s_and_b32 {sr(sT0)}, {sr(sW)}, 1
    s_lshl_b32 {sr(sT0)}, {sr(sT0)}, 12
    v_add_u32 {vr(vFB)}, {sr(sT0)}, {vr(vF)}
    v_add_u32 {vr(vFB + 1)}, {sr(sT0)}, {vr(vF + 1)}
    v_add_u32 {vr(vFB + 2)}, {sr(sT0)}, {vr(vF + 2)}
    v_lshl_add_u32 {vr(vKST)}, {sr(sW)}, 11, {vr(vL16)}
    v_add_u32 {vr(vVST)}, {5 * 8192}, {vr(vKST)}
    """

    stages = []
    ringpos = [0]

    def ring_alloc(size):
        r = RING + 4 * (ringpos[0] % size)
        ringpos[0] += 1
        return vr(r, 4)

    def kv_mfmas(S, ks, R, X, Y):
        w = [ar(16 * ks + 4 * j, 4) for j in range(4)]
        for a, b, d in ((w[0], X, 0), (w[0], Y, 8), (w[1], X, 4), (w[1], Y, 12),
                        (X, w[2], 16), (Y, w[2], 20), (X, w[3], 24), (Y, w[3], 28)):
            c = "0" if ks == 0 else vr(R + d, 4)
            S.mf.append(f"v_mfma_f32_16x16x32_bf16 {vr(R + d, 4)}, {a}, {b}, {c}")

    VSC = cfg.get("vscale", 0)

    def drain(unit, R, tmp=None):
        cv, stv = [], []
        for n in range(4):
            t = R + 8 * n if tmp is None else tmp + 4 * n
            for k in range(4):
                a, b = R + 8 * n + 2 * k, R + 8 * n + 2 * k + 1
                if n < 2:
                    cv += [f"v_mul_f32 {vr(a)}, {sr(sQS)}, {vr(a)}", f"v_mul_f32 {vr(b)}, {sr(sQS)}, {vr(b)}"]
                elif VSC:
                    cv += [f"v_ldexp_f32 {vr(a)}, {vr(a)}, {VSC}", f"v_ldexp_f32 {vr(b)}, {vr(b)}, {VSC}"]
                cv.append(f"v_cvt_pk_bf16_f32 {vr(t + k)}, {vr(a)}, {vr(b)}")
            va = vKST if n < 2 else vVST
            imm = (n & 1) * 1024
            s = f"buffer_store_dwordx4 {vr(t, 4)}, {vr(va)}, {sr(S_WS, 4)}, {sr(sST)} offen offset:{imm} sc1 @@kvst"
            if n == 0:
                s = f"s_add_u32 {sr(sST)}, {sr(sKVST if unit < 4 else sKVST2)}, {unit * 16384}\n" + s
            if cfg.get("nokvst") and not (unit == 7 and n == 0):
                s = "s_nop 0"
            if cfg.get("kvplain"):
                s = s.replace(" sc1 @@", " @@")
            stv.append(s)
        return cv, stv

    for n in range(8):
        S = Stage(f"kv1_{n}", 18)
        S.blocks = [("C1", n), ("W", (S_WUK, sRK, False)), ("W", (S_WUV, sRK, True))]
        for kk in range(2):
            ks = 2 * n + kk
            for j in range(4):
                for x in range(2):
                    S.reads.append((tr_read(ar(16 * ks + 4 * j + 2 * x, 2), vT + 3 * (j & 1), 1 + (j >> 1),
                                            kk * 8192 + x * 256), len(S.mf) + 2 * j))
            for u in range(4):
                X, Y = ring_alloc(8), ring_alloc(8)
                S.reads.append((frag_read(X, vF, 0, (4 * u + kk) * 1024), len(S.mf)))
                S.reads.append((frag_read(Y, vF, 0, (4 * u + 2 + kk) * 1024), len(S.mf) + 1))
                kv_mfmas(S, ks, RSET[u], X, Y)
        stages.append(S)

    def kv2_stage(u, R):
        S = Stage(f"kv2_{u}", 18)
        S.blocks = [("C2", (u, 0)), ("C2", (u, 1))]
        for ks in range(16):
            X, Y = ring_alloc(8), ring_alloc(8)
            S.reads.append((frag_read(X, vF, 0, ks * 1024), len(S.mf)))
            S.reads.append((frag_read(Y, vF, 1, ks * 1024), len(S.mf) + 1))
            kv_mfmas(S, ks, R, X, Y)
        return S

    def ssm_stage(n, R):
        S = Stage(f"ssm_{n}", 8)
        S.blocks = [("SX", 2 * n), ("SB", n), ("SX", 2 * n + 1)]
        for k4 in range(4):
            kh, kk = k4 >> 1, k4 & 1
            B = []
            for reim in range(2):
                r = ring_alloc(12)
                B.append(r)
                S.reads.append((frag_read(r, vFB, 1, reim * 8192 + k4 * 1024), len(S.mf) + reim))
            for rb in range(4):
                r = ring_alloc(12)
                S.reads.append((frag_read(r, vFA, 2 * kh, (2 * rb + kk) * 1024), len(S.mf)))
                for reim in range(2):
                    d = R + 16 * reim + 4 * rb
                    c = "0" if (n == 0 and k4 == 0) else vr(d, 4)
                    S.mf.append(f"v_mfma_f32_16x16x32_bf16 {vr(d, 4)}, {r}, {B[reim]}, {c}")
        return S

    QACC = [RSET[0], RSET[2], RSET[4], RSET[3]]
    RB = RSET[1]

    def qacc(db, qb):
        return QACC[db >> 1] + 16 * (db & 1) + 4 * qb

    qring = [0, 0]

    def q_stage(n):
        S = Stage(f"q_{n}", 14)
        S.blocks = [("X", (0, n)), ("W", (S_WQ, sRQ, False)), ("X", (1, n))]
        for kk in range(2):
            xs = []
            base = len(S.mf)
            for qb in range(4):
                r = ar(128 + 4 * (qring[0] % 12), 4)
                qring[0] += 1
                xs.append(r)
                S.reads.append((frag_read(r, vFA, 2 * (qb >> 1), (2 * (qb & 1) + kk) * 1024), base + qb))
            for db in range(8):
                rr = 192 + 4 * (qring[1] % 8)
                qring[1] += 1
                for x in range(2):
                    S.reads.append((tr_read(ar(rr + 2 * x, 2), vT + 3 * (db & 1), 1,
                                            kk * 8192 + (db >> 1) * 1024 + x * 256), len(S.mf)))
                for qb in range(4):
                    d = qacc(db, qb)
                    c = "0" if (n == 0 and kk == 0) else vr(d, 4)
                    S.mf.append(f"v_mfma_f32_16x16x32_bf16 {vr(d, 4)}, {ar(rr, 4)}, {xs[qb]}, {c}")
        return S

    made = {}
    prev = "K"
    for nm in cfg.get("order", ["U4", "U5", "S0", "S1", "S2", "S3", "U6", "U7"]):
        if nm[0] != prev[0] and "S" in (nm[0], prev[0]):
            ringpos[0] = 0
        if nm[0] == "U":
            S = kv2_stage(int(nm[1]), {4: RSET[4], 5: RSET[0], 6: RSET[2], 7: RSET[3]}[int(nm[1])])
            if prev[0] == "S":
                S.lb = 7
        else:
            S = ssm_stage(int(nm[1]), RB)
            if prev[0] == "U":
                S.lb = 14
        made[nm] = S
        stages.append(S)
        prev = nm
    U4, U5, U6, U7 = (made[f"U{k}"] for k in range(4, 8))
    QS = [q_stage(n) for n in range(8)]
    stages += QS
    for k, v in cfg.get("frac", {}).items():
        stages[int(k)].frac = v
    for k, v in cfg.get("quota", {}).items():
        stages[int(k)].quota, stages[int(k)].dstart = v
    for k, v in cfg.get("mpace", {}).items():
        stages[int(k)].maxpace = v

    UR = [RSET[0], RSET[1], RSET[2], RSET[3], RSET[4], RSET[0], RSET[2], RSET[3]]
    byname = made
    dplan = cfg.get("drains", [["U4", 4, 36, 36, 44], ["U4", 64, 96, 96, 104], ["U5", 4, 36, 36, 44],
                               ["U5", 64, 96, 96, 104], ["U6", 2, 30, 30, 38], ["U6", 64, 96, 96, 104],
                               ["U7", 64, 96, 96, 104]])
    for u, (nm, a, b, c, d) in enumerate(dplan):
        cv, stv = drain(u, UR[u])
        byname[nm].fill.append((cv, a, b))
        byname[nm].fill.append((stv, c, d))
    cv7, st7 = drain(7, RSET[3], RING)
    QS[0].fill.append((cv7, 2, 22))
    QS[0].fill.append((st7, *cfg.get("st7", (24, 32))))

    def signal(line_sgpr_setup, sig=vSIG, one=vONE):
        return line_sgpr_setup + f"\n buffer_store_dword {vr(one)}, {vr(sig)}, {sr(S_FLG, 4)}, {sr(sFO)} offen sc1"

    stages[0].at_barrier.append("@need #zero")
    stages[0].after_barrier.append(f"v_lshl_add_u32 {vr(vPA)}, s2, 2, {vr(vSIG)}\n"
                                   f"buffer_store_dword {vr(vONE)}, {vr(vPA)}, {sr(S_DBG, 4)}, 0 offen sc1")
    tch = cfg.get("touch1")
    if tch:
        gw = f"s_lshl_b32 {sr(sT0)}, s2, 2\n s_add_u32 {sr(sT0)}, {sr(sT0)}, {sr(sW)}\n s_lshl_b32 {sr(sT0)}, {sr(sT0)}, 7"
        tl = [[gw, f"v_lshlrev_b32 {vr(vX0)}, 17, v0",
               f"buffer_load_dword {vr(TMP + 1)}, {vr(vX0)}, {sr(S_XA, 4)}, {sr(sT0)} offen"],
              [f"s_lshl_b32 {sr(sT0)}, s2, 1\n s_and_b32 {sr(sT1)}, {sr(sW)}, 1",
               f"s_add_u32 {sr(sT0)}, {sr(sT0)}, {sr(sT1)}\n s_lshl_b32 {sr(sT0)}, {sr(sT0)}, 7",
               f"v_lshlrev_b32 {vr(vX0)}, 16, v0",
               f"buffer_load_dword {vr(TMP + 2)}, {vr(vX0)}, {sr(S_BSEL, 4)}, {sr(sT0)} offen"],
              [f"s_lshl_b32 {sr(sT0)}, {sr(sI)}, 2\n s_add_u32 {sr(sT0)}, {sr(sT0)}, {sr(sW)}",
               f"s_lshl_b32 {sr(sT0)}, {sr(sT0)}, 13\n s_lshl_b32 {sr(sT1)}, {sr(sH)}, 8",
               f"s_add_u32 {sr(sT0)}, {sr(sT0)}, {sr(sT1)}\n v_and_b32 {vr(vX0)}, 1, v0",
               f"v_lshlrev_b32 {vr(vX0)}, 7, {vr(vX0)}\n v_lshrrev_b32 {vr(vX1)}, 1, v0",
               f"v_lshl_add_u32 {vr(vX0)}, {vr(vX1)}, 18, {vr(vX0)}",
               f"buffer_load_dword {vr(TMP + 3)}, {vr(vX0)}, {sr(S_WQ, 4)}, {sr(sT0)} offen"],
              [gw, f"v_lshlrev_b32 {vr(vX0)}, 17, v0",
               f"buffer_load_dword {vr(TMP + 4)}, {vr(vX0)}, {sr(S_XB, 4)}, {sr(sT0)} offen"]]
        for (stg, slot), items in zip(tch, tl):
            if stg >= 0:
                stages[stg].fill.append((items, slot, slot + len(items)))
    tch = cfg.get("touchg")
    touch_fixed = []
    if tch:
        gw = f"""
        s_and_b32 {sr(sT0)}, s2, 63
        s_lshl_b32 {sr(sT0)}, {sr(sT0)}, 2
        s_add_u32 {sr(sT0)}, {sr(sT0)}, {sr(sW)}
        s_lshl_b32 {sr(sT0)}, {sr(sT0)}, 13
        v_lshlrev_b32 {vr(vX0)}, 7, v0
        """

        def wq(half):
            return f"""
            s_and_b32 {sr(sT0)}, {sr(sI)}, 1
            s_lshl_b32 {sr(sT0)}, {sr(sT0)}, 2
            s_add_u32 {sr(sT0)}, {sr(sT0)}, {sr(sW)}
            s_add_u32 {sr(sT0)}, {sr(sT0)}, {8 * half}
            s_lshl_b32 {sr(sT0)}, {sr(sT0)}, 18
            s_lshl_b32 {sr(sT1)}, {sr(sH)}, 8
            s_add_u32 {sr(sT0)}, {sr(sT0)}, {sr(sT1)}
            v_and_b32 {vr(vX0)}, 1, v0
            v_lshlrev_b32 {vr(vX0)}, 7, {vr(vX0)}
            v_lshrrev_b32 {vr(vX1)}, 1, v0
            v_lshl_add_u32 {vr(vX0)}, {vr(vX1)}, 13, {vr(vX0)}
            buffer_load_dword {vr(TMP + 1)}, {vr(vX0)}, {sr(S_WQ, 4)}, {sr(sT0)} offen
            """
        tl = [gw + f"""buffer_load_dword {vr(TMP + 1)}, {vr(vX0)}, {sr(S_XA, 4)}, {sr(sT0)} offen
              s_and_b32 {sr(sT0)}, s2, 63
              s_and_b32 {sr(sT1)}, {sr(sW)}, 1
              s_lshl_b32 {sr(sT1)}, {sr(sT1)}, 6
              s_add_u32 {sr(sT0)}, {sr(sT0)}, {sr(sT1)}
              s_lshl_b32 {sr(sT0)}, {sr(sT0)}, 13
              buffer_load_dword {vr(TMP + 2)}, {vr(vX0)}, {sr(S_BSEL, 4)}, {sr(sT0)} offen""",
              wq(0), wq(1),
              gw + f"buffer_load_dword {vr(TMP + 1)}, {vr(vX0)}, {sr(S_XB, 4)}, {sr(sT0)} offen"]
        tgrp = cfg.get("tgrp", (0, 1, 2, 3))
        for k, ((stg, slot), txt) in enumerate(zip(tch, tl)):
            if stg >= 0:
                touch_fixed.append((stg, slot, f"s_lshr_b32 {sr(sT0)}, s2, 6\n s_cmp_lg_u32 {sr(sT0)}, {tgrp[k]}\n"
                                               f"s_cbranch_scc1 TCH_{k}\n{txt}\n TCH_{k}:"))
    for k, (stg, slot, grp, names, base, lanes) in enumerate(cfg.get("touchl", [])):
        txt = lin_touch([SR[x] for x in names.split("+")], base, lanes, 64, TMP + 5)
        if names == "b":
            txt = txt.replace(f"s_lshl_b32 {sr(sT0)}, {sr(sT0)}, 2\n        s_add_u32 {sr(sT0)}, {sr(sT0)}, {sr(sW)}",
                              f"s_lshl_b32 {sr(sT0)}, {sr(sT0)}, 1\n s_and_b32 {sr(sT1)}, {sr(sW)}, 1\n"
                              f"s_add_u32 {sr(sT0)}, {sr(sT0)}, {sr(sT1)}")
        touch_fixed.append((stg, slot, f"s_lshr_b32 {sr(sT0)}, s2, 6\n s_cmp_lg_u32 {sr(sT0)}, {grp}\n"
                                       f"s_cbranch_scc1 TCL_{k}\n{txt}\n TCL_{k}:"))
    U5.fill.append(([f"v_lshlrev_b32 {vr(vLA)}, 16, {vr(vLA)}",
                     f"v_lshlrev_b32 {vr(vLB)}, 16, {vr(vLB)}",
                     f"v_lshlrev_b32 {vr(vZA)}, 16, {vr(vZA)}",
                     f"v_mul_f32 {vr(vZA)}, {f32hex(LOG2E)}, {vr(vZA)}",
                     f"v_exp_f32 {vr(vZA)}, {vr(vZA)}",
                     f"v_and_b32 {vr(vPA)}, 7, v0",
                     f"v_cvt_pk_bf16_f32 {vr(vZA)}, {vr(vZA)}, {vr(vZA)}",
                     f"v_lshlrev_b32 {vr(vZA)}, 16, {vr(vZA)}",
                     f"v_mul_f32 {vr(vZB)}, {vr(vZA)}, {vr(vLB)}",
                     f"v_mul_f32 {vr(vZA)}, {vr(vZA)}, {vr(vLA)}",
                     f"v_mul_f32 {vr(vZB)}, {f32hex(1.0 / (2 * math.pi))}, {vr(vZB)}",
                     f"v_mul_f32 {vr(vZA)}, {f32hex(LOG2E)}, {vr(vZA)}",
                     f"v_lshlrev_b32 {vr(vPA)}, 2, {vr(vPA)}",
                     sync.load(S_DBG, "0", vPA, vPV)], 44, 64))
    U6.at_barrier.append(sync.check("Z", S_DBG, "0", vPA, vPV))

    U6.blocks.append(("SCR", None))
    E0 = TMP

    def scan1(addrs):
        a = addrs[2]
        lr, li = E0, E0 + 1
        out = cexp("1.0", lr, li, E0 + 2, E0 + 3)
        cur = (RB, RB + 16)
        for t in range(1, 16):
            d = (E0 + 4 + 2 * (t & 1), E0 + 5 + 2 * (t & 1))
            out += cmadd(d[0], d[1], lr, li, cur[0], cur[1], RB + t, RB + 16 + t)
            cur = d
        assert cur == (E0 + 6, E0 + 7)
        out += [f"v_and_b32 {vr(vX0)}, 15, v0",
                f"s_and_b32 {sr(sT0)}, {sr(sW)}, 1\n s_lshl_b32 {sr(sT0)}, {sr(sT0)}, 7",
                f"s_add_u32 {sr(sT0)}, {sr(sT0)}, {a}",
                f"v_lshl_add_u32 {vr(E0 + 8)}, {vr(vX0)}, 3, {sr(sT0)}",
                f"v_lshl_add_u32 {vr(vX1)}, {vr(vSEG)}, 8, {vr(E0 + 8)}",
                f"ds_write_b64 {vr(vX1)}, {vr(E0 + 6, 2)}"]
        return out

    U6.fill.append((scan1, 6, 100))

    ER = RSET[4]
    vEA = vFB
    scan2 = [f"ds_read_b64 {vr(ER + 2 * s, 2)}, {vr(E0 + 8)} offset:{256 * s}" for s in range(8)]
    lr, li = E0, E0 + 1
    scan2 += cexp(f32hex(16.0), lr, li, E0 + 2, E0 + 3)
    scan2 += [f"v_mov_b32 {vr(vPRE)}, 0", f"v_mov_b32 {vr(vPRE + 1)}, 0",
              f"v_and_b32 {vr(vX0)}, 15, v0",
              f"s_and_b32 {sr(sT0)}, {sr(sW)}, 1\n s_lshl_b32 {sr(sT0)}, {sr(sT0)}, 7",
              f"s_lshl_b32 {sr(sT2)}, {sr(sPG)}, 8\n s_add_u32 {sr(sT0)}, {sr(sT0)}, {sr(sT2)}",
              f"v_lshl_add_u32 {vr(vEA)}, {vr(vX0)}, 3, {sr(sT0)}",
              f"v_lshl_add_u32 {vr(vX0)}, {vr(vSEG)}, 16, {vr(vEA)}",
              f"s_lshl_b32 {sr(sT0)}, {sr(sC)}, 12"]
    cur = (ER, ER + 1)
    for s in range(1, 8):
        scan2 += [f"v_cmp_eq_u32 vcc, {s}, {vr(vSEG)}"]
        d = (E0 + 4 + 2 * (s & 1), E0 + 5 + 2 * (s & 1))
        scan2 += cmadd(d[0], d[1], lr, li, cur[0], cur[1], ER + 2 * s, ER + 2 * s + 1)
        scan2 += [f"v_cndmask_b32 {vr(vPRE)}, {vr(vPRE)}, {vr(cur[0])}, vcc",
                  f"v_cndmask_b32 {vr(vPRE + 1)}, {vr(vPRE + 1)}, {vr(cur[1])}, vcc"]
        cur = d
    scan2 += [f"buffer_store_dwordx2 {vr(E0 + 6, 2)}, {vr(vX0)}, {sr(S_E, 4)}, {sr(sT0)} offen sc1 @@est"]
    U7.fill.append((scan2, 0, 58))
    U7.at_barrier.append("@need #est")
    U7.after_barrier.append(signal(f"s_lshl_b32 {sr(sFO)}, {sr(sPG)}, 5\n s_add_u32 {sr(sFO)}, {sr(sFO)}, {sr(sC)}\n"
                                   f"s_lshl_b32 {sr(sFO)}, {sr(sFO)}, 2\n s_add_u32 {sr(sFO)}, {sr(sFO)}, {FL_E * 128}"))
    U7.fill.append(([f"v_add_u32 {vr(vFA + k)}, {sr(sWLDS)}, {vr(vF + k)}" for k in range(3)] +
                    [f"s_lshl_b32 {sr(sT1)}, {sr(sW)}, 10"] +
                    [f"v_subrev_u32 {vr(vT + k)}, {sr(sT1)}, {vr(vT + k)}" for k in range(6)], 58, 70))

    kvsig = cfg.get("kvsig", 1)
    QS[kvsig].at_barrier.append("@need #kvst")
    QS[kvsig].after_barrier.append(signal(f"s_lshl_b32 {sr(sFO)}, {sr(sH)}, 5\n s_add_u32 {sr(sFO)}, {sr(sFO)}, {sr(sI)}\n"
                                      f"s_lshl_b32 {sr(sFO)}, {sr(sFO)}, 2"))

    EV = 48
    LAM, L128, LSEG, COEF, CT = 78, 80, 82, 84, 86
    s2a = cexp("1.0", LAM, LAM + 1, CT, CT + 1) + [
        f"v_add_f32 {vr(CT)}, -1.0, {vr(LAM)}",
        f"v_mul_f32 {vr(CT + 1)}, {vr(vLA)}, {vr(vLA)}",
        f"v_fmac_f32 {vr(CT + 1)}, {vr(vLB)}, {vr(vLB)}",
        f"v_rcp_f32 {vr(CT + 1)}, {vr(CT + 1)}",
        f"v_mul_f32 {vr(COEF)}, {vr(CT)}, {vr(vLA)}",
        f"v_fmac_f32 {vr(COEF)}, {vr(LAM + 1)}, {vr(vLB)}",
        f"v_mul_f32 {vr(COEF + 1)}, {vr(LAM + 1)}, {vr(vLA)}",
        f"v_fma_f32 {vr(COEF + 1)}, -{vr(CT)}, {vr(vLB)}, {vr(COEF + 1)}",
        f"v_add_f32 {vr(CT + 1)}, {vr(CT + 1)}, {vr(CT + 1)}",
        f"v_mul_f32 {vr(COEF)}, {vr(COEF)}, {vr(CT + 1)}",
        f"v_mul_f32 {vr(COEF + 1)}, {vr(COEF + 1)}, {vr(CT + 1)}"]
    XT, LQ, EA, HP = 76, 74, 56, RING

    def ure(t):
        return XT if t == 0 else RB + t - 1

    for t in range(16):
        r, m = RB + t, RB + 16 + t
        s2a += [f"v_mul_f32 {vr(ure(t))}, {vr(COEF)}, {vr(r)}",
                f"v_fma_f32 {vr(ure(t))}, -{vr(COEF + 1)}, {vr(m)}, {vr(ure(t))}",
                f"v_mul_f32 {vr(m)}, {vr(COEF)}, {vr(m)}",
                f"v_fmac_f32 {vr(m)}, {vr(COEF + 1)}, {vr(r)}"]
    s2c = [f"v_and_b32 {vr(vPA)}, 15, v0", f"v_lshlrev_b32 {vr(vPA)}, 2, {vr(vPA)}",
           f"v_lshrrev_b32 {vr(EA + 1)}, 4, v0", f"s_add_i32 {sr(sT0)}, {sr(sC)}, -16",
           f"v_lshl_add_u32 {vr(EA)}, {vr(EA + 1)}, 2, {sr(sT0)}", f"v_lshl_add_u32 {vr(EA)}, {vr(EA)}, 12, {vr(vEA)}",
           f"v_sub_u32 {vr(EA + 1)}, 3, {vr(EA + 1)}", f"v_cvt_f32_u32 {vr(EA + 1)}, {vr(EA + 1)}",
           f"v_mul_f32 {vr(EA + 1)}, {f32hex(512.0)}, {vr(EA + 1)}"]
    s2c += cexp(vr(EA + 1), LQ, LQ + 1, EA + 2, EA + 3)
    s2c += cexp(f32hex(128.0), L128, L128 + 1, EA + 2, EA + 3)
    s2c += [f"v_cvt_f32_u32 {vr(EA + 1)}, {vr(vSEG)}", f"v_mul_f32 {vr(EA + 1)}, {f32hex(16.0)}, {vr(EA + 1)}"]
    s2c += cexp(vr(EA + 1), LSEG, LSEG + 1, EA + 2, EA + 3)
    s2c += [f"v_add_u32 {vr(EA + k)}, {4096 * k}, {vr(EA)}" for k in range(1, 4)]
    epoll = cfg.get("epoll", 2)
    QS[0].fill.append((s2c, 26, 64 * epoll))
    QS[0].fill.append((s2a, *cfg.get("s2awin", (30, 64 * (epoll + 1) + 30))))
    QS[epoll].fill.append(([f"s_lshl_b32 {sr(sFO)}, {sr(sPG)}, 7\n s_add_u32 {sr(sFO)}, {sr(sFO)}, {FL_E * 128}",
                            sync.load(S_FLG, sr(sFO), vPA, vPV)], 4, 10))
    QS[epoll].at_barrier.append(sync.check("E", S_FLG, sr(sFO), vPA, vPV))
    QS[epoll].fill.append(([f"buffer_load_dwordx2 {vr(EV + 2 * k, 2)}, {vr(EA + k)}, {sr(S_E, 4)}, 0 offen sc1"
                            for k in range(4)], 51, 62))
    A = 60
    s2b = cmadd(A, A + 1, L128, L128 + 1, EV, EV + 1, EV + 2, EV + 3)
    s2b += cmadd(A + 2, A + 3, L128, L128 + 1, A, A + 1, EV + 4, EV + 5)
    s2b += cmadd(A, A + 1, L128, L128 + 1, A + 2, A + 3, EV + 6, EV + 7)

    def cmul(d, l, h):
        return [f"v_mul_f32 {vr(d)}, {vr(l)}, {vr(h)}", f"v_mul_f32 {vr(d + 1)}, {vr(l)}, {vr(h + 1)}",
                f"v_fma_f32 {vr(d)}, -{vr(l + 1)}, {vr(h + 1)}, {vr(d)}", f"v_fmac_f32 {vr(d + 1)}, {vr(l + 1)}, {vr(h)}"]

    s2b += cmul(A + 2, LQ, A)
    for sw in ("16", "32"):
        s2b += [f"v_mov_b32 {vr(A)}, {vr(A + 2)}", f"v_mov_b32 {vr(A + 1)}, {vr(A + 3)}",
                f"v_permlane{sw}_swap_b32 {vr(A)}, {vr(A + 2)}", f"v_permlane{sw}_swap_b32 {vr(A + 1)}, {vr(A + 3)}",
                f"v_add_f32 {vr(A + 2)}, {vr(A + 2)}, {vr(A)}", f"v_add_f32 {vr(A + 3)}, {vr(A + 3)}, {vr(A + 1)}"]
    s2b += cmadd(A, A + 1, LSEG, LSEG + 1, A + 2, A + 3, vPRE, vPRE + 1)
    s2b += cmul(A + 2, COEF, A)
    cur = (A + 2, A + 3)
    for t in range(16):
        d = (ure(t), RB + 16 + t)
        s2b += cmadd(d[0], d[1], LAM, LAM + 1, cur[0], cur[1], d[0], d[1])
        if t & 1:
            s2b += [f"v_cvt_pk_bf16_f32 {vr(HP + t // 2)}, {vr(cur[0])}, {vr(d[0])}",
                    f"v_cvt_pk_bf16_f32 {vr(HP + 8 + t // 2)}, -{vr(cur[1])}, -{vr(d[1])}"]
        cur = d
    s2b += [f"v_mov_b32 {vr(vSIG2)}, {vr(vSIG)}", f"v_mov_b32 {vr(vONE2)}, 1"]
    hst = [f"""s_lshl_b32 {sr(sT1)}, {sr(sC)}, 18
    s_lshr_b32 {sr(sT2)}, {sr(sW)}, 1
    s_lshl_b32 {sr(sT2)}, {sr(sT2)}, 17
    s_add_u32 {sr(sT1)}, {sr(sT1)}, {sr(sT2)}
    s_lshl_b32 {sr(sT2)}, {sr(sPG)}, 13
    s_add_u32 {sr(sT1)}, {sr(sT1)}, {sr(sT2)}
    s_and_b32 {sr(sT2)}, {sr(sW)}, 1
    s_lshl_b32 {sr(sT2)}, {sr(sT2)}, 11
    s_add_u32 {sr(sT1)}, {sr(sT1)}, {sr(sT2)}
    s_add_u32 {sr(sT1)}, {sr(sT1)}, {WS_HF}"""]
    for reim in range(2):
        for half in range(2):
            hst.append(f"buffer_store_dwordx4 {vr(HP + 8 * reim + 4 * half, 4)}, {vr(vL16)}, {sr(S_WS, 4)}, {sr(sT1)} "
                       f"offen offset:{half * 1024} sc1 @@hst")
        if reim == 0:
            hst.append(f"s_add_u32 {sr(sT1)}, {sr(sT1)}, 4096")
    s2lo, s2hi, hhi = cfg.get("s2bwin", (64 * (epoll + 1) + 40, 64 * 5 + 40, 64 * 6))
    assert s2lo >= cfg.get("s2awin", (30, 64 * (epoll + 1) + 30))[1] and hhi <= 64 * 7 + 40
    QS[0].fill.append((s2b, s2lo, s2hi))
    QS[0].fill.append((hst, s2hi, hhi))

    QS[6].fill.append(([f"v_and_b32 {vr(vPA)}, 7, v0", f"v_lshlrev_b32 {vr(vPA)}, 2, {vr(vPA)}",
                        f"s_lshl_b32 {sr(sFO)}, {sr(sH)}, 7", sync.load(S_FLG, sr(sFO), vPA, vPV)], 6, 14))
    QS[6].at_barrier.append(sync.check("KV", S_FLG, sr(sFO), vPA, vPV))

    def qpack(cg, groups=(0, 1)):
        out = []
        for g in groups:
            for hq in range(2):
                qb = 2 * g + hq
                dst = QREG[g] + 4 * (2 * cg + hq)
                src = [qacc(2 * cg, qb) + k for k in range(4)] + [qacc(2 * cg + 1, qb) + k for k in range(4)]
                out += [f"v_cvt_pk_bf16_f32 {vr(dst + k)}, {vr(src[2 * k])}, {vr(src[2 * k + 1])}" for k in range(4)]
        return out

    QS[7].fill.append((qpack(0), 43, 52))
    QS[7].fill.append((qpack(1), 52, 61))
    QS[6].fill.append((ATT.selectors(), 16, 90))
    if cfg.get("touch4", True):
        tq4 = Prog()
        touch_code(S_CODE, "KA_pc4", 77, tq4)
        QS[5].fill.append(([x.text for x in tq4.ins], 0, 24))

    P1 = Pipe(stages, dma_group, cfg, "blk", cfg.get("npro", 6), fine(0))
    pairfree = [max(P1.free_at[2 * q], P1.free_at[2 * q + 1]) for q in range(5)]
    r0 = min(range(5), key=lambda q: [pairfree[(q + t) % 5] for t in range(4)])

    def tile_dma(tile, addr):
        out = []
        for j in range(8):
            su = []
            if j % 4 == 0:
                su = [f"s_mov_b32 {sr(sD0)}, {tile * 32768 + j * 1024}", f"s_add_u32 m0, {sr(sW8K)}, {addr + j * 1024}"]
                if tile == 0:
                    su[0] = f"s_bitcmp1_b32 {sr(sW)}, 0\n s_cselect_b32 {sr(sD0)}, {1 << 21}, 0" if j == 0 else \
                        f"s_add_u32 {sr(sD0)}, {sr(sD0)}, 4096"
            out.append((su, f"buffer_load_dwordx4 {vr(vW)}, {sr(S_KVR, 4)}, {sr(sD0)} offen offset:{(j % 4) * 1024} "
                            f"sc1 lds @@tile{tile}"))
        return out

    def tile_addr(t):
        return ((r0 + t) % 5) * 2 * BLK

    poll_bar = P1.bar[len(stages) - 1]
    P1.extra_fixed.append((poll_bar, f"s_lshl_b32 {sr(sW8K)}, {sr(sW)}, 13\n v_add_u32 {vr(vW)}, {sr(sW8K)}, {vr(vL16)}"))
    for stg, slot, txt in touch_fixed:
        P1.extra_fixed.append((P1.start[stg] + slot, txt))
    ntile_pre = 0
    tp = cfg.get("tilepace", 4)
    for t in range(cfg.get("ntilepre", 2)):
        e = max(P1.bar[pairfree[(r0 + t) % 5]], poll_bar) + 1
        if max(P1.dcur, e) + 8 * tp + 1 >= P1.total:
            break
        P1.add_dma(tile_dma(t, tile_addr(t)), e, tp, P1.total - 1)
        ntile_pre += 1
    P1.schedule()

    for gi, grp in enumerate(P1.prolog_dma):
        for setup, ins in grp:
            p("\n".join(setup))
            p(ins)
        if gi == 2:
            if timing:
                p("s_memrealtime s[92:93]")
            p(late)
            tlb = cfg.get("tlb", 0)
            if tlb:
                p(f"v_lshlrev_b32 {vr(vX0)}, {tlb}, v0\n s_lshl_b32 {sr(sT0)}, {sr(sW)}, {tlb - 2}")
                for k, srd in enumerate((S_WS, S_XA, S_BSEL, S_XB, S_WQ, S_WO, S_CSEL)):
                    p(f"buffer_load_dword {vr(TMP + 1 + k)}, {vr(vX0)}, {sr(srd, 4)}, {sr(sT0)} offen offset:8")
    if timing:
        p(f"v_mov_b32 {vr(vX0)}, {sr(sRET)}\n v_mov_b32 {vr(vX1)}, {sr(sRET)}\n v_mov_b32 v94, {63 * 8}")
        p(f"buffer_store_dwordx2 {vr(vX0, 2)}, v94, {sr(S_WS, 4)}, {sr(sStamp)} offen")
        p(f"v_mov_b32 v92, s90\n v_mov_b32 v93, s92\n v_mov_b32 v94, {62 * 8}")
        p(f"buffer_store_dwordx2 v[92:93], v94, {sr(S_WS, 4)}, {sr(sStamp)} offen")
    st(94)
    p(f"@need {P1.first_need}\n s_barrier")
    st(94)
    for t in P1.prolog_reads:
        p(t)
    xb = {}
    if timing:
        for n in (8, 10, 14, 16):
            tq = Prog()
            stamp(tq, True, nstamp[0], sTS, 92, 94, S_WS, sStamp)
            nstamp[0] += 1
            xb[P1.start[n]] = "\n".join(x.text for x in tq.ins)
    P1.emit(p, xb)
    if timing:
        p(f"v_lshlrev_b32 v94, 2, v0\n buffer_store_dword v95, v94, {sr(S_WS, 4)}, {sr(sStamp)} offen offset:768")
    st()

    p("@need #tile0\n s_barrier")
    rest = []
    for t in range(ntile_pre, 3 + cfg.get("deep", 1)):
        rest += ["\n".join(su + [ins]) for su, ins in tile_dma(t, tile_addr(t))]
    hsig = signal(f"s_lshl_b32 {sr(sFO)}, {sr(sC)}, 5\n s_add_u32 {sr(sFO)}, {sr(sFO)}, {sr(sPG)}\n"
                  f"s_lshl_b32 {sr(sFO)}, {sr(sFO)}, 2\n s_add_u32 {sr(sFO)}, {sr(sFO)}, {FL_H * 128}", vSIG2, vONE2)

    LACC, HACC, TRING, SACC, Y, XR = 32, 96, 160, 208, 224, 240
    vCX, vT5 = 192, 197
    vF5, vH = 8, 13
    W32 = 32768
    vO, vOA, vWr, vRd, vX = vVST, vSEG, vRD, vCST, 250
    sOA, sOB, sPX, sPI = sM0, sKVOFF, sSLOT, sCNT
    TSTR = 144
    ro, r2 = cfg.get("roto", (0, 0)), cfg.get("rot2", (1, 2))
    d2a = [f"""
    s_and_b32 {sr(sCT)}, {sr(sH)}, 3
    s_lshr_b32 {sr(sKQ)}, {sr(sH)}, 2
    s_mul_i32 {sr(sRO)}, {sr(sI)}, {ro[0]}
    s_mul_i32 {sr(sT2)}, {sr(sCT)}, {ro[1]}
    s_add_u32 {sr(sRO)}, {sr(sRO)}, {sr(sT2)}
    s_and_b32 {sr(sRO)}, {sr(sRO)}, 7
    s_lshl_b32 {sr(sRO2)}, {sr(sRO)}, 14
    s_lshl_b32 {sr(sRO)}, {sr(sRO)}, 16
    s_lshl_b32 {sr(sT2)}, {sr(sKQ)}, 17
    s_add_u32 {sr(sT2)}, {sr(sT2)}, {sr(sWLDS)}
    s_add_u32 {sr(sT2)}, {sr(sT2)}, {WS_CTX}
    s_lshl_b32 {sr(sT3)}, {sr(sI)}, 20
    s_add_u32 {sr(sCTXO)}, {sr(sT2)}, {sr(sT3)}
    s_add_u32 {sr(sT2)}, {sr(sT2)}, {15 << 20}
    s_sub_u32 {sr(sCTXH)}, {sr(sT2)}, {sr(sT3)}
    s_lshl_b32 {sr(sWOO)}, {sr(sKQ)}, 19
    s_lshl_b32 {sr(sT2)}, {sr(sW)}, 14
    s_add_u32 {sr(sWOO)}, {sr(sWOO)}, {sr(sT2)}
    s_lshl_b32 {sr(sT2)}, {sr(sCT)}, 8
    s_add_u32 {sr(sWOO)}, {sr(sWOO)}, {sr(sT2)}
    """]
    d2b = f"""
    s_lshl_b32 {sr(sT2)}, {sr(sI)}, 1
    s_sub_u32 {sr(sT2)}, {r0 + 33}, {sr(sT2)}
    s_mul_i32 {sr(sT3)}, {sr(sT2)}, 52
    s_lshr_b32 {sr(sT3)}, {sr(sT3)}, 8
    s_mul_i32 {sr(sT3)}, {sr(sT3)}, 5
    s_sub_u32 {sr(sT2)}, {sr(sT2)}, {sr(sT3)}
    s_lshl_b32 {sr(sT2)}, {sr(sT2)}, 15
    s_add_u32 {sr(sMB)}, {sr(sT2)}, {sr(sWLDS)}
    """
    for q in range(1, 5):
        d2b += f"""s_add_u32 {sr(sMB + q)}, {sr(sMB + q - 1)}, 32768
        s_cmp_ge_u32 {sr(sMB + q)}, {NBLK * BLK}
        s_cselect_b32 {sr(sMB + q)}, {sr(sWLDS)}, {sr(sMB + q)}
        """
    d3x = [f"""
    s_lshr_b32 {sr(sT2)}, {sr(sKQ)}, 2
    s_lshl_b32 {sr(sT2)}, {sr(sT2)}, 6
    v_add_u32 {vr(vNa)}, 16, v0
    v_and_b32 {vr(vNa)}, 32, {vr(vNa)}
    v_xor_b32 {vr(vNa)}, {vr(vNa)}, {vr(vN)}
    v_add_u32 {vr(vNa)}, {sr(sT2)}, {vr(vNa)}
    v_xor_b32 {vr(vNb)}, 64, {vr(vNa)}
    s_lshr_b32 {sr(sT2)}, {sr(sW)}, 1
    s_lshl_b32 {sr(sT2)}, {sr(sT2)}, 12
    s_sub_u32 {sr(sT2)}, {sr(sT2)}, {sr(sWLDS)}
    v_add_u32 {vr(vF + 1)}, {sr(sT2)}, {vr(vL16)}
    s_and_b32 {sr(sT2)}, {sr(sW)}, 1
    s_lshl_b32 {sr(sT2)}, {sr(sT2)}, 11
    s_sub_u32 {sr(sT2)}, {sr(sT2)}, {sr(sWLDS)}
    v_lshrrev_b32 {vr(vX0)}, 2, v0
    v_lshl_add_u32 {vr(vF + 2)}, {vr(vX0)}, 6, {sr(sT2)}
    v_and_b32 {vr(vX0)}, 3, v0
    v_lshl_add_u32 {vr(vF + 2)}, {vr(vX0)}, 3, {vr(vF + 2)}
    v_bfe_u32 {vr(vX0)}, v0, 4, 1
    v_lshl_add_u32 {vr(vF + 2)}, {vr(vX0)}, 5, {vr(vF + 2)}
    """]
    tail1 = []
    for q in range(5):
        tail1 += [f"v_add_u32 {vr(vCX + q)}, {sr(sMB + q)}, {vr(vF + 1)}",
                  f"v_add_u32 {vr(vT5 + q)}, {sr(sMB + q)}, {vr(vF + 2)}",
                  f"v_xor_b32 {vr(vT5 + 5 + q)}, 32, {vr(vT5 + q)}"]
    tail2 = [f"""
    s_and_b32 {sr(sT0)}, s2, 7
    s_lshr_b32 {sr(sT1)}, s2, 3
    s_lshl_b32 {sr(sRT64)}, {sr(sT0)}, 2
    s_lshr_b32 {sr(sT2)}, {sr(sT1)}, 3
    s_add_u32 {sr(sRT64)}, {sr(sRT64)}, {sr(sT2)}
    s_and_b32 {sr(sCT64)}, {sr(sT1)}, 7
    s_mul_i32 {sr(sR2)}, {sr(sCT64)}, {r2[0]}
    s_mul_i32 {sr(sT2)}, {sr(sT2)}, {r2[1]}
    s_add_u32 {sr(sR2)}, {sr(sR2)}, {sr(sT2)}
    s_and_b32 {sr(sR2)}, {sr(sR2)}, 7
    s_lshl_b32 {sr(sR2)}, {sr(sR2)}, 7
    s_lshl_b32 {sr(sHO)}, {sr(sRT64)}, 17
    s_add_u32 {sr(sHO)}, {sr(sHO)}, {sr(sWLDS)}
    s_add_u32 {sr(sHO)}, {sr(sHO)}, {WS_HF}
    s_lshl_b32 {sr(sCO)}, {sr(sCT64)}, 16
    s_lshr_b32 {sr(sT2)}, {sr(sW)}, 1
    s_lshl_b32 {sr(sT3)}, {sr(sT2)}, 11
    s_add_u32 {sr(sCO)}, {sr(sCO)}, {sr(sT3)}
    v_lshrrev_b32 {vr(vC4)}, 2, v0
    v_mul_u32_u24 {vr(vC4)}, 3072, {vr(vC4)}
    v_add_u32 {vr(vC4)}, {vr(vC4)}, {vr(vN)}
    v_lshrrev_b32 {vr(vX0)}, 5, v0
    s_lshl_b32 {sr(sT1)}, {sr(sW)}, 8
    s_sub_u32 {sr(sT1)}, {sr(sT1)}, {sr(sWLDS)}
    v_lshl_add_u32 {vr(vX1)}, {vr(vX0)}, 11, {sr(sT1)}
    v_bfe_u32 {vr(vX0)}, v0, 1, 1
    v_lshl_add_u32 {vr(vX1)}, {vr(vX0)}, 10, {vr(vX1)}
    v_bfe_u32 {vr(vX0)}, v0, 4, 1
    v_lshl_add_u32 {vr(vX1)}, {vr(vX0)}, 7, {vr(vX1)}
    v_bfe_u32 {vr(vX0)}, v0, 2, 2
    v_lshl_add_u32 {vr(vX1)}, {vr(vX0)}, 4, {vr(vX1)}
    v_and_b32 {vr(vX0)}, 1, v0
    v_lshl_add_u32 {vr(vX1)}, {vr(vX0)}, 3, {vr(vX1)}
    v_subrev_u32 {vr(vF)}, {sr(sWLDS)}, {vr(vF)}
    """]
    for q in range(5):
        tail2 += [f"v_add_u32 {vr(vH + q)}, {sr(sMB + q)}, {vr(vX1)}", f"v_add_u32 {vr(vF5 + q)}, {sr(sMB + q)}, {vr(vF)}"]
    touch2 = lines(f"""
    s_cmp_eq_u32 {sr(sI)}, 4
    s_cselect_b32 {sr(sT1)}, 1, 0
    s_mul_i32 {sr(sT2)}, {sr(sI)}, 9
    s_bfe_u32 {sr(sT2)}, {sr(sT2)}, 0x30002
    s_sub_u32 {sr(sT2)}, {sr(sT2)}, {sr(sT1)}
    s_add_u32 {sr(sT3)}, {sr(sT1)}, 5
    v_lshrrev_b32 v226, {sr(sT3)}, v0
    v_lshlrev_b32 v226, 17, v226
    v_add_lshl_u32 v226, v226, v0, 7
    s_and_b32 {sr(sT0)}, s2, 31
    s_lshl_b32 {sr(sT0)}, {sr(sT0)}, 2
    s_add_u32 {sr(sT0)}, {sr(sT0)}, {sr(sW)}
    s_lshl_b32 {sr(sT3)}, {sr(sT0)}, 3
    s_add_u32 {sr(sT3)}, {sr(sT3)}, {sr(sT2)}
    s_lshl_b32 {sr(sT3)}, {sr(sT3)}, 12
    buffer_load_dword v237, v226, {sr(S_WO, 4)}, {sr(sT3)} offen
    s_add_u32 {sr(sT3)}, {sr(sT1)}, 3
    v_lshrrev_b32 v226, {sr(sT3)}, v0
    v_lshlrev_b32 v226, 17, v226
    v_add_lshl_u32 v226, v226, v0, 7
    s_lshr_b32 {sr(sT0)}, {sr(sT0)}, 1
    s_lshl_b32 {sr(sT0)}, {sr(sT0)}, 3
    s_add_u32 {sr(sT0)}, {sr(sT0)}, {sr(sT2)}
    s_lshl_b32 {sr(sT0)}, {sr(sT0)}, 10
    buffer_load_dword v224, v226, {sr(S_CSEL, 4)}, {sr(sT0)} offen
    """) if cfg.get("touch2", True) else []

    mid_fill = [f"""
    s_lshr_b32 {sr(sCF)}, {sr(sH)}, 2
    s_lshl_b32 {sr(sCF)}, {sr(sCF)}, 3
    s_add_u32 {sr(sCF)}, {sr(sCF)}, {sr(sI)}
    s_lshl_b32 {sr(sCF)}, {sr(sCF)}, 7
    s_add_u32 {sr(sFO)}, {sr(sCF)}, {FL_CTX * 128}
    s_and_b32 {sr(sCF)}, {sr(sH)}, 3
    s_lshl_b32 {sr(sCF)}, {sr(sCF)}, 2
    s_add_u32 {sr(sCF)}, {sr(sCF)}, {sr(sFO)}
    v_and_b32 {vr(vPA2)}, 3, v0
    v_lshlrev_b32 {vr(vPA2)}, 2, {vr(vPA2)}
    """]

    def ctx_signal(g):
        return (f"buffer_store_dword {vr(vONE2)}, {vr(vSIG2)}, {sr(S_FLG, 4)}, {sr(sCF)} offen "
                f"offset:{64 * g} sc1")

    tring = [0]
    sring = [0, 0]

    def s2_stage(n):
        S = Stage(f"s2_{n}", 8)
        S.frac = 0.8
        S.group = 4
        S.blocks = [("H", n), ("C", n)]
        for ks in range(4):
            rr = 32 + 4 * (sring[1] % 8)
            sring[1] += 1
            for x in range(2):
                S.reads.append((tr_read(ar(rr + 2 * x, 2), vH, 0, ks * 4096 + x * 64, W32), len(S.mf)))
            for db in range(4):
                r = ar((192 + 4 * (sring[0] % 24)) % 256, 4)
                sring[0] += 1
                S.reads.append((frag_read(r, vF5, 1, (db >> 1) * 8192 + (ks & 1) * 4096 + (db & 1) * 2048 + (ks >> 1) * 1024,
                                          W32), len(S.mf)))
                d = SACC + 4 * db
                c = "0" if (n == 0 and ks == 0) else vr(d, 4)
                S.mf.append(f"v_mfma_f32_16x16x32_bf16 {vr(d, 4)}, {ar(rr, 4)}, {r}, {c}")
        return S

    def o_stage(g, n):
        S = Stage(f"o{g}_{n}", 12)
        S.blocks = [("WO", n), ("CX", (0, n))] if g == 0 else [("CX", (1, n))]
        acc = HACC if g else LACC
        for kk in range(2):
            ks = 2 * n + kk
            wb = (192, 0, 128, 64)[ks >> 2] + 16 * (ks & 3)
            if g == 0:
                for mb in range(4):
                    for x in range(2):
                        S.reads.append((tr_read(ar(wb + 4 * mb + 2 * x, 2), vT5 + 5 * (mb & 1), 0,
                                                kk * 8192 + (mb >> 1) * 1024 + x * 4096, W32), len(S.mf) + mb))
            for tb in (1, 2, 3, 0):
                r = vr(TRING + 4 * (tring[0] % 8), 4)
                tring[0] += 1
                S.reads.append((frag_read(r, vCX, 1 - g, kk * 8192 + tb * 1024, W32), len(S.mf)))
                for mb in range(4):
                    d = acc + 16 * tb + 4 * mb
                    c = "0" if ks == 0 else vr(d, 4)
                    S.mf.append(f"v_mfma_f32_16x16x32_bf16 {vr(d, 4)}, {ar(wb + 4 * mb, 4)}, {r}, {c}")
        return S

    TL = [o_stage(0, n) for n in range(8)]
    TH = [merge_stages(f"oh_{n}", [o_stage(1, 2 * n), o_stage(1, 2 * n + 1)]) for n in range(4)]
    T2 = [s2_stage(n) for n in range(8)]
    if cfg.get("s2merge"):
        T2 = [merge_stages(f"s2m_{n}", T2[2 * n:2 * n + 2]) for n in range(4)]
    T2[0].lb = 14
    tst = TL + TH + T2
    n2 = len(T2)
    for S in TL + TH:
        S.minpace = cfg.get("tpace", 4.0)
    for S in T2:
        S.minpace = 1.0
    for k, v in cfg.get("tquota", {}).items():
        tst[int(k)].quota, tst[int(k)].dstart = v
    bsig, bpoll = cfg.get("bsig", 2), cfg.get("bpoll", 4)
    TL[bsig].at_barrier.append("@need #ctxst")
    TL[bsig].after_barrier.append(ctx_signal(1))
    ep = ATT.ctx_epilogue(cfg, 1, packed=HACC + 16)
    epv, eps = [x for x in ep if x.startswith("v_")], [x for x in ep if not x.startswith("v_")]
    if cfg.get("epist"):
        epv, eps = ep, []
    nexp = cfg.get("nexp", 999)
    elo, ehi, slo, shi = cfg.get("epiwin", (0, 1, 1, 16))
    if epv[nexp:]:
        TL[0].fill.append((epv[nexp:], elo, ehi))
    assert ehi <= slo and shi < 32 * (bsig + 1) - 13
    if eps:
        TL[0].fill.append((eps, slo, shi))
    TL[0].fill.append((tail2, ehi, 32 * bpoll - 4))
    TL[bpoll].fill.append(([f"""
    s_add_u32 {sr(sT0)}, {sr(sFO)}, 64
    s_lshr_b32 {sr(sT1)}, {sr(sRT64)}, 1
    s_lshl_b32 {sr(sT1)}, {sr(sT1)}, 7
    s_add_u32 {sr(sT1)}, {sr(sT1)}, {FL_H * 128}
    v_add_u32 {vr(vX0)}, {sr(sT0)}, {vr(vPA2)}
    v_and_b32 {vr(vX1)}, 15, v0
    v_lshl_add_u32 {vr(vX1)}, {vr(vX1)}, 2, {sr(sT1)}
    v_cmp_gt_u32 vcc, 32, v0
    v_cndmask_b32 {vr(vPA2)}, {vr(vX1)}, {vr(vX0)}, vcc
    {sync.load(S_FLG, "0", vPA2, vPV2)}
    """], -4, 6))
    TL[bpoll].at_barrier.append(sync.check("B", S_FLG, "0", vPA2, vPV2))
    for S in TH + T2:
        S.gate = bpoll

    def pstore(g):
        acc = HACC if g else LACC
        out = []
        for tb in (1, 2, 3, 0):
            for mp in range(2):
                u = 2 * tb + mp
                if u == 0:
                    continue
                r = acc + 8 * u
                out += [f"s_add_u32 {sr(sT2)}, {sr(sKQ)}, {tb}", f"s_and_b32 {sr(sT2)}, {sr(sT2)}, 3",
                        f"s_and_b32 {sr(sT3)}, {sr(sKQ)}, 4", f"s_or_b32 {sr(sT2)}, {sr(sT2)}, {sr(sT3)}"] \
                    if (mp == 0 or tb == 0) else []
                if mp:
                    out.append(f"s_xor_b32 {sr(sT2)}, {sr(sT2)}, 4")
                out += [f"s_mul_i32 {sr(sT3)}, {sr(sT2)}, {7 * 4096}", f"s_add_u32 {sr(sT3)}, {sr(sT3)}, {sr(sPX)}",
                        f"s_add_u32 {sr(sT3)}, {sr(sT3)}, {g * 56 * 4096 + (u - 1) * 4096}"]
                out += [f"v_cvt_pk_bf16_f32 {vr(r + k)}, {vr(r + 2 * k)}, {vr(r + 2 * k + 1)}" for k in range(4)]
                out.append(f"buffer_store_dwordx4 {vr(r, 4)}, {vr(vL16)}, {sr(S_WS, 4)}, {sr(sT3)} offen sc1 @@pst{g}")
        return out

    def psig(g):
        return (f"buffer_store_dword {vr(vONE2)}, {vr(vSIG2)}, {sr(S_FLG, 4)}, {sr(sCF)} offen "
                f"offset:{128 * g} sc1")

    def pload(g):
        pr = (HACC if g else LACC) + 8
        out = []
        for k in range(7):
            out.append(f"buffer_load_dwordx4 {vr(pr + 4 * k, 4)}, {vr(vL16)}, {sr(S_WS, 4)}, {sr(sPI)} offen sc1")
            out.append(f"s_add_u32 {sr(sPI)}, {sr(sPI)}, {4096 if k < 6 else 50 * 4096}")
        return out

    def padd(g):
        acc = HACC if g else LACC
        t = acc + 40
        out = []
        for k in range(7):
            for j in range(4):
                r = acc + 8 + 4 * k + j
                out += [f"v_lshlrev_b32 {vr(t)}, 16, {vr(r)}", f"v_and_b32 {vr(t + 1)}, 0xffff0000, {vr(r)}",
                        f"v_add_f32 {vr(acc + 2 * j)}, {vr(acc + 2 * j)}, {vr(t)}",
                        f"v_add_f32 {vr(acc + 2 * j + 1)}, {vr(acc + 2 * j + 1)}, {vr(t + 1)}"]
        return out

    D = SACC
    epi = [f"""
    s_lshl_b32 {sr(sT0)}, {sr(sI)}, 2
    s_add_u32 {sr(sT0)}, {sr(sT0)}, {sr(sCT)}
    s_lshl_b32 {sr(sFO)}, {sr(sT0)}, 8
    s_add_u32 {sr(sFO)}, {sr(sFO)}, {FL_P * 128}
    s_lshl_b32 {sr(sCF)}, {sr(sKQ)}, 2
    s_add_u32 {sr(sCF)}, {sr(sCF)}, {sr(sFO)}
    s_mul_i32 {sr(sPX)}, {sr(sT0)}, {112 * 4096}
    s_lshl_b32 {sr(sT0)}, {sr(sW)}, 10
    s_add_u32 {sr(sPX)}, {sr(sPX)}, {sr(sT0)}
    s_add_u32 {sr(sPX)}, {sr(sPX)}, {WS_PX}
    s_mul_i32 {sr(sPI)}, {sr(sKQ)}, {7 * 4096}
    s_add_u32 {sr(sPI)}, {sr(sPI)}, {sr(sPX)}
    v_and_b32 {vr(vPA2)}, 7, v0
    v_lshlrev_b32 {vr(vPA2)}, 2, {vr(vPA2)}
    v_lshrrev_b32 {vr(vX0)}, 4, v0
    v_and_b32 {vr(vX1)}, 15, v0
    v_lshlrev_b32 {vr(vX)}, 12, {vr(vX0)}
    v_lshl_add_u32 {vr(vX)}, {vr(vX1)}, 3, {vr(vX)}
    s_lshl_b32 {sr(sOA)}, {sr(sRT64)}, 2
    s_add_u32 {sr(sOA)}, {sr(sOA)}, {sr(sW)}
    s_lshl_b32 {sr(sT0)}, {sr(sOA)}, 14
    s_lshl_b32 {sr(sT1)}, {sr(sCT64)}, 7
    s_add_u32 {sr(sT0)}, {sr(sT0)}, {sr(sT1)}
    """]
    for n in range(4):
        epi.append(f"buffer_load_dwordx2 {vr(XR + 2 * n, 2)}, {vr(vX)}, {sr(S_XA, 4)}, {sr(sT0)} offen offset:{n * 1024}")
    epi.append(f"""
    v_lshlrev_b32 {vr(vX)}, 3, {vr(vX1)}
    buffer_load_dwordx2 {vr(XR + 8, 2)}, {vr(vX)}, {sr(S_DSK, 4)}, {sr(sT1)} offen
    """)
    epi2 = [f"""
    v_lshlrev_b32 {vr(vOA)}, 14, {vr(vX0)}
    v_lshl_add_u32 {vr(vOA)}, {vr(vX1)}, 4, {vr(vOA)}
    s_lshl_b32 {sr(sOA)}, {sr(sOA)}, 16
    s_lshl_b32 {sr(sT1)}, {sr(sCT64)}, 8
    s_add_u32 {sr(sOA)}, {sr(sOA)}, {sr(sT1)}
    v_mul_u32_u24 {vr(vWr)}, {TSTR}, {vr(vX1)}
    v_lshl_add_u32 {vr(vWr)}, {vr(vX0)}, 4, {vr(vWr)}
    v_lshrrev_b32 {vr(vX0)}, 3, v0
    v_and_b32 {vr(vX1)}, 7, v0
    v_mul_u32_u24 {vr(vRd)}, {TSTR}, {vr(vX0)}
    v_lshl_add_u32 {vr(vRd)}, {vr(vX1)}, 4, {vr(vRd)}
    s_add_u32 {sr(sT0)}, TRBASE
    v_add_u32 {vr(vRd)}, {sr(sT0)}, {vr(vRd)}
    v_add_u32 {vr(vWr)}, {sr(sT0)}, {vr(vWr)}
    v_lshlrev_b32 {vr(vO)}, 12, {vr(vX0)}
    v_lshl_add_u32 {vr(vO)}, {vr(vX1)}, 4, {vr(vO)}
    s_lshr_b32 {sr(sT1)}, {sr(sW)}, 1
    s_lshl_b32 {sr(sT1)}, {sr(sT1)}, 2
    s_and_b32 {sr(sT0)}, {sr(sKQ)}, 3
    s_add_u32 {sr(sT1)}, {sr(sT1)}, {sr(sT0)}
    s_lshl_b32 {sr(sOB)}, {sr(sT1)}, 16
    s_lshl_b32 {sr(sT1)}, {sr(sCT)}, 1
    s_and_b32 {sr(sT0)}, {sr(sW)}, 1
    s_add_u32 {sr(sT1)}, {sr(sT1)}, {sr(sT0)}
    s_lshl_b32 {sr(sT1)}, {sr(sT1)}, 1
    s_lshr_b32 {sr(sT0)}, {sr(sKQ)}, 2
    s_add_u32 {sr(sT1)}, {sr(sT1)}, {sr(sT0)}
    s_lshl_b32 {sr(sT1)}, {sr(sT1)}, 7
    s_add_u32 {sr(sOB)}, {sr(sOB)}, {sr(sT1)}
    v_lshlrev_b32 {vr(D)}, 16, {vr(XR + 8)}
    v_and_b32 {vr(D + 1)}, 0xffff0000, {vr(XR + 8)}
    v_lshlrev_b32 {vr(D + 2)}, 16, {vr(XR + 9)}
    v_and_b32 {vr(D + 3)}, 0xffff0000, {vr(XR + 9)}
    """]
    for n in range(4):
        y, x = Y + 4 * n, XR + 2 * n
        epi2 += [f"v_lshlrev_b32 {vr(y)}, 16, {vr(x)}", f"v_and_b32 {vr(y + 1)}, 0xffff0000, {vr(x)}",
                 f"v_lshlrev_b32 {vr(y + 2)}, 16, {vr(x + 1)}", f"v_and_b32 {vr(y + 3)}, 0xffff0000, {vr(x + 1)}"]
        epi2 += [f"v_mul_f32 {vr(y + e)}, {vr(y + e)}, {vr(D + e)}" for e in range(4)]
        epi2 += [f"v_cvt_pk_bf16_f32 {vr(x)}, {vr(y)}, {vr(y + 1)}", f"v_cvt_pk_bf16_f32 {vr(x + 1)}, {vr(y + 2)}, {vr(y + 3)}",
                 f"v_lshlrev_b32 {vr(y)}, 16, {vr(x)}", f"v_and_b32 {vr(y + 1)}, 0xffff0000, {vr(x)}",
                 f"v_lshlrev_b32 {vr(y + 2)}, 16, {vr(x + 1)}", f"v_and_b32 {vr(y + 3)}, 0xffff0000, {vr(x + 1)}"]
    trbase = [None]
    assert bsig < bpoll < 7
    TL[bpoll + 1].fill.append((epi, 0, 32 * (7 - bpoll) - 2))
    TH[0].fill.append((pstore(0), 1, cfg.get("pl_hi", 50)))
    TH[1].fill.append((lambda a_: [x.replace("TRBASE", str(trbase[0])) for x in epi2], 0, 90))
    lsig, lpoll = cfg.get("lsig", 1), cfg.get("lpoll", 7)
    hsg, hpl = cfg.get("psig", 2), cfg.get("ppoll", 99)
    R = TH + T2
    onep = cfg.get("onep", True)
    if not onep:
        R[lsig].at_barrier.append("@need #pst0")
        R[lsig].after_barrier.append(psig(0))
        R[lpoll].fill.append(([sync.load(S_FLG, sr(sFO), vPA2, vPV2)], *cfg.get("lpollat", (-6, -2))))
        R[lpoll].at_barrier.append(sync.check("PL", S_FLG, sr(sFO), vPA2, vPV2))
        R[lpoll].after_barrier += pload(0) + [f"s_add_u32 {sr(sFO)}, {sr(sFO)}, 128"]
    else:
        TH[2].fill.append(([f"s_add_u32 {sr(sFO)}, {sr(sFO)}, 128"], 0, 2))
    T2[0].fill.append((pstore(1), -10, 15))
    if hsg < n2 - 1:
        T2[hsg].at_barrier.append("@need #pst1")
        T2[hsg].after_barrier.insert(0, psig(1))
    if hpl < n2 - 1:
        T2[hpl].fill.append(([sync.load(S_FLG, sr(sFO), vPA2, vPV2)], -6, -2))
        T2[hpl].at_barrier.append(sync.check("PH", S_FLG, sr(sFO), vPA2, vPV2))
        T2[hpl].after_barrier += (pload(0) if onep else []) + pload(1)
    paddl = cfg.get("paddl")
    if paddl:
        R[paddl[0]].fill.append((padd(0), paddl[1], paddl[2]))

    def tail_order(blocks):
        first = [(0, 0), (1, 0), (2, 0), (3, 0), (0, 1), (1, 1)]
        return first + [x for x in blocks if x not in first]

    P2 = Pipe(tst, dma_group, cfg, "tb", cfg.get("npro2", 8), fine(24) and (lambda n: fine(24)(n).replace("v95", "v255")),
              gated=("CX", "H"), order=tail_order, slots=list(range(10)))
    q = [q for q in range(NBLK) if P2.free_at[q] < len(tst)][0]
    trbase[0] = f"{sr(sMB + q // 2)}, {(q % 2) * BLK}"
    P2.schedule()
    dm = ["\n".join(su + [ins]) for grp in P2.prolog_dma for su, ins in grp]

    tc = Prog()
    if cfg.get("touch3", True):
        touch_code(S_CODE, "KA_pc2", 237, tc)
    tcl = [x.text for x in tc.ins]
    acheck = sync.check("A", S_FLG, sr(sFO), vPA2, vPV2)
    npost = cfg.get("npost", 4)
    T = dict(d2=(d2a, [d2b]), d3a=d3x, d3post=[hsig] + mid_fill, s1=[ctx_signal(0)] + tcl + dm[:8],
             sig7="@need #ctxst\n s_barrier\n" + ctx_signal(0) + "\n" + "\n".join(dm[:8]),
             s2=dm[8:12] + [sync.load(S_FLG, sr(sFO), vPA2, vPV2)] + dm[12:16], s2bar=acheck,
             s2post=dm[16:16 + npost], s3=dm[16 + npost:24] + tail1)
    ATT.gen_attention(p, cfg, tile_addr(0), st, pre=qpack(2, (0,)) + qpack(3, (0,)) + qpack(2, (1,)) + qpack(3, (1,)),
                      rest=rest, touch=touch2, T=T)

    p("s_barrier")
    p(f"s_load_dwordx2 {sr(S_OUT, 2)}, s[0:1], {KA['OUT']}\n s_load_dwordx2 {sr(S_DSK, 2)}, s[0:1], {KA['DSK']}")
    rem, ev = dm[24:], epv[:nexp]
    d0 = cfg.get("remstart", 40)
    for k, x in enumerate(ev):
        p(x)
        if rem and k >= d0 and (k - d0) % max(1, (len(ev) - d0) // len(dm[24:])) == 0:
            p(rem.pop(0))
    for x in rem:
        p(x)
    p(f"""
    s_waitcnt lgkmcnt(0)
    s_mov_b32 {sr(S_OUT + 2)}, {2048 * 4096}
    s_mov_b32 {sr(S_OUT + 3)}, {SRD3}
    s_mov_b32 {sr(S_DSK + 2)}, 1024
    s_mov_b32 {sr(S_DSK + 3)}, {SRD3}
    @need {P2.first_need}
    s_barrier
    """)
    st()
    for t in P2.prolog_reads:
        p(t)
    xb = {}
    if timing:
        for n in (8, 12):
            tq = Prog()
            stamp(tq, True, nstamp[0], sTS, 252, 254, S_WS, sStamp)
            nstamp[0] += 1
            xb[P2.start[n]] = "\n".join(x.text for x in tq.ins)
    P2.emit(p, xb)
    if timing:
        p(f"v_lshlrev_b32 v254, 2, v0\n buffer_store_dword v255, v254, {sr(S_WS, 4)}, {sr(sStamp)} offen offset:512")
    st()

    osc = " " + cfg.get("outflag", "sc1")
    if hsg >= n2 - 1:
        p("@need #pst1\n s_barrier\n" + psig(1))
    if hpl >= n2 - 1:
        p(sync.load(S_FLG, sr(sFO), vPA2, vPV2))

    def out_b(g):
        acc = HACC if g else LACC
        for k in range(2):
            p(f"ds_write_b128 {vr(vWr)}, {vr(acc + 4 * k, 4)} offset:{k * 64}")
        p(f"s_lshl_b32 {sr(sT0)}, {sr(sI)}, 19")
        if g:
            p(f"s_sub_u32 {sr(sT0)}, {15 << 19}, {sr(sT0)}")
        p(f"s_add_u32 {sr(sT0)}, {sr(sT0)}, {sr(sOB)}\n s_add_u32 {sr(sT1)}, {sr(sT0)}, {8 * 4096}")
        p("s_waitcnt lgkmcnt(0)")
        for k in range(2):
            p(f"ds_read_b128 {vr(acc + 48 + 4 * k, 4)}, {vr(vRd)} offset:{k * 8 * TSTR}")

    def store_b(g):
        acc = HACC if g else LACC
        for k in range(2):
            p(f"buffer_store_dwordx4 {vr(acc + 48 + 4 * k, 4)}, {vr(vO)}, {sr(S_OUT, 4)}, {sr(sT1 if k else sT0)} offen "
              f"offset:2048{osc}")

    def fin_l():
        if not paddl:
            for x in padd(0):
                p(x)
        out_b(0)

    late_l = onep and hpl >= n2 - 1
    if not late_l:
        fin_l()
    for r in range(4):
        for db in range(4):
            p(f"v_add_f32 {vr(Y + 4 * r + db)}, {vr(Y + 4 * r + db)}, {vr(SACC + 4 * db + r)}")
    if hpl >= n2 - 1:
        p(sync.check("PH", S_FLG, sr(sFO), vPA2, vPV2))
        p("s_barrier")
        for x in (pload(0) if onep else []) + pload(1):
            p(x)
    if not late_l:
        store_b(0)
    for r in range(4):
        p(f"buffer_store_dwordx4 {vr(Y + 4 * r, 4)}, {vr(vOA)}, {sr(S_OUT, 4)}, {sr(sOA)} offen{osc}")
        if r < 3:
            p(f"s_add_u32 {sr(sOA)}, {sr(sOA)}, 4096")
    if late_l:
        fin_l()
    pa = padd(1)
    for x in pa[:16]:
        p(x)
    if late_l:
        store_b(0)
    for x in pa[16:]:
        p(x)
    out_b(1)
    store_b(1)
    st()
    if timing and cfg.get("dbgout") is not None:
        p(f"""
        s_cmp_lg_u32 s2, {cfg["dbgout"]}
        s_cbranch_scc1 KA_end
        s_waitcnt vmcnt(0)
        s_barrier
        v_lshlrev_b32 v1, 4, v0
        v_mov_b32 v2, {63 * 8}
        buffer_load_dword v3, v1, {sr(S_WS, 4)}, {sr(sStamp)} offen offset:4 sc1
        buffer_load_dword v5, v1, {sr(S_WS, 4)}, {sr(sStamp)} offen offset:12 sc1
        buffer_load_dword v4, v2, {sr(S_WS, 4)}, {sr(sStamp)} offen sc1
        s_mov_b32 {sr(S_DBG + 2)}, 64
        v_lshlrev_b32 v1, 2, v0
        v_sub_u32 v3, v3, v4
        v_sub_u32 v5, v5, v4
        v_and_b32 v5, 0xffff, v5
        v_mul_u32_u24 v3, 100000, v3
        v_add_u32 v3, v3, v5
        buffer_store_dword v3, v1, {sr(S_DBG, 4)}, 0 offen offset:32
        """)
    p.label("KA_end")
    p("s_endpgm")
    p.label("KA_codeend")
    sync.emit(p)
    ATT.gen_attention_rare(p, cfg)
    p.finish(cfg.get("verbose_nop", False))
    if cfg.get("align8"):
        p.align8(True)
    return p


def build(cfg):
    import os
    ref = "cdna_kernels/" + NAME + ".s.ref"
    hdr = [l for l in open(ref).read().split("\n")
           if l.startswith(";") and "@launch" not in l][:19] if os.path.exists(ref) else ["; test build"]
    ka = gen(cfg)
    out = "\n".join(hdr) + "\n"
    if cfg.get("aslist"):
        out += f"; @launch kernel={NAME}_kernel grid=(256,1,1) block=(256,1,1) lds={NBLK * BLK}\n"
    else:
        out += f"; @launch grid=(256,1,1) block=(256,1,1) lds={NBLK * BLK}\n"
    out += '.amdgcn_target "amdgcn-amd-amdhsa--gfx950"\n'
    out += kernel_text(NAME + "_kernel", ka)
    out += '.section .rodata,"a"\n.p2align 6\n'
    out += descriptor_text(NAME + "_kernel", 512, 102, 256)
    print("instrs", len(ka.ins), "maxv", ka.maxreg("v"), "maxa", ka.maxreg("a"), "maxs", ka.maxreg("s"),
          "auto nops", sum(1 for x in ka.ins if x.auto and x.cls == "nop"), file=sys.stderr)
    return out


if __name__ == "__main__":
    cfg = json.loads(sys.argv[2]) if len(sys.argv) > 2 else {}
    open(sys.argv[1], "w").write(build(cfg))
```

```python
from asmlib import *

BLK = 16384
NBLK = 10


def ldsaddr(vbase, addr, win=65536):
    return vr(vbase + addr // win), addr % win


def lines(text):
    return [x.strip() for x in text.split("\n") if x.strip()]


def cost(text, vmcost=4):
    c = 0
    for x in lines(text):
        if x.startswith("@") or x.endswith(":"):
            continue
        op = x.split()[0]
        if op.startswith(TRANS):
            c += 8
        elif op.startswith("buffer_") or op.startswith("global_"):
            c += vmcost
        else:
            c += 4
    return c


def split_items(items):
    out = []
    for it in items:
        for x in lines(it):
            op = x.split()[0]
            if out and (op.startswith("s_cselect") or op.startswith("s_addc") or op.startswith("s_cbranch")
                        or x.endswith(":") or out[-1].split("\n")[-1].startswith("@need")):
                out[-1] += "\n" + x
            else:
                out.append(x)
    return out


class Sched:
    def __init__(self, backbone, cap, vmcost=4):
        self.bb = list(backbone)
        self.n = len(self.bb)
        self.cap = [cap] * self.n
        self.fixed = [[] for _ in self.bb]
        self.front = [[] for _ in self.bb]
        self.chains = []
        self.vmcost = vmcost
        self.place = {}
        self.cap0 = cap
        self.nomem = set()
        self.excl = True
        self.m0gap = 2

    def fix(self, slot, text, c=None, front=False):
        (self.front if front else self.fixed)[slot].append(text)
        self.cap[slot] -= cost(text, self.vmcost) if c is None else c

    def chain(self, items):
        if items:
            it = [list(x) for x in items]
            for k in range(len(it) - 2, -1, -1):
                it[k][2] = min(it[k][2], it[k + 1][2])
            self.chains.append(it)

    def spread(self, items, lo, hi, early=2, late=3):
        items = split_items(items)
        tot = sum(cost(x, self.vmcost) for x in items)
        acc = 0
        ch = []
        for x in items:
            t = lo + (acc * (hi - lo)) // max(tot, 1)
            acc += cost(x, self.vmcost)
            ch.append((x, max(lo, t - early), min(hi - 1, t + late)))
        self.chain(ch)

    def run(self):
        pos = [0] * len(self.chains)
        hold = [0] * len(self.chains)
        self.out = [[] for _ in self.bb]
        self.over = [0] * self.n

        def isvm(t):
            return lines(t)[-1].startswith(("buffer_", "global_"))

        def ismem(t):
            return t.startswith("ds_") or isvm(t)

        def hasvalu(t):
            return any(x.startswith("v_") for x in lines(t))

        for s in range(self.n):
            room = self.cap[s]
            free = not self.front[s]
            empty = not self.front[s] and not self.fixed[s] and self.cap[s] >= self.cap0
            closed = False
            valu, seen = set(), set()
            first, head, rest = [], [], []
            while True:
                best = None
                for ci, ch in enumerate(self.chains):
                    if pos[ci] >= len(ch):
                        continue
                    it = ch[pos[ci]]
                    due = it[2] <= s
                    if not due and (it[1] > s or hold[ci] > s or closed):
                        continue
                    c = cost(it[0], self.vmcost)
                    lead = free and it[0].startswith("s_") and ci not in seen and not it[0].startswith("s_barrier")
                    if lead:
                        c -= 4
                    if ismem(it[0]) and (ci in valu or s in self.nomem):
                        if not due:
                            continue
                        c += 8
                    if self.excl and isvm(it[0]) and not empty:
                        if not due:
                            continue
                        c += 4
                    if c > room and not due:
                        continue
                    key = (it[2], 0 if isvm(it[0]) else 1)
                    if best is None or key < best[0]:
                        best = (key, ci, c, lead)
                if best is None:
                    break
                _, ci, c, lead = best
                it = self.chains[ci][pos[ci]]
                if hasvalu(it[0]):
                    valu.add(ci)
                (first if lead else rest if ci in valu else head).append(it[0])
                seen.add(ci)
                if lead:
                    free = False
                if self.excl and isvm(it[0]):
                    closed = True
                    free = False
                empty = False
                assert s >= (it[4] if len(it) > 4 else it[1]), ("placed before release", it, s)
                if len(it) > 3 and it[3] is not None:
                    self.place[it[3]] = s
                room -= c
                pos[ci] += 1
                if " m0," in it[0] and pos[ci] < len(self.chains[ci]) and isvm(self.chains[ci][pos[ci]][0]):
                    hold[ci] = s + self.m0gap
            self.out[s] = first + head + rest
            self.over[s] = max(0, -room)
        for ci, ch in enumerate(self.chains):
            assert pos[ci] == len(ch), ("unplaced", ch[pos[ci]])

    def emit(self, p, before=None):
        for s in range(self.n):
            if before and s in before:
                p(before[s])
            p(self.bb[s])
            for x in self.front[s] + self.out[s] + self.fixed[s]:
                p(x)


class Stage:
    def __init__(self, name, lb):
        self.name = name
        self.blocks = []
        self.mf = []
        self.reads = []
        self.fill = []
        self.at_barrier = []
        self.after_barrier = []
        self.lb = lb
        self.gate = None
        self.frac = None
        self.maxpace = None
        self.minpace = None
        self.group = 8
        self.quota = None
        self.dstart = 0.0


class Pipe:
    def __init__(self, stages, dma_group, cfg, tag, npro, stampfn=None, gated=(), order=None, slots=None):
        self.stages, self.cfg, self.tag = stages, cfg, tag
        nst = len(stages)
        start, mf = [], []
        for S in stages:
            start.append(len(mf))
            mf += S.mf
        total = len(mf)
        start.append(total)
        self.start, self.total, self.mf = start, total, mf
        bar = [start[n] - stages[n].lb - 1 for n in range(nst)]
        bar[0] = -1
        bar.append(total - 1)
        self.bar = bar
        blocks = [(n, j) for n, S in enumerate(stages) for j in range(len(S.blocks))]
        if order:
            blocks = order(blocks)
        free_at = [0] * NBLK
        seq = list(slots or range(NBLK))
        self.saddr = saddr = [[None] * len(S.blocks) for S in stages]
        self.prolog_dma = []
        byb = {}
        fbmin = 0
        tags = [[] for _ in stages]
        for k, (n, j) in enumerate(blocks):
            kind, par = stages[n].blocks[j]
            slot = min(seq, key=lambda q: free_at[q])
            seq.remove(slot)
            seq.append(slot)
            fb = free_at[slot]
            free_at[slot] = (n + 1 if kind == "SCR" else n) + 1
            saddr[n][j] = slot * BLK
            if kind == "SCR":
                assert bar[fb] + 1 <= start[n], "scratch block not free in time"
                continue
            tags[n].append(f"#{tag}{k}")
            grp = dma_group(kind, par, slot * BLK, f"{tag}{k}")
            if k < npro:
                assert (kind not in gated or stages[n].gate is None) and fb == 0
                self.prolog_dma.append(grp)
                continue
            if kind in gated and stages[n].gate is not None:
                fb = max(fb, stages[n].gate + 1)
            fb = max(fb, fbmin)
            fbmin = fb
            byb.setdefault(fb, []).append((n, grp))
        self.free_at = free_at
        self.first_need = " ".join(tags[0])
        self.tags, self.stampfn = tags, stampfn
        self.dma = []
        self.dcur = 0
        carry = []
        for fb in range(nst):
            S = stages[fb]
            lst = carry + byb.get(fb, [])
            carry = []
            if S.quota is not None:
                lst, carry = lst[:S.quota], lst[S.quota:]
            if not lst:
                continue
            cnt = sum(len(g[1]) for g in lst)
            frac = S.frac if S.frac is not None else cfg.get("spread", 0.9)
            mp = S.maxpace if S.maxpace is not None else cfg.get("maxpace", 8)
            lo = bar[fb] + 1 + int(S.dstart * (bar[fb + 1] - bar[fb]))
            span = max(bar[fb + 1] - max(lo, self.dcur), 1)
            mn = S.minpace if S.minpace is not None else cfg.get("minpace", 1.0)
            pace = min(max(mn, span * frac / cnt), mp)
            for n, grp in lst:
                self.add_dma(grp, lo, pace, bar[n] - 1)
        assert not carry
        self.extra_fixed = []

    def add_dma(self, grp, earliest, pace, limit):
        for setup, ins in grp:
            s = min(max(self.dcur, earliest), limit)
            r = int(s)
            assert earliest <= limit, "DMA cannot be issued before its barrier"
            for x in setup:
                self.dma.append((x, max(earliest, r - 4), min(r + 1, limit), None, earliest))
            self.dma.append((ins, min(r, limit), min(r + 4, limit), None, earliest))
            self.dcur = s + pace

    def schedule(self):
        stages, start, bar, total, cfg = self.stages, self.start, self.bar, self.total, self.cfg
        nst = len(stages)
        mfins = [Ins(t) for t in self.mf]
        LAT = cfg.get("ldslat", 5)
        reads = []
        for n, S in enumerate(stages):
            for fn, fu in sorted(S.reads, key=lambda r: r[1]):
                t = fn(self.saddr[n])
                dst = Ins(t).writes
                g0 = start[n] + (fu // S.group) * S.group
                fu += start[n]
                e = fu - 1
                while e >= 0 and not (mfins[e].reads & dst):
                    e -= 1
                reads.append((t, n, e, fu, g0))
        void = set()
        for attempt in range(3):
            sc = Sched(self.mf, 8, cfg.get("vmcost", 8))
            sc.excl, sc.m0gap = cfg.get("excl", True), cfg.get("m0gap", 2)
            self.prolog_reads = []
            ch = []
            for k, (t, n, e, fu, g0) in enumerate(reads):
                if n == 0 and e < 0 and len(self.prolog_reads) < 14:
                    self.prolog_reads.append(t)
                    sc.place[k] = -1
                    continue
                rel = max(e, bar[n] + 1, 0)
                dl = g0 - 1 - LAT
                if n < nst - 1:
                    dl = min(dl, bar[n + 1] - LAT)
                    assert rel < bar[n + 1], (stages[n].name, "read after next barrier", t)
                assert rel < fu, (stages[n].name, t)
                ch.append((t, rel, max(dl, rel), k))
            for k in range(len(ch) - 2, -1, -1):
                ch[k] = (ch[k][0], ch[k][1], max(ch[k][1], min(ch[k][2], ch[k + 1][2])), ch[k][3])
            for k in range(1, len(ch)):
                if ch[k][2] < ch[k - 1][2]:
                    ch[k] = (ch[k][0], ch[k][1], ch[k - 1][2], ch[k][3])
            sc.chains.append([list(x) for x in ch])
            sc.chain(self.dma)
            for n in range(1, nst):
                txt = "".join(x + "\n" for x in stages[n - 1].at_barrier)
                txt += f"@need {' '.join(self.tags[n])}\n s_waitcnt lgkmcnt(0)\n s_barrier\n"
                if self.stampfn:
                    txt += self.stampfn(n)
                sc.fix(bar[n], txt)
                ab = split_items(stages[n - 1].after_barrier)
                sc.chain([(x, bar[n] + 1, min(bar[n] + 2 + k, total - 1)) for k, x in enumerate(ab)])
            for slot, txt in self.extra_fixed:
                sc.fix(slot, txt)
            groups = sorted({r[4] for r in reads})
            for g0 in groups:
                if g0 > 0 and g0 not in void:
                    sc.front[g0 - 1].append("@")
            for n, S in enumerate(stages):
                for items, lo, hi in S.fill:
                    if callable(items):
                        items = items(self.saddr[n])
                    sc.spread(items, lo + start[n], min(hi + start[n], total))
            sc.run()
            self.before = {}
            newvoid = set()
            for g0 in groups:
                lastbar = max(b for b in bar[:-1] if b < g0)
                regs = [Ins(r[0]).text.split()[1].rstrip(",") for k, r in enumerate(reads)
                        if r[4] == g0 and (sc.place[k] > lastbar or lastbar < 0) and sc.place[k] <= g0 - 3]
                if g0 > 0:
                    sc.front[g0 - 1] = [x for x in sc.front[g0 - 1] if x != "@"]
                if not regs:
                    newvoid.add(g0)
                elif g0 > 0:
                    sc.front[g0 - 1].append("@need " + " ".join(regs))
                else:
                    self.before[g0] = "@need " + " ".join(regs)
            if newvoid == void:
                break
            void = newvoid
        for k, (t, n, e, fu, g0) in enumerate(reads):
            assert sc.place[k] < fu and (n == nst - 1 or sc.place[k] <= bar[n + 1])
            if cfg.get("verbose") and 0 <= sc.place[k] > g0 - 3:
                print(f"  late read {stages[n].name}: {t} at {sc.place[k] - start[n]} use {fu - start[n]}")
        self.sc = sc
        if cfg.get("verbose"):
            print("  over: " + " ".join(f"{S.name}={sum(sc.over[start[n]:start[n + 1]])}" for n, S in enumerate(stages)))

    def emit(self, p, extra_before=None):
        before = dict(self.before)
        for k, v in (extra_before or {}).items():
            before[k] = v + "\n" + before.get(k, "")
        n0 = len(p.ins)
        self.sc.emit(p, before)
        verify_stream(p.ins[n0:])


def merge_stages(name, lst):
    S = Stage(name, lst[0].lb)
    S.group = lst[0].group
    for T in lst:
        nb, nm = len(S.blocks), len(S.mf)
        S.blocks += T.blocks
        S.mf += T.mf
        S.reads += [((lambda f, o: (lambda a: f(a[o:])))(fn, nb), fu + nm) for fn, fu in T.reads]
    return S


def verify_stream(ins):
    nxt = {}
    for x in reversed(ins):
        if x.is_mfma():
            for r in x.writes:
                nxt[r] = "acc" if r in x.srcc else "init"
            for r in x.srcab:
                nxt[r] = "ab"
        elif x.cls == "ds_read":
            for r in x.writes:
                assert nxt.get(r) != "acc", ("load into live accumulator", x.text)
                nxt[r] = "init"
        else:
            for r in x.reads | x.writes:
                assert nxt.get(r) != "acc", ("filler touches live accumulator", x.text, r)
            for r in x.writes:
                assert nxt.get(r) != "ab", ("filler overwrites MFMA operand", x.text, r)


def weave(name, A, B, chunk=(8, 4), lb=None):
    S = Stage(name, A.lb if lb is None else lb)
    S.group = 4
    S.blocks = A.blocks + B.blocks
    pos = ([], [])
    src = (list(A.mf), list(B.mf))
    while src[0] or src[1]:
        for k in range(2):
            for _ in range(chunk[k]):
                if src[k]:
                    pos[k].append(len(S.mf))
                    S.mf.append(src[k].pop(0))
    nb = len(A.blocks)
    S.reads = [(fn, pos[0][fu]) for fn, fu in A.reads]
    S.reads += [((lambda f: (lambda a: f(a[nb:])))(fn), pos[1][fu]) for fn, fu in B.reads]
    return S
```

```python
import sys, json
from gen_common import *
from regs import *
from pipesched import *
import gen_att3 as ATT

PSTR = 272
PART = 64 * PSTR


def cexp(n, outre, outim, t0, t1):
    return [
        f"v_mul_f32 {vr(t0)}, {n}, {vr(vZA)}",
        f"v_mul_f32 {vr(t1)}, {n}, {vr(vZB)}",
        f"v_exp_f32 {vr(t0)}, {vr(t0)}",
        f"v_fract_f32 {vr(t1)}, {vr(t1)}",
        f"v_cos_f32 {vr(outre)}, {vr(t1)}",
        f"v_sin_f32 {vr(outim)}, {vr(t1)}",
        f"v_mul_f32 {vr(outre)}, {vr(outre)}, {vr(t0)}",
        f"v_mul_f32 {vr(outim)}, {vr(outim)}, {vr(t0)}",
    ]


def cmadd(dre, dim, lre, lim, hre, him, ure, uim):
    return [
        f"v_fma_f32 {vr(dre)}, {vr(lre)}, {vr(hre)}, {vr(ure)}",
        f"v_fma_f32 {vr(dim)}, {vr(lre)}, {vr(him)}, {vr(uim)}",
        f"v_fma_f32 {vr(dre)}, -{vr(lim)}, {vr(him)}, {vr(dre)}",
        f"v_fma_f32 {vr(dim)}, {vr(lim)}, {vr(hre)}, {vr(dim)}",
    ]


class Sync:
    def __init__(self, cfg):
        self.spins = []
        self.cfg = cfg

    def load(self, srd, soff, pa, pv):
        return f"buffer_load_dword {vr(pv)}, {vr(pa)}, {sr(srd, 4)}, {soff} offen sc1"

    def check(self, name, srd, soff, pa, pv):
        self.spins.append((name, srd, soff, pa, pv))
        return f"""
        POLL_{name}:
        v_cmp_ne_u32 vcc, {sr(sEXP)}, {vr(pv)}
        s_cbranch_vccnz SPIN_{name}
        POLLOK_{name}:
        """

    def emit(self, p):
        for name, srd, soff, pa, pv in self.spins:
            p(f"""
            SPIN_{name}:
            s_add_u32 {sr(sSPIN)}, {sr(sSPIN)}, 1
            s_cmp_gt_u32 {sr(sSPIN)}, 0x100000
            s_cbranch_scc1 POLLOK_{name}
            s_sleep {self.cfg.get('sleep', 2)}
            {self.load(srd, soff, pa, pv)}
            s_waitcnt vmcnt(0)
            s_branch POLL_{name}
            """)


def frag_read(dst, vb, blk, off, win=65536):
    def fn(addrs):
        r, imm = ldsaddr(vb, addrs[blk] + off, win)
        return f"ds_read_b128 {dst}, {r} offset:{imm}"
    return fn


def tr_read(dst, vb, blk, off, win=65536):
    def fn(addrs):
        r, imm = ldsaddr(vb, addrs[blk] + off, win)
        return f"ds_read_b64_tr_b16 {dst}, {r} offset:{imm}"
    return fn


KXOR = [False]


def adv(r, step, mask=1023):
    return [f"s_add_u32 {sr(r)}, {sr(r)}, {step}", f"s_and_b32 {sr(r)}, {sr(r)}, {mask}"]


def dma_group(kind, par, addr, tag):
    out = []

    def one(pos, setup, vpat, srd, imm, flags="", linear=False):
        s = list(setup)
        if not linear or pos == 0:
            if kind in ("H", "C", "WO", "CX"):
                s.append(f"s_add_u32 m0, {sr(sMB + addr // 32768)}, {addr % 32768 + pos * 1024 - imm}")
            else:
                s.append(f"s_add_u32 m0, {sr(sWLDS)}, {addr + pos * 1024 - imm}")
        off = f" offset:{imm}" if imm else ""
        out.append((s, f"buffer_load_dwordx4 {vr(vpat)}, {sr(srd, 4)}, {sr(sD0)} offen{off}{flags} lds @@{tag}"))

    if kind == "C1":
        for pos in range(4):
            su = []
            if pos == 0:
                if KXOR[0]:
                    su = [f"s_xor_b32 {sr(sRK)}, {sr(sRK)}, {(par ^ (par - 1)) * 128}"] if par else []
                else:
                    su = adv(sRK, 128) if par else []
                su = su + [f"s_add_u32 {sr(sD0)}, {sr(sCKV)}, {sr(sRK)}"]
            if pos == 2:
                su = [f"s_add_u32 {sr(sD0)}, {sr(sD0)}, 16384"]
            one(pos, su, vN, S_CKV, (pos & 1) * 64)
    elif kind == "W":
        srd, rot, same = par
        for pos in range(4):
            su = []
            if pos == 0 and not same:
                su = [f"s_lshl_b32 {sr(sD0)}, {sr(rot)}, 12", f"s_add_u32 {sr(sD0)}, {sr(sD0)}, {sr(sWOFF)}"]
            one(pos, su, vW, srd, pos * 64)
    elif kind == "C2":
        u, xy = par
        for pos in range(4):
            su = []
            if pos % 2 == 0:
                su = [f"s_add_u32 {sr(sD0)}, {sr(sCKV2b if pos else sCKV2a)}, {(u - 4) * 32768 + xy * 16384}"]
            one(pos, su, vN, S_CKV, (pos & 1) * 64)
    elif kind == "SX":
        for pos in range(4):
            su = []
            if pos == 0:
                su = (adv(sRS, 256) if (par and par % 2 == 0) else []) + [f"s_add_u32 {sr(sD0)}, {sr(sXA)}, {sr(sRS)}"]
                if par & 1:
                    su.append(f"s_add_u32 {sr(sD0)}, {sr(sD0)}, 128")
            if pos == 2:
                su = [f"s_add_u32 {sr(sD0)}, {sr(sD0)}, 4096"]
            one(pos, su, vS, S_XA, (pos & 1) * 64)
    elif kind == "SB":
        for pos in range(4):
            su = [f"s_add_u32 {sr(sD0)}, {sr(sBOFF)}, {sr(sRS)}"] if pos == 0 else []
            one(pos, su, vN, S_BSEL, pos * 64)
    elif kind == "X":
        g, stg = par
        for pos in range(4):
            su = []
            if pos == 0:
                su = (adv(sRQ, 128) if (stg and g == 0) else []) + \
                    [f"s_add_u32 {sr(sD0)}, {sr(sXQB if g else sXQA)}, {sr(sRQ)}"]
            if pos == 2:
                su = [f"s_add_u32 {sr(sD0)}, {sr(sD0)}, {sr(sXD)}"]
            one(pos, su, vN, S_XB, (pos & 1) * 64)
    elif kind == "H":
        for pos in range(4):
            su = []
            if pos == 0:
                su = (adv(sR2, 128) if par else []) + \
                    [f"s_lshl_b32 {sr(sD0)}, {sr(sR2)}, 7", f"s_add_u32 {sr(sD0)}, {sr(sD0)}, {sr(sHO)}"]
            one(pos, su, vL16, S_WS, pos * 1024, " sc1", linear=True)
    elif kind == "C":
        for pos in range(4):
            su = []
            if pos == 0:
                su = [f"s_add_u32 {sr(sD0)}, {sr(sCO)}, {sr(sR2)}"]
            one(pos, su, vC4, S_CSEL, (pos >> 1) * 1024 + (pos & 1) * 64)
    elif kind == "WO":
        for pos in range(4):
            su = []
            if pos == 0:
                su = (adv(sRO, 65536, 0x7ffff) if par else []) + [f"s_add_u32 {sr(sD0)}, {sr(sRO)}, {sr(sWOO)}"]
            one(pos, su, vNb if pos & 1 else vNa, S_WO, (pos >> 1) * 128)
    elif kind == "CX":
        g, stg = par
        for pos in range(4):
            su = []
            if pos == 0:
                su = (adv(sRO2, 16384, 0x1ffff) if (g or stg) else []) + \
                    [f"s_add_u32 {sr(sD0)}, {sr(sCTXH if g else sCTXO)}, {sr(sRO2)}"]
            one(pos, su, vL16, S_WS, pos * 1024, " sc1", linear=True)
    elif kind == "SCR":
        pass
    else:
        raise ValueError(kind)
    return out


def gen(cfg):
    timing = cfg.get("timing", False)
    p = Prog()
    sync = Sync(cfg)
    nstamp = [0]

    def st(va=vS):
        stamp(p, timing, nstamp[0], sTS, vX0, va, S_WS, sStamp)
        nstamp[0] += 1

    def fine(base):
        if not timing:
            return None
        return lambda n: f"s_memtime {sr(sTS, 2)}\n s_waitcnt lgkmcnt(0)\n v_writelane_b32 v95, {sr(sTS)}, {base + n}\n"

    def touch_code(srd, label, dst, q=None):
        (q or p)(f"""
        s_getpc_b64 {sr(srd, 2)}
        {label}:
        s_mov_b32 {sr(srd + 2)}, KA_codeend-{label}
        s_mov_b32 {sr(srd + 3)}, {SRD3}
        s_lshr_b32 {sr(sT0)}, s2, 3
        s_lshl_b32 {sr(sT0)}, {sr(sT0)}, 2
        s_add_u32 {sr(sT0)}, {sr(sT0)}, {sr(sW)}
        s_lshl_b32 {sr(sT0)}, {sr(sT0)}, 7
        v_lshlrev_b32 {vr(vX0)}, 14, v0
        buffer_load_dword {vr(dst)}, {vr(vX0)}, {sr(srd, 4)}, {sr(sT0)} offen
        """)

    p(f"""
    s_cmp_ge_u32 s2, 256
    s_cbranch_scc1 KA_end
    {"s_memrealtime " + sr(sRET, 2) if timing else ""}
    s_load_dwordx2 {sr(S_CKV, 2)}, s[0:1], {KA['CKV']}
    s_load_dwordx2 {sr(S_WUK, 2)}, s[0:1], {KA['WUK']}
    s_load_dwordx2 {sr(S_WUV, 2)}, s[0:1], {KA['WUV']}
    s_load_dwordx2 {sr(S_XA, 2)}, s[0:1], {KA['XA']}
    s_load_dwordx4 {sr(S_BSEL, 4)}, s[0:1], {KA['BRE']}
    s_load_dwordx2 {sr(S_XB, 2)}, s[0:1], {KA['XB']}
    s_load_dwordx2 {sr(S_WQ, 2)}, s[0:1], {KA['WQ']}
    s_load_dwordx2 {sr(S_WO, 2)}, s[0:1], {KA['WO']}
    s_load_dwordx4 {sr(S_CSEL, 4)}, s[0:1], {KA['CRE']}
    s_load_dwordx2 {sr(S_WS, 2)}, s[0:1], {KA['WS']}
    s_load_dwordx2 {sr(sDBGP, 2)}, s[0:1], {KA['DBG']}
    s_load_dwordx4 {sr(S_LRE, 4)}, s[0:1], {KA['LRE']}
    s_load_dwordx2 {sr(S_LDT, 2)}, s[0:1], {KA['LDT']}
    v_lshlrev_b32 {vr(vSIG)}, 16, v0
    v_lshrrev_b32 {vr(vX0)}, 6, v0
    v_and_b32 v0, 63, v0
    v_readfirstlane_b32 {sr(sW)}, {vr(vX0)}
    """)
    if cfg.get("pretouch", True):
        touch_code(S_E, "KA_pc", TMP)
    hs = 1 if cfg.get("hswap", True) else 0
    KXOR[0] = cfg.get("kxor", False)
    rk = cfg.get("rotk", (4, 4, 0))
    rq = cfg.get("rotq", (1, 2, 1))
    p(f"""
    s_and_b32 {sr(sT0)}, s2, 7
    s_lshr_b32 {sr(sT1)}, s2, 3
    s_add_u32 {sr(sT2)}, {sr(sT1)}, {cfg.get("hrot", 0)}
    s_and_b32 {sr(sT2)}, {sr(sT2)}, 3
    s_lshl_b32 {sr(sH)}, {sr(sT0)}, 2
    s_add_u32 {sr(sH)}, {sr(sH)}, {sr(sT2)}
    s_lshr_b32 {sr(sI)}, {sr(sT1)}, 2
    s_lshl_b32 {sr(sWLDS)}, {sr(sW)}, 12
    v_lshrrev_b32 {vr(vX0)}, 5, v0
    v_lshlrev_b32 {vr(vX0)}, 1, {vr(vX0)}
    v_and_b32 {vr(vX1)}, 3, v0
    v_xor_b32 {vr(vX0)}, {vr(vX0)}, {vr(vX1)}
    v_lshlrev_b32 {vr(vX0)}, 4, {vr(vX0)}
    v_lshrrev_b32 {vr(vX1)}, 2, v0
    v_lshl_add_u32 {vr(vW)}, {vr(vX1)}, 13, {vr(vX0)}
    v_lshl_add_u32 {vr(vN)}, {vr(vX1)}, 10, {vr(vX0)}
    s_and_b32 {sr(sT0)}, {sr(sH)}, {hs}
    s_lshl_b32 {sr(sT0)}, {sr(sT0)}, 17
    s_lshl_b32 {sr(sCKV)}, {sr(sI)}, 18
    s_add_u32 {sr(sCKV)}, {sr(sCKV)}, {sr(sT0)}
    s_xor_b32 {sr(sCKV2b)}, {sr(sCKV)}, 0x20000
    s_lshl_b32 {sr(sT0)}, {sr(sW)}, 15
    s_add_u32 {sr(sCKV)}, {sr(sCKV)}, {sr(sT0)}
    s_lshl_b32 {sr(sWOFF)}, {sr(sW)}, 17
    s_lshl_b32 {sr(sT0)}, {sr(sH)}, 8
    s_add_u32 {sr(sWOFF)}, {sr(sWOFF)}, {sr(sT0)}
    s_and_b32 {sr(sT0)}, {sr(sH)}, 3
    s_cmp_eq_u32 {sr(sT0)}, 1
    s_cselect_b32 {sr(sT0)}, {cfg.get("rotk1", rk[0])}, {rk[0]}
    s_mul_i32 {sr(sRK)}, {sr(sI)}, {sr(sT0)}
    s_bfe_u32 {sr(sT0)}, {sr(sH)}, 0x10001
    s_mul_i32 {sr(sT0)}, {sr(sT0)}, {rk[1]}
    s_add_u32 {sr(sRK)}, {sr(sRK)}, {sr(sT0)}
    s_lshr_b32 {sr(sT0)}, {sr(sH)}, 2
    s_mul_i32 {sr(sT0)}, {sr(sT0)}, {rk[2]}
    s_add_u32 {sr(sRK)}, {sr(sRK)}, {sr(sT0)}
    s_and_b32 {sr(sRK)}, {sr(sRK)}, {cfg.get("kmask", 7)}
    s_lshl_b32 {sr(sRK)}, {sr(sRK)}, 7
    s_lshl_b32 {sr(sT0)}, {sr(sW)}, 8
    {"s_xor_b32" if KXOR[0] else "s_add_u32"} {sr(sT0)}, {sr(sT0)}, {sr(sRK)}
    s_and_b32 {sr(sT1)}, {sr(sT0)}, 1023
    s_add_u32 {sr(sCKV2a)}, {sr(sCKV2b)}, {sr(sT1)}
    {"s_xor_b32" if KXOR[0] else "s_add_u32"} {sr(sT0)}, {sr(sT0)}, 128
    s_and_b32 {sr(sT0)}, {sr(sT0)}, 1023
    s_add_u32 {sr(sCKV2b)}, {sr(sCKV2b)}, {sr(sT0)}
    """)
    for s, n in ((S_CKV, 2048 * 1024), (S_WUK, 512 * 8192), (S_WUV, 512 * 8192)):
        p(f"s_mov_b32 {sr(s + 2)}, {n}")
        p(f"s_mov_b32 {sr(s + 3)}, {SRD3}")
    p("s_waitcnt lgkmcnt(0)")
    if timing:
        p("s_memrealtime s[90:91]")

    def lin_touch(srd, base, lanes, nwg, dst):
        sh = {64: 6, 32: 5, 16: 4, 8: 3}[lanes]
        t = f"""
        s_and_b32 {sr(sT0)}, s2, {nwg - 1}
        s_lshl_b32 {sr(sT0)}, {sr(sT0)}, 2
        s_add_u32 {sr(sT0)}, {sr(sT0)}, {sr(sW)}
        s_lshl_b32 {sr(sT0)}, {sr(sT0)}, {sh + 7}
        """
        if base:
            t += f"s_add_u32 {sr(sT0)}, {sr(sT0)}, {base}\n"
        t += f"v_lshlrev_b32 {vr(vX0)}, 7, v0\n"
        if lanes < 64:
            t += f"v_lshrrev_b32 {vr(vX1)}, {sh}, v0\n v_lshl_add_u32 {vr(vX0)}, {vr(vX1)}, 24, {vr(vX0)}\n"
        for k, d in enumerate(srd):
            t += f"buffer_load_dword {vr(dst + k)}, {vr(vX0)}, {sr(d, 4)}, {sr(sT0)} offen\n"
        return t

    SR = dict(ckv=S_CKV, wk=S_WUK, wv=S_WUV, xa=S_XA, xb=S_XB, wq=S_WQ, b=S_BSEL)
    for names, base, lanes in cfg.get("init_touch", []):
        p(lin_touch([SR[x] for x in names.split("+")], base, lanes, 256, TMP + 1))

    late = f"""
    s_and_b32 {sr(sT0)}, s2, 7
    s_lshr_b32 {sr(sT1)}, s2, 3
    s_lshr_b32 {sr(sC)}, {sr(sT0)}, 1
    s_lshl_b32 {sr(sC)}, {sr(sC)}, 2
    s_lshr_b32 {sr(sT2)}, {sr(sT1)}, 3
    s_add_u32 {sr(sC)}, {sr(sC)}, {sr(sT2)}
    s_and_b32 {sr(sPG)}, {sr(sT0)}, 1
    s_lshl_b32 {sr(sPG)}, {sr(sPG)}, 3
    s_and_b32 {sr(sT2)}, {sr(sT1)}, 7
    s_add_u32 {sr(sPG)}, {sr(sPG)}, {sr(sT2)}
    v_and_b32 {vr(vX0)}, 15, v0
    s_and_b32 {sr(sT2)}, {sr(sW)}, 1
    s_lshl_b32 {sr(sT2)}, {sr(sT2)}, 4
    s_lshl_b32 {sr(sT3)}, {sr(sPG)}, 5
    s_add_u32 {sr(sT2)}, {sr(sT2)}, {sr(sT3)}
    v_add_lshl_u32 {vr(vX1)}, {vr(vX0)}, {sr(sT2)}, 1
    global_load_ushort {vr(vLA)}, {vr(vX1)}, {sr(S_LRE, 2)}
    global_load_ushort {vr(vLB)}, {vr(vX1)}, {sr(S_LIM, 2)}
    global_load_ushort {vr(vZA)}, {vr(vX1)}, {sr(S_LDT, 2)}
    s_add_u32 {sr(S_FLG)}, {sr(S_WS)}, {WS_FLG}
    s_addc_u32 {sr(S_FLG + 1)}, {sr(S_WS + 1)}, 0
    s_mov_b32 {sr(S_FLG + 2)}, 32768
    s_mov_b32 {sr(S_FLG + 3)}, {SRD3}
    v_lshlrev_b32 {vr(vL16)}, 4, v0
    v_mov_b32 {vr(DT)}, 0
    v_mov_b32 {vr(DT + 1)}, 0
    v_mov_b32 {vr(DT + 2)}, 0
    v_mov_b32 {vr(DT + 3)}, 0
    s_lshl_b32 {sr(sT0)}, s2, 2
    s_add_u32 {sr(sT0)}, {sr(sT0)}, {sr(sW)}
    s_lshl_b32 {sr(sT0)}, {sr(sT0)}, 10
    buffer_store_dwordx4 {vr(DT, 4)}, {vr(vL16)}, {sr(S_FLG, 4)}, {sr(sT0)} offen sc1 @@zero
    s_mov_b32 {sr(S_DBG)}, {sr(sDBGP)}
    s_mov_b32 {sr(S_DBG + 1)}, {sr(sDBGP + 1)}
    s_cmp_eq_u32 {sr(sW)}, 0
    s_cselect_b32 {sr(sEXP)}, 1, 0
    s_cselect_b32 {sr(S_DBG + 2)}, 32, 0
    s_cselect_b32 {sr(S_FLG + 2)}, 32768, 0
    s_mov_b32 {sr(S_DBG + 3)}, {SRD3}
    v_mov_b32 {vr(vONE)}, 1
    s_mov_b32 {sr(sSPIN)}, 0
    s_cmp_ge_u32 {sr(sW)}, 2
    s_cselect_b32 {sr(S_BSEL)}, {sr(S_BSEL + 2)}, {sr(S_BSEL)}
    s_cselect_b32 {sr(S_BSEL + 1)}, {sr(S_BSEL + 3)}, {sr(S_BSEL + 1)}
    s_bitcmp1_b32 {sr(sW)}, 0
    s_cselect_b32 {sr(S_CSEL)}, {sr(S_CSEL + 2)}, {sr(S_CSEL)}
    s_cselect_b32 {sr(S_CSEL + 1)}, {sr(S_CSEL + 3)}, {sr(S_CSEL + 1)}
    """
    for s, n in ((S_XA, 2048 * 1024), (S_BSEL, 512 * 1024), (S_XB, 2048 * 1024), (S_WQ, 512 * 8192),
                 (S_WO, 4096 * 1024), (S_CSEL, 512 * 1024), (S_WS, WS_END + (1 << 20 if timing else 0)),
                 (S_E, 65536)):
        late += f"s_mov_b32 {sr(s + 2)}, {n}\n s_mov_b32 {sr(s + 3)}, {SRD3}\n"
    late += f"""
    s_add_u32 {sr(S_E)}, {sr(S_WS)}, {WS_E}
    s_addc_u32 {sr(S_E + 1)}, {sr(S_WS + 1)}, 0
    s_mul_i32 {sr(sKVST)}, {sr(sH)}, {HEADSTRIDE}
    s_add_u32 {sr(S_KVR)}, {sr(S_WS)}, {sr(sKVST)}
    s_addc_u32 {sr(S_KVR + 1)}, {sr(S_WS + 1)}, 0
    s_lshl_b32 {sr(sT0)}, {sr(sI)}, 16
    s_sub_u32 {sr(S_KVR + 2)}, {32 * 32768}, {sr(sT0)}
    s_and_b32 {sr(sT0)}, {sr(sW)}, 1
    s_lshl_b32 {sr(sT0)}, {sr(sT0)}, 15
    s_add_u32 {sr(S_KVR + 2)}, {sr(S_KVR + 2)}, {sr(sT0)}
    s_mov_b32 {sr(S_KVR + 3)}, {SRD3}
    s_lshl_b32 {sr(sT0)}, {sr(sI)}, 17
    s_add_u32 {sr(sKVST)}, {sr(sKVST)}, {sr(sT0)}
    s_and_b32 {sr(sT0)}, {sr(sH)}, {hs}
    s_lshl_b32 {sr(sT0)}, {sr(sT0)}, 16
    s_sub_u32 {sr(sKVST2)}, {sr(sKVST)}, {sr(sT0)}
    s_add_u32 {sr(sKVST)}, {sr(sKVST)}, {sr(sT0)}
    s_add_u32 {sr(sRS)}, {sr(sC)}, {sr(sPG)}
    s_mul_i32 {sr(sRS)}, {sr(sRS)}, {cfg.get("rots", 1)}
    s_and_b32 {sr(sRS)}, {sr(sRS)}, 3
    s_lshl_b32 {sr(sRS)}, {sr(sRS)}, 8
    s_mul_i32 {sr(sRQ)}, {sr(sI)}, {rq[0]}
    s_mul_i32 {sr(sT0)}, {sr(sH)}, {rq[1]}
    s_add_u32 {sr(sRQ)}, {sr(sRQ)}, {sr(sT0)}
    s_lshr_b32 {sr(sT0)}, {sr(sH)}, 2
    s_mul_i32 {sr(sT0)}, {sr(sT0)}, {rq[2]}
    s_add_u32 {sr(sRQ)}, {sr(sRQ)}, {sr(sT0)}
    s_and_b32 {sr(sRQ)}, {sr(sRQ)}, 7
    s_lshl_b32 {sr(sRQ)}, {sr(sRQ)}, 7
    s_lshl_b32 {sr(sXA)}, {sr(sC)}, 17
    s_lshr_b32 {sr(sT0)}, {sr(sW)}, 1
    s_lshl_b32 {sr(sT0)}, {sr(sT0)}, 16
    s_add_u32 {sr(sXA)}, {sr(sXA)}, {sr(sT0)}
    s_and_b32 {sr(sT0)}, {sr(sW)}, 1
    s_lshl_b32 {sr(sT1)}, {sr(sT0)}, 13
    s_add_u32 {sr(sXA)}, {sr(sXA)}, {sr(sT1)}
    s_lshl_b32 {sr(sBOFF)}, {sr(sPG)}, 15
    s_lshl_b32 {sr(sT1)}, {sr(sT0)}, 14
    s_add_u32 {sr(sBOFF)}, {sr(sBOFF)}, {sr(sT1)}
    s_lshl_b32 {sr(sT0)}, {sr(sW)}, 15
    s_sub_u32 {sr(sXD)}, {7 << 14}, {sr(sT0)}
    s_lshl_b32 {sr(sT0)}, {sr(sW)}, 14
    s_lshl_b32 {sr(sXQA)}, {sr(sI)}, 17
    s_sub_u32 {sr(sXQB)}, {15 << 17}, {sr(sXQA)}
    s_add_u32 {sr(sXQA)}, {sr(sXQA)}, {sr(sT0)}
    s_add_u32 {sr(sXQB)}, {sr(sXQB)}, {sr(sT0)}
    s_mov_b32 {sr(sQS)}, {f32hex(QSCALE)}
    """
    if timing:
        late += f"s_lshl_b32 {sr(sStamp)}, s2, 10\n s_add_u32 {sr(sStamp)}, {sr(sStamp)}, {WS_STAMP}\n"
    late += f"""
    v_lshrrev_b32 {vr(vX1)}, 4, v0
    v_mul_u32_u24 {vr(vS)}, {12 * 1024}, {vr(vX1)}
    v_add_u32 {vr(vS)}, {vr(vS)}, {vr(vN)}
    s_lshr_b32 {sr(sT0)}, {sr(sW)}, 1
    s_lshl_b32 {sr(sT0)}, {sr(sT0)}, 2
    v_add_u32 {vr(vSEG)}, {sr(sT0)}, {vr(vX1)}
    v_bfe_u32 {vr(vF)}, v0, 3, 1
    v_lshlrev_b32 {vr(vF)}, 1, {vr(vF)}
    v_xor_b32 {vr(vF)}, {vr(vF)}, {vr(vX1)}
    v_lshl_add_u32 {vr(vF)}, {vr(vX0)}, 2, {vr(vF)}
    v_lshlrev_b32 {vr(vF)}, 4, {vr(vF)}
    v_add_u32 {vr(vF + 1)}, 0x10000, {vr(vF)}
    v_add_u32 {vr(vF + 2)}, 0x20000, {vr(vF)}
    v_lshrrev_b32 {vr(vT)}, 5, v0
    v_lshlrev_b32 {vr(vT)}, 12, {vr(vT)}
    v_bfe_u32 {vr(vT + 1)}, v0, 4, 1
    v_mul_u32_u24 {vr(vT + 1)}, {512 + 32}, {vr(vT + 1)}
    v_add_u32 {vr(vT)}, {vr(vT)}, {vr(vT + 1)}
    v_bfe_u32 {vr(vT + 1)}, v0, 2, 2
    v_lshl_add_u32 {vr(vT)}, {vr(vT + 1)}, 6, {vr(vT)}
    v_and_b32 {vr(vT + 1)}, 3, v0
    v_lshl_add_u32 {vr(vT)}, {vr(vT + 1)}, 3, {vr(vT)}
    s_lshl_b32 {sr(sT0)}, {sr(sW)}, 10
    v_add_u32 {vr(vT)}, {sr(sT0)}, {vr(vT)}
    v_add_u32 {vr(vT + 1)}, 0x10000, {vr(vT)}
    v_add_u32 {vr(vT + 2)}, 0x20000, {vr(vT)}
    v_xor_b32 {vr(vT + 3)}, 32, {vr(vT)}
    v_xor_b32 {vr(vT + 4)}, 32, {vr(vT + 1)}
    v_xor_b32 {vr(vT + 5)}, 32, {vr(vT + 2)}
    s_lshr_b32 {sr(sT0)}, {sr(sW)}, 1
    s_lshl_b32 {sr(sT0)}, {sr(sT0)}, 13
    v_add_u32 {vr(vFA)}, {sr(sT0)}, {vr(vF)}
    v_add_u32 {vr(vFA + 1)}, {sr(sT0)}, {vr(vF + 1)}
    v_add_u32 {vr(vFA + 2)}, {sr(sT0)}, {vr(vF + 2)}
    s_and_b32 {sr(sT0)}, {sr(sW)}, 1
    s_lshl_b32 {sr(sT0)}, {sr(sT0)}, 12
    v_add_u32 {vr(vFB)}, {sr(sT0)}, {vr(vF)}
    v_add_u32 {vr(vFB + 1)}, {sr(sT0)}, {vr(vF + 1)}
    v_add_u32 {vr(vFB + 2)}, {sr(sT0)}, {vr(vF + 2)}
    v_lshl_add_u32 {vr(vKST)}, {sr(sW)}, 11, {vr(vL16)}
    v_add_u32 {vr(vVST)}, {5 * 8192}, {vr(vKST)}
    """

    stages = []
    ringpos = [0]

    def ring_alloc(size):
        r = RING + 4 * (ringpos[0] % size)
        ringpos[0] += 1
        return vr(r, 4)

    def kv_mfmas(S, ks, R, X, Y):
        w = [ar(16 * ks + 4 * j, 4) for j in range(4)]
        for a, b, d in ((w[0], X, 0), (w[0], Y, 8), (w[1], X, 4), (w[1], Y, 12),
                        (X, w[2], 16), (Y, w[2], 20), (X, w[3], 24), (Y, w[3], 28)):
            c = "0" if ks == 0 else vr(R + d, 4)
            S.mf.append(f"v_mfma_f32_16x16x32_bf16 {vr(R + d, 4)}, {a}, {b}, {c}")

    VSC = cfg.get("vscale", 0)

    def drain(unit, R, tmp=None):
        cv, stv = [], []
        for n in range(4):
            t = R + 8 * n if tmp is None else tmp + 4 * n
            for k in range(4):
                a, b = R + 8 * n + 2 * k, R + 8 * n + 2 * k + 1
                if n < 2:
                    cv += [f"v_mul_f32 {vr(a)}, {sr(sQS)}, {vr(a)}", f"v_mul_f32 {vr(b)}, {sr(sQS)}, {vr(b)}"]
                elif VSC:
                    cv += [f"v_ldexp_f32 {vr(a)}, {vr(a)}, {VSC}", f"v_ldexp_f32 {vr(b)}, {vr(b)}, {VSC}"]
                cv.append(f"v_cvt_pk_bf16_f32 {vr(t + k)}, {vr(a)}, {vr(b)}")
            va = vKST if n < 2 else vVST
            imm = (n & 1) * 1024
            s = f"buffer_store_dwordx4 {vr(t, 4)}, {vr(va)}, {sr(S_WS, 4)}, {sr(sST)} offen offset:{imm} sc1 @@kvst"
            if n == 0:
                s = f"s_add_u32 {sr(sST)}, {sr(sKVST if unit < 4 else sKVST2)}, {unit * 16384}\n" + s
            if cfg.get("nokvst") and not (unit == 7 and n == 0):
                s = "s_nop 0"
            if cfg.get("kvplain"):
                s = s.replace(" sc1 @@", " @@")
            stv.append(s)
        return cv, stv

    for n in range(8):
        S = Stage(f"kv1_{n}", 18)
        S.blocks = [("C1", n), ("W", (S_WUK, sRK, False)), ("W", (S_WUV, sRK, True))]
        for kk in range(2):
            ks = 2 * n + kk
            for j in range(4):
                for x in range(2):
                    S.reads.append((tr_read(ar(16 * ks + 4 * j + 2 * x, 2), vT + 3 * (j & 1), 1 + (j >> 1),
                                            kk * 8192 + x * 256), len(S.mf) + 2 * j))
            for u in range(4):
                X, Y = ring_alloc(8), ring_alloc(8)
                S.reads.append((frag_read(X, vF, 0, (4 * u + kk) * 1024), len(S.mf)))
                S.reads.append((frag_read(Y, vF, 0, (4 * u + 2 + kk) * 1024), len(S.mf) + 1))
                kv_mfmas(S, ks, RSET[u], X, Y)
        stages.append(S)

    def kv2_stage(u, R):
        S = Stage(f"kv2_{u}", 18)
        S.blocks = [("C2", (u, 0)), ("C2", (u, 1))]
        for ks in range(16):
            X, Y = ring_alloc(8), ring_alloc(8)
            S.reads.append((frag_read(X, vF, 0, ks * 1024), len(S.mf)))
            S.reads.append((frag_read(Y, vF, 1, ks * 1024), len(S.mf) + 1))
            kv_mfmas(S, ks, R, X, Y)
        return S

    def ssm_stage(n, R):
        S = Stage(f"ssm_{n}", 8)
        S.blocks = [("SX", 2 * n), ("SB", n), ("SX", 2 * n + 1)]
        for k4 in range(4):
            kh, kk = k4 >> 1, k4 & 1
            B = []
            for reim in range(2):
                r = ring_alloc(12)
                B.append(r)
                S.reads.append((frag_read(r, vFB, 1, reim * 8192 + k4 * 1024), len(S.mf) + reim))
            for rb in range(4):
                r = ring_alloc(12)
                S.reads.append((frag_read(r, vFA, 2 * kh, (2 * rb + kk) * 1024), len(S.mf)))
                for reim in range(2):
                    d = R + 16 * reim + 4 * rb
                    c = "0" if (n == 0 and k4 == 0) else vr(d, 4)
                    S.mf.append(f"v_mfma_f32_16x16x32_bf16 {vr(d, 4)}, {r}, {B[reim]}, {c}")
        return S

    QACC = [RSET[0], RSET[2], RSET[4], RSET[3]]
    RB = RSET[1]

    def qacc(db, qb):
        return QACC[db >> 1] + 16 * (db & 1) + 4 * qb

    qring = [0, 0]

    def q_stage(n):
        S = Stage(f"q_{n}", 14)
        S.blocks = [("X", (0, n)), ("W", (S_WQ, sRQ, False)), ("X", (1, n))]
        for kk in range(2):
            xs = []
            base = len(S.mf)
            for qb in range(4):
                r = ar(128 + 4 * (qring[0] % 12), 4)
                qring[0] += 1
                xs.append(r)
                S.reads.append((frag_read(r, vFA, 2 * (qb >> 1), (2 * (qb & 1) + kk) * 1024), base + qb))
            for db in range(8):
                rr = 192 + 4 * (qring[1] % 8)
                qring[1] += 1
                for x in range(2):
                    S.reads.append((tr_read(ar(rr + 2 * x, 2), vT + 3 * (db & 1), 1,
                                            kk * 8192 + (db >> 1) * 1024 + x * 256), len(S.mf)))
                for qb in range(4):
                    d = qacc(db, qb)
                    c = "0" if (n == 0 and kk == 0) else vr(d, 4)
                    S.mf.append(f"v_mfma_f32_16x16x32_bf16 {vr(d, 4)}, {ar(rr, 4)}, {xs[qb]}, {c}")
        return S

    made = {}
    prev = "K"
    for nm in cfg.get("order", ["U4", "U5", "S0", "S1", "S2", "S3", "U6", "U7"]):
        if nm[0] != prev[0] and "S" in (nm[0], prev[0]):
            ringpos[0] = 0
        if nm[0] == "U":
            S = kv2_stage(int(nm[1]), {4: RSET[4], 5: RSET[0], 6: RSET[2], 7: RSET[3]}[int(nm[1])])
            if prev[0] == "S":
                S.lb = 7
        else:
            S = ssm_stage(int(nm[1]), RB)
            if prev[0] == "U":
                S.lb = 14
        made[nm] = S
        stages.append(S)
        prev = nm
    U4, U5, U6, U7 = (made[f"U{k}"] for k in range(4, 8))
    QS = [q_stage(n) for n in range(8)]
    stages += QS
    for k, v in cfg.get("frac", {}).items():
        stages[int(k)].frac = v
    for k, v in cfg.get("quota", {}).items():
        stages[int(k)].quota, stages[int(k)].dstart = v
    for k, v in cfg.get("mpace", {}).items():
        stages[int(k)].maxpace = v

    UR = [RSET[0], RSET[1], RSET[2], RSET[3], RSET[4], RSET[0], RSET[2], RSET[3]]
    byname = made
    dplan = cfg.get("drains", [["U4", 4, 36, 36, 44], ["U4", 64, 96, 96, 104], ["U5", 4, 36, 36, 44],
                               ["U5", 64, 96, 96, 104], ["U6", 2, 30, 30, 38], ["U6", 64, 96, 96, 104],
                               ["U7", 64, 96, 96, 104]])
    for u, (nm, a, b, c, d) in enumerate(dplan):
        cv, stv = drain(u, UR[u])
        byname[nm].fill.append((cv, a, b))
        byname[nm].fill.append((stv, c, d))
    cv7, st7 = drain(7, RSET[3], RING)
    QS[0].fill.append((cv7, 2, 22))
    QS[0].fill.append((st7, *cfg.get("st7", (24, 32))))

    def signal(line_sgpr_setup, sig=vSIG, one=vONE):
        return line_sgpr_setup + f"\n buffer_store_dword {vr(one)}, {vr(sig)}, {sr(S_FLG, 4)}, {sr(sFO)} offen sc1"

    stages[0].at_barrier.append("@need #zero")
    stages[0].after_barrier.append(f"v_lshl_add_u32 {vr(vPA)}, s2, 2, {vr(vSIG)}\n"
                                   f"buffer_store_dword {vr(vONE)}, {vr(vPA)}, {sr(S_DBG, 4)}, 0 offen sc1")
    tch = cfg.get("touch1")
    if tch:
        gw = f"s_lshl_b32 {sr(sT0)}, s2, 2\n s_add_u32 {sr(sT0)}, {sr(sT0)}, {sr(sW)}\n s_lshl_b32 {sr(sT0)}, {sr(sT0)}, 7"
        tl = [[gw, f"v_lshlrev_b32 {vr(vX0)}, 17, v0",
               f"buffer_load_dword {vr(TMP + 1)}, {vr(vX0)}, {sr(S_XA, 4)}, {sr(sT0)} offen"],
              [f"s_lshl_b32 {sr(sT0)}, s2, 1\n s_and_b32 {sr(sT1)}, {sr(sW)}, 1",
               f"s_add_u32 {sr(sT0)}, {sr(sT0)}, {sr(sT1)}\n s_lshl_b32 {sr(sT0)}, {sr(sT0)}, 7",
               f"v_lshlrev_b32 {vr(vX0)}, 16, v0",
               f"buffer_load_dword {vr(TMP + 2)}, {vr(vX0)}, {sr(S_BSEL, 4)}, {sr(sT0)} offen"],
              [f"s_lshl_b32 {sr(sT0)}, {sr(sI)}, 2\n s_add_u32 {sr(sT0)}, {sr(sT0)}, {sr(sW)}",
               f"s_lshl_b32 {sr(sT0)}, {sr(sT0)}, 13\n s_lshl_b32 {sr(sT1)}, {sr(sH)}, 8",
               f"s_add_u32 {sr(sT0)}, {sr(sT0)}, {sr(sT1)}\n v_and_b32 {vr(vX0)}, 1, v0",
               f"v_lshlrev_b32 {vr(vX0)}, 7, {vr(vX0)}\n v_lshrrev_b32 {vr(vX1)}, 1, v0",
               f"v_lshl_add_u32 {vr(vX0)}, {vr(vX1)}, 18, {vr(vX0)}",
               f"buffer_load_dword {vr(TMP + 3)}, {vr(vX0)}, {sr(S_WQ, 4)}, {sr(sT0)} offen"],
              [gw, f"v_lshlrev_b32 {vr(vX0)}, 17, v0",
               f"buffer_load_dword {vr(TMP + 4)}, {vr(vX0)}, {sr(S_XB, 4)}, {sr(sT0)} offen"]]
        for (stg, slot), items in zip(tch, tl):
            if stg >= 0:
                stages[stg].fill.append((items, slot, slot + len(items)))
    tch = cfg.get("touchg")
    touch_fixed = []
    if tch:
        gw = f"""
        s_and_b32 {sr(sT0)}, s2, 63
        s_lshl_b32 {sr(sT0)}, {sr(sT0)}, 2
        s_add_u32 {sr(sT0)}, {sr(sT0)}, {sr(sW)}
        s_lshl_b32 {sr(sT0)}, {sr(sT0)}, 13
        v_lshlrev_b32 {vr(vX0)}, 7, v0
        """

        def wq(half):
            return f"""
            s_and_b32 {sr(sT0)}, {sr(sI)}, 1
            s_lshl_b32 {sr(sT0)}, {sr(sT0)}, 2
            s_add_u32 {sr(sT0)}, {sr(sT0)}, {sr(sW)}
            s_add_u32 {sr(sT0)}, {sr(sT0)}, {8 * half}
            s_lshl_b32 {sr(sT0)}, {sr(sT0)}, 18
            s_lshl_b32 {sr(sT1)}, {sr(sH)}, 8
            s_add_u32 {sr(sT0)}, {sr(sT0)}, {sr(sT1)}
            v_and_b32 {vr(vX0)}, 1, v0
            v_lshlrev_b32 {vr(vX0)}, 7, {vr(vX0)}
            v_lshrrev_b32 {vr(vX1)}, 1, v0
            v_lshl_add_u32 {vr(vX0)}, {vr(vX1)}, 13, {vr(vX0)}
            buffer_load_dword {vr(TMP + 1)}, {vr(vX0)}, {sr(S_WQ, 4)}, {sr(sT0)} offen
            """
        tl = [gw + f"""buffer_load_dword {vr(TMP + 1)}, {vr(vX0)}, {sr(S_XA, 4)}, {sr(sT0)} offen
              s_and_b32 {sr(sT0)}, s2, 63
              s_and_b32 {sr(sT1)}, {sr(sW)}, 1
              s_lshl_b32 {sr(sT1)}, {sr(sT1)}, 6
              s_add_u32 {sr(sT0)}, {sr(sT0)}, {sr(sT1)}
              s_lshl_b32 {sr(sT0)}, {sr(sT0)}, 13
              buffer_load_dword {vr(TMP + 2)}, {vr(vX0)}, {sr(S_BSEL, 4)}, {sr(sT0)} offen""",
              wq(0), wq(1),
              gw + f"buffer_load_dword {vr(TMP + 1)}, {vr(vX0)}, {sr(S_XB, 4)}, {sr(sT0)} offen"]
        tgrp = cfg.get("tgrp", (0, 1, 2, 3))
        for k, ((stg, slot), txt) in enumerate(zip(tch, tl)):
            if stg >= 0:
                touch_fixed.append((stg, slot, f"s_lshr_b32 {sr(sT0)}, s2, 6\n s_cmp_lg_u32 {sr(sT0)}, {tgrp[k]}\n"
                                               f"s_cbranch_scc1 TCH_{k}\n{txt}\n TCH_{k}:"))
    for k, (stg, slot, grp, names, base, lanes) in enumerate(cfg.get("touchl", [])):
        txt = lin_touch([SR[x] for x in names.split("+")], base, lanes, 64, TMP + 5)
        if names == "b":
            txt = txt.replace(f"s_lshl_b32 {sr(sT0)}, {sr(sT0)}, 2\n        s_add_u32 {sr(sT0)}, {sr(sT0)}, {sr(sW)}",
                              f"s_lshl_b32 {sr(sT0)}, {sr(sT0)}, 1\n s_and_b32 {sr(sT1)}, {sr(sW)}, 1\n"
                              f"s_add_u32 {sr(sT0)}, {sr(sT0)}, {sr(sT1)}")
        touch_fixed.append((stg, slot, f"s_lshr_b32 {sr(sT0)}, s2, 6\n s_cmp_lg_u32 {sr(sT0)}, {grp}\n"
                                       f"s_cbranch_scc1 TCL_{k}\n{txt}\n TCL_{k}:"))
    U5.fill.append(([f"v_lshlrev_b32 {vr(vLA)}, 16, {vr(vLA)}",
                     f"v_lshlrev_b32 {vr(vLB)}, 16, {vr(vLB)}",
                     f"v_lshlrev_b32 {vr(vZA)}, 16, {vr(vZA)}",
                     f"v_mul_f32 {vr(vZA)}, {f32hex(LOG2E)}, {vr(vZA)}",
                     f"v_exp_f32 {vr(vZA)}, {vr(vZA)}",
                     f"v_and_b32 {vr(vPA)}, 7, v0",
                     f"v_cvt_pk_bf16_f32 {vr(vZA)}, {vr(vZA)}, {vr(vZA)}",
                     f"v_lshlrev_b32 {vr(vZA)}, 16, {vr(vZA)}",
                     f"v_mul_f32 {vr(vZB)}, {vr(vZA)}, {vr(vLB)}",
                     f"v_mul_f32 {vr(vZA)}, {vr(vZA)}, {vr(vLA)}",
                     f"v_mul_f32 {vr(vZB)}, {f32hex(1.0 / (2 * math.pi))}, {vr(vZB)}",
                     f"v_mul_f32 {vr(vZA)}, {f32hex(LOG2E)}, {vr(vZA)}",
                     f"v_lshlrev_b32 {vr(vPA)}, 2, {vr(vPA)}",
                     sync.load(S_DBG, "0", vPA, vPV)], 44, 64))
    U6.at_barrier.append(sync.check("Z", S_DBG, "0", vPA, vPV))

    U6.blocks.append(("SCR", None))
    E0 = TMP

    def scan1(addrs):
        a = addrs[2]
        lr, li = E0, E0 + 1
        out = cexp("1.0", lr, li, E0 + 2, E0 + 3)
        cur = (RB, RB + 16)
        for t in range(1, 16):
            d = (E0 + 4 + 2 * (t & 1), E0 + 5 + 2 * (t & 1))
            out += cmadd(d[0], d[1], lr, li, cur[0], cur[1], RB + t, RB + 16 + t)
            cur = d
        assert cur == (E0 + 6, E0 + 7)
        out += [f"v_and_b32 {vr(vX0)}, 15, v0",
                f"s_and_b32 {sr(sT0)}, {sr(sW)}, 1\n s_lshl_b32 {sr(sT0)}, {sr(sT0)}, 7",
                f"s_add_u32 {sr(sT0)}, {sr(sT0)}, {a}",
                f"v_lshl_add_u32 {vr(E0 + 8)}, {vr(vX0)}, 3, {sr(sT0)}",
                f"v_lshl_add_u32 {vr(vX1)}, {vr(vSEG)}, 8, {vr(E0 + 8)}",
                f"ds_write_b64 {vr(vX1)}, {vr(E0 + 6, 2)}"]
        return out

    U6.fill.append((scan1, 6, 100))

    ER = RSET[4]
    vEA = vFB
    scan2 = [f"ds_read_b64 {vr(ER + 2 * s, 2)}, {vr(E0 + 8)} offset:{256 * s}" for s in range(8)]
    lr, li = E0, E0 + 1
    scan2 += cexp(f32hex(16.0), lr, li, E0 + 2, E0 + 3)
    scan2 += [f"v_mov_b32 {vr(vPRE)}, 0", f"v_mov_b32 {vr(vPRE + 1)}, 0",
              f"v_and_b32 {vr(vX0)}, 15, v0",
              f"s_and_b32 {sr(sT0)}, {sr(sW)}, 1\n s_lshl_b32 {sr(sT0)}, {sr(sT0)}, 7",
              f"s_lshl_b32 {sr(sT2)}, {sr(sPG)}, 8\n s_add_u32 {sr(sT0)}, {sr(sT0)}, {sr(sT2)}",
              f"v_lshl_add_u32 {vr(vEA)}, {vr(vX0)}, 3, {sr(sT0)}",
              f"v_lshl_add_u32 {vr(vX0)}, {vr(vSEG)}, 16, {vr(vEA)}",
              f"s_lshl_b32 {sr(sT0)}, {sr(sC)}, 12"]
    cur = (ER, ER + 1)
    for s in range(1, 8):
        scan2 += [f"v_cmp_eq_u32 vcc, {s}, {vr(vSEG)}"]
        d = (E0 + 4 + 2 * (s & 1), E0 + 5 + 2 * (s & 1))
        scan2 += cmadd(d[0], d[1], lr, li, cur[0], cur[1], ER + 2 * s, ER + 2 * s + 1)
        scan2 += [f"v_cndmask_b32 {vr(vPRE)}, {vr(vPRE)}, {vr(cur[0])}, vcc",
                  f"v_cndmask_b32 {vr(vPRE + 1)}, {vr(vPRE + 1)}, {vr(cur[1])}, vcc"]
        cur = d
    scan2 += [f"buffer_store_dwordx2 {vr(E0 + 6, 2)}, {vr(vX0)}, {sr(S_E, 4)}, {sr(sT0)} offen sc1 @@est"]
    U7.fill.append((scan2, 0, 58))
    U7.at_barrier.append("@need #est")
    U7.after_barrier.append(signal(f"s_lshl_b32 {sr(sFO)}, {sr(sPG)}, 5\n s_add_u32 {sr(sFO)}, {sr(sFO)}, {sr(sC)}\n"
                                   f"s_lshl_b32 {sr(sFO)}, {sr(sFO)}, 2\n s_add_u32 {sr(sFO)}, {sr(sFO)}, {FL_E * 128}"))
    U7.fill.append(([f"v_add_u32 {vr(vFA + k)}, {sr(sWLDS)}, {vr(vF + k)}" for k in range(3)] +
                    [f"s_lshl_b32 {sr(sT1)}, {sr(sW)}, 10"] +
                    [f"v_subrev_u32 {vr(vT + k)}, {sr(sT1)}, {vr(vT + k)}" for k in range(6)], 58, 70))

    kvsig = cfg.get("kvsig", 1)
    QS[kvsig].at_barrier.append("@need #kvst")
    QS[kvsig].after_barrier.append(signal(f"s_lshl_b32 {sr(sFO)}, {sr(sH)}, 5\n s_add_u32 {sr(sFO)}, {sr(sFO)}, {sr(sI)}\n"
                                      f"s_lshl_b32 {sr(sFO)}, {sr(sFO)}, 2"))

    EV = 48
    LAM, L128, LSEG, COEF, CT = 78, 80, 82, 84, 86
    s2a = cexp("1.0", LAM, LAM + 1, CT, CT + 1) + [
        f"v_add_f32 {vr(CT)}, -1.0, {vr(LAM)}",
        f"v_mul_f32 {vr(CT + 1)}, {vr(vLA)}, {vr(vLA)}",
        f"v_fmac_f32 {vr(CT + 1)}, {vr(vLB)}, {vr(vLB)}",
        f"v_rcp_f32 {vr(CT + 1)}, {vr(CT + 1)}",
        f"v_mul_f32 {vr(COEF)}, {vr(CT)}, {vr(vLA)}",
        f"v_fmac_f32 {vr(COEF)}, {vr(LAM + 1)}, {vr(vLB)}",
        f"v_mul_f32 {vr(COEF + 1)}, {vr(LAM + 1)}, {vr(vLA)}",
        f"v_fma_f32 {vr(COEF + 1)}, -{vr(CT)}, {vr(vLB)}, {vr(COEF + 1)}",
        f"v_add_f32 {vr(CT + 1)}, {vr(CT + 1)}, {vr(CT + 1)}",
        f"v_mul_f32 {vr(COEF)}, {vr(COEF)}, {vr(CT + 1)}",
        f"v_mul_f32 {vr(COEF + 1)}, {vr(COEF + 1)}, {vr(CT + 1)}"]
    XT, LQ, EA, HP = 76, 74, 56, RING

    def ure(t):
        return XT if t == 0 else RB + t - 1

    for t in range(16):
        r, m = RB + t, RB + 16 + t
        s2a += [f"v_mul_f32 {vr(ure(t))}, {vr(COEF)}, {vr(r)}",
                f"v_fma_f32 {vr(ure(t))}, -{vr(COEF + 1)}, {vr(m)}, {vr(ure(t))}",
                f"v_mul_f32 {vr(m)}, {vr(COEF)}, {vr(m)}",
                f"v_fmac_f32 {vr(m)}, {vr(COEF + 1)}, {vr(r)}"]
    s2c = [f"v_and_b32 {vr(vPA)}, 15, v0", f"v_lshlrev_b32 {vr(vPA)}, 2, {vr(vPA)}",
           f"v_lshrrev_b32 {vr(EA + 1)}, 4, v0", f"s_add_i32 {sr(sT0)}, {sr(sC)}, -16",
           f"v_lshl_add_u32 {vr(EA)}, {vr(EA + 1)}, 2, {sr(sT0)}", f"v_lshl_add_u32 {vr(EA)}, {vr(EA)}, 12, {vr(vEA)}",
           f"v_sub_u32 {vr(EA + 1)}, 3, {vr(EA + 1)}", f"v_cvt_f32_u32 {vr(EA + 1)}, {vr(EA + 1)}",
           f"v_mul_f32 {vr(EA + 1)}, {f32hex(512.0)}, {vr(EA + 1)}"]
    s2c += cexp(vr(EA + 1), LQ, LQ + 1, EA + 2, EA + 3)
    s2c += cexp(f32hex(128.0), L128, L128 + 1, EA + 2, EA + 3)
    s2c += [f"v_cvt_f32_u32 {vr(EA + 1)}, {vr(vSEG)}", f"v_mul_f32 {vr(EA + 1)}, {f32hex(16.0)}, {vr(EA + 1)}"]
    s2c += cexp(vr(EA + 1), LSEG, LSEG + 1, EA + 2, EA + 3)
    s2c += [f"v_add_u32 {vr(EA + k)}, {4096 * k}, {vr(EA)}" for k in range(1, 4)]
    epoll = cfg.get("epoll", 2)
    QS[0].fill.append((s2c, 26, 64 * epoll))
    QS[0].fill.append((s2a, *cfg.get("s2awin", (30, 64 * (epoll + 1) + 30))))
    QS[epoll].fill.append(([f"s_lshl_b32 {sr(sFO)}, {sr(sPG)}, 7\n s_add_u32 {sr(sFO)}, {sr(sFO)}, {FL_E * 128}",
                            sync.load(S_FLG, sr(sFO), vPA, vPV)], 4, 10))
    QS[epoll].at_barrier.append(sync.check("E", S_FLG, sr(sFO), vPA, vPV))
    QS[epoll].fill.append(([f"buffer_load_dwordx2 {vr(EV + 2 * k, 2)}, {vr(EA + k)}, {sr(S_E, 4)}, 0 offen sc1"
                            for k in range(4)], 51, 62))
    A = 60
    s2b = cmadd(A, A + 1, L128, L128 + 1, EV, EV + 1, EV + 2, EV + 3)
    s2b += cmadd(A + 2, A + 3, L128, L128 + 1, A, A + 1, EV + 4, EV + 5)
    s2b += cmadd(A, A + 1, L128, L128 + 1, A + 2, A + 3, EV + 6, EV + 7)

    def cmul(d, l, h):
        return [f"v_mul_f32 {vr(d)}, {vr(l)}, {vr(h)}", f"v_mul_f32 {vr(d + 1)}, {vr(l)}, {vr(h + 1)}",
                f"v_fma_f32 {vr(d)}, -{vr(l + 1)}, {vr(h + 1)}, {vr(d)}", f"v_fmac_f32 {vr(d + 1)}, {vr(l + 1)}, {vr(h)}"]

    s2b += cmul(A + 2, LQ, A)
    for sw in ("16", "32"):
        s2b += [f"v_mov_b32 {vr(A)}, {vr(A + 2)}", f"v_mov_b32 {vr(A + 1)}, {vr(A + 3)}",
                f"v_permlane{sw}_swap_b32 {vr(A)}, {vr(A + 2)}", f"v_permlane{sw}_swap_b32 {vr(A + 1)}, {vr(A + 3)}",
                f"v_add_f32 {vr(A + 2)}, {vr(A + 2)}, {vr(A)}", f"v_add_f32 {vr(A + 3)}, {vr(A + 3)}, {vr(A + 1)}"]
    s2b += cmadd(A, A + 1, LSEG, LSEG + 1, A + 2, A + 3, vPRE, vPRE + 1)
    s2b += cmul(A + 2, COEF, A)
    cur = (A + 2, A + 3)
    for t in range(16):
        d = (ure(t), RB + 16 + t)
        s2b += cmadd(d[0], d[1], LAM, LAM + 1, cur[0], cur[1], d[0], d[1])
        if t & 1:
            s2b += [f"v_cvt_pk_bf16_f32 {vr(HP + t // 2)}, {vr(cur[0])}, {vr(d[0])}",
                    f"v_cvt_pk_bf16_f32 {vr(HP + 8 + t // 2)}, -{vr(cur[1])}, -{vr(d[1])}"]
        cur = d
    s2b += [f"v_mov_b32 {vr(vSIG2)}, {vr(vSIG)}", f"v_mov_b32 {vr(vONE2)}, 1"]
    hst = [f"""s_lshl_b32 {sr(sT1)}, {sr(sC)}, 18
    s_lshr_b32 {sr(sT2)}, {sr(sW)}, 1
    s_lshl_b32 {sr(sT2)}, {sr(sT2)}, 17
    s_add_u32 {sr(sT1)}, {sr(sT1)}, {sr(sT2)}
    s_lshl_b32 {sr(sT2)}, {sr(sPG)}, 13
    s_add_u32 {sr(sT1)}, {sr(sT1)}, {sr(sT2)}
    s_and_b32 {sr(sT2)}, {sr(sW)}, 1
    s_lshl_b32 {sr(sT2)}, {sr(sT2)}, 11
    s_add_u32 {sr(sT1)}, {sr(sT1)}, {sr(sT2)}
    s_add_u32 {sr(sT1)}, {sr(sT1)}, {WS_HF}"""]
    for reim in range(2):
        for half in range(2):
            hst.append(f"buffer_store_dwordx4 {vr(HP + 8 * reim + 4 * half, 4)}, {vr(vL16)}, {sr(S_WS, 4)}, {sr(sT1)} "
                       f"offen offset:{half * 1024} sc1 @@hst")
        if reim == 0:
            hst.append(f"s_add_u32 {sr(sT1)}, {sr(sT1)}, 4096")
    s2lo, s2hi, hhi = cfg.get("s2bwin", (64 * (epoll + 1) + 40, 64 * 5 + 40, 64 * 6))
    assert s2lo >= cfg.get("s2awin", (30, 64 * (epoll + 1) + 30))[1] and hhi <= 64 * 7 + 40
    QS[0].fill.append((s2b, s2lo, s2hi))
    QS[0].fill.append((hst, s2hi, hhi))

    QS[6].fill.append(([f"v_and_b32 {vr(vPA)}, 7, v0", f"v_lshlrev_b32 {vr(vPA)}, 2, {vr(vPA)}",
                        f"s_lshl_b32 {sr(sFO)}, {sr(sH)}, 7", sync.load(S_FLG, sr(sFO), vPA, vPV)], 6, 14))
    QS[6].at_barrier.append(sync.check("KV", S_FLG, sr(sFO), vPA, vPV))

    def qpack(cg, groups=(0, 1)):
        out = []
        for g in groups:
            for hq in range(2):
                qb = 2 * g + hq
                dst = QREG[g] + 4 * (2 * cg + hq)
                src = [qacc(2 * cg, qb) + k for k in range(4)] + [qacc(2 * cg + 1, qb) + k for k in range(4)]
                out += [f"v_cvt_pk_bf16_f32 {vr(dst + k)}, {vr(src[2 * k])}, {vr(src[2 * k + 1])}" for k in range(4)]
        return out

    QS[7].fill.append((qpack(0), 43, 52))
    QS[7].fill.append((qpack(1), 52, 61))
    QS[6].fill.append((ATT.selectors(), 16, 90))
    if cfg.get("touch4", True):
        tq4 = Prog()
        touch_code(S_CODE, "KA_pc4", 77, tq4)
        QS[5].fill.append(([x.text for x in tq4.ins], 0, 24))

    P1 = Pipe(stages, dma_group, cfg, "blk", cfg.get("npro", 6), fine(0))
    pairfree = [max(P1.free_at[2 * q], P1.free_at[2 * q + 1]) for q in range(5)]
    r0 = min(range(5), key=lambda q: [pairfree[(q + t) % 5] for t in range(4)])

    def tile_dma(tile, addr):
        out = []
        for j in range(8):
            su = []
            if j % 4 == 0:
                su = [f"s_mov_b32 {sr(sD0)}, {tile * 32768 + j * 1024}", f"s_add_u32 m0, {sr(sW8K)}, {addr + j * 1024}"]
                if tile == 0:
                    su[0] = f"s_bitcmp1_b32 {sr(sW)}, 0\n s_cselect_b32 {sr(sD0)}, {1 << 21}, 0" if j == 0 else \
                        f"s_add_u32 {sr(sD0)}, {sr(sD0)}, 4096"
            out.append((su, f"buffer_load_dwordx4 {vr(vW)}, {sr(S_KVR, 4)}, {sr(sD0)} offen offset:{(j % 4) * 1024} "
                            f"sc1 lds @@tile{tile}"))
        return out

    def tile_addr(t):
        return ((r0 + t) % 5) * 2 * BLK

    poll_bar = P1.bar[len(stages) - 1]
    P1.extra_fixed.append((poll_bar, f"s_lshl_b32 {sr(sW8K)}, {sr(sW)}, 13\n v_add_u32 {vr(vW)}, {sr(sW8K)}, {vr(vL16)}"))
    for stg, slot, txt in touch_fixed:
        P1.extra_fixed.append((P1.start[stg] + slot, txt))
    ntile_pre = 0
    tp = cfg.get("tilepace", 4)
    for t in range(cfg.get("ntilepre", 2)):
        e = max(P1.bar[pairfree[(r0 + t) % 5]], poll_bar) + 1
        if max(P1.dcur, e) + 8 * tp + 1 >= P1.total:
            break
        P1.add_dma(tile_dma(t, tile_addr(t)), e, tp, P1.total - 1)
        ntile_pre += 1
    P1.schedule()

    for gi, grp in enumerate(P1.prolog_dma):
        for setup, ins in grp:
            p("\n".join(setup))
            p(ins)
        if gi == 2:
            if timing:
                p("s_memrealtime s[92:93]")
            p(late)
            tlb = cfg.get("tlb", 0)
            if tlb:
                p(f"v_lshlrev_b32 {vr(vX0)}, {tlb}, v0\n s_lshl_b32 {sr(sT0)}, {sr(sW)}, {tlb - 2}")
                for k, srd in enumerate((S_WS, S_XA, S_BSEL, S_XB, S_WQ, S_WO, S_CSEL)):
                    p(f"buffer_load_dword {vr(TMP + 1 + k)}, {vr(vX0)}, {sr(srd, 4)}, {sr(sT0)} offen offset:8")
    if timing:
        p(f"v_mov_b32 {vr(vX0)}, {sr(sRET)}\n v_mov_b32 {vr(vX1)}, {sr(sRET)}\n v_mov_b32 v94, {63 * 8}")
        p(f"buffer_store_dwordx2 {vr(vX0, 2)}, v94, {sr(S_WS, 4)}, {sr(sStamp)} offen")
        p(f"v_mov_b32 v92, s90\n v_mov_b32 v93, s92\n v_mov_b32 v94, {62 * 8}")
        p(f"buffer_store_dwordx2 v[92:93], v94, {sr(S_WS, 4)}, {sr(sStamp)} offen")
    st(94)
    p(f"@need {P1.first_need}\n s_barrier")
    st(94)
    for t in P1.prolog_reads:
        p(t)
    xb = {}
    if timing:
        for n in (8, 10, 14, 16):
            tq = Prog()
            stamp(tq, True, nstamp[0], sTS, 92, 94, S_WS, sStamp)
            nstamp[0] += 1
            xb[P1.start[n]] = "\n".join(x.text for x in tq.ins)
    P1.emit(p, xb)
    if timing:
        p(f"v_lshlrev_b32 v94, 2, v0\n buffer_store_dword v95, v94, {sr(S_WS, 4)}, {sr(sStamp)} offen offset:768")
    st()

    p("@need #tile0\n s_barrier")
    rest = []
    for t in range(ntile_pre, 3 + cfg.get("deep", 1)):
        rest += ["\n".join(su + [ins]) for su, ins in tile_dma(t, tile_addr(t))]
    hsig = signal(f"s_lshl_b32 {sr(sFO)}, {sr(sC)}, 5\n s_add_u32 {sr(sFO)}, {sr(sFO)}, {sr(sPG)}\n"
                  f"s_lshl_b32 {sr(sFO)}, {sr(sFO)}, 2\n s_add_u32 {sr(sFO)}, {sr(sFO)}, {FL_H * 128}", vSIG2, vONE2)

    LACC, HACC, TRING, SACC, Y, XR = 32, 96, 160, 208, 224, 240
    vCX, vT5 = 192, 197
    vF5, vH = 8, 13
    W32 = 32768
    vO, vOA, vWr, vRd, vX = vVST, vSEG, vRD, vCST, 250
    sOA, sOB, sPX, sPI = sM0, sKVOFF, sSLOT, sCNT
    TSTR = 144
    ro, r2 = cfg.get("roto", (0, 0)), cfg.get("rot2", (1, 2))
    d2a = [f"""
    s_and_b32 {sr(sCT)}, {sr(sH)}, 3
    s_lshr_b32 {sr(sKQ)}, {sr(sH)}, 2
    s_mul_i32 {sr(sRO)}, {sr(sI)}, {ro[0]}
    s_mul_i32 {sr(sT2)}, {sr(sCT)}, {ro[1]}
    s_add_u32 {sr(sRO)}, {sr(sRO)}, {sr(sT2)}
    s_and_b32 {sr(sRO)}, {sr(sRO)}, 7
    s_lshl_b32 {sr(sRO2)}, {sr(sRO)}, 14
    s_lshl_b32 {sr(sRO)}, {sr(sRO)}, 16
    s_lshl_b32 {sr(sT2)}, {sr(sKQ)}, 17
    s_add_u32 {sr(sT2)}, {sr(sT2)}, {sr(sWLDS)}
    s_add_u32 {sr(sT2)}, {sr(sT2)}, {WS_CTX}
    s_lshl_b32 {sr(sT3)}, {sr(sI) if not cfg.get("abl_cx") else 0}, 20
    s_add_u32 {sr(sCTXO)}, {sr(sT2)}, {sr(sT3)}
    s_add_u32 {sr(sT2)}, {sr(sT2)}, {15 << 20}
    s_sub_u32 {sr(sCTXH)}, {sr(sT2)}, {sr(sT3)}
    s_lshl_b32 {sr(sWOO)}, {sr(sKQ)}, 19
    s_lshl_b32 {sr(sT2)}, {sr(sW)}, 14
    s_add_u32 {sr(sWOO)}, {sr(sWOO)}, {sr(sT2)}
    s_lshl_b32 {sr(sT2)}, {sr(sCT)}, 8
    s_add_u32 {sr(sWOO)}, {sr(sWOO)}, {sr(sT2)}
    """]
    d2b = f"""
    s_lshl_b32 {sr(sT2)}, {sr(sI)}, 1
    s_sub_u32 {sr(sT2)}, {r0 + 33}, {sr(sT2)}
    s_mul_i32 {sr(sT3)}, {sr(sT2)}, 52
    s_lshr_b32 {sr(sT3)}, {sr(sT3)}, 8
    s_mul_i32 {sr(sT3)}, {sr(sT3)}, 5
    s_sub_u32 {sr(sT2)}, {sr(sT2)}, {sr(sT3)}
    s_lshl_b32 {sr(sT2)}, {sr(sT2)}, 15
    s_add_u32 {sr(sMB)}, {sr(sT2)}, {sr(sWLDS)}
    """
    for q in range(1, 5):
        d2b += f"""s_add_u32 {sr(sMB + q)}, {sr(sMB + q - 1)}, 32768
        s_cmp_ge_u32 {sr(sMB + q)}, {NBLK * BLK}
        s_cselect_b32 {sr(sMB + q)}, {sr(sWLDS)}, {sr(sMB + q)}
        """
    d3x = [f"""
    s_lshr_b32 {sr(sT2)}, {sr(sKQ)}, 2
    s_lshl_b32 {sr(sT2)}, {sr(sT2)}, 6
    v_add_u32 {vr(vNa)}, 16, v0
    v_and_b32 {vr(vNa)}, 32, {vr(vNa)}
    v_xor_b32 {vr(vNa)}, {vr(vNa)}, {vr(vN)}
    v_add_u32 {vr(vNa)}, {sr(sT2)}, {vr(vNa)}
    v_xor_b32 {vr(vNb)}, 64, {vr(vNa)}
    s_lshr_b32 {sr(sT2)}, {sr(sW)}, 1
    s_lshl_b32 {sr(sT2)}, {sr(sT2)}, 12
    s_sub_u32 {sr(sT2)}, {sr(sT2)}, {sr(sWLDS)}
    v_add_u32 {vr(vF + 1)}, {sr(sT2)}, {vr(vL16)}
    s_and_b32 {sr(sT2)}, {sr(sW)}, 1
    s_lshl_b32 {sr(sT2)}, {sr(sT2)}, 11
    s_sub_u32 {sr(sT2)}, {sr(sT2)}, {sr(sWLDS)}
    v_lshrrev_b32 {vr(vX0)}, 2, v0
    v_lshl_add_u32 {vr(vF + 2)}, {vr(vX0)}, 6, {sr(sT2)}
    v_and_b32 {vr(vX0)}, 3, v0
    v_lshl_add_u32 {vr(vF + 2)}, {vr(vX0)}, 3, {vr(vF + 2)}
    v_bfe_u32 {vr(vX0)}, v0, 4, 1
    v_lshl_add_u32 {vr(vF + 2)}, {vr(vX0)}, 5, {vr(vF + 2)}
    """]
    tail1 = []
    for q in range(5):
        tail1 += [f"v_add_u32 {vr(vCX + q)}, {sr(sMB + q)}, {vr(vF + 1)}",
                  f"v_add_u32 {vr(vT5 + q)}, {sr(sMB + q)}, {vr(vF + 2)}",
                  f"v_xor_b32 {vr(vT5 + 5 + q)}, 32, {vr(vT5 + q)}"]
    tail2 = [f"""
    s_and_b32 {sr(sT0)}, s2, 7
    s_lshr_b32 {sr(sT1)}, s2, 3
    s_lshl_b32 {sr(sRT64)}, {sr(sT0)}, 2
    s_lshr_b32 {sr(sT2)}, {sr(sT1)}, 3
    s_add_u32 {sr(sRT64)}, {sr(sRT64)}, {sr(sT2)}
    s_and_b32 {sr(sCT64)}, {sr(sT1)}, 7
    s_mul_i32 {sr(sR2)}, {sr(sCT64)}, {r2[0]}
    s_mul_i32 {sr(sT2)}, {sr(sT2)}, {r2[1]}
    s_add_u32 {sr(sR2)}, {sr(sR2)}, {sr(sT2)}
    s_and_b32 {sr(sR2)}, {sr(sR2)}, 7
    s_lshl_b32 {sr(sR2)}, {sr(sR2)}, 7
    s_lshl_b32 {sr(sHO)}, {sr(sRT64) if not cfg.get("abl_s2") else 0}, 17
    s_add_u32 {sr(sHO)}, {sr(sHO)}, {sr(sWLDS)}
    s_add_u32 {sr(sHO)}, {sr(sHO)}, {WS_HF}
    s_lshl_b32 {sr(sCO)}, {sr(sCT64) if not cfg.get("abl_s2") else 0}, 16
    s_lshr_b32 {sr(sT2)}, {sr(sW)}, 1
    s_lshl_b32 {sr(sT3)}, {sr(sT2)}, 11
    s_add_u32 {sr(sCO)}, {sr(sCO)}, {sr(sT3)}
    v_lshrrev_b32 {vr(vC4)}, 2, v0
    v_mul_u32_u24 {vr(vC4)}, 3072, {vr(vC4)}
    v_add_u32 {vr(vC4)}, {vr(vC4)}, {vr(vN)}
    v_lshrrev_b32 {vr(vX0)}, 5, v0
    s_lshl_b32 {sr(sT1)}, {sr(sW)}, 8
    s_sub_u32 {sr(sT1)}, {sr(sT1)}, {sr(sWLDS)}
    v_lshl_add_u32 {vr(vX1)}, {vr(vX0)}, 11, {sr(sT1)}
    v_bfe_u32 {vr(vX0)}, v0, 1, 1
    v_lshl_add_u32 {vr(vX1)}, {vr(vX0)}, 10, {vr(vX1)}
    v_bfe_u32 {vr(vX0)}, v0, 4, 1
    v_lshl_add_u32 {vr(vX1)}, {vr(vX0)}, 7, {vr(vX1)}
    v_bfe_u32 {vr(vX0)}, v0, 2, 2
    v_lshl_add_u32 {vr(vX1)}, {vr(vX0)}, 4, {vr(vX1)}
    v_and_b32 {vr(vX0)}, 1, v0
    v_lshl_add_u32 {vr(vX1)}, {vr(vX0)}, 3, {vr(vX1)}
    v_subrev_u32 {vr(vF)}, {sr(sWLDS)}, {vr(vF)}
    """]
    for q in range(5):
        tail2 += [f"v_add_u32 {vr(vH + q)}, {sr(sMB + q)}, {vr(vX1)}", f"v_add_u32 {vr(vF5 + q)}, {sr(sMB + q)}, {vr(vF)}"]
    touch2 = lines(f"""
    s_cmp_eq_u32 {sr(sI)}, 4
    s_cselect_b32 {sr(sT1)}, 1, 0
    s_mul_i32 {sr(sT2)}, {sr(sI)}, 9
    s_bfe_u32 {sr(sT2)}, {sr(sT2)}, 0x30002
    s_sub_u32 {sr(sT2)}, {sr(sT2)}, {sr(sT1)}
    s_add_u32 {sr(sT3)}, {sr(sT1)}, 5
    v_lshrrev_b32 v226, {sr(sT3)}, v0
    v_lshlrev_b32 v226, 17, v226
    v_add_lshl_u32 v226, v226, v0, 7
    s_and_b32 {sr(sT0)}, s2, 31
    s_lshl_b32 {sr(sT0)}, {sr(sT0)}, 2
    s_add_u32 {sr(sT0)}, {sr(sT0)}, {sr(sW)}
    s_lshl_b32 {sr(sT3)}, {sr(sT0)}, 3
    s_add_u32 {sr(sT3)}, {sr(sT3)}, {sr(sT2)}
    s_lshl_b32 {sr(sT3)}, {sr(sT3)}, 12
    buffer_load_dword v237, v226, {sr(S_WO, 4)}, {sr(sT3)} offen
    s_add_u32 {sr(sT3)}, {sr(sT1)}, 3
    v_lshrrev_b32 v226, {sr(sT3)}, v0
    v_lshlrev_b32 v226, 17, v226
    v_add_lshl_u32 v226, v226, v0, 7
    s_lshr_b32 {sr(sT0)}, {sr(sT0)}, 1
    s_lshl_b32 {sr(sT0)}, {sr(sT0)}, 3
    s_add_u32 {sr(sT0)}, {sr(sT0)}, {sr(sT2)}
    s_lshl_b32 {sr(sT0)}, {sr(sT0)}, 10
    buffer_load_dword v224, v226, {sr(S_CSEL, 4)}, {sr(sT0)} offen
    """) if cfg.get("touch2", True) else []

    mid_fill = [f"""
    s_lshr_b32 {sr(sCF)}, {sr(sH)}, 2
    s_lshl_b32 {sr(sCF)}, {sr(sCF)}, 3
    s_add_u32 {sr(sCF)}, {sr(sCF)}, {sr(sI)}
    s_lshl_b32 {sr(sCF)}, {sr(sCF)}, 7
    s_add_u32 {sr(sFO)}, {sr(sCF)}, {FL_CTX * 128}
    s_and_b32 {sr(sCF)}, {sr(sH)}, 3
    s_lshl_b32 {sr(sCF)}, {sr(sCF)}, 2
    s_add_u32 {sr(sCF)}, {sr(sCF)}, {sr(sFO)}
    v_and_b32 {vr(vPA2)}, 3, v0
    v_lshlrev_b32 {vr(vPA2)}, 2, {vr(vPA2)}
    """]

    def ctx_signal(g):
        return (f"buffer_store_dword {vr(vONE2)}, {vr(vSIG2)}, {sr(S_FLG, 4)}, {sr(sCF)} offen "
                f"offset:{64 * g} sc1")

    tring = [0]
    sring = [0, 0]

    def s2_stage(n, small=False):
        S = Stage(f"s2_{n}", 8)
        S.frac = 0.8
        S.group = 4
        S.blocks = [("H", n), ("C", n)]
        for ks in range(4):
            rr = 240 + 4 * (sring[1] % 4) if small else 128 + 4 * (sring[1] % 8)
            sring[1] += 1
            for x in range(2):
                S.reads.append((tr_read(ar(rr + 2 * x, 2), vH, 0, ks * 4096 + x * 64, W32), len(S.mf)))
            for db in range(4):
                r = ar(192 + 4 * (sring[0] % 12) if small else (list(range(0, 64, 4)) + list(range(160, 192, 4)))[sring[0] % 24], 4)
                sring[0] += 1
                S.reads.append((frag_read(r, vF5, 1, (db >> 1) * 8192 + (ks & 1) * 4096 + (db & 1) * 2048 + (ks >> 1) * 1024,
                                          W32), len(S.mf)))
                d = SACC + 4 * db
                c = "0" if (n == 0 and ks == 0) else vr(d, 4)
                S.mf.append(f"v_mfma_f32_16x16x32_bf16 {vr(d, 4)}, {ar(rr, 4)}, {r}, {c}")
        return S

    def o_stage(g, n):
        S = Stage(f"o{g}_{n}", 12)
        S.blocks = [("WO", n), ("CX", (0, n))] if g == 0 else [("CX", (1, n))]
        acc = HACC if g else LACC
        for kk in range(2):
            ks = 2 * n + kk
            wb = (192, 0, 128, 64)[ks >> 2] + 16 * (ks & 3)
            if g == 0:
                for mb in range(4):
                    for x in range(2):
                        S.reads.append((tr_read(ar(wb + 4 * mb + 2 * x, 2), vT5 + 5 * (mb & 1), 0,
                                                kk * 8192 + (mb >> 1) * 1024 + x * 4096, W32), len(S.mf) + mb))
            for tb in (1, 2, 3, 0):
                r = vr(TRING + 4 * (tring[0] % 8), 4)
                tring[0] += 1
                S.reads.append((frag_read(r, vCX, 1 - g, kk * 8192 + tb * 1024, W32), len(S.mf)))
                for mb in range(4):
                    d = acc + 16 * tb + 4 * mb
                    c = "0" if ks == 0 else vr(d, 4)
                    S.mf.append(f"v_mfma_f32_16x16x32_bf16 {vr(d, 4)}, {ar(wb + 4 * mb, 4)}, {r}, {c}")
        return S

    TL = [o_stage(0, n) for n in range(8)]
    TH, ns2 = [], 0
    for nm in cfg.get("hplan", ["h0h1", "h2h3", "h4h5", "h6h7"]):
        hs_ = [o_stage(1, int(nm[k + 1])) for k in range(0, len(nm), 2) if nm[k] == "h"]
        S = merge_stages(nm, hs_)
        if "s" in nm:
            S = weave(nm, S, s2_stage(ns2, True), chunk=(8 * len(hs_), 4), lb=cfg.get("wlb", 10))
            ns2 += 1
        TH.append(S)
    sring[0] = sring[1] = 0
    T2 = [s2_stage(n) for n in range(ns2, 8)]
    T2[0].lb = 14
    tst = TL + TH + T2
    n2 = len(T2)
    for S in TL + TH:
        S.minpace = cfg.get("tpace", 4.0)
    for S in T2:
        S.minpace = 1.0
    for k, v in cfg.get("tquota", {}).items():
        tst[int(k)].quota, tst[int(k)].dstart = v
    bsig, bpoll = cfg.get("bsig", 2), cfg.get("bpoll", 4)
    TL[bsig].at_barrier.append("@need #ctxst")
    TL[bsig].after_barrier.append(ctx_signal(1))
    ep = ATT.ctx_epilogue(cfg, 1, packed=HACC + 16)
    epv, eps = [x for x in ep if x.startswith("v_")], [x for x in ep if not x.startswith("v_")]
    if cfg.get("epist"):
        epv, eps = ep, []
    nexp = cfg.get("nexp", 999)
    elo, ehi, slo, shi = cfg.get("epiwin", (0, 1, 1, 16))
    if epv[nexp:]:
        TL[0].fill.append((epv[nexp:], elo, ehi))
    assert ehi <= slo and shi < 32 * (bsig + 1) - 13
    if eps:
        TL[0].fill.append((eps, slo, shi))
    TL[0].fill.append((tail2, ehi, 32 * bpoll - 4))
    TL[bpoll].fill.append(([f"""
    s_add_u32 {sr(sT0)}, {sr(sFO)}, 64
    s_lshr_b32 {sr(sT1)}, {sr(sRT64)}, 1
    s_lshl_b32 {sr(sT1)}, {sr(sT1)}, 7
    s_add_u32 {sr(sT1)}, {sr(sT1)}, {FL_H * 128}
    v_add_u32 {vr(vX0)}, {sr(sT0)}, {vr(vPA2)}
    v_and_b32 {vr(vX1)}, 15, v0
    v_lshl_add_u32 {vr(vX1)}, {vr(vX1)}, 2, {sr(sT1)}
    v_cmp_gt_u32 vcc, 32, v0
    v_cndmask_b32 {vr(vPA2)}, {vr(vX1)}, {vr(vX0)}, vcc
    {sync.load(S_FLG, "0", vPA2, vPV2)}
    """], -4, 6))
    TL[bpoll].at_barrier.append(sync.check("B", S_FLG, "0", vPA2, vPV2))
    for S in TH + T2:
        S.gate = bpoll

    def pstore(g):
        acc = HACC if g else LACC
        out = []
        for tb in (1, 2, 3, 0):
            for mp in range(2):
                u = 2 * tb + mp
                if u == 0:
                    continue
                r = acc + 8 * u
                out += [f"s_add_u32 {sr(sT2)}, {sr(sKQ)}, {tb}", f"s_and_b32 {sr(sT2)}, {sr(sT2)}, 3",
                        f"s_and_b32 {sr(sT3)}, {sr(sKQ)}, 4", f"s_or_b32 {sr(sT2)}, {sr(sT2)}, {sr(sT3)}"] \
                    if (mp == 0 or tb == 0) else []
                if mp:
                    out.append(f"s_xor_b32 {sr(sT2)}, {sr(sT2)}, 4")
                out += [f"s_mul_i32 {sr(sT3)}, {sr(sT2)}, {7 * 4096}", f"s_add_u32 {sr(sT3)}, {sr(sT3)}, {sr(sPX)}",
                        f"s_add_u32 {sr(sT3)}, {sr(sT3)}, {g * 56 * 4096 + (u - 1) * 4096}"]
                out += [f"v_cvt_pk_bf16_f32 {vr(r + k)}, {vr(r + 2 * k)}, {vr(r + 2 * k + 1)}" for k in range(4)]
                if g in cfg.get("abl_p", ()) and u != 1:
                    continue
                out.append(f"buffer_store_dwordx4 {vr(r, 4)}, {vr(vL16)}, {sr(S_WS, 4)}, {sr(sT3)} offen sc1 @@pst{g}")
        return out

    def psig(g):
        return (f"buffer_store_dword {vr(vONE2)}, {vr(vSIG2)}, {sr(S_FLG, 4)}, {sr(sCF)} offen "
                f"offset:{128 * g} sc1")

    def pload(g):
        pr = (HACC if g else LACC) + 8
        out = []
        for k in range(1 if g in cfg.get("abl_p", ()) else 7):
            out.append(f"buffer_load_dwordx4 {vr(pr + 4 * k, 4)}, {vr(vL16)}, {sr(S_WS, 4)}, {sr(sPI)} offen sc1")
            out.append(f"s_add_u32 {sr(sPI)}, {sr(sPI)}, {4096 if k < 6 else 50 * 4096}")
        return out

    def padd(g):
        acc = HACC if g else LACC
        t = acc + 40
        out = []
        for k in range(7):
            for j in range(4):
                r = acc + 8 + 4 * k + j
                out += [f"v_lshlrev_b32 {vr(t)}, 16, {vr(r)}", f"v_and_b32 {vr(t + 1)}, 0xffff0000, {vr(r)}",
                        f"v_add_f32 {vr(acc + 2 * j)}, {vr(acc + 2 * j)}, {vr(t)}",
                        f"v_add_f32 {vr(acc + 2 * j + 1)}, {vr(acc + 2 * j + 1)}, {vr(t + 1)}"]
        return out

    DR = [vF + 1, vF + 2, 18, 19]
    epi = [f"""
    s_lshl_b32 {sr(sT0)}, {sr(sI)}, 2
    s_add_u32 {sr(sT0)}, {sr(sT0)}, {sr(sCT)}
    s_lshl_b32 {sr(sFO)}, {sr(sT0)}, 8
    s_add_u32 {sr(sFO)}, {sr(sFO)}, {FL_P * 128}
    s_lshl_b32 {sr(sCF)}, {sr(sKQ)}, 2
    s_add_u32 {sr(sCF)}, {sr(sCF)}, {sr(sFO)}
    s_mul_i32 {sr(sPX)}, {sr(sT0)}, {112 * 4096}
    s_lshl_b32 {sr(sT0)}, {sr(sW)}, 10
    s_add_u32 {sr(sPX)}, {sr(sPX)}, {sr(sT0)}
    s_add_u32 {sr(sPX)}, {sr(sPX)}, {WS_PX}
    s_mul_i32 {sr(sPI)}, {sr(sKQ)}, {7 * 4096}
    s_add_u32 {sr(sPI)}, {sr(sPI)}, {sr(sPX)}
    v_and_b32 {vr(vPA2)}, 7, v0
    v_lshlrev_b32 {vr(vPA2)}, 2, {vr(vPA2)}
    v_lshrrev_b32 {vr(vX0)}, 4, v0
    v_and_b32 {vr(vX1)}, 15, v0
    v_lshlrev_b32 {vr(vX)}, 12, {vr(vX0)}
    v_lshl_add_u32 {vr(vX)}, {vr(vX1)}, 3, {vr(vX)}
    s_lshl_b32 {sr(sOA)}, {sr(sRT64)}, 2
    s_add_u32 {sr(sOA)}, {sr(sOA)}, {sr(sW)}
    s_lshl_b32 {sr(sT0)}, {sr(sOA)}, 14
    s_lshl_b32 {sr(sT1)}, {sr(sCT64)}, 7
    s_add_u32 {sr(sT0)}, {sr(sT0)}, {sr(sT1)}
    """]
    for n in range(4):
        epi.append(f"buffer_load_dwordx2 {vr(XR + 2 * n, 2)}, {vr(vX)}, {sr(S_XA, 4)}, {sr(sT0)} offen offset:{n * 1024}")
    epi.append(f"""
    v_lshlrev_b32 {vr(vX)}, 3, {vr(vX1)}
    buffer_load_dwordx2 {vr(XR + 8, 2)}, {vr(vX)}, {sr(S_DSK, 4)}, {sr(sT1)} offen
    """)
    epi2 = [f"""
    v_lshlrev_b32 {vr(vOA)}, 14, {vr(vX0)}
    v_lshl_add_u32 {vr(vOA)}, {vr(vX1)}, 4, {vr(vOA)}
    s_lshl_b32 {sr(sOA)}, {sr(sOA)}, 16
    s_lshl_b32 {sr(sT1)}, {sr(sCT64)}, 8
    s_add_u32 {sr(sOA)}, {sr(sOA)}, {sr(sT1)}
    v_mul_u32_u24 {vr(vWr)}, {TSTR}, {vr(vX1)}
    v_lshl_add_u32 {vr(vWr)}, {vr(vX0)}, 4, {vr(vWr)}
    v_lshrrev_b32 {vr(vX0)}, 3, v0
    v_and_b32 {vr(vX1)}, 7, v0
    v_mul_u32_u24 {vr(vRd)}, {TSTR}, {vr(vX0)}
    v_lshl_add_u32 {vr(vRd)}, {vr(vX1)}, 4, {vr(vRd)}
    s_add_u32 {sr(sT0)}, TRBASE
    v_add_u32 {vr(vRd)}, {sr(sT0)}, {vr(vRd)}
    v_add_u32 {vr(vWr)}, {sr(sT0)}, {vr(vWr)}
    v_lshlrev_b32 {vr(vO)}, 12, {vr(vX0)}
    v_lshl_add_u32 {vr(vO)}, {vr(vX1)}, 4, {vr(vO)}
    s_lshr_b32 {sr(sT1)}, {sr(sW)}, 1
    s_lshl_b32 {sr(sT1)}, {sr(sT1)}, 2
    s_and_b32 {sr(sT0)}, {sr(sKQ)}, 3
    s_add_u32 {sr(sT1)}, {sr(sT1)}, {sr(sT0)}
    s_lshl_b32 {sr(sOB)}, {sr(sT1)}, 16
    s_lshl_b32 {sr(sT1)}, {sr(sCT)}, 1
    s_and_b32 {sr(sT0)}, {sr(sW)}, 1
    s_add_u32 {sr(sT1)}, {sr(sT1)}, {sr(sT0)}
    s_lshl_b32 {sr(sT1)}, {sr(sT1)}, 1
    s_lshr_b32 {sr(sT0)}, {sr(sKQ)}, 2
    s_add_u32 {sr(sT1)}, {sr(sT1)}, {sr(sT0)}
    s_lshl_b32 {sr(sT1)}, {sr(sT1)}, 7
    s_add_u32 {sr(sOB)}, {sr(sOB)}, {sr(sT1)}
    v_lshlrev_b32 {vr(DR[0])}, 16, {vr(XR + 8)}
    v_and_b32 {vr(DR[1])}, 0xffff0000, {vr(XR + 8)}
    v_lshlrev_b32 {vr(DR[2])}, 16, {vr(XR + 9)}
    v_and_b32 {vr(DR[3])}, 0xffff0000, {vr(XR + 9)}
    """]
    for n in range(4):
        y, x = Y + 4 * n, XR + 2 * n
        epi2 += [f"v_lshlrev_b32 {vr(y)}, 16, {vr(x)}", f"v_and_b32 {vr(y + 1)}, 0xffff0000, {vr(x)}",
                 f"v_lshlrev_b32 {vr(y + 2)}, 16, {vr(x + 1)}", f"v_and_b32 {vr(y + 3)}, 0xffff0000, {vr(x + 1)}"]
        epi2 += [f"v_mul_f32 {vr(y + e)}, {vr(y + e)}, {vr(DR[e])}" for e in range(4)]
        epi2 += [f"v_cvt_pk_bf16_f32 {vr(x)}, {vr(y)}, {vr(y + 1)}", f"v_cvt_pk_bf16_f32 {vr(x + 1)}, {vr(y + 2)}, {vr(y + 3)}",
                 f"v_lshlrev_b32 {vr(y)}, 16, {vr(x)}", f"v_and_b32 {vr(y + 1)}, 0xffff0000, {vr(x)}",
                 f"v_lshlrev_b32 {vr(y + 2)}, 16, {vr(x + 1)}", f"v_and_b32 {vr(y + 3)}, 0xffff0000, {vr(x + 1)}"]
    trbase = [None]
    assert bsig < bpoll < 7
    TL[bpoll + 1].fill.append((epi, 0, 32 * (7 - bpoll) - 2))
    TH[0].fill.append((pstore(0), 1, cfg.get("pl_hi", 50)))
    TH[0].fill.append((lambda a_: [x.replace("TRBASE", str(trbase[0])) for x in epi2], *cfg.get("epi2win", (64, 154))))
    lsig, lpoll = cfg.get("lsig", 1), cfg.get("lpoll", 7)
    hsg, hpl = cfg.get("psig", 2), cfg.get("ppoll", 99)
    R = TH + T2
    onep = cfg.get("onep", True)
    if not onep:
        R[lsig].at_barrier.append("@need #pst0")
        R[lsig].after_barrier.append(psig(0))
        if lpoll < len(R) - 1:
            R[lpoll].fill.append(([sync.load(S_FLG, sr(sFO), vPA2, vPV2)], *cfg.get("lpollat", (-6, -2))))
            R[lpoll].at_barrier.append(sync.check("PL", S_FLG, sr(sFO), vPA2, vPV2))
            R[lpoll].after_barrier += pload(0) + [f"s_add_u32 {sr(sFO)}, {sr(sFO)}, 128"]
        else:
            R[-1].fill.append(([sync.load(S_FLG, sr(sFO), vPA2, vPV2)], -6, -2))
    else:
        TH[2].fill.append(([f"s_add_u32 {sr(sFO)}, {sr(sFO)}, 128"], 0, 2))
    T2[0].fill.append((pstore(1), *cfg.get("phwin", (-10, 15))))
    if hsg < n2 - 1:
        T2[hsg].at_barrier.append("@need #pst1")
        T2[hsg].after_barrier.insert(0, psig(1))
    if hpl < n2 - 1:
        T2[hpl].fill.append(([sync.load(S_FLG, sr(sFO), vPA2, vPV2)], -6, -2))
        T2[hpl].at_barrier.append(sync.check("PH", S_FLG, sr(sFO), vPA2, vPV2))
        T2[hpl].after_barrier += (pload(0) if onep else []) + pload(1)
    paddl = cfg.get("paddl")
    if paddl:
        R[paddl[0]].fill.append((padd(0), paddl[1], paddl[2]))

    def tail_order(blocks):
        first = [(0, 0), (1, 0), (2, 0), (3, 0), (0, 1), (1, 1)]
        return first + [x for x in blocks if x not in first]

    P2 = Pipe(tst, dma_group, cfg, "tb", cfg.get("npro2", 8), fine(24) and (lambda n: fine(24)(n).replace("v95", "v255")),
              gated=("CX", "H"), order=tail_order, slots=list(range(10)))
    q = [q for q in range(NBLK) if P2.free_at[q] < len(tst)][0]
    trbase[0] = f"{sr(sMB + q // 2)}, {(q % 2) * BLK}"
    P2.schedule()
    dm = ["\n".join(su + [ins]) for grp in P2.prolog_dma for su, ins in grp]

    tc = Prog()
    if cfg.get("touch3", True):
        touch_code(S_CODE, "KA_pc2", 237, tc)
    tcl = [x.text for x in tc.ins]
    acheck = sync.check("A", S_FLG, sr(sFO), vPA2, vPV2)
    npost = cfg.get("npost", 4)
    T = dict(d2=(d2a, [d2b]), d3a=d3x, d3post=[hsig] + mid_fill, s1=[ctx_signal(0)] + tcl + dm[:8],
             sig7="@need #ctxst\n s_barrier\n" + ctx_signal(0) + "\n" + "\n".join(dm[:8]),
             s2=dm[8:12] + [sync.load(S_FLG, sr(sFO), vPA2, vPV2)] + dm[12:16], s2bar=acheck,
             s2post=dm[16:16 + npost], s3=dm[16 + npost:24] + tail1)
    ATT.gen_attention(p, cfg, tile_addr(0), st, pre=qpack(2, (0,)) + qpack(3, (0,)) + qpack(2, (1,)) + qpack(3, (1,)),
                      rest=rest, touch=touch2, T=T)

    p("s_barrier")
    p(f"s_load_dwordx2 {sr(S_OUT, 2)}, s[0:1], {KA['OUT']}\n s_load_dwordx2 {sr(S_DSK, 2)}, s[0:1], {KA['DSK']}")
    rem, ev = dm[24:], epv[:nexp]
    d0 = cfg.get("remstart", 40)
    for k, x in enumerate(ev):
        p(x)
        if rem and k >= d0 and (k - d0) % max(1, (len(ev) - d0) // len(dm[24:])) == 0:
            p(rem.pop(0))
    for x in rem:
        p(x)
    p(f"""
    s_waitcnt lgkmcnt(0)
    s_mov_b32 {sr(S_OUT + 2)}, {2048 * 4096}
    s_mov_b32 {sr(S_OUT + 3)}, {SRD3}
    s_mov_b32 {sr(S_DSK + 2)}, 1024
    s_mov_b32 {sr(S_DSK + 3)}, {SRD3}
    @need {P2.first_need}
    s_barrier
    """)
    st()
    for t in P2.prolog_reads:
        p(t)
    xb = {}
    if timing:
        for n in (8, 8 + len(TH)):
            tq = Prog()
            stamp(tq, True, nstamp[0], sTS, 252, 254, S_WS, sStamp)
            nstamp[0] += 1
            xb[P2.start[n]] = "\n".join(x.text for x in tq.ins)
    P2.emit(p, xb)
    if timing:
        p(f"v_lshlrev_b32 v254, 2, v0\n buffer_store_dword v255, v254, {sr(S_WS, 4)}, {sr(sStamp)} offen offset:512")
    st()

    osc = " " + cfg.get("outflag", "sc1")
    lend = not onep and lpoll >= len(R) - 1
    if lend:
        assert hpl >= n2 - 1 and not paddl
        p(sync.check("PL", S_FLG, sr(sFO), vPA2, vPV2))
    if hsg >= n2 - 1:
        p("@need #pst1\n s_barrier\n" + psig(1))
    elif lend:
        p("s_barrier")
    if lend:
        for x in pload(0) + [f"s_add_u32 {sr(sFO)}, {sr(sFO)}, 128"]:
            p(x)
    if hpl >= n2 - 1:
        p(sync.load(S_FLG, sr(sFO), vPA2, vPV2))

    def out_b(g):
        acc = HACC if g else LACC
        for k in range(2):
            p(f"ds_write_b128 {vr(vWr)}, {vr(acc + 4 * k, 4)} offset:{k * 64}")
        p(f"s_lshl_b32 {sr(sT0)}, {sr(sI)}, 19")
        if g:
            p(f"s_sub_u32 {sr(sT0)}, {15 << 19}, {sr(sT0)}")
        p(f"s_add_u32 {sr(sT0)}, {sr(sT0)}, {sr(sOB)}\n s_add_u32 {sr(sT1)}, {sr(sT0)}, {8 * 4096}")
        p("s_waitcnt lgkmcnt(0)")
        for k in range(2):
            p(f"ds_read_b128 {vr(acc + 48 + 4 * k, 4)}, {vr(vRd)} offset:{k * 8 * TSTR}")

    def store_b(g):
        acc = HACC if g else LACC
        for k in range(2):
            p(f"buffer_store_dwordx4 {vr(acc + 48 + 4 * k, 4)}, {vr(vO)}, {sr(S_OUT, 4)}, {sr(sT1 if k else sT0)} offen "
              f"offset:2048{osc}")

    def fin_l():
        if not paddl:
            for x in padd(0):
                p(x)
        out_b(0)

    late_l = onep and hpl >= n2 - 1
    if not late_l:
        fin_l()
    for r in range(4):
        for db in range(4):
            p(f"v_add_f32 {vr(Y + 4 * r + db)}, {vr(Y + 4 * r + db)}, {vr(SACC + 4 * db + r)}")
    if hpl >= n2 - 1:
        p(sync.check("PH", S_FLG, sr(sFO), vPA2, vPV2))
        p("s_barrier")
        for x in (pload(0) if onep else []) + pload(1):
            p(x)
    if not late_l:
        store_b(0)
    for r in range(4):
        p(f"buffer_store_dwordx4 {vr(Y + 4 * r, 4)}, {vr(vOA)}, {sr(S_OUT, 4)}, {sr(sOA)} offen{osc}")
        if r < 3:
            p(f"s_add_u32 {sr(sOA)}, {sr(sOA)}, 4096")
    if late_l:
        fin_l()
    pa = padd(1)
    for x in pa[:16]:
        p(x)
    if late_l:
        store_b(0)
    for x in pa[16:]:
        p(x)
    out_b(1)
    store_b(1)
    st()
    if timing and cfg.get("dbgout") is not None:
        p(f"""
        s_cmp_lg_u32 s2, {cfg["dbgout"]}
        s_cbranch_scc1 KA_end
        s_waitcnt vmcnt(0)
        s_barrier
        v_lshlrev_b32 v1, 4, v0
        v_mov_b32 v2, {63 * 8}
        buffer_load_dword v3, v1, {sr(S_WS, 4)}, {sr(sStamp)} offen offset:4 sc1
        buffer_load_dword v5, v1, {sr(S_WS, 4)}, {sr(sStamp)} offen offset:12 sc1
        buffer_load_dword v4, v2, {sr(S_WS, 4)}, {sr(sStamp)} offen sc1
        s_mov_b32 {sr(S_DBG + 2)}, 64
        v_lshlrev_b32 v1, 2, v0
        v_sub_u32 v3, v3, v4
        v_sub_u32 v5, v5, v4
        v_and_b32 v5, 0xffff, v5
        v_mul_u32_u24 v3, 100000, v3
        v_add_u32 v3, v3, v5
        buffer_store_dword v3, v1, {sr(S_DBG, 4)}, 0 offen offset:32
        """)
    p.label("KA_end")
    p("s_endpgm")
    p.label("KA_codeend")
    sync.emit(p)
    ATT.gen_attention_rare(p, cfg)
    p.finish(cfg.get("verbose_nop", False))
    if cfg.get("align8"):
        p.align8(True)
    return p


def build(cfg):
    import os
    ref = "cdna_kernels/" + NAME + ".s.ref"
    hdr = [l for l in open(ref).read().split("\n")
           if l.startswith(";") and "@launch" not in l][:19] if os.path.exists(ref) else ["; test build"]
    ka = gen(cfg)
    out = "\n".join(hdr) + "\n"
    if cfg.get("aslist"):
        out += f"; @launch kernel={NAME}_kernel grid=(256,1,1) block=(256,1,1) lds={NBLK * BLK}\n"
    else:
        out += f"; @launch grid=(256,1,1) block=(256,1,1) lds={NBLK * BLK}\n"
    out += '.amdgcn_target "amdgcn-amd-amdhsa--gfx950"\n'
    out += kernel_text(NAME + "_kernel", ka)
    out += '.section .rodata,"a"\n.p2align 6\n'
    out += descriptor_text(NAME + "_kernel", 512, 102, 256)
    print("instrs", len(ka.ins), "maxv", ka.maxreg("v"), "maxa", ka.maxreg("a"), "maxs", ka.maxreg("s"),
          "auto nops", sum(1 for x in ka.ins if x.auto and x.cls == "nop"), file=sys.stderr)
    return out


if __name__ == "__main__":
    cfg = json.loads(sys.argv[2]) if len(sys.argv) > 2 else {}
    open(sys.argv[1], "w").write(build(cfg))
```

```python
from asmlib import *

BLK = 16384
NBLK = 10


def ldsaddr(vbase, addr, win=65536):
    return vr(vbase + addr // win), addr % win


def lines(text):
    return [x.strip() for x in text.split("\n") if x.strip()]


def cost(text, vmcost=4):
    c = 0
    for x in lines(text):
        if x.startswith("@") or x.endswith(":"):
            continue
        op = x.split()[0]
        if op.startswith(TRANS) or op.startswith("v_mfma"):
            c += 8
        elif op.startswith("buffer_") or op.startswith("global_"):
            c += vmcost
        else:
            c += 4
    return c


def split_items(items):
    out = []
    for it in items:
        if it.startswith("~"):
            out.append(it[1:].replace("|", "\n"))
            continue
        for x in lines(it):
            op = x.split()[0]
            if out and (op.startswith("s_cselect") or op.startswith("s_addc") or op.startswith("s_cbranch")
                        or x.endswith(":") or out[-1].split("\n")[-1].startswith("@need")):
                out[-1] += "\n" + x
            else:
                out.append(x)
    return out


class Sched:
    def __init__(self, backbone, cap, vmcost=4):
        self.bb = list(backbone)
        self.n = len(self.bb)
        self.cap = [cap] * self.n
        self.fixed = [[] for _ in self.bb]
        self.front = [[] for _ in self.bb]
        self.chains = []
        self.vmcost = vmcost
        self.place = {}
        self.cap0 = cap
        self.nomem = set()
        self.excl = True
        self.m0gap = 2

    def fix(self, slot, text, c=None, front=False):
        (self.front if front else self.fixed)[slot].append(text)
        self.cap[slot] -= cost(text, self.vmcost) if c is None else c

    def chain(self, items):
        if items:
            it = [list(x) for x in items]
            for k in range(len(it) - 2, -1, -1):
                it[k][2] = min(it[k][2], it[k + 1][2])
            self.chains.append(it)

    def spread(self, items, lo, hi, early=2, late=3):
        items = split_items(items)
        tot = sum(cost(x, self.vmcost) for x in items)
        acc = 0
        ch = []
        for x in items:
            t = lo + (acc * (hi - lo)) // max(tot, 1)
            acc += cost(x, self.vmcost)
            ch.append((x, max(lo, t - early), min(hi - 1, t + late)))
        self.chain(ch)

    def run(self):
        pos = [0] * len(self.chains)
        hold = [0] * len(self.chains)
        self.out = [[] for _ in self.bb]
        self.over = [0] * self.n

        def isvm(t):
            return any(x.startswith(("buffer_", "global_")) for x in lines(t))

        def ismem(t):
            return t.startswith("ds_") or isvm(t)

        def hasvalu(t):
            return any(x.startswith("v_") for x in lines(t))

        for s in range(self.n):
            room = self.cap[s]
            free = not self.front[s]
            empty = not self.front[s] and not self.fixed[s] and self.cap[s] >= self.cap0
            closed = False
            valu, seen = set(), set()
            first, head, rest = [], [], []
            while True:
                best = None
                for ci, ch in enumerate(self.chains):
                    if pos[ci] >= len(ch):
                        continue
                    it = ch[pos[ci]]
                    due = it[2] <= s
                    if not due and (it[1] > s or hold[ci] > s or closed):
                        continue
                    c = cost(it[0], self.vmcost)
                    lead = free and it[0].startswith("s_") and ci not in seen and not it[0].startswith("s_barrier")
                    if lead:
                        c -= 4
                    if ismem(it[0]) and (ci in valu or s in self.nomem):
                        if not due:
                            continue
                        c += 8
                    if self.excl and isvm(it[0]) and not empty:
                        if not due:
                            continue
                        c += 4
                    if c > room and not due:
                        continue
                    key = (it[2], 0 if isvm(it[0]) else 1)
                    if best is None or key < best[0]:
                        best = (key, ci, c, lead)
                if best is None:
                    break
                _, ci, c, lead = best
                it = self.chains[ci][pos[ci]]
                if hasvalu(it[0]):
                    valu.add(ci)
                (first if lead else rest if ci in valu else head).append(it[0])
                seen.add(ci)
                if lead:
                    free = False
                if self.excl and isvm(it[0]):
                    closed = True
                    free = False
                empty = False
                assert s >= (it[4] if len(it) > 4 else it[1]), ("placed before release", it, s)
                if len(it) > 3 and it[3] is not None:
                    self.place[it[3]] = s
                room -= c
                pos[ci] += 1
                if " m0," in it[0] and pos[ci] < len(self.chains[ci]) and isvm(self.chains[ci][pos[ci]][0]):
                    hold[ci] = s + self.m0gap
            self.out[s] = first + head + rest
            self.over[s] = max(0, -room)
        for ci, ch in enumerate(self.chains):
            assert pos[ci] == len(ch), ("unplaced", ch[pos[ci]])

    def emit(self, p, before=None):
        for s in range(self.n):
            if before and s in before:
                p(before[s])
            p(self.bb[s])
            for x in self.front[s] + self.out[s] + self.fixed[s]:
                p(x)


class Stage:
    def __init__(self, name, lb):
        self.name = name
        self.blocks = []
        self.mf = []
        self.reads = []
        self.fill = []
        self.at_barrier = []
        self.after_barrier = []
        self.lb = lb
        self.gate = None
        self.frac = None
        self.maxpace = None
        self.minpace = None
        self.group = 8
        self.quota = None
        self.dstart = 0.0


class Pipe:
    def __init__(self, stages, dma_group, cfg, tag, npro, stampfn=None, gated=(), order=None, slots=None):
        self.stages, self.cfg, self.tag = stages, cfg, tag
        nst = len(stages)
        start, mf = [], []
        for S in stages:
            start.append(len(mf))
            mf += S.mf
        total = len(mf)
        start.append(total)
        self.start, self.total, self.mf = start, total, mf
        bar = [start[n] - stages[n].lb - 1 for n in range(nst)]
        bar[0] = -1
        bar.append(total - 1)
        self.bar = bar
        blocks = [(n, j) for n, S in enumerate(stages) for j in range(len(S.blocks))]
        if order:
            blocks = order(blocks)
        free_at = [0] * NBLK
        seq = list(slots or range(NBLK))
        self.saddr = saddr = [[None] * len(S.blocks) for S in stages]
        self.prolog_dma = []
        byb = {}
        fbmin = 0
        tags = [[] for _ in stages]
        for k, (n, j) in enumerate(blocks):
            kind, par = stages[n].blocks[j]
            slot = min(seq, key=lambda q: free_at[q])
            seq.remove(slot)
            seq.append(slot)
            fb = free_at[slot]
            free_at[slot] = (n + 1 if kind == "SCR" else n) + 1
            saddr[n][j] = slot * BLK
            if kind == "SCR":
                assert bar[fb] + 1 <= start[n], "scratch block not free in time"
                continue
            tags[n].append(f"#{tag}{k}")
            grp = dma_group(kind, par, slot * BLK, f"{tag}{k}")
            if k < npro:
                assert (kind not in gated or stages[n].gate is None) and fb == 0
                self.prolog_dma.append(grp)
                continue
            if kind in gated and stages[n].gate is not None:
                fb = max(fb, stages[n].gate + 1)
            fb = max(fb, fbmin)
            fbmin = fb
            byb.setdefault(fb, []).append((n, grp))
        self.free_at = free_at
        self.first_need = " ".join(tags[0])
        self.tags, self.stampfn = tags, stampfn
        self.dma = []
        self.dcur = 0
        carry = []
        for fb in range(nst):
            S = stages[fb]
            lst = carry + byb.get(fb, [])
            carry = []
            if S.quota is not None:
                lst, carry = lst[:S.quota], lst[S.quota:]
            if not lst:
                continue
            cnt = sum(len(g[1]) for g in lst)
            frac = S.frac if S.frac is not None else cfg.get("spread", 0.9)
            mp = S.maxpace if S.maxpace is not None else cfg.get("maxpace", 8)
            lo = bar[fb] + 1 + int(S.dstart * (bar[fb + 1] - bar[fb]))
            span = max(bar[fb + 1] - max(lo, self.dcur), 1)
            mn = S.minpace if S.minpace is not None else cfg.get("minpace", 1.0)
            pace = min(max(mn, span * frac / cnt), mp)
            for n, grp in lst:
                self.add_dma(grp, lo, pace, bar[n] - 1)
        assert not carry
        self.extra_fixed = []

    def add_dma(self, grp, earliest, pace, limit):
        for setup, ins in grp:
            s = min(max(self.dcur, earliest), limit)
            r = int(s)
            assert earliest <= limit, "DMA cannot be issued before its barrier"
            for x in setup:
                self.dma.append((x, max(earliest, r - 4), min(r + 1, limit), None, earliest))
            self.dma.append((ins, min(r, limit), min(r + 4, limit), None, earliest))
            self.dcur = s + pace

    def schedule(self):
        stages, start, bar, total, cfg = self.stages, self.start, self.bar, self.total, self.cfg
        nst = len(stages)
        mfins = [Ins(t) for t in self.mf]
        LAT = cfg.get("ldslat", 5)
        reads = []
        for n, S in enumerate(stages):
            for fn, fu in sorted(S.reads, key=lambda r: r[1]):
                t = fn(self.saddr[n])
                dst = Ins(t).writes
                g0 = start[n] + (fu // S.group) * S.group
                fu += start[n]
                e = fu - 1
                while e >= 0 and not (mfins[e].reads & dst):
                    e -= 1
                reads.append((t, n, e, fu, g0))
        void = set()
        for attempt in range(3):
            sc = Sched(self.mf, 8, cfg.get("vmcost", 8))
            sc.excl, sc.m0gap = cfg.get("excl", True), cfg.get("m0gap", 2)
            self.prolog_reads = []
            ch = []
            for k, (t, n, e, fu, g0) in enumerate(reads):
                if n == 0 and e < 0 and len(self.prolog_reads) < 14:
                    self.prolog_reads.append(t)
                    sc.place[k] = -1
                    continue
                rel = max(e, bar[n] + 1, 0)
                dl = g0 - 1 - LAT
                if n < nst - 1:
                    dl = min(dl, bar[n + 1] - LAT)
                    assert rel < bar[n + 1], (stages[n].name, "read after next barrier", t)
                assert rel < fu, (stages[n].name, t)
                ch.append((t, rel, max(dl, rel), k))
            for k in range(len(ch) - 2, -1, -1):
                ch[k] = (ch[k][0], ch[k][1], max(ch[k][1], min(ch[k][2], ch[k + 1][2])), ch[k][3])
            for k in range(1, len(ch)):
                if ch[k][2] < ch[k - 1][2]:
                    ch[k] = (ch[k][0], ch[k][1], ch[k - 1][2], ch[k][3])
            sc.chains.append([list(x) for x in ch])
            sc.chain(self.dma)
            for n in range(1, nst):
                txt = "".join(x + "\n" for x in stages[n - 1].at_barrier)
                txt += f"@need {' '.join(self.tags[n])}\n s_waitcnt lgkmcnt(0)\n s_barrier\n"
                if self.stampfn:
                    txt += self.stampfn(n)
                sc.fix(bar[n], txt)
                ab = split_items(stages[n - 1].after_barrier)
                sc.chain([(x, bar[n] + 1, min(bar[n] + 2 + k, total - 1)) for k, x in enumerate(ab)])
            for slot, txt in self.extra_fixed:
                sc.fix(slot, txt)
            groups = sorted({r[4] for r in reads})
            for g0 in groups:
                if g0 > 0 and g0 not in void:
                    sc.front[g0 - 1].append("@")
            for n, S in enumerate(stages):
                for items, lo, hi in S.fill:
                    if callable(items):
                        items = items(self.saddr[n])
                    sc.spread(items, lo + start[n], min(hi + start[n], total))
            sc.run()
            self.before = {}
            newvoid = set()
            for g0 in groups:
                lastbar = max(b for b in bar[:-1] if b < g0)
                regs = [Ins(r[0]).text.split()[1].rstrip(",") for k, r in enumerate(reads)
                        if r[4] == g0 and (sc.place[k] > lastbar or lastbar < 0) and sc.place[k] <= g0 - 3]
                if g0 > 0:
                    sc.front[g0 - 1] = [x for x in sc.front[g0 - 1] if x != "@"]
                if not regs:
                    newvoid.add(g0)
                elif g0 > 0:
                    sc.front[g0 - 1].append("@need " + " ".join(regs))
                else:
                    self.before[g0] = "@need " + " ".join(regs)
            if newvoid == void:
                break
            void = newvoid
        for k, (t, n, e, fu, g0) in enumerate(reads):
            assert sc.place[k] < fu and (n == nst - 1 or sc.place[k] <= bar[n + 1])
            if cfg.get("verbose") and 0 <= sc.place[k] > g0 - 3:
                print(f"  late read {stages[n].name}: {t} at {sc.place[k] - start[n]} use {fu - start[n]}")
        self.sc = sc
        if cfg.get("verbose"):
            print("  over: " + " ".join(f"{S.name}={sum(sc.over[start[n]:start[n + 1]])}" for n, S in enumerate(stages)))

    def emit(self, p, extra_before=None):
        before = dict(self.before)
        for k, v in (extra_before or {}).items():
            before[k] = v + "\n" + before.get(k, "")
        n0 = len(p.ins)
        self.sc.emit(p, before)
        verify_stream(p.ins[n0:])


def merge_stages(name, lst):
    S = Stage(name, lst[0].lb)
    S.group = lst[0].group
    for T in lst:
        nb, nm = len(S.blocks), len(S.mf)
        S.blocks += T.blocks
        S.mf += T.mf
        S.reads += [((lambda f, o: (lambda a: f(a[o:])))(fn, nb), fu + nm) for fn, fu in T.reads]
    return S


def verify_stream(ins):
    nxt = {}
    for x in reversed(ins):
        if x.is_mfma():
            for r in x.writes:
                nxt[r] = "acc" if r in x.srcc else "init"
            for r in x.srcab:
                nxt[r] = "ab"
        elif x.cls in ("ds_read", "vm_load") or "keep" in (x.tag or ""):
            for r in x.writes:
                assert nxt.get(r) != "acc", ("load into live accumulator", x.text)
                nxt[r] = "init"
        else:
            for r in x.reads | x.writes:
                assert nxt.get(r) != "acc", ("filler touches live accumulator", x.text, r)
            for r in x.writes:
                assert nxt.get(r) != "ab", ("filler overwrites MFMA operand", x.text, r)


def weave(name, A, B, chunk=(8, 4), lb=None):
    S = Stage(name, A.lb if lb is None else lb)
    S.group = 4
    S.blocks = A.blocks + B.blocks
    pos = ([], [])
    src = (list(A.mf), list(B.mf))
    while src[0] or src[1]:
        for k in range(2):
            for _ in range(chunk[k]):
                if src[k]:
                    pos[k].append(len(S.mf))
                    S.mf.append(src[k].pop(0))
    nb = len(A.blocks)
    S.reads = [(fn, pos[0][fu]) for fn, fu in A.reads]
    S.reads += [((lambda f: (lambda a: f(a[nb:])))(fn), pos[1][fu]) for fn, fu in B.reads]
    return S
```

```python
import sys, json, re
from gen_common import *
from regs import *
from pipesched import *
import gen_att3 as ATT

PSTR = 272
PART = 64 * PSTR


def cexp(n, outre, outim, t0, t1):
    return [
        f"v_mul_f32 {vr(t0)}, {n}, {vr(vZA)}",
        f"v_mul_f32 {vr(t1)}, {n}, {vr(vZB)}",
        f"v_exp_f32 {vr(t0)}, {vr(t0)}",
        f"v_fract_f32 {vr(t1)}, {vr(t1)}",
        f"v_cos_f32 {vr(outre)}, {vr(t1)}",
        f"v_sin_f32 {vr(outim)}, {vr(t1)}",
        f"v_mul_f32 {vr(outre)}, {vr(outre)}, {vr(t0)}",
        f"v_mul_f32 {vr(outim)}, {vr(outim)}, {vr(t0)}",
    ]


def cmadd(dre, dim, lre, lim, hre, him, ure, uim):
    return [
        f"v_fma_f32 {vr(dre)}, {vr(lre)}, {vr(hre)}, {vr(ure)}",
        f"v_fma_f32 {vr(dim)}, {vr(lre)}, {vr(him)}, {vr(uim)}",
        f"v_fma_f32 {vr(dre)}, -{vr(lim)}, {vr(him)}, {vr(dre)}",
        f"v_fma_f32 {vr(dim)}, {vr(lim)}, {vr(hre)}, {vr(dim)}",
    ]


class Sync:
    def __init__(self, cfg):
        self.spins = []
        self.cfg = cfg

    def load(self, srd, soff, pa, pv):
        return f"buffer_load_dword {vr(pv)}, {vr(pa)}, {sr(srd, 4)}, {soff} offen sc1"

    def check(self, name, srd, soff, pa, pv):
        self.spins.append((name, srd, soff, pa, pv))
        return f"""
        POLL_{name}:
        v_cmp_ne_u32 vcc, {sr(sEXP)}, {vr(pv)}
        s_cbranch_vccnz SPIN_{name}
        POLLOK_{name}:
        """

    def emit(self, p):
        for name, srd, soff, pa, pv in self.spins:
            p(f"""
            SPIN_{name}:
            s_add_u32 {sr(sSPIN)}, {sr(sSPIN)}, 1
            s_cmp_gt_u32 {sr(sSPIN)}, 0x100000
            s_cbranch_scc1 POLLOK_{name}
            s_sleep {self.cfg.get('sleep', 2)}
            {self.load(srd, soff, pa, pv)}
            s_waitcnt vmcnt(0)
            s_branch POLL_{name}
            """)


def frag_read(dst, vb, blk, off, win=65536):
    def fn(addrs):
        r, imm = ldsaddr(vb, addrs[blk] + off, win)
        return f"ds_read_b128 {dst}, {r} offset:{imm}"
    return fn


def tr_read(dst, vb, blk, off, win=65536):
    def fn(addrs):
        r, imm = ldsaddr(vb, addrs[blk] + off, win)
        return f"ds_read_b64_tr_b16 {dst}, {r} offset:{imm}"
    return fn


KXOR = [False]


def adv(r, step, mask=1023):
    return [f"s_add_u32 {sr(r)}, {sr(r)}, {step}", f"s_and_b32 {sr(r)}, {sr(r)}, {mask}"]


def dma_group(kind, par, addr, tag):
    out = []

    def one(pos, setup, vpat, srd, imm, flags="", linear=False):
        s = list(setup)
        if not linear or pos == 0:
            if kind in ("H", "C", "WO", "CX"):
                s.append(f"s_add_u32 m0, {sr(sMB + addr // 32768)}, {addr % 32768 + pos * 1024 - imm}")
            else:
                s.append(f"s_add_u32 m0, {sr(sWLDS)}, {addr + pos * 1024 - imm}")
        off = f" offset:{imm}" if imm else ""
        out.append((s, f"buffer_load_dwordx4 {vr(vpat)}, {sr(srd, 4)}, {sr(sD0)} offen{off}{flags} lds @@{tag}"))

    if kind == "C1":
        for pos in range(4):
            su = []
            if pos == 0:
                if KXOR[0]:
                    su = [f"s_xor_b32 {sr(sRK)}, {sr(sRK)}, {(par ^ (par - 1)) * 128}"] if par else []
                else:
                    su = adv(sRK, 128) if par else []
                su = su + [f"s_add_u32 {sr(sD0)}, {sr(sCKV)}, {sr(sRK)}"]
            if pos == 2:
                su = [f"s_add_u32 {sr(sD0)}, {sr(sD0)}, 16384"]
            one(pos, su, vN, S_CKV, (pos & 1) * 64)
    elif kind == "W":
        srd, rot, same = par
        for pos in range(4):
            su = []
            if pos == 0 and not same:
                su = [f"s_lshl_b32 {sr(sD0)}, {sr(rot)}, 12", f"s_add_u32 {sr(sD0)}, {sr(sD0)}, {sr(sWOFF)}"]
            one(pos, su, vW, srd, pos * 64)
    elif kind == "C2":
        u, kh = par
        for pos in range(4):
            su = []
            if pos % 2 == 0:
                src = sCKV2b if pos else sCKV2a
                if kh:
                    su = [f"s_xor_b32 {sr(sD0)}, {sr(src)}, 512"]
                    src = sD0
                su.append(f"s_add_u32 {sr(sD0)}, {sr(src)}, {(u - 4) * 32768}")
            one(pos, su, vN, S_CKV, (pos & 1) * 64)
    elif kind == "SX":
        for pos in range(4):
            su = []
            if pos == 0:
                su = (adv(sRS, 256) if (par and par % 2 == 0) else []) + [f"s_add_u32 {sr(sD0)}, {sr(sXA)}, {sr(sRS)}"]
                if par & 1:
                    su.append(f"s_add_u32 {sr(sD0)}, {sr(sD0)}, 128")
            if pos == 2:
                su = [f"s_add_u32 {sr(sD0)}, {sr(sD0)}, 4096"]
            one(pos, su, vS, S_XA, (pos & 1) * 64)
    elif kind == "SB":
        for pos in range(4):
            su = [f"s_add_u32 {sr(sD0)}, {sr(sBOFF)}, {sr(sRS)}"] if pos == 0 else []
            one(pos, su, vN, S_BSEL, pos * 64)
    elif kind == "X":
        g, stg = par
        for pos in range(4):
            su = []
            if pos == 0:
                su = (adv(sRQ, 128) if (stg and g == 0) else []) + \
                    [f"s_add_u32 {sr(sD0)}, {sr(sXQB if g else sXQA)}, {sr(sRQ)}"]
            if pos == 2:
                su = [f"s_add_u32 {sr(sD0)}, {sr(sD0)}, {sr(sXD)}"]
            one(pos, su, vN, S_XB, (pos & 1) * 64)
    elif kind == "H":
        for pos in range(4):
            su = []
            if pos == 0:
                su = (adv(sR2, 128) if par else []) + \
                    [f"s_lshl_b32 {sr(sD0)}, {sr(sR2)}, 7", f"s_add_u32 {sr(sD0)}, {sr(sD0)}, {sr(sHO)}"]
            one(pos, su, vL16, S_WS, pos * 1024, " sc1", linear=True)
    elif kind == "C":
        for pos in range(4):
            su = []
            if pos == 0:
                su = [f"s_add_u32 {sr(sD0)}, {sr(sCO)}, {sr(sR2)}"]
            one(pos, su, vC4, S_CSEL, (pos >> 1) * 1024 + (pos & 1) * 64)
    elif kind == "WO":
        for pos in range(4):
            su = []
            if pos == 0:
                su = (adv(sRO, 65536, 0x7ffff) if par else []) + [f"s_add_u32 {sr(sD0)}, {sr(sRO)}, {sr(sWOO)}"]
            one(pos, su, vNb if pos & 1 else vNa, S_WO, (pos >> 1) * 128)
    elif kind == "CX":
        g, stg = par
        for pos in range(4):
            su = []
            if pos == 0:
                su = (adv(sRO2, 16384, 0x1ffff) if (g or stg) else []) + \
                    [f"s_add_u32 {sr(sD0)}, {sr(sCTXH if g else sCTXO)}, {sr(sRO2)}"]
            one(pos, su, vL16, S_WS, pos * 1024, " sc1", linear=True)
    elif kind == "SCR":
        pass
    else:
        raise ValueError(kind)
    return out


def gen(cfg):
    timing = cfg.get("timing", False)
    p = Prog()
    sync = Sync(cfg)
    nstamp = [0]

    def st(va=vS):
        stamp(p, timing, nstamp[0], sTS, vX0, va, S_WS, sStamp)
        nstamp[0] += 1

    def fine(base):
        if not timing or cfg.get("light"):
            return None
        return lambda n: f"s_memtime {sr(sTS, 2)}\n s_waitcnt lgkmcnt(0)\n v_writelane_b32 v95, {sr(sTS)}, {base + n}\n"

    def touch_code(srd, label, dst, q=None):
        (q or p)(f"""
        s_getpc_b64 {sr(srd, 2)}
        {label}:
        s_mov_b32 {sr(srd + 2)}, KA_codeend-{label}
        s_mov_b32 {sr(srd + 3)}, {SRD3}
        s_lshr_b32 {sr(sT0)}, s2, 3
        s_lshl_b32 {sr(sT0)}, {sr(sT0)}, 2
        s_add_u32 {sr(sT0)}, {sr(sT0)}, {sr(sW)}
        s_lshl_b32 {sr(sT0)}, {sr(sT0)}, 7
        v_lshlrev_b32 {vr(vX0)}, 14, v0
        buffer_load_dword {vr(dst)}, {vr(vX0)}, {sr(srd, 4)}, {sr(sT0)} offen
        """)

    p(f"""
    s_cmp_ge_u32 s2, 256
    s_cbranch_scc1 KA_end
    {"s_memrealtime " + sr(sRET, 2) if timing else ""}
    s_load_dwordx2 {sr(S_CKV, 2)}, s[0:1], {KA['CKV']}
    s_load_dwordx2 {sr(S_WUK, 2)}, s[0:1], {KA['WUK']}
    s_load_dwordx2 {sr(S_WUV, 2)}, s[0:1], {KA['WUV']}
    s_load_dwordx2 {sr(S_XA, 2)}, s[0:1], {KA['XA']}
    s_load_dwordx4 {sr(S_BSEL, 4)}, s[0:1], {KA['BRE']}
    s_load_dwordx2 {sr(S_XB, 2)}, s[0:1], {KA['XB']}
    s_load_dwordx2 {sr(S_WQ, 2)}, s[0:1], {KA['WQ']}
    s_load_dwordx2 {sr(S_WO, 2)}, s[0:1], {KA['WO']}
    s_load_dwordx4 {sr(S_CSEL, 4)}, s[0:1], {KA['CRE']}
    s_load_dwordx2 {sr(S_WS, 2)}, s[0:1], {KA['WS']}
    s_load_dwordx2 {sr(sDBGP, 2)}, s[0:1], {KA['DBG']}
    s_load_dwordx4 {sr(S_LRE, 4)}, s[0:1], {KA['LRE']}
    s_load_dwordx2 {sr(S_LDT, 2)}, s[0:1], {KA['LDT']}
    v_lshlrev_b32 {vr(vSIG)}, 16, v0
    v_lshrrev_b32 {vr(vX0)}, 6, v0
    v_and_b32 v0, 63, v0
    v_readfirstlane_b32 {sr(sW)}, {vr(vX0)}
    """)
    if cfg.get("pretouch", True):
        touch_code(S_E, "KA_pc", TMP)
    hs = 1 if cfg.get("hswap", True) else 0
    KXOR[0] = cfg.get("kxor", False)
    rk = cfg.get("rotk", (4, 4, 0))
    rq = cfg.get("rotq", (1, 2, 1))
    p(f"""
    s_and_b32 {sr(sT0)}, s2, 7
    s_lshr_b32 {sr(sT1)}, s2, 3
    s_add_u32 {sr(sT2)}, {sr(sT1)}, {cfg.get("hrot", 0)}
    s_and_b32 {sr(sT2)}, {sr(sT2)}, 3
    s_lshl_b32 {sr(sH)}, {sr(sT0)}, 2
    s_add_u32 {sr(sH)}, {sr(sH)}, {sr(sT2)}
    s_lshr_b32 {sr(sI)}, {sr(sT1)}, 2
    s_lshl_b32 {sr(sWLDS)}, {sr(sW)}, 12
    v_lshrrev_b32 {vr(vX0)}, 5, v0
    v_lshlrev_b32 {vr(vX0)}, 1, {vr(vX0)}
    v_and_b32 {vr(vX1)}, 3, v0
    v_xor_b32 {vr(vX0)}, {vr(vX0)}, {vr(vX1)}
    v_lshlrev_b32 {vr(vX0)}, 4, {vr(vX0)}
    v_lshrrev_b32 {vr(vX1)}, 2, v0
    v_lshl_add_u32 {vr(vW)}, {vr(vX1)}, 13, {vr(vX0)}
    v_lshl_add_u32 {vr(vN)}, {vr(vX1)}, 10, {vr(vX0)}
    s_and_b32 {sr(sT0)}, {sr(sH)}, {hs}
    s_lshl_b32 {sr(sT0)}, {sr(sT0)}, 17
    s_lshl_b32 {sr(sCKV)}, {sr(sI)}, 18
    s_add_u32 {sr(sCKV)}, {sr(sCKV)}, {sr(sT0)}
    s_xor_b32 {sr(sCKV2b)}, {sr(sCKV)}, 0x20000
    s_lshl_b32 {sr(sT0)}, {sr(sW)}, 15
    s_add_u32 {sr(sCKV)}, {sr(sCKV)}, {sr(sT0)}
    s_lshl_b32 {sr(sWOFF)}, {sr(sW)}, 17
    s_lshl_b32 {sr(sT0)}, {sr(sH)}, 8
    s_add_u32 {sr(sWOFF)}, {sr(sWOFF)}, {sr(sT0)}
    s_and_b32 {sr(sT0)}, {sr(sH)}, 3
    s_cmp_eq_u32 {sr(sT0)}, 1
    s_cselect_b32 {sr(sT0)}, {cfg.get("rotk1", rk[0])}, {rk[0]}
    s_mul_i32 {sr(sRK)}, {sr(sI)}, {sr(sT0)}
    s_bfe_u32 {sr(sT0)}, {sr(sH)}, 0x10001
    s_mul_i32 {sr(sT0)}, {sr(sT0)}, {rk[1]}
    s_add_u32 {sr(sRK)}, {sr(sRK)}, {sr(sT0)}
    s_lshr_b32 {sr(sT0)}, {sr(sH)}, 2
    s_mul_i32 {sr(sT0)}, {sr(sT0)}, {rk[2]}
    s_add_u32 {sr(sRK)}, {sr(sRK)}, {sr(sT0)}
    s_and_b32 {sr(sRK)}, {sr(sRK)}, {cfg.get("kmask", 7)}
    s_lshl_b32 {sr(sRK)}, {sr(sRK)}, 7
    s_lshr_b32 {sr(sT0)}, {sr(sW)}, 1
    s_lshl_b32 {sr(sT0)}, {sr(sT0)}, 14
    s_add_u32 {sr(sCKV2b)}, {sr(sCKV2b)}, {sr(sT0)}
    s_and_b32 {sr(sT0)}, {sr(sW)}, 1
    s_lshl_b32 {sr(sT0)}, {sr(sT0)}, 8
    {"s_xor_b32" if KXOR[0] else "s_add_u32"} {sr(sT0)}, {sr(sT0)}, {sr(sRK)}
    s_and_b32 {sr(sT1)}, {sr(sT0)}, 1023
    s_add_u32 {sr(sCKV2a)}, {sr(sCKV2b)}, {sr(sT1)}
    {"s_xor_b32" if KXOR[0] else "s_add_u32"} {sr(sT0)}, {sr(sT0)}, 128
    s_and_b32 {sr(sT0)}, {sr(sT0)}, 1023
    s_add_u32 {sr(sCKV2b)}, {sr(sCKV2b)}, {sr(sT0)}
    """)
    for s, n in ((S_CKV, 2048 * 1024), (S_WUK, 512 * 8192), (S_WUV, 512 * 8192)):
        p(f"s_mov_b32 {sr(s + 2)}, {n}")
        p(f"s_mov_b32 {sr(s + 3)}, {SRD3}")
    p("s_waitcnt lgkmcnt(0)")
    if timing:
        p("s_memrealtime s[90:91]")

    def lin_touch(srd, base, lanes, nwg, dst):
        sh = {64: 6, 32: 5, 16: 4, 8: 3}[lanes]
        t = f"""
        s_and_b32 {sr(sT0)}, s2, {nwg - 1}
        s_lshl_b32 {sr(sT0)}, {sr(sT0)}, 2
        s_add_u32 {sr(sT0)}, {sr(sT0)}, {sr(sW)}
        s_lshl_b32 {sr(sT0)}, {sr(sT0)}, {sh + 7}
        """
        if base:
            t += f"s_add_u32 {sr(sT0)}, {sr(sT0)}, {base}\n"
        t += f"v_lshlrev_b32 {vr(vX0)}, 7, v0\n"
        if lanes < 64:
            t += f"v_lshrrev_b32 {vr(vX1)}, {sh}, v0\n v_lshl_add_u32 {vr(vX0)}, {vr(vX1)}, 24, {vr(vX0)}\n"
        for k, d in enumerate(srd):
            t += f"buffer_load_dword {vr(dst + k)}, {vr(vX0)}, {sr(d, 4)}, {sr(sT0)} offen\n"
        return t

    SR = dict(ckv=S_CKV, wk=S_WUK, wv=S_WUV, xa=S_XA, xb=S_XB, wq=S_WQ, b=S_BSEL)
    for names, base, lanes in cfg.get("init_touch", []):
        p(lin_touch([SR[x] for x in names.split("+")], base, lanes, 256, TMP + 1))

    late = f"""
    s_and_b32 {sr(sT0)}, s2, 7
    s_lshr_b32 {sr(sT1)}, s2, 3
    s_lshr_b32 {sr(sC)}, {sr(sT0)}, 1
    s_lshl_b32 {sr(sC)}, {sr(sC)}, 2
    s_lshr_b32 {sr(sT2)}, {sr(sT1)}, 3
    s_add_u32 {sr(sC)}, {sr(sC)}, {sr(sT2)}
    s_and_b32 {sr(sPG)}, {sr(sT0)}, 1
    s_lshl_b32 {sr(sPG)}, {sr(sPG)}, 3
    s_and_b32 {sr(sT2)}, {sr(sT1)}, 7
    s_add_u32 {sr(sPG)}, {sr(sPG)}, {sr(sT2)}
    v_and_b32 {vr(vX0)}, 15, v0
    s_and_b32 {sr(sT2)}, {sr(sW)}, 1
    s_lshl_b32 {sr(sT2)}, {sr(sT2)}, 4
    s_lshl_b32 {sr(sT3)}, {sr(sPG)}, 5
    s_add_u32 {sr(sT2)}, {sr(sT2)}, {sr(sT3)}
    v_add_lshl_u32 {vr(vX1)}, {vr(vX0)}, {sr(sT2)}, 1
    global_load_ushort {vr(vLA)}, {vr(vX1)}, {sr(S_LRE, 2)}
    global_load_ushort {vr(vLB)}, {vr(vX1)}, {sr(S_LIM, 2)}
    global_load_ushort {vr(vZA)}, {vr(vX1)}, {sr(S_LDT, 2)}
    s_add_u32 {sr(S_FLG)}, {sr(S_WS)}, {WS_FLG}
    s_addc_u32 {sr(S_FLG + 1)}, {sr(S_WS + 1)}, 0
    s_mov_b32 {sr(S_FLG + 2)}, 32768
    s_mov_b32 {sr(S_FLG + 3)}, {SRD3}
    v_lshlrev_b32 {vr(vL16)}, 4, v0
    v_mov_b32 {vr(DT)}, 0
    v_mov_b32 {vr(DT + 1)}, 0
    v_mov_b32 {vr(DT + 2)}, 0
    v_mov_b32 {vr(DT + 3)}, 0
    s_lshl_b32 {sr(sT0)}, s2, 2
    s_add_u32 {sr(sT0)}, {sr(sT0)}, {sr(sW)}
    s_lshl_b32 {sr(sT0)}, {sr(sT0)}, 10
    buffer_store_dwordx4 {vr(DT, 4)}, {vr(vL16)}, {sr(S_FLG, 4)}, {sr(sT0)} offen sc1 @@zero
    s_mov_b32 {sr(S_DBG)}, {sr(sDBGP)}
    s_mov_b32 {sr(S_DBG + 1)}, {sr(sDBGP + 1)}
    s_cmp_eq_u32 {sr(sW)}, 0
    s_cselect_b32 {sr(sEXP)}, 1, 0
    s_cselect_b32 {sr(S_DBG + 2)}, 32, 0
    s_cselect_b32 {sr(S_FLG + 2)}, 32768, 0
    s_mov_b32 {sr(S_DBG + 3)}, {SRD3}
    v_mov_b32 {vr(vONE)}, 1
    s_mov_b32 {sr(sSPIN)}, 0
    s_cmp_ge_u32 {sr(sW)}, 2
    s_cselect_b32 {sr(S_BSEL)}, {sr(S_BSEL + 2)}, {sr(S_BSEL)}
    s_cselect_b32 {sr(S_BSEL + 1)}, {sr(S_BSEL + 3)}, {sr(S_BSEL + 1)}
    s_bitcmp1_b32 {sr(sW)}, 0
    s_cselect_b32 {sr(S_CSEL)}, {sr(S_CSEL + 2)}, {sr(S_CSEL)}
    s_cselect_b32 {sr(S_CSEL + 1)}, {sr(S_CSEL + 3)}, {sr(S_CSEL + 1)}
    """
    for s, n in ((S_XA, 2048 * 1024), (S_BSEL, 512 * 1024), (S_XB, 2048 * 1024), (S_WQ, 512 * 8192),
                 (S_WO, 4096 * 1024), (S_CSEL, 512 * 1024), (S_WS, WS_END + (1 << 20 if timing else 0)),
                 (S_E, 65536)):
        late += f"s_mov_b32 {sr(s + 2)}, {n}\n s_mov_b32 {sr(s + 3)}, {SRD3}\n"
    late += f"""
    s_add_u32 {sr(S_E)}, {sr(S_WS)}, {WS_E}
    s_addc_u32 {sr(S_E + 1)}, {sr(S_WS + 1)}, 0
    s_mul_i32 {sr(sKVST)}, {sr(sH)}, {HEADSTRIDE}
    s_add_u32 {sr(S_KVR)}, {sr(S_WS)}, {sr(sKVST)}
    s_addc_u32 {sr(S_KVR + 1)}, {sr(S_WS + 1)}, 0
    s_lshl_b32 {sr(sT0)}, {sr(sI)}, 16
    s_sub_u32 {sr(S_KVR + 2)}, {32 * 32768}, {sr(sT0)}
    s_and_b32 {sr(sT0)}, {sr(sW)}, 1
    s_lshl_b32 {sr(sT0)}, {sr(sT0)}, 15
    s_add_u32 {sr(S_KVR + 2)}, {sr(S_KVR + 2)}, {sr(sT0)}
    s_mov_b32 {sr(S_KVR + 3)}, {SRD3}
    s_lshl_b32 {sr(sT0)}, {sr(sI)}, 17
    s_add_u32 {sr(sKVST)}, {sr(sKVST)}, {sr(sT0)}
    s_and_b32 {sr(sT0)}, {sr(sH)}, {hs}
    s_lshl_b32 {sr(sT0)}, {sr(sT0)}, 16
    s_sub_u32 {sr(sKVST2)}, {sr(sKVST)}, {sr(sT0)}
    s_add_u32 {sr(sKVST)}, {sr(sKVST)}, {sr(sT0)}
    s_add_u32 {sr(sRS)}, {sr(sC)}, {sr(sPG)}
    s_mul_i32 {sr(sRS)}, {sr(sRS)}, {cfg.get("rots", 1)}
    s_and_b32 {sr(sRS)}, {sr(sRS)}, 3
    s_lshl_b32 {sr(sRS)}, {sr(sRS)}, 8
    s_mul_i32 {sr(sRQ)}, {sr(sI)}, {rq[0]}
    s_mul_i32 {sr(sT0)}, {sr(sH)}, {rq[1]}
    s_add_u32 {sr(sRQ)}, {sr(sRQ)}, {sr(sT0)}
    s_lshr_b32 {sr(sT0)}, {sr(sH)}, 2
    s_mul_i32 {sr(sT0)}, {sr(sT0)}, {rq[2]}
    s_add_u32 {sr(sRQ)}, {sr(sRQ)}, {sr(sT0)}
    s_and_b32 {sr(sRQ)}, {sr(sRQ)}, 7
    s_lshl_b32 {sr(sRQ)}, {sr(sRQ)}, 7
    s_lshl_b32 {sr(sXA)}, {sr(sC)}, 17
    s_lshr_b32 {sr(sT0)}, {sr(sW)}, 1
    s_lshl_b32 {sr(sT0)}, {sr(sT0)}, 16
    s_add_u32 {sr(sXA)}, {sr(sXA)}, {sr(sT0)}
    s_and_b32 {sr(sT0)}, {sr(sW)}, 1
    s_lshl_b32 {sr(sT1)}, {sr(sT0)}, 13
    s_add_u32 {sr(sXA)}, {sr(sXA)}, {sr(sT1)}
    s_lshl_b32 {sr(sBOFF)}, {sr(sPG)}, 15
    s_lshl_b32 {sr(sT1)}, {sr(sT0)}, 14
    s_add_u32 {sr(sBOFF)}, {sr(sBOFF)}, {sr(sT1)}
    s_lshl_b32 {sr(sT0)}, {sr(sW)}, 15
    s_sub_u32 {sr(sXD)}, {7 << 14}, {sr(sT0)}
    s_lshl_b32 {sr(sT0)}, {sr(sW)}, 14
    s_lshl_b32 {sr(sXQA)}, {sr(sI)}, 17
    s_sub_u32 {sr(sXQB)}, {15 << 17}, {sr(sXQA)}
    s_add_u32 {sr(sXQA)}, {sr(sXQA)}, {sr(sT0)}
    s_add_u32 {sr(sXQB)}, {sr(sXQB)}, {sr(sT0)}
    s_mov_b32 {sr(sQS)}, {f32hex(QSCALE)}
    """
    if timing:
        late += f"s_lshl_b32 {sr(sStamp)}, s2, 10\n s_add_u32 {sr(sStamp)}, {sr(sStamp)}, {WS_STAMP}\n"
    late += f"""
    v_lshrrev_b32 {vr(vX1)}, 4, v0
    v_mul_u32_u24 {vr(vS)}, {12 * 1024}, {vr(vX1)}
    v_add_u32 {vr(vS)}, {vr(vS)}, {vr(vN)}
    s_lshr_b32 {sr(sT0)}, {sr(sW)}, 1
    s_lshl_b32 {sr(sT0)}, {sr(sT0)}, 2
    v_add_u32 {vr(vSEG)}, {sr(sT0)}, {vr(vX1)}
    v_bfe_u32 {vr(vF)}, v0, 3, 1
    v_lshlrev_b32 {vr(vF)}, 1, {vr(vF)}
    v_xor_b32 {vr(vF)}, {vr(vF)}, {vr(vX1)}
    v_lshl_add_u32 {vr(vF)}, {vr(vX0)}, 2, {vr(vF)}
    v_lshlrev_b32 {vr(vF)}, 4, {vr(vF)}
    v_add_u32 {vr(vF + 1)}, 0x10000, {vr(vF)}
    v_add_u32 {vr(vF + 2)}, 0x20000, {vr(vF)}
    v_lshrrev_b32 {vr(vT)}, 5, v0
    v_lshlrev_b32 {vr(vT)}, 12, {vr(vT)}
    v_bfe_u32 {vr(vT + 1)}, v0, 4, 1
    v_mul_u32_u24 {vr(vT + 1)}, {512 + 32}, {vr(vT + 1)}
    v_add_u32 {vr(vT)}, {vr(vT)}, {vr(vT + 1)}
    v_bfe_u32 {vr(vT + 1)}, v0, 2, 2
    v_lshl_add_u32 {vr(vT)}, {vr(vT + 1)}, 6, {vr(vT)}
    v_and_b32 {vr(vT + 1)}, 3, v0
    v_lshl_add_u32 {vr(vT)}, {vr(vT + 1)}, 3, {vr(vT)}
    s_lshl_b32 {sr(sT0)}, {sr(sW)}, 10
    v_add_u32 {vr(vT)}, {sr(sT0)}, {vr(vT)}
    v_add_u32 {vr(vT + 1)}, 0x10000, {vr(vT)}
    v_add_u32 {vr(vT + 2)}, 0x20000, {vr(vT)}
    v_xor_b32 {vr(vT + 3)}, 32, {vr(vT)}
    v_xor_b32 {vr(vT + 4)}, 32, {vr(vT + 1)}
    v_xor_b32 {vr(vT + 5)}, 32, {vr(vT + 2)}
    s_lshr_b32 {sr(sT0)}, {sr(sW)}, 1
    s_lshl_b32 {sr(sT0)}, {sr(sT0)}, 13
    v_add_u32 {vr(vFA)}, {sr(sT0)}, {vr(vF)}
    v_add_u32 {vr(vFA + 1)}, {sr(sT0)}, {vr(vF + 1)}
    v_add_u32 {vr(vFA + 2)}, {sr(sT0)}, {vr(vF + 2)}
    s_and_b32 {sr(sT0)}, {sr(sW)}, 1
    s_lshl_b32 {sr(sT0)}, {sr(sT0)}, 12
    v_add_u32 {vr(vFB)}, {sr(sT0)}, {vr(vF)}
    v_add_u32 {vr(vFB + 1)}, {sr(sT0)}, {vr(vF + 1)}
    v_add_u32 {vr(vFB + 2)}, {sr(sT0)}, {vr(vF + 2)}
    v_lshl_add_u32 {vr(vKST)}, {sr(sW)}, 11, {vr(vL16)}
    v_add_u32 {vr(vVST)}, {5 * 8192}, {vr(vKST)}
    """

    stages = []
    ringpos = [0]

    def ring_alloc(size):
        r = RING + 4 * (ringpos[0] % size)
        ringpos[0] += 1
        return vr(r, 4)

    def kv_mfmas(S, ks, R, X, Y):
        w = [ar(16 * ks + 4 * j, 4) for j in range(4)]
        for a, b, d in ((w[0], X, 0), (w[0], Y, 8), (w[1], X, 4), (w[1], Y, 12),
                        (X, w[2], 16), (Y, w[2], 20), (X, w[3], 24), (Y, w[3], 28)):
            c = "0" if ks == 0 else vr(R + d, 4)
            S.mf.append(f"v_mfma_f32_16x16x32_bf16 {vr(R + d, 4)}, {a}, {b}, {c}")

    VSC = cfg.get("vscale", 0)

    def drain(unit, R, tmp=None):
        cv, stv = [], []
        for n in range(4):
            t = R + 8 * n if tmp is None else tmp + 4 * n
            for k in range(4):
                a, b = R + 8 * n + 2 * k, R + 8 * n + 2 * k + 1
                if n < 2:
                    cv += [f"v_mul_f32 {vr(a)}, {sr(sQS)}, {vr(a)}", f"v_mul_f32 {vr(b)}, {sr(sQS)}, {vr(b)}"]
                elif VSC:
                    cv += [f"v_ldexp_f32 {vr(a)}, {vr(a)}, {VSC}", f"v_ldexp_f32 {vr(b)}, {vr(b)}, {VSC}"]
                cv.append(f"v_cvt_pk_bf16_f32 {vr(t + k)}, {vr(a)}, {vr(b)}")
            va = vKST if n < 2 else vVST
            imm = (n & 1) * 1024
            s = f"buffer_store_dwordx4 {vr(t, 4)}, {vr(va)}, {sr(S_WS, 4)}, {sr(sST)} offen offset:{imm} sc1 @@kvst"
            if n == 0:
                s = f"s_add_u32 {sr(sST)}, {sr(sKVST if unit < 4 else sKVST2)}, {unit * 16384}\n" + s
            if cfg.get("nokvst") and not (unit == 7 and n == 0):
                s = "s_nop 0"
            if cfg.get("kvplain"):
                s = s.replace(" sc1 @@", " @@")
            stv.append(s)
        return cv, stv

    for n in range(8):
        S = Stage(f"kv1_{n}", 18)
        S.blocks = [("C1", n), ("W", (S_WUK, sRK, False)), ("W", (S_WUV, sRK, True))]
        for kk in range(2):
            ks = 2 * n + kk
            for j in range(4):
                for x in range(2):
                    S.reads.append((tr_read(ar(16 * ks + 4 * j + 2 * x, 2), vT + 3 * (j & 1), 1 + (j >> 1),
                                            kk * 8192 + x * 256), len(S.mf) + 2 * j))
            for u in range(4):
                X, Y = ring_alloc(8), ring_alloc(8)
                S.reads.append((frag_read(X, vF, 0, (4 * u + kk) * 1024), len(S.mf)))
                S.reads.append((frag_read(Y, vF, 0, (4 * u + 2 + kk) * 1024), len(S.mf) + 1))
                kv_mfmas(S, ks, RSET[u], X, Y)
        stages.append(S)

    def mid_stage(nm, RB):
        m = re.fullmatch(r"(?:U(\d)([ab]?))?(?:S(\d))?", nm)
        u, half, n = m.group(1), m.group(2), m.group(3)
        S = Stage(nm, 8 if u is None else 18)
        rs = 8 if n is None else 12 if u is None else 14
        kvs, sms = [], []
        if u is not None:
            u = int(u)
            khs = {"": (0, 1), "a": (0,), "b": (1,)}[half]
            S.blocks += [("C2", (u, kh)) for kh in khs]
            kvs = [(j, 8 * kh + k) for j, kh in enumerate(khs) for k in range(8)]
        nb = len(S.blocks)
        if n is not None:
            n = int(n)
            S.blocks += [("SX", 2 * n), ("SB", n), ("SX", 2 * n + 1)]
            sms = list(range(4))
        per = len(kvs) // 4 if sms else 16
        while kvs or sms:
            for j, ks in kvs[:per]:
                X, Y = ring_alloc(rs), ring_alloc(rs)
                S.reads.append((frag_read(X, vF, j, (ks & 7) * 1024), len(S.mf)))
                S.reads.append((frag_read(Y, vF, j, 8192 + (ks & 7) * 1024), len(S.mf) + 1))
                kv_mfmas(S, ks, {4: RSET[4], 5: RSET[0], 6: RSET[2], 7: RSET[3]}[u], X, Y)
            kvs = kvs[per:]
            if sms:
                k4 = sms.pop(0)
                kh, kk = k4 >> 1, k4 & 1
                B = []
                for reim in range(2):
                    r = ring_alloc(rs)
                    B.append(r)
                    S.reads.append((frag_read(r, vFB, nb + 1, reim * 8192 + k4 * 1024), len(S.mf) + reim))
                for rb in range(4):
                    r = ring_alloc(rs)
                    S.reads.append((frag_read(r, vFA, nb + 2 * kh, (2 * rb + kk) * 1024), len(S.mf)))
                    for reim in range(2):
                        d = RB + 16 * reim + 4 * rb
                        c = "0" if (n == 0 and k4 == 0) else vr(d, 4)
                        S.mf.append(f"v_mfma_f32_16x16x32_bf16 {vr(d, 4)}, {r}, {B[reim]}, {c}")
        S.rs = rs
        return S

    QACC = [RSET[0], RSET[2], RSET[4], RSET[3]]
    RB = RSET[1]

    def qacc(db, qb):
        return QACC[db >> 1] + 16 * (db & 1) + 4 * qb

    qring = [0, 0]

    def q_stage(n):
        S = Stage(f"q_{n}", 14)
        S.blocks = [("X", (0, n)), ("W", (S_WQ, sRQ, False)), ("X", (1, n))]
        for kk in range(2):
            xs = []
            base = len(S.mf)
            for qb in range(4):
                r = ar(128 + 4 * (qring[0] % 12), 4)
                qring[0] += 1
                xs.append(r)
                S.reads.append((frag_read(r, vFA, 2 * (qb >> 1), (2 * (qb & 1) + kk) * 1024), base + qb))
            for db in range(8):
                rr = 192 + 4 * (qring[1] % 8)
                qring[1] += 1
                for x in range(2):
                    S.reads.append((tr_read(ar(rr + 2 * x, 2), vT + 3 * (db & 1), 1,
                                            kk * 8192 + (db >> 1) * 1024 + x * 256), len(S.mf)))
                for qb in range(4):
                    d = qacc(db, qb)
                    c = "0" if (n == 0 and kk == 0) else vr(d, 4)
                    S.mf.append(f"v_mfma_f32_16x16x32_bf16 {vr(d, 4)}, {ar(rr, 4)}, {xs[qb]}, {c}")
        return S

    made = {}
    prs = 8
    order = cfg.get("order", ["U4", "U5", "S0", "S1", "S2", "S3", "U6", "U7"])
    for nm in order:
        rs = 8 if "S" not in nm else 12 if "U" not in nm else 14
        if rs != prs:
            ringpos[0] = cfg.get("ringstart", {}).get(nm, 8 if rs > prs == 8 and rs == 14 else 0)
        S = mid_stage(nm, RB)
        if prs == 12 and rs != 12:
            S.lb = 7
        if prs == 8 and rs == 12:
            S.lb = 14
        if prs == 14:
            S.lb = cfg.get("wovlb", 10)
        made[nm] = S
        stages.append(S)
        prs = rs
    U6, U7 = stages[-2], stages[-1]
    U5 = made[cfg.get("parstage", "U5")]
    QS = [q_stage(n) for n in range(8)]
    stages += QS
    for k, v in cfg.get("frac", {}).items():
        stages[int(k)].frac = v
    for k, v in cfg.get("quota", {}).items():
        stages[int(k)].quota, stages[int(k)].dstart = v
    for k, v in cfg.get("mpace", {}).items():
        stages[int(k)].maxpace = v

    UR = [RSET[0], RSET[1], RSET[2], RSET[3], RSET[4], RSET[0], RSET[2], RSET[3]]
    byname = made
    dplan = cfg.get("drains", [["U4", 4, 36, 36, 44], ["U4", 64, 96, 96, 104], ["U5", 4, 36, 36, 44],
                               ["U5", 64, 96, 96, 104], ["U6", 2, 30, 30, 38], ["U6", 64, 96, 96, 104],
                               ["U7", 64, 96, 96, 104]])
    stag = cfg.get("stag")
    allst = {}
    for u, (nm, a, b, c, d) in enumerate(dplan):
        cv, stv = drain(u, UR[u])
        byname[nm].fill.append((cv, a, b))
        allst[u] = stv
        if not stag or not any(u in x[0] for x in stag):
            byname[nm].fill.append((stv, c, d))
    for k, (units, nm, lo, hi, grp) in enumerate(stag or []):
        items = []
        for u in units:
            for j, x in enumerate(split_items(allst[u])):
                if not x.startswith("buffer"):
                    items.append(x)
                    if cfg.get("stagoob"):
                        items.append(f"s_bitcmp{grp}_b32 s2, {cfg.get('stagbit', 5)}\n"
                                     f"s_cselect_b32 {sr(sST)}, {sr(sST)}, {WS_END + (2 << 20)}")
                elif cfg.get("stagoob"):
                    items.append(x)
                else:
                    items.append(f"~s_cbranch_vcc{'z' if grp else 'nz'} STG_{k}_{u}_{j}|{x}|STG_{k}_{u}_{j}:")
        byname[nm].fill.append((items, lo, hi))
    if stag and not cfg.get("stagoob"):
        for nm in sorted({x[1] for x in stag}):
            lo = min(x[2] for x in stag if x[1] == nm)
            byname[nm].fill.append(([f"s_bitcmp1_b32 s2, {cfg.get('stagbit', 5)}\n s_cselect_b64 vcc, -1, 0"], lo - 4, lo))
    cv7, st7 = drain(7, RSET[3], RING)
    QS[0].fill.append((cv7, 2, 22))
    QS[0].fill.append((st7, *cfg.get("st7", (24, 32))))

    def signal(line_sgpr_setup, sig=vSIG, one=vONE):
        return line_sgpr_setup + f"\n buffer_store_dword {vr(one)}, {vr(sig)}, {sr(S_FLG, 4)}, {sr(sFO)} offen sc1"

    stages[0].at_barrier.append("@need #zero")
    stages[0].after_barrier.append(f"v_lshl_add_u32 {vr(vPA)}, s2, 2, {vr(vSIG)}\n"
                                   f"buffer_store_dword {vr(vONE)}, {vr(vPA)}, {sr(S_DBG, 4)}, 0 offen sc1")
    tch = cfg.get("touch1")
    if tch:
        gw = f"s_lshl_b32 {sr(sT0)}, s2, 2\n s_add_u32 {sr(sT0)}, {sr(sT0)}, {sr(sW)}\n s_lshl_b32 {sr(sT0)}, {sr(sT0)}, 7"
        tl = [[gw, f"v_lshlrev_b32 {vr(vX0)}, 17, v0",
               f"buffer_load_dword {vr(TMP + 1)}, {vr(vX0)}, {sr(S_XA, 4)}, {sr(sT0)} offen"],
              [f"s_lshl_b32 {sr(sT0)}, s2, 1\n s_and_b32 {sr(sT1)}, {sr(sW)}, 1",
               f"s_add_u32 {sr(sT0)}, {sr(sT0)}, {sr(sT1)}\n s_lshl_b32 {sr(sT0)}, {sr(sT0)}, 7",
               f"v_lshlrev_b32 {vr(vX0)}, 16, v0",
               f"buffer_load_dword {vr(TMP + 2)}, {vr(vX0)}, {sr(S_BSEL, 4)}, {sr(sT0)} offen"],
              [f"s_lshl_b32 {sr(sT0)}, {sr(sI)}, 2\n s_add_u32 {sr(sT0)}, {sr(sT0)}, {sr(sW)}",
               f"s_lshl_b32 {sr(sT0)}, {sr(sT0)}, 13\n s_lshl_b32 {sr(sT1)}, {sr(sH)}, 8",
               f"s_add_u32 {sr(sT0)}, {sr(sT0)}, {sr(sT1)}\n v_and_b32 {vr(vX0)}, 1, v0",
               f"v_lshlrev_b32 {vr(vX0)}, 7, {vr(vX0)}\n v_lshrrev_b32 {vr(vX1)}, 1, v0",
               f"v_lshl_add_u32 {vr(vX0)}, {vr(vX1)}, 18, {vr(vX0)}",
               f"buffer_load_dword {vr(TMP + 3)}, {vr(vX0)}, {sr(S_WQ, 4)}, {sr(sT0)} offen"],
              [gw, f"v_lshlrev_b32 {vr(vX0)}, 17, v0",
               f"buffer_load_dword {vr(TMP + 4)}, {vr(vX0)}, {sr(S_XB, 4)}, {sr(sT0)} offen"]]
        for (stg, slot), items in zip(tch, tl):
            if stg >= 0:
                stages[stg].fill.append((items, slot, slot + len(items)))
    tch = cfg.get("touchg")
    touch_fixed = []
    if tch:
        gw = f"""
        s_and_b32 {sr(sT0)}, s2, 63
        s_lshl_b32 {sr(sT0)}, {sr(sT0)}, 2
        s_add_u32 {sr(sT0)}, {sr(sT0)}, {sr(sW)}
        s_lshl_b32 {sr(sT0)}, {sr(sT0)}, 13
        v_lshlrev_b32 {vr(vX0)}, 7, v0
        """

        def wq(half):
            return f"""
            s_and_b32 {sr(sT0)}, {sr(sI)}, 1
            s_lshl_b32 {sr(sT0)}, {sr(sT0)}, 2
            s_add_u32 {sr(sT0)}, {sr(sT0)}, {sr(sW)}
            s_add_u32 {sr(sT0)}, {sr(sT0)}, {8 * half}
            s_lshl_b32 {sr(sT0)}, {sr(sT0)}, 18
            s_lshl_b32 {sr(sT1)}, {sr(sH)}, 8
            s_add_u32 {sr(sT0)}, {sr(sT0)}, {sr(sT1)}
            v_and_b32 {vr(vX0)}, 1, v0
            v_lshlrev_b32 {vr(vX0)}, 7, {vr(vX0)}
            v_lshrrev_b32 {vr(vX1)}, 1, v0
            v_lshl_add_u32 {vr(vX0)}, {vr(vX1)}, 13, {vr(vX0)}
            buffer_load_dword {vr(TMP + 1)}, {vr(vX0)}, {sr(S_WQ, 4)}, {sr(sT0)} offen
            """
        tl = [gw + f"""buffer_load_dword {vr(TMP + 1)}, {vr(vX0)}, {sr(S_XA, 4)}, {sr(sT0)} offen
              s_and_b32 {sr(sT0)}, s2, 63
              s_and_b32 {sr(sT1)}, {sr(sW)}, 1
              s_lshl_b32 {sr(sT1)}, {sr(sT1)}, 6
              s_add_u32 {sr(sT0)}, {sr(sT0)}, {sr(sT1)}
              s_lshl_b32 {sr(sT0)}, {sr(sT0)}, 13
              buffer_load_dword {vr(TMP + 2)}, {vr(vX0)}, {sr(S_BSEL, 4)}, {sr(sT0)} offen""",
              wq(0), wq(1),
              gw + f"buffer_load_dword {vr(TMP + 1)}, {vr(vX0)}, {sr(S_XB, 4)}, {sr(sT0)} offen"]
        tgrp = cfg.get("tgrp", (0, 1, 2, 3))
        for k, ((stg, slot), txt) in enumerate(zip(tch, tl)):
            if stg >= 0:
                touch_fixed.append((stg, slot, f"s_lshr_b32 {sr(sT0)}, s2, 6\n s_cmp_lg_u32 {sr(sT0)}, {tgrp[k]}\n"
                                               f"s_cbranch_scc1 TCH_{k}\n{txt}\n TCH_{k}:"))
    for k, (stg, slot, grp, names, base, lanes) in enumerate(cfg.get("touchl", [])):
        txt = lin_touch([SR[x] for x in names.split("+")], base, lanes, 64, TMP + 5)
        if names == "b":
            txt = txt.replace(f"s_lshl_b32 {sr(sT0)}, {sr(sT0)}, 2\n        s_add_u32 {sr(sT0)}, {sr(sT0)}, {sr(sW)}",
                              f"s_lshl_b32 {sr(sT0)}, {sr(sT0)}, 1\n s_and_b32 {sr(sT1)}, {sr(sW)}, 1\n"
                              f"s_add_u32 {sr(sT0)}, {sr(sT0)}, {sr(sT1)}")
        touch_fixed.append((stg, slot, f"s_lshr_b32 {sr(sT0)}, s2, 6\n s_cmp_lg_u32 {sr(sT0)}, {grp}\n"
                                       f"s_cbranch_scc1 TCL_{k}\n{txt}\n TCL_{k}:"))
    U5.fill.append(([f"v_lshlrev_b32 {vr(vLA)}, 16, {vr(vLA)}",
                     f"v_lshlrev_b32 {vr(vLB)}, 16, {vr(vLB)}",
                     f"v_lshlrev_b32 {vr(vZA)}, 16, {vr(vZA)}",
                     f"v_mul_f32 {vr(vZA)}, {f32hex(LOG2E)}, {vr(vZA)}",
                     f"v_exp_f32 {vr(vZA)}, {vr(vZA)}",
                     f"v_and_b32 {vr(vPA)}, 7, v0",
                     f"v_cvt_pk_bf16_f32 {vr(vZA)}, {vr(vZA)}, {vr(vZA)}",
                     f"v_lshlrev_b32 {vr(vZA)}, 16, {vr(vZA)}",
                     f"v_mul_f32 {vr(vZB)}, {vr(vZA)}, {vr(vLB)}",
                     f"v_mul_f32 {vr(vZA)}, {vr(vZA)}, {vr(vLA)}",
                     f"v_mul_f32 {vr(vZB)}, {f32hex(1.0 / (2 * math.pi))}, {vr(vZB)}",
                     f"v_mul_f32 {vr(vZA)}, {f32hex(LOG2E)}, {vr(vZA)}",
                     f"v_lshlrev_b32 {vr(vPA)}, 2, {vr(vPA)}",
                     sync.load(S_DBG, "0", vPA, vPV)], 44, 64))
    U6.at_barrier.append(sync.check("Z", S_DBG, "0", vPA, vPV))

    U6.blocks.append(("SCR", None))
    E0 = TMP

    def scan1(addrs):
        a = addrs[-1]
        lr, li = E0, E0 + 1
        out = cexp("1.0", lr, li, E0 + 2, E0 + 3)
        cur = (RB, RB + 16)
        for t in range(1, 16):
            d = (E0 + 4 + 2 * (t & 1), E0 + 5 + 2 * (t & 1))
            out += cmadd(d[0], d[1], lr, li, cur[0], cur[1], RB + t, RB + 16 + t)
            cur = d
        assert cur == (E0 + 6, E0 + 7)
        out += [f"v_and_b32 {vr(vX0)}, 15, v0",
                f"s_and_b32 {sr(sT0)}, {sr(sW)}, 1\n s_lshl_b32 {sr(sT0)}, {sr(sT0)}, 7",
                f"s_add_u32 {sr(sT0)}, {sr(sT0)}, {a}",
                f"v_lshl_add_u32 {vr(E0 + 8)}, {vr(vX0)}, 3, {sr(sT0)}",
                f"v_lshl_add_u32 {vr(vX1)}, {vr(vSEG)}, 8, {vr(E0 + 8)}",
                f"ds_write_b64 {vr(vX1)}, {vr(E0 + 6, 2)}"]
        return out

    U6.fill.append((scan1, *cfg.get("scan1win", (6, 100))))

    ER = RSET[4]
    vEA = vFB
    scan2 = [f"ds_read_b64 {vr(ER + 2 * s, 2)}, {vr(E0 + 8)} offset:{256 * s}" for s in range(8)]
    lr, li = E0, E0 + 1
    scan2 += cexp(f32hex(16.0), lr, li, E0 + 2, E0 + 3)
    scan2 += [f"v_mov_b32 {vr(vPRE)}, 0", f"v_mov_b32 {vr(vPRE + 1)}, 0",
              f"v_and_b32 {vr(vX0)}, 15, v0",
              f"s_and_b32 {sr(sT0)}, {sr(sW)}, 1\n s_lshl_b32 {sr(sT0)}, {sr(sT0)}, 7",
              f"s_lshl_b32 {sr(sT2)}, {sr(sPG)}, 8\n s_add_u32 {sr(sT0)}, {sr(sT0)}, {sr(sT2)}",
              f"v_lshl_add_u32 {vr(vEA)}, {vr(vX0)}, 3, {sr(sT0)}",
              f"v_lshl_add_u32 {vr(vX0)}, {vr(vSEG)}, 16, {vr(vEA)}",
              f"s_lshl_b32 {sr(sT0)}, {sr(sC)}, 12"]
    cur = (ER, ER + 1)
    for s in range(1, 8):
        scan2 += [f"v_cmp_eq_u32 vcc, {s}, {vr(vSEG)}"]
        d = (E0 + 4 + 2 * (s & 1), E0 + 5 + 2 * (s & 1))
        scan2 += cmadd(d[0], d[1], lr, li, cur[0], cur[1], ER + 2 * s, ER + 2 * s + 1)
        scan2 += [f"v_cndmask_b32 {vr(vPRE)}, {vr(vPRE)}, {vr(cur[0])}, vcc",
                  f"v_cndmask_b32 {vr(vPRE + 1)}, {vr(vPRE + 1)}, {vr(cur[1])}, vcc"]
        cur = d
    scan2 += [f"buffer_store_dwordx2 {vr(E0 + 6, 2)}, {vr(vX0)}, {sr(S_E, 4)}, {sr(sT0)} offen sc1 @@est"]
    U7.fill.append((scan2, 0, 58))
    U7.at_barrier.append("@need #est")
    U7.after_barrier.append(signal(f"s_lshl_b32 {sr(sFO)}, {sr(sPG)}, 5\n s_add_u32 {sr(sFO)}, {sr(sFO)}, {sr(sC)}\n"
                                   f"s_lshl_b32 {sr(sFO)}, {sr(sFO)}, 2\n s_add_u32 {sr(sFO)}, {sr(sFO)}, {FL_E * 128}"))
    U7.fill.append(([f"v_add_u32 {vr(vFA + k)}, {sr(sWLDS)}, {vr(vF + k)}" for k in range(3)] +
                    [f"s_lshl_b32 {sr(sT1)}, {sr(sW)}, 10"] +
                    [f"v_subrev_u32 {vr(vT + k)}, {sr(sT1)}, {vr(vT + k)}" for k in range(6)], 58, 70))

    kvsig = cfg.get("kvsig", 1)
    QS[kvsig].at_barrier.append("@need #kvst")
    QS[kvsig].after_barrier.append(signal(f"s_lshl_b32 {sr(sFO)}, {sr(sH)}, 5\n s_add_u32 {sr(sFO)}, {sr(sFO)}, {sr(sI)}\n"
                                      f"s_lshl_b32 {sr(sFO)}, {sr(sFO)}, 2"))

    EV = 48
    LAM, L128, LSEG, COEF, CT = 78, 80, 82, 84, 86
    s2a = cexp("1.0", LAM, LAM + 1, CT, CT + 1) + [
        f"v_add_f32 {vr(CT)}, -1.0, {vr(LAM)}",
        f"v_mul_f32 {vr(CT + 1)}, {vr(vLA)}, {vr(vLA)}",
        f"v_fmac_f32 {vr(CT + 1)}, {vr(vLB)}, {vr(vLB)}",
        f"v_rcp_f32 {vr(CT + 1)}, {vr(CT + 1)}",
        f"v_mul_f32 {vr(COEF)}, {vr(CT)}, {vr(vLA)}",
        f"v_fmac_f32 {vr(COEF)}, {vr(LAM + 1)}, {vr(vLB)}",
        f"v_mul_f32 {vr(COEF + 1)}, {vr(LAM + 1)}, {vr(vLA)}",
        f"v_fma_f32 {vr(COEF + 1)}, -{vr(CT)}, {vr(vLB)}, {vr(COEF + 1)}",
        f"v_add_f32 {vr(CT + 1)}, {vr(CT + 1)}, {vr(CT + 1)}",
        f"v_mul_f32 {vr(COEF)}, {vr(COEF)}, {vr(CT + 1)}",
        f"v_mul_f32 {vr(COEF + 1)}, {vr(COEF + 1)}, {vr(CT + 1)}"]
    XT, LQ, EA, HP = 76, 74, 56, RING

    def ure(t):
        return XT if t == 0 else RB + t - 1

    for t in range(16):
        r, m = RB + t, RB + 16 + t
        s2a += [f"v_mul_f32 {vr(ure(t))}, {vr(COEF)}, {vr(r)}",
                f"v_fma_f32 {vr(ure(t))}, -{vr(COEF + 1)}, {vr(m)}, {vr(ure(t))}",
                f"v_mul_f32 {vr(m)}, {vr(COEF)}, {vr(m)}",
                f"v_fmac_f32 {vr(m)}, {vr(COEF + 1)}, {vr(r)}"]
    s2c = [f"v_and_b32 {vr(vPA)}, 15, v0", f"v_lshlrev_b32 {vr(vPA)}, 2, {vr(vPA)}",
           f"v_lshrrev_b32 {vr(EA + 1)}, 4, v0", f"s_add_i32 {sr(sT0)}, {sr(sC)}, -16",
           f"v_lshl_add_u32 {vr(EA)}, {vr(EA + 1)}, 2, {sr(sT0)}", f"v_lshl_add_u32 {vr(EA)}, {vr(EA)}, 12, {vr(vEA)}",
           f"v_sub_u32 {vr(EA + 1)}, 3, {vr(EA + 1)}", f"v_cvt_f32_u32 {vr(EA + 1)}, {vr(EA + 1)}",
           f"v_mul_f32 {vr(EA + 1)}, {f32hex(512.0)}, {vr(EA + 1)}"]
    s2c += cexp(vr(EA + 1), LQ, LQ + 1, EA + 2, EA + 3)
    s2c += cexp(f32hex(128.0), L128, L128 + 1, EA + 2, EA + 3)
    s2c += [f"v_cvt_f32_u32 {vr(EA + 1)}, {vr(vSEG)}", f"v_mul_f32 {vr(EA + 1)}, {f32hex(16.0)}, {vr(EA + 1)}"]
    s2c += cexp(vr(EA + 1), LSEG, LSEG + 1, EA + 2, EA + 3)
    s2c += [f"v_add_u32 {vr(EA + k)}, {4096 * k}, {vr(EA)}" for k in range(1, 4)]
    epoll = cfg.get("epoll", 2)
    QS[0].fill.append((s2c, 26, 64 * epoll))
    QS[0].fill.append((s2a, *cfg.get("s2awin", (30, 64 * (epoll + 1) + 30))))
    QS[epoll].fill.append(([f"s_lshl_b32 {sr(sFO)}, {sr(sPG)}, 7\n s_add_u32 {sr(sFO)}, {sr(sFO)}, {FL_E * 128}",
                            sync.load(S_FLG, sr(sFO), vPA, vPV)], 4, 10))
    QS[epoll].at_barrier.append(sync.check("E", S_FLG, sr(sFO), vPA, vPV))
    QS[epoll].fill.append(([f"buffer_load_dwordx2 {vr(EV + 2 * k, 2)}, {vr(EA + k)}, {sr(S_E, 4)}, 0 offen sc1"
                            for k in range(4)], 51, 62))
    A = 60
    s2b = cmadd(A, A + 1, L128, L128 + 1, EV, EV + 1, EV + 2, EV + 3)
    s2b += cmadd(A + 2, A + 3, L128, L128 + 1, A, A + 1, EV + 4, EV + 5)
    s2b += cmadd(A, A + 1, L128, L128 + 1, A + 2, A + 3, EV + 6, EV + 7)

    def cmul(d, l, h):
        return [f"v_mul_f32 {vr(d)}, {vr(l)}, {vr(h)}", f"v_mul_f32 {vr(d + 1)}, {vr(l)}, {vr(h + 1)}",
                f"v_fma_f32 {vr(d)}, -{vr(l + 1)}, {vr(h + 1)}, {vr(d)}", f"v_fmac_f32 {vr(d + 1)}, {vr(l + 1)}, {vr(h)}"]

    s2b += cmul(A + 2, LQ, A)
    for sw in ("16", "32"):
        s2b += [f"v_mov_b32 {vr(A)}, {vr(A + 2)}", f"v_mov_b32 {vr(A + 1)}, {vr(A + 3)}",
                f"v_permlane{sw}_swap_b32 {vr(A)}, {vr(A + 2)}", f"v_permlane{sw}_swap_b32 {vr(A + 1)}, {vr(A + 3)}",
                f"v_add_f32 {vr(A + 2)}, {vr(A + 2)}, {vr(A)}", f"v_add_f32 {vr(A + 3)}, {vr(A + 3)}, {vr(A + 1)}"]
    s2b += cmadd(A, A + 1, LSEG, LSEG + 1, A + 2, A + 3, vPRE, vPRE + 1)
    s2b += cmul(A + 2, COEF, A)
    cur = (A + 2, A + 3)
    for t in range(16):
        d = (ure(t), RB + 16 + t)
        s2b += cmadd(d[0], d[1], LAM, LAM + 1, cur[0], cur[1], d[0], d[1])
        if t & 1:
            s2b += [f"v_cvt_pk_bf16_f32 {vr(HP + t // 2)}, {vr(cur[0])}, {vr(d[0])}",
                    f"v_cvt_pk_bf16_f32 {vr(HP + 8 + t // 2)}, -{vr(cur[1])}, -{vr(d[1])}"]
        cur = d
    s2b += [f"v_mov_b32 {vr(vSIG2)}, {vr(vSIG)}", f"v_mov_b32 {vr(vONE2)}, 1"]
    hst = [f"""s_lshl_b32 {sr(sT1)}, {sr(sC)}, 18
    s_lshr_b32 {sr(sT2)}, {sr(sW)}, 1
    s_lshl_b32 {sr(sT2)}, {sr(sT2)}, 17
    s_add_u32 {sr(sT1)}, {sr(sT1)}, {sr(sT2)}
    s_lshl_b32 {sr(sT2)}, {sr(sPG)}, 13
    s_add_u32 {sr(sT1)}, {sr(sT1)}, {sr(sT2)}
    s_and_b32 {sr(sT2)}, {sr(sW)}, 1
    s_lshl_b32 {sr(sT2)}, {sr(sT2)}, 11
    s_add_u32 {sr(sT1)}, {sr(sT1)}, {sr(sT2)}
    s_add_u32 {sr(sT1)}, {sr(sT1)}, {WS_HF}"""]
    for reim in range(2):
        for half in range(2):
            hst.append(f"buffer_store_dwordx4 {vr(HP + 8 * reim + 4 * half, 4)}, {vr(vL16)}, {sr(S_WS, 4)}, {sr(sT1)} "
                       f"offen offset:{half * 1024} sc1 @@hst")
        if reim == 0:
            hst.append(f"s_add_u32 {sr(sT1)}, {sr(sT1)}, 4096")
    s2lo, s2hi, hhi = cfg.get("s2bwin", (64 * (epoll + 1) + 40, 64 * 5 + 40, 64 * 6))
    assert s2lo >= cfg.get("s2awin", (30, 64 * (epoll + 1) + 30))[1] and hhi <= 64 * 7 + 40
    QS[0].fill.append((s2b, s2lo, s2hi))
    QS[0].fill.append((hst, s2hi, hhi))

    QS[6].fill.append(([f"v_and_b32 {vr(vPA)}, 7, v0", f"v_lshlrev_b32 {vr(vPA)}, 2, {vr(vPA)}",
                        f"s_lshl_b32 {sr(sFO)}, {sr(sH)}, 7", sync.load(S_FLG, sr(sFO), vPA, vPV)], 6, 14))
    QS[6].at_barrier.append(sync.check("KV", S_FLG, sr(sFO), vPA, vPV))

    def qpack(cg, groups=(0, 1)):
        out = []
        for g in groups:
            for hq in range(2):
                qb = 2 * g + hq
                dst = QREG[g] + 4 * (2 * cg + hq)
                src = [qacc(2 * cg, qb) + k for k in range(4)] + [qacc(2 * cg + 1, qb) + k for k in range(4)]
                out += [f"v_cvt_pk_bf16_f32 {vr(dst + k)}, {vr(src[2 * k])}, {vr(src[2 * k + 1])}" for k in range(4)]
        return out

    QS[7].fill.append((qpack(0), 43, 52))
    QS[7].fill.append((qpack(1), 52, 61))
    QS[6].fill.append((ATT.selectors(), 16, 90))
    if cfg.get("touch4", True):
        tq4 = Prog()
        touch_code(S_CODE, "KA_pc4", 77, tq4)
        QS[5].fill.append(([x.text for x in tq4.ins], 0, 24))

    P1 = Pipe(stages, dma_group, cfg, "blk", cfg.get("npro", 6), fine(0))
    pairfree = [max(P1.free_at[2 * q], P1.free_at[2 * q + 1]) for q in range(5)]
    r0 = min(range(5), key=lambda q: [pairfree[(q + t) % 5] for t in range(4)])

    def tile_dma(tile, addr):
        out = []
        for j in range(8):
            su = []
            if j % 4 == 0:
                su = [f"s_mov_b32 {sr(sD0)}, {tile * 32768 + j * 1024}", f"s_add_u32 m0, {sr(sW8K)}, {addr + j * 1024}"]
                if tile == 0:
                    su[0] = f"s_bitcmp1_b32 {sr(sW)}, 0\n s_cselect_b32 {sr(sD0)}, {1 << 21}, 0" if j == 0 else \
                        f"s_add_u32 {sr(sD0)}, {sr(sD0)}, 4096"
            out.append((su, f"buffer_load_dwordx4 {vr(vW)}, {sr(S_KVR, 4)}, {sr(sD0)} offen offset:{(j % 4) * 1024} "
                            f"sc1 lds @@tile{tile}"))
        return out

    def tile_addr(t):
        return ((r0 + t) % 5) * 2 * BLK

    poll_bar = P1.bar[len(stages) - 1]
    P1.extra_fixed.append((poll_bar, f"s_lshl_b32 {sr(sW8K)}, {sr(sW)}, 13\n v_add_u32 {vr(vW)}, {sr(sW8K)}, {vr(vL16)}"))
    for stg, slot, txt in touch_fixed:
        P1.extra_fixed.append((P1.start[stg] + slot, txt))
    ntile_pre = 0
    tp = cfg.get("tilepace", 4)
    for t in range(cfg.get("ntilepre", 2)):
        e = max(P1.bar[pairfree[(r0 + t) % 5]], poll_bar) + 1
        if max(P1.dcur, e) + 8 * tp + 1 >= P1.total:
            break
        P1.add_dma(tile_dma(t, tile_addr(t)), e, tp, P1.total - 1)
        ntile_pre += 1
    P1.schedule()

    for gi, grp in enumerate(P1.prolog_dma):
        for setup, ins in grp:
            p("\n".join(setup))
            p(ins)
        if gi == 2:
            if timing:
                p("s_memrealtime s[92:93]")
            p(late)
            tlb = cfg.get("tlb", 0)
            if tlb:
                p(f"v_lshlrev_b32 {vr(vX0)}, {tlb}, v0\n s_lshl_b32 {sr(sT0)}, {sr(sW)}, {tlb - 2}")
                for k, srd in enumerate((S_WS, S_XA, S_BSEL, S_XB, S_WQ, S_WO, S_CSEL)):
                    p(f"buffer_load_dword {vr(TMP + 1 + k)}, {vr(vX0)}, {sr(srd, 4)}, {sr(sT0)} offen offset:8")
    if timing:
        p(f"v_mov_b32 {vr(vX0)}, {sr(sRET)}\n v_mov_b32 {vr(vX1)}, {sr(sRET)}\n v_mov_b32 v94, {63 * 8}")
        p(f"buffer_store_dwordx2 {vr(vX0, 2)}, v94, {sr(S_WS, 4)}, {sr(sStamp)} offen")
        p(f"v_mov_b32 v92, s90\n v_mov_b32 v93, s92\n v_mov_b32 v94, {62 * 8}")
        p(f"buffer_store_dwordx2 v[92:93], v94, {sr(S_WS, 4)}, {sr(sStamp)} offen")
    st(94)
    p(f"@need {P1.first_need}\n s_barrier")
    st(94)
    for t in P1.prolog_reads:
        p(t)
    xb = {}
    if timing:
        for n in (8, 10, len(stages) - 10, len(stages) - 8):
            tq = Prog()
            stamp(tq, True, nstamp[0], sTS, 92, 94, S_WS, sStamp)
            nstamp[0] += 1
            xb[P1.start[n]] = "\n".join(x.text for x in tq.ins)
    P1.emit(p, xb)
    if timing:
        p(f"v_lshlrev_b32 v94, 2, v0\n buffer_store_dword v95, v94, {sr(S_WS, 4)}, {sr(sStamp)} offen offset:768")
    st()

    p("@need #tile0\n s_barrier")
    rest = []
    for t in range(ntile_pre, 3 + cfg.get("deep", 1)):
        rest += ["\n".join(su + [ins]) for su, ins in tile_dma(t, tile_addr(t))]
    hsig = signal(f"s_lshl_b32 {sr(sFO)}, {sr(sC)}, 5\n s_add_u32 {sr(sFO)}, {sr(sFO)}, {sr(sPG)}\n"
                  f"s_lshl_b32 {sr(sFO)}, {sr(sFO)}, 2\n s_add_u32 {sr(sFO)}, {sr(sFO)}, {FL_H * 128}", vSIG2, vONE2)

    LACC, HACC, TRING, SACC, Y, XR = 32, 96, 160, 208, 224, 240
    vCX, vT5 = 192, 197
    vF5, vH = 8, 13
    W32 = 32768
    vO, vOA, vWr, vRd, vX = vVST, vSEG, vRD, vCST, 250
    sOA, sOB, sPX, sPI = sM0, sKVOFF, sSLOT, sCNT
    TSTR = 144
    ro, r2 = cfg.get("roto", (0, 0)), cfg.get("rot2", (1, 2))
    d2a = [f"""
    s_and_b32 {sr(sCT)}, {sr(sH)}, 3
    s_lshr_b32 {sr(sKQ)}, {sr(sH)}, 2
    s_mul_i32 {sr(sRO)}, {sr(sI)}, {ro[0]}
    s_mul_i32 {sr(sT2)}, {sr(sCT)}, {ro[1]}
    s_add_u32 {sr(sRO)}, {sr(sRO)}, {sr(sT2)}
    s_and_b32 {sr(sRO)}, {sr(sRO)}, 7
    s_lshl_b32 {sr(sRO2)}, {sr(sRO)}, 14
    s_lshl_b32 {sr(sRO)}, {sr(sRO)}, 16
    s_lshl_b32 {sr(sT2)}, {sr(sKQ)}, 17
    s_add_u32 {sr(sT2)}, {sr(sT2)}, {sr(sWLDS)}
    s_add_u32 {sr(sT2)}, {sr(sT2)}, {WS_CTX}
    s_lshl_b32 {sr(sT3)}, {sr(sI) if not cfg.get("abl_cx") else 0}, 20
    s_add_u32 {sr(sCTXO)}, {sr(sT2)}, {sr(sT3)}
    s_add_u32 {sr(sT2)}, {sr(sT2)}, {15 << 20}
    s_sub_u32 {sr(sCTXH)}, {sr(sT2)}, {sr(sT3)}
    s_lshl_b32 {sr(sWOO)}, {sr(sKQ)}, 19
    s_lshl_b32 {sr(sT2)}, {sr(sW)}, 14
    s_add_u32 {sr(sWOO)}, {sr(sWOO)}, {sr(sT2)}
    s_lshl_b32 {sr(sT2)}, {sr(sCT)}, 8
    s_add_u32 {sr(sWOO)}, {sr(sWOO)}, {sr(sT2)}
    """]
    d2b = f"""
    s_lshl_b32 {sr(sT2)}, {sr(sI)}, 1
    s_sub_u32 {sr(sT2)}, {r0 + 33}, {sr(sT2)}
    s_mul_i32 {sr(sT3)}, {sr(sT2)}, 52
    s_lshr_b32 {sr(sT3)}, {sr(sT3)}, 8
    s_mul_i32 {sr(sT3)}, {sr(sT3)}, 5
    s_sub_u32 {sr(sT2)}, {sr(sT2)}, {sr(sT3)}
    s_lshl_b32 {sr(sT2)}, {sr(sT2)}, 15
    s_add_u32 {sr(sMB)}, {sr(sT2)}, {sr(sWLDS)}
    """
    for q in range(1, 5):
        d2b += f"""s_add_u32 {sr(sMB + q)}, {sr(sMB + q - 1)}, 32768
        s_cmp_ge_u32 {sr(sMB + q)}, {NBLK * BLK}
        s_cselect_b32 {sr(sMB + q)}, {sr(sWLDS)}, {sr(sMB + q)}
        """
    d3x = [f"""
    s_lshr_b32 {sr(sT2)}, {sr(sKQ)}, 2
    s_lshl_b32 {sr(sT2)}, {sr(sT2)}, 6
    v_add_u32 {vr(vNa)}, 16, v0
    v_and_b32 {vr(vNa)}, 32, {vr(vNa)}
    v_xor_b32 {vr(vNa)}, {vr(vNa)}, {vr(vN)}
    v_add_u32 {vr(vNa)}, {sr(sT2)}, {vr(vNa)}
    v_xor_b32 {vr(vNb)}, 64, {vr(vNa)}
    s_lshr_b32 {sr(sT2)}, {sr(sW)}, 1
    s_lshl_b32 {sr(sT2)}, {sr(sT2)}, 12
    s_sub_u32 {sr(sT2)}, {sr(sT2)}, {sr(sWLDS)}
    v_add_u32 {vr(vF + 1)}, {sr(sT2)}, {vr(vL16)}
    s_and_b32 {sr(sT2)}, {sr(sW)}, 1
    s_lshl_b32 {sr(sT2)}, {sr(sT2)}, 11
    s_sub_u32 {sr(sT2)}, {sr(sT2)}, {sr(sWLDS)}
    v_lshrrev_b32 {vr(vX0)}, 2, v0
    v_lshl_add_u32 {vr(vF + 2)}, {vr(vX0)}, 6, {sr(sT2)}
    v_and_b32 {vr(vX0)}, 3, v0
    v_lshl_add_u32 {vr(vF + 2)}, {vr(vX0)}, 3, {vr(vF + 2)}
    v_bfe_u32 {vr(vX0)}, v0, 4, 1
    v_lshl_add_u32 {vr(vF + 2)}, {vr(vX0)}, 5, {vr(vF + 2)}
    """]
    tail1 = []
    for q in range(5):
        tail1 += [f"v_add_u32 {vr(vCX + q)}, {sr(sMB + q)}, {vr(vF + 1)}",
                  f"v_add_u32 {vr(vT5 + q)}, {sr(sMB + q)}, {vr(vF + 2)}",
                  f"v_xor_b32 {vr(vT5 + 5 + q)}, 32, {vr(vT5 + q)}"]
    tail2 = [f"""
    s_and_b32 {sr(sT0)}, s2, 7
    s_lshr_b32 {sr(sT1)}, s2, 3
    s_lshl_b32 {sr(sRT64)}, {sr(sT0)}, 2
    s_lshr_b32 {sr(sT2)}, {sr(sT1)}, 3
    s_add_u32 {sr(sRT64)}, {sr(sRT64)}, {sr(sT2)}
    s_and_b32 {sr(sCT64)}, {sr(sT1)}, 7
    s_mul_i32 {sr(sR2)}, {sr(sCT64)}, {r2[0]}
    s_mul_i32 {sr(sT2)}, {sr(sT2)}, {r2[1]}
    s_add_u32 {sr(sR2)}, {sr(sR2)}, {sr(sT2)}
    s_and_b32 {sr(sR2)}, {sr(sR2)}, 7
    s_lshl_b32 {sr(sR2)}, {sr(sR2)}, 7
    s_lshl_b32 {sr(sHO)}, {sr(sRT64) if not cfg.get("abl_s2") else 0}, 17
    s_add_u32 {sr(sHO)}, {sr(sHO)}, {sr(sWLDS)}
    s_add_u32 {sr(sHO)}, {sr(sHO)}, {WS_HF}
    s_lshl_b32 {sr(sCO)}, {sr(sCT64) if not cfg.get("abl_s2") else 0}, 16
    s_lshr_b32 {sr(sT2)}, {sr(sW)}, 1
    s_lshl_b32 {sr(sT3)}, {sr(sT2)}, 11
    s_add_u32 {sr(sCO)}, {sr(sCO)}, {sr(sT3)}
    v_lshrrev_b32 {vr(vC4)}, 2, v0
    v_mul_u32_u24 {vr(vC4)}, 3072, {vr(vC4)}
    v_add_u32 {vr(vC4)}, {vr(vC4)}, {vr(vN)}
    v_lshrrev_b32 {vr(vX0)}, 5, v0
    s_lshl_b32 {sr(sT1)}, {sr(sW)}, 8
    s_sub_u32 {sr(sT1)}, {sr(sT1)}, {sr(sWLDS)}
    v_lshl_add_u32 {vr(vX1)}, {vr(vX0)}, 11, {sr(sT1)}
    v_bfe_u32 {vr(vX0)}, v0, 1, 1
    v_lshl_add_u32 {vr(vX1)}, {vr(vX0)}, 10, {vr(vX1)}
    v_bfe_u32 {vr(vX0)}, v0, 4, 1
    v_lshl_add_u32 {vr(vX1)}, {vr(vX0)}, 7, {vr(vX1)}
    v_bfe_u32 {vr(vX0)}, v0, 2, 2
    v_lshl_add_u32 {vr(vX1)}, {vr(vX0)}, 4, {vr(vX1)}
    v_and_b32 {vr(vX0)}, 1, v0
    v_lshl_add_u32 {vr(vX1)}, {vr(vX0)}, 3, {vr(vX1)}
    v_subrev_u32 {vr(vF)}, {sr(sWLDS)}, {vr(vF)}
    """]
    for q in range(5):
        tail2 += [f"v_add_u32 {vr(vH + q)}, {sr(sMB + q)}, {vr(vX1)}", f"v_add_u32 {vr(vF5 + q)}, {sr(sMB + q)}, {vr(vF)}"]
    touch2 = lines(f"""
    s_cmp_eq_u32 {sr(sI)}, 4
    s_cselect_b32 {sr(sT1)}, 1, 0
    s_mul_i32 {sr(sT2)}, {sr(sI)}, 9
    s_bfe_u32 {sr(sT2)}, {sr(sT2)}, 0x30002
    s_sub_u32 {sr(sT2)}, {sr(sT2)}, {sr(sT1)}
    s_add_u32 {sr(sT3)}, {sr(sT1)}, 5
    v_lshrrev_b32 v226, {sr(sT3)}, v0
    v_lshlrev_b32 v226, 17, v226
    v_add_lshl_u32 v226, v226, v0, 7
    s_and_b32 {sr(sT0)}, s2, 31
    s_lshl_b32 {sr(sT0)}, {sr(sT0)}, 2
    s_add_u32 {sr(sT0)}, {sr(sT0)}, {sr(sW)}
    s_lshl_b32 {sr(sT3)}, {sr(sT0)}, 3
    s_add_u32 {sr(sT3)}, {sr(sT3)}, {sr(sT2)}
    s_lshl_b32 {sr(sT3)}, {sr(sT3)}, 12
    buffer_load_dword v237, v226, {sr(S_WO, 4)}, {sr(sT3)} offen
    s_add_u32 {sr(sT3)}, {sr(sT1)}, 3
    v_lshrrev_b32 v226, {sr(sT3)}, v0
    v_lshlrev_b32 v226, 17, v226
    v_add_lshl_u32 v226, v226, v0, 7
    s_lshr_b32 {sr(sT0)}, {sr(sT0)}, 1
    s_lshl_b32 {sr(sT0)}, {sr(sT0)}, 3
    s_add_u32 {sr(sT0)}, {sr(sT0)}, {sr(sT2)}
    s_lshl_b32 {sr(sT0)}, {sr(sT0)}, 10
    buffer_load_dword v224, v226, {sr(S_CSEL, 4)}, {sr(sT0)} offen
    """) if cfg.get("touch2", True) else []

    mid_fill = [f"""
    s_lshr_b32 {sr(sCF)}, {sr(sH)}, 2
    s_lshl_b32 {sr(sCF)}, {sr(sCF)}, 3
    s_add_u32 {sr(sCF)}, {sr(sCF)}, {sr(sI)}
    s_lshl_b32 {sr(sCF)}, {sr(sCF)}, 7
    s_add_u32 {sr(sFO)}, {sr(sCF)}, {FL_CTX * 128}
    s_and_b32 {sr(sCF)}, {sr(sH)}, 3
    s_lshl_b32 {sr(sCF)}, {sr(sCF)}, 2
    s_add_u32 {sr(sCF)}, {sr(sCF)}, {sr(sFO)}
    v_and_b32 {vr(vPA2)}, 3, v0
    v_lshlrev_b32 {vr(vPA2)}, 2, {vr(vPA2)}
    """]

    def ctx_signal(g):
        return (f"buffer_store_dword {vr(vONE2)}, {vr(vSIG2)}, {sr(S_FLG, 4)}, {sr(sCF)} offen "
                f"offset:{64 * g} sc1")

    tring = [0]
    sring = [0, 0]

    def s2_stage(n, small=False):
        S = Stage(f"s2_{n}", cfg.get("s2lb", 8))
        S.frac = 0.8
        S.group = 4
        S.blocks = [("H", n), ("C", n)]
        for ks in range(4):
            rr = 240 + 4 * (sring[1] % 4) if small else 128 + 4 * (sring[1] % 8)
            sring[1] += 1
            for x in range(2):
                S.reads.append((tr_read(ar(rr + 2 * x, 2), vH, 0, ks * 4096 + x * 64, W32), len(S.mf)))
            for db in range(4):
                r = ar(192 + 4 * (sring[0] % 12) if small else (list(range(0, 64, 4)) + list(range(160, 192, 4)))[sring[0] % 24], 4)
                sring[0] += 1
                S.reads.append((frag_read(r, vF5, 1, (db >> 1) * 8192 + (ks & 1) * 4096 + (db & 1) * 2048 + (ks >> 1) * 1024,
                                          W32), len(S.mf)))
                d = SACC + 4 * db
                c = "0" if (n == 0 and ks == 0) else vr(d, 4)
                S.mf.append(f"v_mfma_f32_16x16x32_bf16 {vr(d, 4)}, {ar(rr, 4)}, {r}, {c}")
        return S

    def o_stage(g, n):
        S = Stage(f"o{g}_{n}", 12)
        S.blocks = [("WO", n), ("CX", (0, n))] if g == 0 else [("CX", (1, n))]
        acc = HACC if g else LACC
        for kk in range(2):
            ks = 2 * n + kk
            wb = (192, 0, 128, 64)[ks >> 2] + 16 * (ks & 3)
            if g == 0:
                for mb in range(4):
                    for x in range(2):
                        S.reads.append((tr_read(ar(wb + 4 * mb + 2 * x, 2), vT5 + 5 * (mb & 1), 0,
                                                kk * 8192 + (mb >> 1) * 1024 + x * 4096, W32), len(S.mf) + mb))
            for tb in (1, 2, 3, 0):
                r = vr(TRING + 4 * (tring[0] % 8), 4)
                tring[0] += 1
                S.reads.append((frag_read(r, vCX, 1 - g, kk * 8192 + tb * 1024, W32), len(S.mf)))
                for mb in range(4):
                    d = acc + 16 * tb + 4 * mb
                    c = "0" if ks == 0 else vr(d, 4)
                    S.mf.append(f"v_mfma_f32_16x16x32_bf16 {vr(d, 4)}, {ar(wb + 4 * mb, 4)}, {r}, {c}")
        return S

    TL = [o_stage(0, n) for n in range(8)]
    TH, ns2 = [], 0
    for nm in cfg.get("hplan", ["h0h1", "h2h3", "h4h5", "h6h7"]):
        hs_ = [o_stage(1, int(nm[k + 1])) for k in range(0, len(nm), 2) if nm[k] == "h"]
        S = merge_stages(nm, hs_)
        if "s" in nm:
            S = weave(nm, S, s2_stage(ns2, True), chunk=(8 * len(hs_), 4), lb=cfg.get("wlb", 10))
            ns2 += 1
        TH.append(S)
    sring[0] = sring[1] = 0
    T2 = [s2_stage(n) for n in range(ns2, 8)]
    T2[0].lb = 14
    tst = TL + TH + T2
    n2 = len(T2)
    for S in TL + TH:
        S.minpace = cfg.get("tpace", 4.0)
    for S in T2:
        S.minpace = 1.0
    for k, v in cfg.get("tquota", {}).items():
        tst[int(k)].quota, tst[int(k)].dstart = v
    bsig, bpoll = cfg.get("bsig", 2), cfg.get("bpoll", 4)
    TL[bsig].at_barrier.append("@need #ctxst")
    TL[bsig].after_barrier.append(ctx_signal(1))
    ep = ATT.ctx_epilogue(cfg, 1, packed=HACC + 16)
    epv, eps = [x for x in ep if x.startswith("v_")], [x for x in ep if not x.startswith("v_")]
    if cfg.get("epist"):
        epv, eps = ep, []
    nexp = cfg.get("nexp", 999)
    elo, ehi, slo, shi = cfg.get("epiwin", (0, 1, 1, 16))
    if epv[nexp:]:
        TL[0].fill.append((epv[nexp:], elo, ehi))
    assert ehi <= slo and shi < 32 * (bsig + 1) - 13
    if eps:
        TL[0].fill.append((eps, slo, shi))
    TL[0].fill.append((tail2, ehi, 32 * bpoll + cfg.get("bpollat", (-4, 6))[0]))
    TL[bpoll].fill.append(([f"""
    s_add_u32 {sr(sT0)}, {sr(sFO)}, 64
    s_lshr_b32 {sr(sT1)}, {sr(sRT64)}, 1
    s_lshl_b32 {sr(sT1)}, {sr(sT1)}, 7
    s_add_u32 {sr(sT1)}, {sr(sT1)}, {FL_H * 128}
    v_add_u32 {vr(vX0)}, {sr(sT0)}, {vr(vPA2)}
    v_and_b32 {vr(vX1)}, 15, v0
    v_lshl_add_u32 {vr(vX1)}, {vr(vX1)}, 2, {sr(sT1)}
    v_cmp_gt_u32 vcc, 32, v0
    v_cndmask_b32 {vr(vPA2)}, {vr(vX1)}, {vr(vX0)}, vcc
    {sync.load(S_FLG, "0", vPA2, vPV2)}
    """], *cfg.get("bpollat", (-4, 6))))
    TL[bpoll].at_barrier.append(sync.check("B", S_FLG, "0", vPA2, vPV2))
    for S in TH + T2:
        S.gate = bpoll

    def pstore(g):
        acc = HACC if g else LACC
        out = []
        for tb in (1, 2, 3, 0):
            for mp in range(2):
                u = 2 * tb + mp
                if u == 0:
                    continue
                r = acc + 8 * u
                out += [f"s_add_u32 {sr(sT2)}, {sr(sKQ)}, {tb}", f"s_and_b32 {sr(sT2)}, {sr(sT2)}, 3",
                        f"s_and_b32 {sr(sT3)}, {sr(sKQ)}, 4", f"s_or_b32 {sr(sT2)}, {sr(sT2)}, {sr(sT3)}"] \
                    if (mp == 0 or tb == 0) else []
                if mp:
                    out.append(f"s_xor_b32 {sr(sT2)}, {sr(sT2)}, 4")
                out += [f"s_mul_i32 {sr(sT3)}, {sr(sT2)}, {7 * 4096}", f"s_add_u32 {sr(sT3)}, {sr(sT3)}, {sr(sPX)}",
                        f"s_add_u32 {sr(sT3)}, {sr(sT3)}, {g * 56 * 4096 + (u - 1) * 4096}"]
                out += [f"v_cvt_pk_bf16_f32 {vr(r + k)}, {vr(r + 2 * k)}, {vr(r + 2 * k + 1)}" for k in range(4)]
                if g in cfg.get("abl_p", ()) and u != 1:
                    continue
                out.append(f"buffer_store_dwordx4 {vr(r, 4)}, {vr(vL16)}, {sr(S_WS, 4)}, {sr(sT3)} offen sc1 @@pst{g}")
        return out

    def psig(g):
        return (f"buffer_store_dword {vr(vONE2)}, {vr(vSIG2)}, {sr(S_FLG, 4)}, {sr(sCF)} offen "
                f"offset:{128 * g} sc1")

    def pload(g):
        pr = (HACC if g else LACC) + 8
        out = []
        for k in range(1 if g in cfg.get("abl_p", ()) else 7):
            out.append(f"buffer_load_dwordx4 {vr(pr + 4 * k, 4)}, {vr(vL16)}, {sr(S_WS, 4)}, {sr(sPI)} offen sc1")
            out.append(f"s_add_u32 {sr(sPI)}, {sr(sPI)}, {4096 if k < 6 else 50 * 4096}")
        return out

    PSEL = LACC + 36

    def padd(g):
        acc = HACC if g else LACC
        return [f"v_mfma_f32_16x16x32_bf16 {vr(acc + 4 * j, 4)}, {vr(PSEL + 2 - 2 * j, 4)}, {vr(acc + 8 + 4 * k, 4)}, "
                f"{vr(acc + 4 * j, 4)}" for k in range(7) for j in range(2)]

    psel = [x + " @@keep" for x in lines(f"""
    v_bfe_u32 {vr(PSEL)}, v0, 2, 2
    v_lshrrev_b32 {vr(PSEL + 1)}, 4, v0
    v_xor_b32 {vr(PSEL)}, {vr(PSEL)}, {vr(PSEL + 1)}
    v_min_u32 {vr(PSEL)}, 1, {vr(PSEL)}
    v_xor_b32 {vr(PSEL)}, 1, {vr(PSEL)}
    v_mul_u32_u24 {vr(PSEL)}, 0x3f80, {vr(PSEL)}
    v_lshlrev_b32 {vr(PSEL + 1)}, 4, v0
    v_lshlrev_b32 {vr(PSEL)}, {vr(PSEL + 1)}, {vr(PSEL)}
    v_bfe_i32 {vr(PSEL + 1)}, v0, 1, 1
    v_and_b32 {vr(PSEL + 3)}, {vr(PSEL + 1)}, {vr(PSEL)}
    v_xor_b32 {vr(PSEL + 2)}, {vr(PSEL + 3)}, {vr(PSEL)}
    v_mov_b32 {vr(PSEL)}, 0
    v_mov_b32 {vr(PSEL + 1)}, 0
    v_mov_b32 {vr(PSEL + 4)}, 0
    v_mov_b32 {vr(PSEL + 5)}, 0
    """)]

    DR = [vF + 1, vF + 2, 18, 19]
    epi = [f"""
    s_lshl_b32 {sr(sT0)}, {sr(sI)}, 2
    s_add_u32 {sr(sT0)}, {sr(sT0)}, {sr(sCT)}
    s_lshl_b32 {sr(sFO)}, {sr(sT0)}, 8
    s_add_u32 {sr(sFO)}, {sr(sFO)}, {FL_P * 128}
    s_lshl_b32 {sr(sCF)}, {sr(sKQ)}, 2
    s_add_u32 {sr(sCF)}, {sr(sCF)}, {sr(sFO)}
    s_mul_i32 {sr(sPX)}, {sr(sT0)}, {112 * 4096}
    s_lshl_b32 {sr(sT0)}, {sr(sW)}, 10
    s_add_u32 {sr(sPX)}, {sr(sPX)}, {sr(sT0)}
    s_add_u32 {sr(sPX)}, {sr(sPX)}, {WS_PX}
    s_mul_i32 {sr(sPI)}, {sr(sKQ)}, {7 * 4096}
    s_add_u32 {sr(sPI)}, {sr(sPI)}, {sr(sPX)}
    v_and_b32 {vr(vPA2)}, 7, v0
    v_max_u32 {vr(vPA2)}, 1, {vr(vPA2)}
    v_xor_b32 {vr(vPA2)}, {sr(sKQ)}, {vr(vPA2)}
    v_lshlrev_b32 {vr(vPA2)}, 2, {vr(vPA2)}
    v_lshrrev_b32 {vr(vX0)}, 4, v0
    v_and_b32 {vr(vX1)}, 15, v0
    v_lshlrev_b32 {vr(vX)}, 12, {vr(vX0)}
    v_lshl_add_u32 {vr(vX)}, {vr(vX1)}, 3, {vr(vX)}
    s_lshl_b32 {sr(sOA)}, {sr(sRT64)}, 2
    s_add_u32 {sr(sOA)}, {sr(sOA)}, {sr(sW)}
    s_lshl_b32 {sr(sT0)}, {sr(sOA)}, 14
    s_lshl_b32 {sr(sT1)}, {sr(sCT64)}, 7
    s_add_u32 {sr(sT0)}, {sr(sT0)}, {sr(sT1)}
    """]
    for n in range(4):
        epi.append(f"buffer_load_dwordx2 {vr(XR + 2 * n, 2)}, {vr(vX)}, {sr(S_XA, 4)}, {sr(sT0)} offen offset:{n * 1024}")
    epi.append(f"""
    v_lshlrev_b32 {vr(vX)}, 3, {vr(vX1)}
    buffer_load_dwordx2 {vr(XR + 8, 2)}, {vr(vX)}, {sr(S_DSK, 4)}, {sr(sT1)} offen
    """)
    epi2 = [f"""
    v_lshlrev_b32 {vr(vOA)}, 14, {vr(vX0)}
    v_lshl_add_u32 {vr(vOA)}, {vr(vX1)}, 4, {vr(vOA)}
    s_lshl_b32 {sr(sOA)}, {sr(sOA)}, 16
    s_lshl_b32 {sr(sT1)}, {sr(sCT64)}, 8
    s_add_u32 {sr(sOA)}, {sr(sOA)}, {sr(sT1)}
    v_mul_u32_u24 {vr(vWr)}, {TSTR}, {vr(vX1)}
    v_lshl_add_u32 {vr(vWr)}, {vr(vX0)}, 4, {vr(vWr)}
    v_lshrrev_b32 {vr(vX0)}, 3, v0
    v_and_b32 {vr(vX1)}, 7, v0
    v_mul_u32_u24 {vr(vRd)}, {TSTR}, {vr(vX0)}
    v_lshl_add_u32 {vr(vRd)}, {vr(vX1)}, 4, {vr(vRd)}
    s_add_u32 {sr(sT0)}, TRBASE
    v_add_u32 {vr(vRd)}, {sr(sT0)}, {vr(vRd)}
    v_add_u32 {vr(vWr)}, {sr(sT0)}, {vr(vWr)}
    v_lshlrev_b32 {vr(vO)}, 12, {vr(vX0)}
    v_lshl_add_u32 {vr(vO)}, {vr(vX1)}, 4, {vr(vO)}
    s_lshr_b32 {sr(sT1)}, {sr(sW)}, 1
    s_lshl_b32 {sr(sT1)}, {sr(sT1)}, 2
    s_and_b32 {sr(sT0)}, {sr(sKQ)}, 3
    s_add_u32 {sr(sT1)}, {sr(sT1)}, {sr(sT0)}
    s_lshl_b32 {sr(sOB)}, {sr(sT1)}, 16
    s_lshl_b32 {sr(sT1)}, {sr(sCT)}, 1
    s_and_b32 {sr(sT0)}, {sr(sW)}, 1
    s_add_u32 {sr(sT1)}, {sr(sT1)}, {sr(sT0)}
    s_lshl_b32 {sr(sT1)}, {sr(sT1)}, 1
    s_lshr_b32 {sr(sT0)}, {sr(sKQ)}, 2
    s_add_u32 {sr(sT1)}, {sr(sT1)}, {sr(sT0)}
    s_lshl_b32 {sr(sT1)}, {sr(sT1)}, 7
    s_add_u32 {sr(sOB)}, {sr(sOB)}, {sr(sT1)}
    v_lshlrev_b32 {vr(DR[0])}, 16, {vr(XR + 8)}
    v_and_b32 {vr(DR[1])}, 0xffff0000, {vr(XR + 8)}
    v_lshlrev_b32 {vr(DR[2])}, 16, {vr(XR + 9)}
    v_and_b32 {vr(DR[3])}, 0xffff0000, {vr(XR + 9)}
    """]
    for n in range(4):
        y, x = Y + 4 * n, XR + 2 * n
        epi2 += [f"v_lshlrev_b32 {vr(y)}, 16, {vr(x)}", f"v_and_b32 {vr(y + 1)}, 0xffff0000, {vr(x)}",
                 f"v_lshlrev_b32 {vr(y + 2)}, 16, {vr(x + 1)}", f"v_and_b32 {vr(y + 3)}, 0xffff0000, {vr(x + 1)}"]
        epi2 += [f"v_mul_f32 {vr(y + e)}, {vr(y + e)}, {vr(DR[e])}" for e in range(4)]
        epi2 += [f"v_cvt_pk_bf16_f32 {vr(x)}, {vr(y)}, {vr(y + 1)}", f"v_cvt_pk_bf16_f32 {vr(x + 1)}, {vr(y + 2)}, {vr(y + 3)}",
                 f"v_lshlrev_b32 {vr(y)}, 16, {vr(x)}", f"v_and_b32 {vr(y + 1)}, 0xffff0000, {vr(x)}",
                 f"v_lshlrev_b32 {vr(y + 2)}, 16, {vr(x + 1)}", f"v_and_b32 {vr(y + 3)}, 0xffff0000, {vr(x + 1)}"]
    trbase = [None]
    assert bsig < bpoll < 7
    TL[bpoll + 1].fill.append((epi, 0, 32 * (7 - bpoll) - 2))
    TH[0].fill.append((pstore(0), 1, cfg.get("pl_hi", 50)))
    TH[0].fill.append((lambda a_: [x.replace("TRBASE", str(trbase[0])) for x in epi2], *cfg.get("epi2win", (64, 154))))
    TH[0].fill.append((psel, 170, 220))
    assert cfg.get("pl_hi", 50) <= 170
    lsig, lpoll = cfg.get("lsig", 1), cfg.get("lpoll", 7)
    hsg, hpl = cfg.get("psig", 2), cfg.get("ppoll", 99)
    R = TH + T2
    onep = cfg.get("onep", True)
    if not onep:
        R[lsig].at_barrier.append("@need #pst0")
        R[lsig].after_barrier.append(psig(0))
        if lpoll < len(R) - 1:
            R[lpoll].fill.append(([sync.load(S_FLG, sr(sFO), vPA2, vPV2)], *cfg.get("lpollat", (-6, -2))))
            R[lpoll].at_barrier.append(sync.check("PL", S_FLG, sr(sFO), vPA2, vPV2))
            R[lpoll].after_barrier += pload(0) + [f"s_add_u32 {sr(sFO)}, {sr(sFO)}, 128"]
        else:
            R[-1].fill.append(([sync.load(S_FLG, sr(sFO), vPA2, vPV2)], -6, -2))
    else:
        TH[2].fill.append(([f"s_add_u32 {sr(sFO)}, {sr(sFO)}, 128"], 0, 2))
    T2[0].fill.append((pstore(1), *cfg.get("phwin", (-10, 15))))
    if hsg < n2 - 1:
        T2[hsg].at_barrier.append("@need #pst1")
        T2[hsg].after_barrier.insert(0, psig(1))
    two = cfg.get("twopath")
    sGOT = sTHR
    if two:
        assert not onep and hsg < n2 - 1 and lpoll < len(R) - 1
        hpl = 99
        T2[two[0]].fill.append(([f"s_add_u32 {sr(sFO)}, {sr(sFO)}, {WS_FLG}", f"s_mov_b32 {sr(sEXP)}, 1",
                                 f"s_mov_b32 {sr(sGOT)}, 0", sync.load(S_WS, sr(sFO), vPA2, vPV2)],
                                *cfg.get("ppollat", (-30, -24))))
        try_txt = (f"v_cmp_ne_u32 vcc, 1, {vr(vPV2)}\n s_cbranch_vccnz PH_later\n s_mov_b32 {sr(sGOT)}, 1\n" +
                   "\n".join(pload(1)) + "\n PH_later:")
    if hpl < n2 - 1:
        T2[hpl].fill.append(([sync.load(S_FLG, sr(sFO), vPA2, vPV2)], *cfg.get("ppollat", (-6, -2))))
        T2[hpl].at_barrier.append(sync.check("PH", S_FLG, sr(sFO), vPA2, vPV2))
        T2[hpl].after_barrier += (pload(0) if onep else []) + pload(1)
    paddl = cfg.get("paddl")
    if paddl:
        R[paddl[0]].fill.append((padd(0), paddl[1], paddl[2]))

    def tail_order(blocks):
        first = [(0, 0), (1, 0), (2, 0), (3, 0), (0, 1), (1, 1)]
        return first + [x for x in blocks if x not in first]

    P2 = Pipe(tst, dma_group, cfg, "tb", cfg.get("npro2", 8), fine(24) and (lambda n: fine(24)(n).replace("v95", "v255")),
              gated=("CX", "H"), order=tail_order, slots=list(range(10)))
    q = [q for q in range(NBLK) if P2.free_at[q] < len(tst)][0]
    trbase[0] = f"{sr(sMB + q // 2)}, {(q % 2) * BLK}"
    if two:
        P2.extra_fixed.append((P2.start[8 + len(TH) + two[0]] + two[1], try_txt))
    P2.schedule()
    dm = ["\n".join(su + [ins]) for grp in P2.prolog_dma for su, ins in grp]

    tc = Prog()
    if cfg.get("touch3", True):
        touch_code(S_CODE, "KA_pc2", 237, tc)
    tcl = [x.text for x in tc.ins]
    acheck = sync.check("A", S_FLG, sr(sFO), vPA2, vPV2)
    npost = cfg.get("npost", 4)
    T = dict(d2=(d2a, [d2b]), d3a=d3x, d3post=[hsig] + mid_fill, s1=[ctx_signal(0)] + tcl + dm[:8],
             sig7="@need #ctxst\n s_barrier\n" + ctx_signal(0) + "\n" + "\n".join(dm[:8]),
             s2=dm[8:12] + [sync.load(S_FLG, sr(sFO), vPA2, vPV2)] + dm[12:16], s2bar=acheck,
             s2post=dm[16:16 + npost], s3=dm[16 + npost:24] + tail1)
    ATT.gen_attention(p, cfg, tile_addr(0), st, pre=qpack(2, (0,)) + qpack(3, (0,)) + qpack(2, (1,)) + qpack(3, (1,)),
                      rest=rest, touch=touch2, T=T)

    p("s_barrier")
    p(f"s_load_dwordx2 {sr(S_OUT, 2)}, s[0:1], {KA['OUT']}\n s_load_dwordx2 {sr(S_DSK, 2)}, s[0:1], {KA['DSK']}")
    rem, ev = dm[24:], epv[:nexp]
    d0 = cfg.get("remstart", 40)
    for k, x in enumerate(ev):
        p(x)
        if rem and k >= d0 and (k - d0) % max(1, (len(ev) - d0) // len(dm[24:])) == 0:
            p(rem.pop(0))
    for x in rem:
        p(x)
    p(f"""
    s_waitcnt lgkmcnt(0)
    s_mov_b32 {sr(S_OUT + 2)}, {2048 * 4096}
    s_mov_b32 {sr(S_OUT + 3)}, {SRD3}
    s_mov_b32 {sr(S_DSK + 2)}, 1024
    s_mov_b32 {sr(S_DSK + 3)}, {SRD3}
    @need {P2.first_need}
    s_barrier
    """)
    st()
    for t in P2.prolog_reads:
        p(t)
    xb = {}
    if timing:
        for n in (8, 8 + len(TH)):
            tq = Prog()
            stamp(tq, True, nstamp[0], sTS, 252, 254, S_WS, sStamp)
            nstamp[0] += 1
            xb[P2.start[n]] = "\n".join(x.text for x in tq.ins)
    P2.emit(p, xb)
    if timing:
        p(f"v_lshlrev_b32 v254, 2, v0\n buffer_store_dword v255, v254, {sr(S_WS, 4)}, {sr(sStamp)} offen offset:512")
    st()

    osc = " " + cfg.get("outflag", "sc1")
    lend = not onep and lpoll >= len(R) - 1
    if lend:
        assert hpl >= n2 - 1 and not paddl
        p(sync.check("PL", S_FLG, sr(sFO), vPA2, vPV2))
    if hsg >= n2 - 1:
        p("@need #pst1\n s_barrier\n" + psig(1))
    elif lend:
        p("s_barrier")
    if lend:
        for x in pload(0) + [f"s_add_u32 {sr(sFO)}, {sr(sFO)}, 128"]:
            p(x)
    if hpl >= n2 - 1 and not two:
        p(sync.load(S_FLG, sr(sFO), vPA2, vPV2))

    def out_b(g):
        acc = HACC if g else LACC
        for k in range(2):
            p(f"ds_write_b128 {vr(vWr)}, {vr(acc + 4 * k, 4)} offset:{k * 64}")
        p(f"s_lshl_b32 {sr(sT0)}, {sr(sI)}, 19")
        if g:
            p(f"s_sub_u32 {sr(sT0)}, {15 << 19}, {sr(sT0)}")
        p(f"s_add_u32 {sr(sT0)}, {sr(sT0)}, {sr(sOB)}\n s_add_u32 {sr(sT1)}, {sr(sT0)}, {8 * 4096}")
        p("s_waitcnt lgkmcnt(0)")
        for k in range(2):
            p(f"ds_read_b128 {vr(acc + 48 + 4 * k, 4)}, {vr(vRd)} offset:{k * 8 * TSTR}")

    def store_b(g):
        acc = HACC if g else LACC
        for k in range(2):
            p(f"buffer_store_dwordx4 {vr(acc + 48 + 4 * k, 4)}, {vr(vO)}, {sr(S_OUT, 4)}, {sr(sT1 if k else sT0)} offen "
              f"offset:2048{osc}")

    def fin_l():
        if not paddl:
            for x in padd(0):
                p(x)
        out_b(0)

    late_l = onep and hpl >= n2 - 1
    if not late_l:
        fin_l()
    for r in range(4):
        for db in range(4):
            p(f"v_add_f32 {vr(Y + 4 * r + db)}, {vr(Y + 4 * r + db)}, {vr(SACC + 4 * db + r)}")
    if hpl >= n2 - 1 and not two:
        p(sync.check("PH", S_FLG, sr(sFO), vPA2, vPV2))
        p("s_barrier")
        for x in (pload(0) if onep else []) + pload(1):
            p(x)
    if not late_l:
        store_b(0)
    for r in range(4):
        p(f"buffer_store_dwordx4 {vr(Y + 4 * r, 4)}, {vr(vOA)}, {sr(S_OUT, 4)}, {sr(sOA)} offen{osc}")
        if r < 3:
            p(f"s_add_u32 {sr(sOA)}, {sr(sOA)}, 4096")
    if two:
        p(f"s_cmp_eq_u32 {sr(sGOT)}, 1\n s_cbranch_scc1 PH_got")
        p(sync.check("PH", S_WS, sr(sFO), vPA2, vPV2))
        p("s_waitcnt vmcnt(6)")
        for x in pload(1) + padd(1):
            p(x)
        p("s_branch PH_done\n PH_got:")
    if late_l:
        fin_l()
        store_b(0)
    for x in padd(1):
        p(x)
    p("PH_done:")
    out_b(1)
    store_b(1)
    if timing:
        p("s_waitcnt vmcnt(0)")
    st()
    if timing and cfg.get("dbgout") is not None:
        p(f"""
        s_cmp_lg_u32 s2, {cfg["dbgout"]}
        s_cbranch_scc1 KA_end
        s_waitcnt vmcnt(0)
        s_barrier
        v_lshlrev_b32 v1, 4, v0
        v_mov_b32 v2, {63 * 8}
        buffer_load_dword v3, v1, {sr(S_WS, 4)}, {sr(sStamp)} offen offset:4 sc1
        buffer_load_dword v5, v1, {sr(S_WS, 4)}, {sr(sStamp)} offen offset:12 sc1
        buffer_load_dword v4, v2, {sr(S_WS, 4)}, {sr(sStamp)} offen sc1
        s_mov_b32 {sr(S_DBG + 2)}, 64
        v_lshlrev_b32 v1, 2, v0
        v_sub_u32 v3, v3, v4
        v_sub_u32 v5, v5, v4
        v_and_b32 v5, 0xffff, v5
        v_mul_u32_u24 v3, 100000, v3
        v_add_u32 v3, v3, v5
        buffer_store_dword v3, v1, {sr(S_DBG, 4)}, 0 offen offset:32
        """)
    p.label("KA_end")
    p("s_endpgm")
    p.label("KA_codeend")
    sync.emit(p)
    ATT.gen_attention_rare(p, cfg)
    p.finish(cfg.get("verbose_nop", False))
    if cfg.get("align8"):
        p.align8(True)
    return p


def build(cfg):
    import os
    ref = "cdna_kernels/" + NAME + ".s.ref"
    hdr = [l for l in open(ref).read().split("\n")
           if l.startswith(";") and "@launch" not in l][:19] if os.path.exists(ref) else ["; test build"]
    ka = gen(cfg)
    out = "\n".join(hdr) + "\n"
    if cfg.get("aslist"):
        out += f"; @launch kernel={NAME}_kernel grid=(256,1,1) block=(256,1,1) lds={NBLK * BLK}\n"
    else:
        out += f"; @launch grid=(256,1,1) block=(256,1,1) lds={NBLK * BLK}\n"
    out += '.amdgcn_target "amdgcn-amd-amdhsa--gfx950"\n'
    out += kernel_text(NAME + "_kernel", ka)
    out += '.section .rodata,"a"\n.p2align 6\n'
    out += descriptor_text(NAME + "_kernel", 512, 102, 256)
    print("instrs", len(ka.ins), "maxv", ka.maxreg("v"), "maxa", ka.maxreg("a"), "maxs", ka.maxreg("s"),
          "auto nops", sum(1 for x in ka.ins if x.auto and x.cls == "nop"), file=sys.stderr)
    return out


if __name__ == "__main__":
    cfg = json.loads(sys.argv[2]) if len(sys.argv) > 2 else {}
    open(sys.argv[1], "w").write(build(cfg))
```

```python
from gen_common import *
from regs import *
from pipesched import Sched, split_items, cost

BIG = 2.0 ** 100
LDSEND = 163840
vBASE = vMT + 7
vW2 = vK
vSC = [vMT + 3, vMT + 4]
LREG = [216, 220]
SEL = 240
LOOK = 8
M16 = "v_mfma_f32_16x16x32_bf16"

AA, BB = [(0, 0), (0, 1)], [(1, 0), (1, 1)]
A1, B1 = [(0, 1)], [(1, 1)]
LAG = [2]
late_blocks = []
sites = []


def fr0(f):
    return ar(FRING + 4 * (f % NFR), 4)


def oreg(g, db, qb):
    return OREG[g] + 8 * db + 4 * qb


def sm_ops(blocks, par, masks=None):
    ops = []
    el = [(g, qb, k) for g, qb in blocks for k in range(8)]

    def t(n):
        return vr(vET + (n & 7))

    def post(n):
        g, qb, k = el[n]
        if k & 1:
            ops.append(f"v_cvt_pk_bf16_f32 {vr(PREG[g][par] + 4 * qb + k // 2)}, {t(n - 1)}, {t(n)}")

    for n, (g, qb, k) in enumerate(el):
        r = SREG[g][par] + 8 * qb + k
        if masks and (g, qb) in masks:
            ops += mask_ops(r, k, *masks[(g, qb)])
        ops.append(f"v_exp_f32 {t(n)}, {vr(r)}")
        if n >= LAG[0]:
            post(n - LAG[0])
    for n in range(len(el) - LAG[0], len(el)):
        post(n)
    return ops


def mask_ops(r, k, thr, key0):
    c = key0 + 16 * (k >> 2) + (k & 3)
    if c == 0:
        return [f"v_min_f32 {vr(r)}, {vr(r)}, {vr(thr)}"]
    return [f"v_add_f32 {vr(vMT)}, {f32hex(-c * BIG)}, {vr(thr)}", f"v_min_f32 {vr(r)}, {vr(r)}, {vr(vMT)}"]


def sum_mfmas(blocks, par, init=False):
    out = []
    for g, qb in blocks:
        c = vr(LREG[par], 4) if out else ("0" if init else vr(LREG[par ^ 1], 4))
        out.append(f"{M16} {vr(LREG[par], 4)}, {ar(SEL + 4 * (2 * g + qb), 4)}, {vr(PREG[g][par] + 4 * qb, 4)}, {c}")
    return out


def check_ops(blocks, par):
    L = [vr(LREG[par] + 2 * g + qb) for g, qb in blocks]
    t, o = vr(vMT + 1), []
    if len(L) >= 3:
        o.append(f"v_max3_f32 {t}, {L[0]}, {L[1]}, {L[2]}")
        L = [t] + L[3:]
    if len(L) == 2:
        o.append(f"v_max_f32 {t}, {L[0]}, {L[1]}")
        L = [t]
    return o + [f"v_cmp_nge_f32 vcc, {sr(sTHR)}, {L[0]}"]


def dma_ops():
    def ld(j):
        return (f"buffer_load_dwordx4 {vr(vW if j < 4 else vW2)}, {sr(S_KVR, 4)}, {sr(sKVOFF)} offen "
                f"offset:{(j % 4) * 1024} sc1 lds")
    return dict(pre=[f"s_add_u32 {sr(sKVOFF)}, {sr(sKVOFF)}, 32768",
                     f"s_add_u32 m0, m0, {32768 - 4096}",
                     f"s_cmp_eq_u32 m0, {sr(sM0)}\n s_cselect_b32 m0, {sr(sW8K)}, m0"],
                a=[ld(j) for j in range(4)], mid=["s_add_u32 m0, m0, 4096"], b=[ld(j) for j in range(4, 8)])


def slot_adv():
    return [f"s_add_u32 {sr(sSLOT)}, {sr(sSLOT)}, 32768",
            f"s_cmp_eq_u32 {sr(sSLOT)}, {LDSEND}\n s_cselect_b32 {sr(sSLOT)}, 0, {sr(sSLOT)}"]


def qk_mfma(g, par, ks, kb, qb, frag, zero=False):
    d = SREG[g][par] + 8 * qb + 4 * kb
    c = ("0" if zero else vr(NEGM[g] + 4 * qb, 4)) if ks == 0 else vr(d, 4)
    return f"{M16} {vr(d, 4)}, {frag}, {vr(QREG[g] + 4 * (2 * ks + qb), 4)}, {c}"


def body(p, cfg, name, its, last=False, loop=None, extra=(), dma=None, vmwait=12, post_bar=None, lookv=False,
         prebar=None, two=False, postw=999):
    if last:
        fr = lambda f: ar(FRING + 4 * ((f & 7) + 8 * (f >> 4)), 4)
    else:
        fr = fr0
    TAIL = cfg.get("sumtail", 7)
    mf, frag = [], []
    bounds = []
    for it, d in enumerate(its):
        b0 = len(mf)
        for s in range(8):
            for g, qb in d["qk"]:
                mf.append(qk_mfma(g, it, s >> 1, s & 1, qb, fr(16 * it + s)))
                frag.append(16 * it + s)
        for db in range(8):
            for g, qb in d["pv"]:
                o = ar(oreg(g, db, qb), 4)
                mf.append(f"{M16} {o}, {fr(16 * it + 8 + db)}, {vr(PREG[g][it] + 4 * qb, 4)}, {o}")
                frag.append(16 * it + 8 + db)
        sm = sum_mfmas(d["sm"], it ^ 1)
        spos = len(mf) - cfg.get("tails", {}).get(f"{name}{it}", cfg.get("sumtail2", 11) if len(mf) - b0 >= 48 else
                                                  TAIL if len(mf) - b0 >= 24 else 3)
        mf[spos:spos] = sm
        frag[spos:spos] = [None] * len(sm)
        bounds.append((b0, spos, spos + len(sm), len(mf)))
    n = len(mf)
    fuse = {}
    for s, f in enumerate(frag):
        if f is not None:
            fuse[f] = (fuse.get(f, (s,))[0], s)
    sc = Sched(mf, 8, cfg.get("attvm", 8))
    GR, LAT = cfg.get("attgr", 2), cfg.get("attlat", 6)

    def rd(f, off=None):
        return f"ds_read_b128 {fr(f)}, {vr(vRD)} offset:{(f % 32 if off is None else off) * 1024}"

    R = cfg.get("attR", 3)
    ch = []
    barslot = None
    if last:
        ch += [(rd(24 + k), k - R, k - R + 2) for k in range(R, 8)]
    else:
        for it in range(2):
            b0, s0, s1, b1 = bounds[it]
            hi = s0 - 1
            for k in range(16):
                f = 16 * it + 8 + R + k
                if k < 8:
                    rel = b0 + (k * (hi - b0)) // 8
                    dl = min(rel + (hi - b0) // 8 + 1, hi - 1)
                else:
                    rel, dl = hi, b1 - 2
                if f in fuse:
                    dl = min(dl, fuse[f - f % GR][0] - 1 - LAT)
                    rel = min(rel, dl)
                if f - NFR in fuse:
                    rel = max(rel, fuse[f - NFR][1])
                rel = max(rel, 0)
                assert f not in fuse or max(rel, dl) < fuse[f - f % GR][0] - 2, (name, f)
                if f == 32:
                    barslot = rel
                    ch.append((f"v_add_u32 {vr(vRD)}, {sr(sSLOT)}, {vr(vL16)}", barslot - 3, barslot - 1))
                    ch.append(((prebar or "") + f"\n s_waitcnt vmcnt({vmwait})\n s_barrier", barslot, barslot))
                    rel += 1
                off = None
                if f >= 32 and lookv:
                    off = f - 32 + 8 if f < 40 else f - 40 + 24
                ch.append((rd(f, off), rel, max(rel, dl)))
    sc.chain(ch)
    before = {}
    for f in sorted(fuse):
        if f % GR == 0:
            s0 = fuse[f][0]
            need = "@need " + " ".join(fr(f + k) for k in range(GR))
            if s0 == 0:
                continue
            q = s0 - 2 if any(s0 == b[3] for b in bounds) else s0 - 1
            sc.front[q].append(need)
    if not last:
        sc.front[n - 2].append("@need " + " ".join(fr0(k) for k in range(GR)))
        if dma is None:
            dm = dma_ops()
            e = cfg.get("dmaearly", 0)
            ch = []
            if two:
                x2 = dm["pre"] + dm["a"] + dm["mid"] + dm["b"]
                w = (bounds[0][1] - 10 - e) / len(x2)
                ch = [(x, int(k * w), int(k * w) + 3) for k, x in enumerate(x2)]
            ch += [(x, 0, bounds[0][1] - 4 - e) for x in dm["pre"]]
            ch += [(x, bounds[0][1] - 1 - e + 2 * k, bounds[0][3] - 2) for k, x in enumerate(dm["a"])]
            ch += [(x, bounds[0][3], barslot - 4) for x in dm["mid"] + split_items(slot_adv())]
            ch += [(x, max(barslot + 1, bounds[1][1] - 1 - e) + 2 * k, bounds[1][3] - 2) for k, x in enumerate(dm["b"])]
            sc.chain(ch)
        else:
            sc.spread(slot_adv() + dma, 0, barslot, early=3, late=5)
        if post_bar:
            sc.spread(post_bar, barslot + 1, min(n, barslot + 1 + postw), early=2, late=4)
    for it, d in enumerate(its):
        b0, s0, s1, b1 = bounds[it]
        par = it ^ 1
        ops = sm_ops(d["sm"], par, d["mask"]) if d["sm"] else []
        if ops:
            sc.spread(ops, max(b0 - 1, 0), s1 - 2 + cfg.get("smext", 0), early=cfg.get("smearly", 2), late=cfg.get("smlate", 2))
            ck = check_ops(d["sm"], par)
            sc.chain([(x, max(b1 - 4, s1), max(b1 - 3, s1)) for x in ck])
            lab = f"FIX_{name}_{it}"
            sc.fix(b1 - 1, f"s_cbranch_vccnz {lab}\n {lab}_ret:", c=0, front=True)
            sc.nomem.add(b1 - 1)
            sites.append((lab, par, d["sm"]))
        for xi, items in extra:
            if xi == it:
                sc.spread(items, b0, b1)
    if loop:
        sc.fix(n - 1, f"s_sub_u32 {sr(sCNT)}, {sr(sCNT)}, 1\n s_cbranch_scc0 {loop}")
    sc.run()
    if cfg.get("verbose"):
        print(f"  body {name}: {n} mfma, over {sum(sc.over)}")
    for b0, s0, s1, b1 in bounds:
        for q in range(s0, s1):
            src = Ins(mf[q]).srcab
            for z in range(q, b1 - 1):
                for x in sc.out[z]:
                    for y in x.split("\n"):
                        if y.strip().startswith("v_"):
                            assert not (Ins(y).writes & src), (name, y)
    sc.emit(p, before)


def body_t(p, cfg, name, tmpl, loop=None, lead=False):
    R = cfg.get("attR", 3)
    g = 1
    mf, frag = [], []
    S0, S1 = tmpl["sum"]
    for it in range(2):
        m, fg = [], []
        for s in range(8):
            for qb in range(2):
                m.append(qk_mfma(g, it, s >> 1, s & 1, qb, fr0(16 * it + s)))
                fg.append(16 * it + s)
        for db in range(8):
            for qb in range(2):
                o = ar(oreg(g, db, qb), 4)
                m.append(f"{M16} {o}, {fr0(16 * it + 8 + db)}, {vr(PREG[g][it] + 4 * qb, 4)}, {o}")
                fg.append(16 * it + 8 + db)
        for pos, x in zip((S0, S1), sum_mfmas(BB, it ^ 1)):
            m.insert(pos, x)
            fg.insert(pos, None)
        mf += m
        frag += fg
    sm = [sm_ops(BB, 1), sm_ops(BB, 0)]
    E = [x for q in sm for x in q if x.startswith("v_exp")]
    if lead:
        E = E[1:] + E[:1]
    C = [x for q in sm for x in q if x.startswith("v_cvt")]
    D = [f"ds_read_b128 {fr0(f)}, {vr(vRD)} offset:{(f % 32) * 1024}" for f in range(8 + R, 40 + R)]
    dm = dma_ops()
    G = dm["a"] + dm["b"]
    SS = [y.strip() for x in dm["pre"] + slot_adv() + dm["mid"] for y in x.split("\n")]
    if loop:
        SS.append(f"s_sub_u32 {sr(sCNT)}, {sr(sCNT)}, 1")
    K = [check_ops(BB, 1), check_ops(BB, 0)]
    gaps = tmpl["gaps"].split()
    assert len(gaps) == len(mf), len(gaps)
    nx = nd = 0
    for s, (m, gp) in enumerate(zip(mf, gaps)):
        p(m)
        for ch in gp:
            if ch == "w":
                nxt = [z for z in range(s + 1, s + 1 + len(gaps)) if "w" in gaps[z % len(gaps)]][0]
                need = sorted({frag[z % len(gaps)] for z in range(s + 1, nxt + 1)} - {None})
                p("@need " + " ".join(fr0(f) for f in need))
            elif ch == "e":
                p(E.pop(0))
            elif ch == "c":
                p(C.pop(0))
            elif ch == "d":
                p(D.pop(0))
                nd += 1
            elif ch == "g":
                p(G.pop(0))
            elif ch == "s":
                if SS:
                    p(SS.pop(0))
            elif ch == "k":
                p(K[0].pop(0))
                if not K[0]:
                    K.pop(0)
            elif ch == "x":
                lab = f"FIX_{name}_{nx}"
                p(f"s_cbranch_vccnz {lab}\n {lab}_ret:")
                sites.append((lab, nx ^ 1, BB))
                nx += 1
            elif ch == "r":
                assert nd == 24 - R
                p(f"v_add_u32 {vr(vRD)}, {sr(sSLOT)}, {vr(vL16)}")
            elif ch == "B":
                assert nd == 24 - R and len(G) == 4
                p("s_waitcnt vmcnt(12)\n s_barrier")
            else:
                assert ch == "-"
    assert not (E or C or D or G or SS or K), (E, C, D, G, SS, K)
    if loop:
        p(f"s_cbranch_scc0 {loop}")


def rowmax(regs, t0, t1):
    regs = list(regs)
    out = [f"v_max3_f32 {vr(t0)}, {vr(regs[0])}, {vr(regs[1])}, {vr(regs[2])}"]
    k = 3
    while k + 1 < len(regs):
        out.append(f"v_max3_f32 {vr(t0)}, {vr(t0)}, {vr(regs[k])}, {vr(regs[k + 1])}")
        k += 2
    out.append(f"v_max_f32 {vr(t0)}, {vr(t0)}, {vr(regs[k])}")
    for sw in ("16", "32"):
        out += [f"v_mov_b32 {vr(t1)}, {vr(t0)}", f"v_permlane{sw}_swap_b32 {vr(t0)}, {vr(t1)}",
                f"v_max_f32 {vr(t0)}, {vr(t0)}, {vr(t1)}"]
    return out


def interleave(a, b):
    out = []
    for k in range(max(len(a), len(b))):
        out += a[k:k + 1] + b[k:k + 1]
    return out


def selectors():
    o = [f"v_and_b32 {vr(vX0)}, 3, v0", f"s_mov_b32 {sr(sT3)}, 0x3f803f80"]
    for j in range(4):
        o += [f"v_xor_b32 {vr(vX1)}, {j}, {vr(vX0)}", f"v_min_u32 {vr(vX1)}, 1, {vr(vX1)}",
              f"v_xor_b32 {vr(vX1)}, 1, {vr(vX1)}", f"v_mul_lo_u32 {vr(vX1)}, {sr(sT3)}, {vr(vX1)}"]
        o += [f"v_accvgpr_write_b32 {ar(SEL + 4 * j + k)}, {vr(vX1)}" for k in range(4)]
    return o


def gen_attention(p, cfg, slot0, st, pre, rest, touch, T):
    sites.clear()
    late_blocks.clear()
    LAG[0] = cfg.get("smlag", 2)
    DEEP = cfg.get("deep", 1)
    BIAS = cfg.get("bias", 0.0)
    THR = cfg.get("thr", 40.0)
    slot4 = (slot0 + 4 * 32768) % LDSEND
    slot1 = (slot0 + 32768) % LDSEND
    p(f"v_add_u32 {vr(vRD)}, {slot0}, {vr(vL16)}")
    for f in range(8):
        p(f"ds_read_b128 {fr0(f)}, {vr(vRD)} offset:{f * 1024}")
    npre = cfg.get("qpre", 16)
    for x in pre[:npre]:
        p(x)
    setup = f"""
    v_and_b32 {vr(vX0)}, 15, v0
    v_lshrrev_b32 {vr(vX1)}, 4, v0
    v_lshlrev_b32 {vr(vX1)}, 2, {vr(vX1)}
    v_sub_u32 {vr(vX0)}, {vr(vX0)}, {vr(vX1)}
    s_sub_u32 {sr(sT0)}, 7, {sr(sW)}
    v_lshl_add_u32 {vr(vX1)}, {sr(sT0)}, 4, {vr(vX0)}
    v_lshl_add_u32 {vr(vX0)}, {sr(sW)}, 4, {vr(vX0)}
    v_cvt_f32_i32 {vr(vX0)}, {vr(vX0)}
    v_cvt_f32_i32 {vr(vX1)}, {vr(vX1)}
    v_add_f32 {vr(vX0)}, 0.5, {vr(vX0)}
    v_add_f32 {vr(vX1)}, 0.5, {vr(vX1)}
    v_mul_f32 {vr(vTHR[0])}, {f32hex(BIG)}, {vr(vX0)}
    v_mul_f32 {vr(vTHR[1])}, {f32hex(BIG)}, {vr(vX1)}
    s_cmp_eq_u32 {sr(sI)}, 7
    s_cselect_b32 {sr(sT0)}, 0, {f32hex(256 * BIG)}
    v_add_f32 {vr(vBASE)}, {sr(sT0)}, {vr(vTHR[0])}
    """
    ZQ = 248
    setup2 = [f"v_mov_b32 {vr(ZQ + k)}, 0" for k in range(4)]
    setup2 += [f"s_add_u32 {sr(sM0)}, {sr(sW8K)}, {LDSEND}", f"s_mov_b32 {sr(sSLOT)}, {slot1}",
               f"v_add_u32 {vr(vW2)}, 4096, {vr(vW)}",
               f"s_mov_b32 {sr(sKVOFF)}, {(2 + DEEP) * 32768}", f"s_mov_b32 {sr(sTHR)}, {f32hex(2.0 ** (THR - BIAS))}"]

    mf = []
    for g in range(2):
        for par in range(2):
            for s in range(8):
                for qb in range(2):
                    mf.append(qk_mfma(g, par, s >> 1, s & 1, qb, fr0(8 * par + s), zero=True))
    for k in range(8):
        mf.append(f"v_mfma_f32_32x32x16_bf16 {ar(16 * k, 16)}, {vr(ZQ, 4)}, {vr(ZQ, 4)}, 0")
    sc = Sched(mf, 8, cfg.get("attvm", 8))
    for k in range(64, 72):
        sc.cap[k] = 24

    def first(g):
        S0, S1 = SREG[g]
        mx = [rowmax([S0 + 8 * qb + k for k in range(8)] + [S1 + 8 * qb + k for k in range(8)],
                     vMT + 1 + 2 * qb, vMT + 2 + 2 * qb) for qb in range(2)]
        o = interleave(mx[0], mx[1])
        for qb in range(2):
            o.append(f"v_sub_f32 {vr(NEGM[g] + 4 * qb)}, {f32hex(-BIAS) if BIAS else '0'}, {vr(vMT + 1 + 2 * qb)}")
        o += [f"v_add_f32 {vr(S0 + k)}, {vr(S0 + k)}, {vr(NEGM[g] + 4 * (k >> 3))}" for k in range(16)]
        o += sm_ops([(g, 0), (g, 1)], 0)
        o2 = [f"v_add_f32 {vr(S1 + k)}, {vr(S1 + k)}, {vr(NEGM[g] + 4 * (k >> 3))}" for k in range(16)]
        o2 += [f"v_mov_b32 {vr(NEGM[g] + 4 * qb + k)}, {vr(NEGM[g] + 4 * qb)}" for qb in range(2) for k in range(1, 4)]
        return o, o2

    sc.chain([(f"ds_read_b128 {fr0(8 + f)}, {vr(vRD)} offset:{(16 + f) * 1024}", 0, 1 + f) for f in range(8)])
    sc.chain([(x, 0, 10) for x in pre[npre:]])
    sc.spread([setup] + setup2, 12, 34)
    mk = []
    for par in range(2):
        for k in range(8):
            mk += mask_ops(SREG[0][par] + k, k, vTHR[0], 32 * par)
    sc.fix(35, f"s_cmp_lg_u32 {sr(sI)}, 0\n s_cbranch_scc1 ATT_NOMASK0\n" + "\n".join(mk) + "\n ATT_NOMASK0:", c=8)
    a1, a2 = first(0)
    b1, b2 = first(1)
    sc.spread(a1 + a2, 36, 67)
    nb = cfg.get("prob", 30)
    sc.spread(b1[:nb], 67, 72, early=0)
    sc.spread(rest + [f"s_add_u32 m0, {sr(sW8K)}, {(slot0 + (2 + DEEP) * 32768) % LDSEND + 4096}"], *cfg.get("restwin", (4, 62)))
    bs = 52
    sc.chain([("@need #tile1\n s_barrier", bs, bs), (f"v_add_u32 {vr(vRD)}, {sr(sSLOT)}, {vr(vL16)}", bs, bs + 1)] +
             [(f"ds_read_b128 {fr0(k)}, {vr(vRD)} offset:{k * 1024}", bs + 2 + k, min(bs + 4 + 2 * k, 71))
              for k in range(8 + cfg.get("attR", 3))])
    sc.run()
    if cfg.get("verbose"):
        print(f"  prologue over {sum(sc.over)}")
    sc.emit(p)
    for x in b1[nb:] + sum_mfmas(AA + BB, 0, init=True) + b2:
        p(x)
    p("@need " + " ".join(fr0(k) for k in range(cfg.get("attgr", 2))))
    st()

    AB = AA + BB
    VW = 12 if DEEP else 4

    def fs(k):
        if cfg.get("timing") and not cfg.get("light"):
            p(f"s_memtime {sr(sTS, 2)}\n s_waitcnt lgkmcnt(0)\n v_writelane_b32 v255, {sr(sTS)}, {48 + k}")

    fs(0)
    fs(1)

    def it(qk, sm, pv, mask=None):
        return dict(qk=qk, sm=sm, pv=pv, mask=mask)

    def mk(g, mu, thr=None):
        qb = mu >> 1
        return {(g, qb): (vTHR[qb] if thr is None else thr, 32 * mu)}

    def head(lab):
        p(f".p2align {cfg.get('loopalign', 6)}")
        for _ in range(cfg.get("looppad", 0)):
            p("s_nop 0")
        p.label(lab)

    p(f"""
    s_cmp_eq_u32 {sr(sI)}, 0
    s_cbranch_scc1 ATT_D2
    s_lshl_b32 {sr(sCNT)}, {sr(sI)}, 1
    s_sub_u32 {sr(sCNT)}, {sr(sCNT)}, 2
    """)
    if cfg.get("dlun"):
        p(f"s_lshr_b32 {sr(sCNT)}, {sr(sCNT)}, 1\n s_branch ATT_DLb")
    head("ATT_DL")
    if cfg.get("dlun"):
        body(p, cfg, "DLa", [it(AB, AB, AB), it(AB, AB, AB)], vmwait=VW)
        p.label("ATT_DLb")
    body(p, cfg, "DL", [it(AB, AB, AB), it(AB, AB, AB)], loop="ATT_DL", vmwait=VW)
    fs(1)
    body(p, cfg, "D1", [it(AB, AB, AB), it(AB, AB, AB, mk(0, 0))], vmwait=VW, post_bar=touch, postw=cfg.get("postw", 24))
    p.label("ATT_D2")
    body(p, cfg, "D2", [it(A1 + BB, AB, AB, mk(0, 1)), it(A1 + BB, A1 + BB, AB, mk(0, 2))], vmwait=VW,
         extra=[(0, T["d2"][0]), (1, T["d2"][1] + ctx_addr())])
    fs(2)
    body(p, cfg, "D3", [it(BB, A1 + BB, A1 + BB, mk(0, 3)), it(BB, BB, A1 + BB, mk(1, 0, vBASE))],
         extra=[(1, T["d3a"])], post_bar=T["d3post"], prebar="@need #hst", two=not DEEP)
    fs(3)
    for x in ctx_epilogue(cfg, 0):
        p(x)
    st()
    fs(4)
    fs(5)
    p(f"""
    s_cmp_eq_u32 {sr(sI)}, 7
    s_cbranch_scc1 ATT_I7
    s_lshl_b32 {sr(sCNT)}, {sr(sI)}, 2
    s_sub_u32 {sr(sCNT)}, 26, {sr(sCNT)}
    s_waitcnt lgkmcnt(0)
    """)
    if cfg.get("slun"):
        p(f"s_lshr_b32 {sr(sCNT)}, {sr(sCNT)}, 1\n s_branch ATT_SLb")
    head("ATT_SL")
    if cfg.get("slun"):
        body_t(p, cfg, "SLa", cfg["sltmpl"])
        p.label("ATT_SLb")
        body_t(p, cfg, "SL", cfg["sltmpl"], loop="ATT_SL")
    elif "sltmpl" in cfg:
        body_t(p, cfg, "SL", cfg["sltmpl"], loop="ATT_SL")
    else:
        body(p, cfg, "SL", [it(BB, BB, BB), it(BB, BB, BB)], loop="ATT_SL")
    fs(5)
    body(p, cfg, "S1", [it(BB, BB, BB), it(BB, BB, BB, mk(1, 0))], dma=T["s1"], vmwait=16)
    p.label("ATT_S2")
    fs(6)
    nvm = sum(1 for x in split_items(T["s2"]) if x.startswith("buffer_"))
    body(p, cfg, "S2", [it(B1, BB, BB, mk(1, 1)), it(B1, B1, BB, mk(1, 2))], dma=T["s2"], vmwait=nvm,
         post_bar=T["s2post"], lookv=True, prebar=T["s2bar"])
    fs(7)
    body(p, cfg, "S3", [it([], B1, B1, mk(1, 3)), it([], [], B1)], last=True, extra=[(1, T["s3"])])
    fs(8)
    st()
    late_blocks.append("ATT_I7:\n" + T["sig7"] + "\n s_branch ATT_S2")


def ctx_addr():
    return [f"""
    s_lshr_b32 {sr(sT1)}, {sr(sH)}, 2
    s_sub_u32 {sr(sT0)}, {sr(sW)}, {sr(sT1)}
    s_add_u32 {sr(sT1)}, {sr(sW)}, {sr(sT1)}
    s_sub_u32 {sr(sT1)}, 3, {sr(sT1)}
    s_and_b32 {sr(sT0)}, {sr(sT0)}, 3
    s_and_b32 {sr(sT1)}, {sr(sT1)}, 3
    s_add_u32 {sr(sT1)}, {sr(sT1)}, 4
    s_lshl_b32 {sr(sST)}, {sr(sH)}, 5
    s_add_u32 {sr(sST)}, {sr(sST)}, {WS_CTX >> 10}
    s_add_u32 {sr(sT0)}, {sr(sT0)}, {sr(sST)}
    s_add_u32 {sr(sT1)}, {sr(sT1)}, {sr(sST)}
    v_lshl_add_u32 {vr(vCST)}, {sr(sT0)}, 10, {vr(vL16)}
    v_lshl_add_u32 {vr(vCST2)}, {sr(sT1)}, 10, {vr(vL16)}
    s_lshl_b32 {sr(sST)}, {sr(sI)}, 20
    """]


def ctx_epilogue(cfg, g, packed=None):
    VSC = cfg.get("vscale", 0)
    o = []
    if g == 1:
        o += [f"s_lshl_b32 {sr(sST)}, {sr(sI)}, 20", f"s_sub_u32 {sr(sST)}, {15 << 20}, {sr(sST)}"]
    T = 32 if g == 0 else 96
    L = LREG[g] + 2 * g
    for qb in range(2):
        o.append(f"v_ldexp_f32 {vr(vMT + qb)}, {vr(L + qb)}, {VSC}")
    for qb in range(2):
        o.append(f"v_rcp_f32 {vr(vMT + qb)}, {vr(vMT + qb)}")
    for n in range(8):
        c, qb = n >> 1, n & 1
        t = T + 12 * (n & 1) if packed is None else T + 8 * (n & 1)
        q = t + 8 if packed is None else packed + 4 * n
        o += [f"v_accvgpr_read_b32 {vr(t + k)}, {ar(oreg(g, 2 * c + (k >> 2), qb) + (k & 3))}" for k in range(8)]
        if cfg.get("pkmul"):
            o += [f"v_pk_mul_f32 {vr(t + k, 2)}, {vr(t + k, 2)}, {vr(vMT, 2)} op_sel:[0,{qb}] op_sel_hi:[1,{qb}]"
                  for k in range(0, 8, 2)]
        else:
            o += [f"v_mul_f32 {vr(t + k)}, {vr(t + k)}, {vr(vMT + qb)}" for k in range(8)]
        o += [f"v_cvt_pk_bf16_f32 {vr(q + k)}, {vr(t + 2 * k)}, {vr(t + 2 * k + 1)}" for k in range(4)]
        o.append(f"buffer_store_dwordx4 {vr(q, 4)}, {vr(vCST2 if qb else vCST)}, {sr(S_WS, 4)}, {sr(sST)} offen sc1 @@ctxst")
        if qb == 1 and c < 3:
            o.append(f"s_add_u32 {sr(sST)}, {sr(sST)}, 8192")
    return o


def gen_attention_rare(p, cfg):
    BIAS = cfg.get("bias", 0.0)
    for x in late_blocks:
        p(x)
    for lab, par, blocks in sites:
        p.label(lab)
        p("s_waitcnt vmcnt(0) lgkmcnt(0)")
        for g, qb in blocks:
            p(f"s_call_b64 {sr(sRET, 2)}, FIXS_{g}_{qb}_{par}")
            p(f"s_call_b64 {sr(sRET, 2)}, FIXO_{g}_{qb}")
        for x in sum_mfmas(blocks, par):
            p(x)
        p("s_nop 7")
        p(f"s_branch {lab}_ret")
    for g, qb in AA + BB:
        for par in range(2):
            p.label(f"FIXS_{g}_{qb}_{par}")
            S, S2 = SREG[g][par] + 8 * qb, SREG[g][par ^ 1] + 8 * qb
            d = vMT + 1
            for x in rowmax(range(S, S + 8), d, vMT + 2):
                p(x)
            if BIAS:
                p(f"v_add_f32 {vr(d)}, {f32hex(BIAS)}, {vr(d)}")
            p(f"v_max_f32 {vr(d)}, 0, {vr(d)}")
            p(f"v_ceil_f32 {vr(d)}, {vr(d)}")
            p(f"v_cvt_i32_f32 {vr(vSC[0])}, -{vr(d)}")
            for base, cnt in ((NEGM[g] + 4 * qb, 4), (S, 8), (S2, 8)):
                for k in range(cnt):
                    p(f"v_sub_f32 {vr(base + k)}, {vr(base + k)}, {vr(d)}")
            l = LREG[par ^ 1] + 2 * g + qb
            p(f"v_ldexp_f32 {vr(l)}, {vr(l)}, {vr(vSC[0])}")
            for x in sm_ops([(g, qb)], par):
                p(x)
            p(f"s_setpc_b64 {sr(sRET, 2)}")
        p.label(f"FIXO_{g}_{qb}")
        for db in range(8):
            o = oreg(g, db, qb)
            for k in range(4):
                p(f"v_accvgpr_read_b32 {vr(vET + k)}, {ar(o + k)}")
            for k in range(4):
                p(f"v_ldexp_f32 {vr(vET + k)}, {vr(vET + k)}, {vr(vSC[0])}")
            for k in range(4):
                p(f"v_accvgpr_write_b32 {ar(o + k)}, {vr(vET + k)}")
        p(f"s_setpc_b64 {sr(sRET, 2)}")
```

```python
import sys, json, re
from gen_common import *
from regs import *
from pipesched import *
import gen_att3 as ATT

PSTR = 272
PART = 64 * PSTR


def cexp(n, outre, outim, t0, t1):
    return [
        f"v_mul_f32 {vr(t0)}, {n}, {vr(vZA)}",
        f"v_mul_f32 {vr(t1)}, {n}, {vr(vZB)}",
        f"v_exp_f32 {vr(t0)}, {vr(t0)}",
        f"v_fract_f32 {vr(t1)}, {vr(t1)}",
        f"v_cos_f32 {vr(outre)}, {vr(t1)}",
        f"v_sin_f32 {vr(outim)}, {vr(t1)}",
        f"v_mul_f32 {vr(outre)}, {vr(outre)}, {vr(t0)}",
        f"v_mul_f32 {vr(outim)}, {vr(outim)}, {vr(t0)}",
    ]


def cmadd(dre, dim, lre, lim, hre, him, ure, uim):
    return [
        f"v_fma_f32 {vr(dre)}, {vr(lre)}, {vr(hre)}, {vr(ure)}",
        f"v_fma_f32 {vr(dim)}, {vr(lre)}, {vr(him)}, {vr(uim)}",
        f"v_fma_f32 {vr(dre)}, -{vr(lim)}, {vr(him)}, {vr(dre)}",
        f"v_fma_f32 {vr(dim)}, {vr(lim)}, {vr(hre)}, {vr(dim)}",
    ]


class Sync:
    def __init__(self, cfg):
        self.spins = []
        self.cfg = cfg

    def load(self, srd, soff, pa, pv):
        return f"buffer_load_dword {vr(pv)}, {vr(pa)}, {sr(srd, 4)}, {soff} offen sc1"

    def check(self, name, srd, soff, pa, pv):
        self.spins.append((name, srd, soff, pa, pv))
        return f"""
        POLL_{name}:
        v_cmp_ne_u32 vcc, {sr(sEXP)}, {vr(pv)}
        s_cbranch_vccnz SPIN_{name}
        POLLOK_{name}:
        """

    def emit(self, p):
        for name, srd, soff, pa, pv in self.spins:
            p(f"""
            SPIN_{name}:
            s_add_u32 {sr(sSPIN)}, {sr(sSPIN)}, 1
            s_cmp_gt_u32 {sr(sSPIN)}, 0x100000
            s_cbranch_scc1 POLLOK_{name}
            s_sleep {self.cfg.get('sleep', 2)}
            {self.load(srd, soff, pa, pv)}
            s_waitcnt vmcnt(0)
            s_branch POLL_{name}
            """)


def frag_read(dst, vb, blk, off, win=65536):
    def fn(addrs):
        r, imm = ldsaddr(vb, addrs[blk] + off, win)
        return f"ds_read_b128 {dst}, {r} offset:{imm}"
    return fn


def tr_read(dst, vb, blk, off, win=65536):
    def fn(addrs):
        r, imm = ldsaddr(vb, addrs[blk] + off, win)
        return f"ds_read_b64_tr_b16 {dst}, {r} offset:{imm}"
    return fn


KXOR = [False]


def adv(r, step, mask=1023):
    return [f"s_add_u32 {sr(r)}, {sr(r)}, {step}", f"s_and_b32 {sr(r)}, {sr(r)}, {mask}"]


def dma_group(kind, par, addr, tag):
    out = []

    def one(pos, setup, vpat, srd, imm, flags="", linear=False):
        s = list(setup)
        if not linear or pos == 0:
            if kind in ("H", "C", "WO", "CX"):
                s.append(f"s_add_u32 m0, {sr(sMB + addr // 32768)}, {addr % 32768 + pos * 1024 - imm}")
            else:
                s.append(f"s_add_u32 m0, {sr(sWLDS)}, {addr + pos * 1024 - imm}")
        off = f" offset:{imm}" if imm else ""
        out.append((s, f"buffer_load_dwordx4 {vr(vpat)}, {sr(srd, 4)}, {sr(sD0)} offen{off}{flags} lds @@{tag}"))

    if kind == "C1":
        for pos in range(4):
            su = []
            if pos == 0:
                if KXOR[0]:
                    su = [f"s_xor_b32 {sr(sRK)}, {sr(sRK)}, {(par ^ (par - 1)) * 128}"] if par else []
                else:
                    su = adv(sRK, 128) if par else []
                su = su + [f"s_add_u32 {sr(sD0)}, {sr(sCKV)}, {sr(sRK)}"]
            if pos == 2:
                su = [f"s_add_u32 {sr(sD0)}, {sr(sD0)}, 16384"]
            one(pos, su, vN, S_CKV, (pos & 1) * 64)
    elif kind == "W":
        srd, rot, same = par
        for pos in range(4):
            su = []
            if pos == 0 and not same:
                su = [f"s_lshl_b32 {sr(sD0)}, {sr(rot)}, 12", f"s_add_u32 {sr(sD0)}, {sr(sD0)}, {sr(sWOFF)}"]
            one(pos, su, vW, srd, pos * 64)
    elif kind == "C2":
        u, kh = par
        for pos in range(4):
            su = []
            if pos % 2 == 0:
                src = sCKV2b if pos else sCKV2a
                if kh:
                    su = [f"s_xor_b32 {sr(sD0)}, {sr(src)}, 512"]
                    src = sD0
                su.append(f"s_add_u32 {sr(sD0)}, {sr(src)}, {(u - 4) * 32768}")
            one(pos, su, vN, S_CKV, (pos & 1) * 64)
    elif kind == "SX":
        for pos in range(4):
            su = []
            if pos == 0:
                su = (adv(sRS, 256) if (par and par % 2 == 0) else []) + [f"s_add_u32 {sr(sD0)}, {sr(sXA)}, {sr(sRS)}"]
                if par & 1:
                    su.append(f"s_add_u32 {sr(sD0)}, {sr(sD0)}, 128")
            if pos == 2:
                su = [f"s_add_u32 {sr(sD0)}, {sr(sD0)}, 4096"]
            one(pos, su, vS, S_XA, (pos & 1) * 64)
    elif kind == "SB":
        for pos in range(4):
            su = [f"s_add_u32 {sr(sD0)}, {sr(sBOFF)}, {sr(sRS)}"] if pos == 0 else []
            one(pos, su, vN, S_BSEL, pos * 64)
    elif kind == "X":
        g, stg = par
        for pos in range(4):
            su = []
            if pos == 0:
                su = (adv(sRQ, 128) if (stg and g == 0) else []) + \
                    [f"s_add_u32 {sr(sD0)}, {sr(sXQB if g else sXQA)}, {sr(sRQ)}"]
            if pos == 2:
                su = [f"s_add_u32 {sr(sD0)}, {sr(sD0)}, {sr(sXD)}"]
            one(pos, su, vN, S_XB, (pos & 1) * 64)
    elif kind == "H":
        for pos in range(4):
            su = []
            if pos == 0:
                su = (adv(sR2, 128) if par else []) + \
                    [f"s_lshl_b32 {sr(sD0)}, {sr(sR2)}, 7", f"s_add_u32 {sr(sD0)}, {sr(sD0)}, {sr(sHO)}"]
            one(pos, su, vL16, S_WS, pos * 1024, " sc1", linear=True)
    elif kind == "C":
        for pos in range(4):
            su = []
            if pos == 0:
                su = [f"s_add_u32 {sr(sD0)}, {sr(sCO)}, {sr(sR2)}"]
            one(pos, su, vC4, S_CSEL, (pos >> 1) * 1024 + (pos & 1) * 64)
    elif kind == "WO":
        for pos in range(4):
            su = []
            if pos == 0:
                su = (adv(sRO, 65536, 0x7ffff) if par else []) + [f"s_add_u32 {sr(sD0)}, {sr(sRO)}, {sr(sWOO)}"]
            one(pos, su, vNb if pos & 1 else vNa, S_WO, (pos >> 1) * 128)
    elif kind == "CX":
        g, stg = par
        for pos in range(4):
            su = []
            if pos == 0:
                su = (adv(sRO2, 16384, 0x1ffff) if (g or stg) else []) + \
                    [f"s_add_u32 {sr(sD0)}, {sr(sCTXH if g else sCTXO)}, {sr(sRO2)}"]
            one(pos, su, vL16, S_WS, pos * 1024, " sc1", linear=True)
    elif kind == "SCR":
        pass
    else:
        raise ValueError(kind)
    return out


def gen(cfg):
    timing = cfg.get("timing", False)
    p = Prog()
    sync = Sync(cfg)
    nstamp = [0]

    def st(va=vS):
        stamp(p, timing, nstamp[0], sTS, vX0, va, S_WS, sStamp)
        nstamp[0] += 1

    def fine(base):
        if not timing or cfg.get("light"):
            return None
        return lambda n: f"s_memtime {sr(sTS, 2)}\n s_waitcnt lgkmcnt(0)\n v_writelane_b32 v95, {sr(sTS)}, {base + n}\n"

    def touch_code(srd, label, dst, q=None):
        (q or p)(f"""
        s_getpc_b64 {sr(srd, 2)}
        {label}:
        s_mov_b32 {sr(srd + 2)}, KA_codeend-{label}
        s_mov_b32 {sr(srd + 3)}, {SRD3}
        s_lshr_b32 {sr(sT0)}, s2, 3
        s_lshl_b32 {sr(sT0)}, {sr(sT0)}, 2
        s_add_u32 {sr(sT0)}, {sr(sT0)}, {sr(sW)}
        s_lshl_b32 {sr(sT0)}, {sr(sT0)}, 7
        v_lshlrev_b32 {vr(vX0)}, 14, v0
        buffer_load_dword {vr(dst)}, {vr(vX0)}, {sr(srd, 4)}, {sr(sT0)} offen
        """)

    p(f"""
    s_cmp_ge_u32 s2, 256
    s_cbranch_scc1 KA_end
    {"s_memrealtime " + sr(sRET, 2) if timing else ""}
    s_load_dwordx2 {sr(S_CKV, 2)}, s[0:1], {KA['CKV']}
    s_load_dwordx2 {sr(S_WUK, 2)}, s[0:1], {KA['WUK']}
    s_load_dwordx2 {sr(S_WUV, 2)}, s[0:1], {KA['WUV']}
    s_load_dwordx2 {sr(S_XA, 2)}, s[0:1], {KA['XA']}
    s_load_dwordx4 {sr(S_BSEL, 4)}, s[0:1], {KA['BRE']}
    s_load_dwordx2 {sr(S_XB, 2)}, s[0:1], {KA['XB']}
    s_load_dwordx2 {sr(S_WQ, 2)}, s[0:1], {KA['WQ']}
    s_load_dwordx2 {sr(S_WO, 2)}, s[0:1], {KA['WO']}
    s_load_dwordx4 {sr(S_CSEL, 4)}, s[0:1], {KA['CRE']}
    s_load_dwordx2 {sr(S_WS, 2)}, s[0:1], {KA['WS']}
    s_load_dwordx2 {sr(sDBGP, 2)}, s[0:1], {KA['DBG']}
    s_load_dwordx4 {sr(S_LRE, 4)}, s[0:1], {KA['LRE']}
    s_load_dwordx2 {sr(S_LDT, 2)}, s[0:1], {KA['LDT']}
    v_lshlrev_b32 {vr(vSIG)}, 16, v0
    v_lshrrev_b32 {vr(vX0)}, 6, v0
    v_and_b32 v0, 63, v0
    v_readfirstlane_b32 {sr(sW)}, {vr(vX0)}
    """)
    if cfg.get("pretouch", True):
        touch_code(S_E, "KA_pc", TMP)
    hs = 1 if cfg.get("hswap", True) else 0
    KXOR[0] = cfg.get("kxor", False)
    rk = cfg.get("rotk", (4, 4, 0))
    rq = cfg.get("rotq", (1, 2, 1))

    def tab(x):
        v = x if isinstance(x, list) else [(x * k) & 7 for k in range(8)]
        return hex(sum(e << (4 * k) for k, e in enumerate(v)))

    p(f"""
    s_and_b32 {sr(sT0)}, s2, 7
    s_lshr_b32 {sr(sT1)}, s2, 3
    s_add_u32 {sr(sT2)}, {sr(sT1)}, {cfg.get("hrot", 0)}
    s_and_b32 {sr(sT2)}, {sr(sT2)}, 3
    s_lshl_b32 {sr(sH)}, {sr(sT0)}, 2
    s_add_u32 {sr(sH)}, {sr(sH)}, {sr(sT2)}
    s_lshr_b32 {sr(sI)}, {sr(sT1)}, 2
    s_lshl_b32 {sr(sWLDS)}, {sr(sW)}, 12
    v_lshrrev_b32 {vr(vX0)}, 5, v0
    v_lshlrev_b32 {vr(vX0)}, 1, {vr(vX0)}
    v_and_b32 {vr(vX1)}, 3, v0
    v_xor_b32 {vr(vX0)}, {vr(vX0)}, {vr(vX1)}
    v_lshlrev_b32 {vr(vX0)}, 4, {vr(vX0)}
    v_lshrrev_b32 {vr(vX1)}, 2, v0
    v_lshl_add_u32 {vr(vW)}, {vr(vX1)}, 13, {vr(vX0)}
    v_lshl_add_u32 {vr(vN)}, {vr(vX1)}, 10, {vr(vX0)}
    s_and_b32 {sr(sT0)}, {sr(sH)}, {hs}
    s_lshl_b32 {sr(sT0)}, {sr(sT0)}, 17
    s_lshl_b32 {sr(sCKV)}, {sr(sI)}, 18
    s_add_u32 {sr(sCKV)}, {sr(sCKV)}, {sr(sT0)}
    s_xor_b32 {sr(sCKV2b)}, {sr(sCKV)}, 0x20000
    s_lshl_b32 {sr(sT0)}, {sr(sW)}, 15
    s_add_u32 {sr(sCKV)}, {sr(sCKV)}, {sr(sT0)}
    s_lshl_b32 {sr(sWOFF)}, {sr(sW)}, 17
    s_lshl_b32 {sr(sT0)}, {sr(sH)}, 8
    s_add_u32 {sr(sWOFF)}, {sr(sWOFF)}, {sr(sT0)}
    s_and_b32 {sr(sT0)}, {sr(sH)}, 3
    s_cmp_eq_u32 {sr(sT0)}, 1
    s_mov_b32 {sr(sRK)}, {tab(cfg.get("rotk1", rk[0]))}
    s_cselect_b32 {sr(sRK)}, {sr(sRK)}, {tab(rk[0])}
    s_lshl_b32 {sr(sT0)}, {sr(sI)}, 2
    s_lshr_b32 {sr(sRK)}, {sr(sRK)}, {sr(sT0)}
    s_bfe_u32 {sr(sT0)}, {sr(sH)}, 0x10001
    s_mul_i32 {sr(sT0)}, {sr(sT0)}, {rk[1]}
    s_add_u32 {sr(sRK)}, {sr(sRK)}, {sr(sT0)}
    s_lshr_b32 {sr(sT0)}, {sr(sH)}, 2
    s_mul_i32 {sr(sT0)}, {sr(sT0)}, {rk[2]}
    s_add_u32 {sr(sRK)}, {sr(sRK)}, {sr(sT0)}
    s_and_b32 {sr(sRK)}, {sr(sRK)}, {cfg.get("kmask", 7)}
    s_lshl_b32 {sr(sRK)}, {sr(sRK)}, 7
    s_lshr_b32 {sr(sT0)}, {sr(sW)}, 1
    s_lshl_b32 {sr(sT0)}, {sr(sT0)}, 14
    s_add_u32 {sr(sCKV2b)}, {sr(sCKV2b)}, {sr(sT0)}
    s_and_b32 {sr(sT0)}, {sr(sW)}, 1
    s_lshl_b32 {sr(sT0)}, {sr(sT0)}, 8
    {"s_xor_b32" if KXOR[0] else "s_add_u32"} {sr(sT0)}, {sr(sT0)}, {sr(sRK)}
    s_and_b32 {sr(sT1)}, {sr(sT0)}, 1023
    s_add_u32 {sr(sCKV2a)}, {sr(sCKV2b)}, {sr(sT1)}
    {"s_xor_b32" if KXOR[0] else "s_add_u32"} {sr(sT0)}, {sr(sT0)}, 128
    s_and_b32 {sr(sT0)}, {sr(sT0)}, 1023
    s_add_u32 {sr(sCKV2b)}, {sr(sCKV2b)}, {sr(sT0)}
    """)
    for s, n in ((S_CKV, 2048 * 1024), (S_WUK, 512 * 8192), (S_WUV, 512 * 8192)):
        p(f"s_mov_b32 {sr(s + 2)}, {n}")
        p(f"s_mov_b32 {sr(s + 3)}, {SRD3}")
    p("s_waitcnt lgkmcnt(0)")
    if timing:
        p("s_memrealtime s[90:91]")

    def lin_touch(srd, base, lanes, nwg, dst):
        sh = {64: 6, 32: 5, 16: 4, 8: 3}[lanes]
        t = f"""
        s_and_b32 {sr(sT0)}, s2, {nwg - 1}
        s_lshl_b32 {sr(sT0)}, {sr(sT0)}, 2
        s_add_u32 {sr(sT0)}, {sr(sT0)}, {sr(sW)}
        s_lshl_b32 {sr(sT0)}, {sr(sT0)}, {sh + 7}
        """
        if base:
            t += f"s_add_u32 {sr(sT0)}, {sr(sT0)}, {base}\n"
        t += f"v_lshlrev_b32 {vr(vX0)}, 7, v0\n"
        if lanes < 64:
            t += f"v_lshrrev_b32 {vr(vX1)}, {sh}, v0\n v_lshl_add_u32 {vr(vX0)}, {vr(vX1)}, 24, {vr(vX0)}\n"
        for k, d in enumerate(srd):
            t += f"buffer_load_dword {vr(dst + k)}, {vr(vX0)}, {sr(d, 4)}, {sr(sT0)} offen\n"
        return t

    SR = dict(ckv=S_CKV, wk=S_WUK, wv=S_WUV, xa=S_XA, xb=S_XB, wq=S_WQ, b=S_BSEL)
    for names, base, lanes in cfg.get("init_touch", []):
        p(lin_touch([SR[x] for x in names.split("+")], base, lanes, 256, TMP + 1))

    late = f"""
    s_and_b32 {sr(sT0)}, s2, 7
    s_lshr_b32 {sr(sT1)}, s2, 3
    s_lshr_b32 {sr(sC)}, {sr(sT0)}, 1
    s_lshl_b32 {sr(sC)}, {sr(sC)}, 2
    s_lshr_b32 {sr(sT2)}, {sr(sT1)}, 3
    s_add_u32 {sr(sC)}, {sr(sC)}, {sr(sT2)}
    s_and_b32 {sr(sPG)}, {sr(sT0)}, 1
    s_lshl_b32 {sr(sPG)}, {sr(sPG)}, 3
    s_and_b32 {sr(sT2)}, {sr(sT1)}, 7
    s_add_u32 {sr(sPG)}, {sr(sPG)}, {sr(sT2)}
    v_and_b32 {vr(vX0)}, 15, v0
    s_and_b32 {sr(sT2)}, {sr(sW)}, 1
    s_lshl_b32 {sr(sT2)}, {sr(sT2)}, 4
    s_lshl_b32 {sr(sT3)}, {sr(sPG)}, 5
    s_add_u32 {sr(sT2)}, {sr(sT2)}, {sr(sT3)}
    v_add_lshl_u32 {vr(vX1)}, {vr(vX0)}, {sr(sT2)}, 1
    global_load_ushort {vr(vLA)}, {vr(vX1)}, {sr(S_LRE, 2)}
    global_load_ushort {vr(vLB)}, {vr(vX1)}, {sr(S_LIM, 2)}
    global_load_ushort {vr(vZA)}, {vr(vX1)}, {sr(S_LDT, 2)}
    s_add_u32 {sr(S_FLG)}, {sr(S_WS)}, {WS_FLG}
    s_addc_u32 {sr(S_FLG + 1)}, {sr(S_WS + 1)}, 0
    s_mov_b32 {sr(S_FLG + 2)}, 32768
    s_mov_b32 {sr(S_FLG + 3)}, {SRD3}
    v_lshlrev_b32 {vr(vL16)}, 4, v0
    v_mov_b32 {vr(DT)}, 0
    v_mov_b32 {vr(DT + 1)}, 0
    v_mov_b32 {vr(DT + 2)}, 0
    v_mov_b32 {vr(DT + 3)}, 0
    s_lshl_b32 {sr(sT0)}, s2, 2
    s_add_u32 {sr(sT0)}, {sr(sT0)}, {sr(sW)}
    s_lshl_b32 {sr(sT0)}, {sr(sT0)}, 10
    buffer_store_dwordx4 {vr(DT, 4)}, {vr(vL16)}, {sr(S_FLG, 4)}, {sr(sT0)} offen sc1 @@zero
    s_mov_b32 {sr(S_DBG)}, {sr(sDBGP)}
    s_mov_b32 {sr(S_DBG + 1)}, {sr(sDBGP + 1)}
    s_cmp_eq_u32 {sr(sW)}, 0
    s_cselect_b32 {sr(sEXP)}, 1, 0
    s_cselect_b32 {sr(S_DBG + 2)}, 32, 0
    s_cselect_b32 {sr(S_FLG + 2)}, 32768, 0
    s_mov_b32 {sr(S_DBG + 3)}, {SRD3}
    v_mov_b32 {vr(vONE)}, 1
    s_mov_b32 {sr(sSPIN)}, 0
    s_cmp_ge_u32 {sr(sW)}, 2
    s_cselect_b32 {sr(S_BSEL)}, {sr(S_BSEL + 2)}, {sr(S_BSEL)}
    s_cselect_b32 {sr(S_BSEL + 1)}, {sr(S_BSEL + 3)}, {sr(S_BSEL + 1)}
    s_bitcmp1_b32 {sr(sW)}, 0
    s_cselect_b32 {sr(S_CSEL)}, {sr(S_CSEL + 2)}, {sr(S_CSEL)}
    s_cselect_b32 {sr(S_CSEL + 1)}, {sr(S_CSEL + 3)}, {sr(S_CSEL + 1)}
    """
    for s, n in ((S_XA, 2048 * 1024), (S_BSEL, 512 * 1024), (S_XB, 2048 * 1024), (S_WQ, 512 * 8192),
                 (S_WO, 4096 * 1024), (S_CSEL, 512 * 1024), (S_WS, WS_END + (1 << 20 if timing else 0)),
                 (S_E, 65536)):
        late += f"s_mov_b32 {sr(s + 2)}, {n}\n s_mov_b32 {sr(s + 3)}, {SRD3}\n"
    late += f"""
    s_add_u32 {sr(S_E)}, {sr(S_WS)}, {WS_E}
    s_addc_u32 {sr(S_E + 1)}, {sr(S_WS + 1)}, 0
    s_mul_i32 {sr(sKVST)}, {sr(sH)}, {HEADSTRIDE}
    s_add_u32 {sr(S_KVR)}, {sr(S_WS)}, {sr(sKVST)}
    s_addc_u32 {sr(S_KVR + 1)}, {sr(S_WS + 1)}, 0
    s_lshl_b32 {sr(sT0)}, {sr(sI)}, 16
    s_sub_u32 {sr(S_KVR + 2)}, {32 * 32768}, {sr(sT0)}
    s_and_b32 {sr(sT0)}, {sr(sW)}, 1
    s_lshl_b32 {sr(sT0)}, {sr(sT0)}, 15
    s_add_u32 {sr(S_KVR + 2)}, {sr(S_KVR + 2)}, {sr(sT0)}
    s_mov_b32 {sr(S_KVR + 3)}, {SRD3}
    s_lshl_b32 {sr(sT0)}, {sr(sI)}, 17
    s_add_u32 {sr(sKVST)}, {sr(sKVST)}, {sr(sT0)}
    s_and_b32 {sr(sT0)}, {sr(sH)}, {hs}
    s_lshl_b32 {sr(sT0)}, {sr(sT0)}, 16
    s_sub_u32 {sr(sKVST2)}, {sr(sKVST)}, {sr(sT0)}
    s_add_u32 {sr(sKVST)}, {sr(sKVST)}, {sr(sT0)}
    s_add_u32 {sr(sRS)}, {sr(sC)}, {sr(sPG)}
    s_mul_i32 {sr(sRS)}, {sr(sRS)}, {cfg.get("rots", 1)}
    s_and_b32 {sr(sRS)}, {sr(sRS)}, 3
    s_lshl_b32 {sr(sRS)}, {sr(sRS)}, 8
    s_mul_i32 {sr(sRQ)}, {sr(sI)}, {rq[0]}
    s_mul_i32 {sr(sT0)}, {sr(sH)}, {rq[1]}
    s_add_u32 {sr(sRQ)}, {sr(sRQ)}, {sr(sT0)}
    s_lshr_b32 {sr(sT0)}, {sr(sH)}, 2
    s_mul_i32 {sr(sT0)}, {sr(sT0)}, {rq[2]}
    s_add_u32 {sr(sRQ)}, {sr(sRQ)}, {sr(sT0)}
    s_and_b32 {sr(sRQ)}, {sr(sRQ)}, 7
    s_lshl_b32 {sr(sRQ)}, {sr(sRQ)}, 7
    s_lshl_b32 {sr(sXA)}, {sr(sC)}, 17
    s_lshr_b32 {sr(sT0)}, {sr(sW)}, 1
    s_lshl_b32 {sr(sT0)}, {sr(sT0)}, 16
    s_add_u32 {sr(sXA)}, {sr(sXA)}, {sr(sT0)}
    s_and_b32 {sr(sT0)}, {sr(sW)}, 1
    s_lshl_b32 {sr(sT1)}, {sr(sT0)}, 13
    s_add_u32 {sr(sXA)}, {sr(sXA)}, {sr(sT1)}
    s_lshl_b32 {sr(sBOFF)}, {sr(sPG)}, 15
    s_lshl_b32 {sr(sT1)}, {sr(sT0)}, 14
    s_add_u32 {sr(sBOFF)}, {sr(sBOFF)}, {sr(sT1)}
    s_lshl_b32 {sr(sT0)}, {sr(sW)}, 15
    s_sub_u32 {sr(sXD)}, {7 << 14}, {sr(sT0)}
    s_lshl_b32 {sr(sT0)}, {sr(sW)}, 14
    s_lshl_b32 {sr(sXQA)}, {sr(sI)}, 17
    s_sub_u32 {sr(sXQB)}, {15 << 17}, {sr(sXQA)}
    s_add_u32 {sr(sXQA)}, {sr(sXQA)}, {sr(sT0)}
    s_add_u32 {sr(sXQB)}, {sr(sXQB)}, {sr(sT0)}
    s_mov_b32 {sr(sQS)}, {f32hex(QSCALE)}
    """
    if timing:
        late += f"s_lshl_b32 {sr(sStamp)}, s2, 10\n s_add_u32 {sr(sStamp)}, {sr(sStamp)}, {WS_STAMP}\n"
    late += f"""
    v_lshrrev_b32 {vr(vX1)}, 4, v0
    v_mul_u32_u24 {vr(vS)}, {12 * 1024}, {vr(vX1)}
    v_add_u32 {vr(vS)}, {vr(vS)}, {vr(vN)}
    s_lshr_b32 {sr(sT0)}, {sr(sW)}, 1
    s_lshl_b32 {sr(sT0)}, {sr(sT0)}, 2
    v_add_u32 {vr(vSEG)}, {sr(sT0)}, {vr(vX1)}
    v_bfe_u32 {vr(vF)}, v0, 3, 1
    v_lshlrev_b32 {vr(vF)}, 1, {vr(vF)}
    v_xor_b32 {vr(vF)}, {vr(vF)}, {vr(vX1)}
    v_lshl_add_u32 {vr(vF)}, {vr(vX0)}, 2, {vr(vF)}
    v_lshlrev_b32 {vr(vF)}, 4, {vr(vF)}
    v_add_u32 {vr(vF + 1)}, 0x10000, {vr(vF)}
    v_add_u32 {vr(vF + 2)}, 0x20000, {vr(vF)}
    v_lshrrev_b32 {vr(vT)}, 5, v0
    v_lshlrev_b32 {vr(vT)}, 12, {vr(vT)}
    v_bfe_u32 {vr(vT + 1)}, v0, 4, 1
    v_mul_u32_u24 {vr(vT + 1)}, {512 + 32}, {vr(vT + 1)}
    v_add_u32 {vr(vT)}, {vr(vT)}, {vr(vT + 1)}
    v_bfe_u32 {vr(vT + 1)}, v0, 2, 2
    v_lshl_add_u32 {vr(vT)}, {vr(vT + 1)}, 6, {vr(vT)}
    v_and_b32 {vr(vT + 1)}, 3, v0
    v_lshl_add_u32 {vr(vT)}, {vr(vT + 1)}, 3, {vr(vT)}
    s_lshl_b32 {sr(sT0)}, {sr(sW)}, 10
    v_add_u32 {vr(vT)}, {sr(sT0)}, {vr(vT)}
    v_add_u32 {vr(vT + 1)}, 0x10000, {vr(vT)}
    v_add_u32 {vr(vT + 2)}, 0x20000, {vr(vT)}
    v_xor_b32 {vr(vT + 3)}, 32, {vr(vT)}
    v_xor_b32 {vr(vT + 4)}, 32, {vr(vT + 1)}
    v_xor_b32 {vr(vT + 5)}, 32, {vr(vT + 2)}
    s_lshr_b32 {sr(sT0)}, {sr(sW)}, 1
    s_lshl_b32 {sr(sT0)}, {sr(sT0)}, 13
    v_add_u32 {vr(vFA)}, {sr(sT0)}, {vr(vF)}
    v_add_u32 {vr(vFA + 1)}, {sr(sT0)}, {vr(vF + 1)}
    v_add_u32 {vr(vFA + 2)}, {sr(sT0)}, {vr(vF + 2)}
    s_and_b32 {sr(sT0)}, {sr(sW)}, 1
    s_lshl_b32 {sr(sT0)}, {sr(sT0)}, 12
    v_add_u32 {vr(vFB)}, {sr(sT0)}, {vr(vF)}
    v_add_u32 {vr(vFB + 1)}, {sr(sT0)}, {vr(vF + 1)}
    v_add_u32 {vr(vFB + 2)}, {sr(sT0)}, {vr(vF + 2)}
    v_lshl_add_u32 {vr(vKST)}, {sr(sW)}, 11, {vr(vL16)}
    v_add_u32 {vr(vVST)}, {5 * 8192}, {vr(vKST)}
    """

    stages = []
    ringpos = [0]

    def ring_alloc(size):
        r = RING + 4 * (ringpos[0] % size)
        ringpos[0] += 1
        return vr(r, 4)

    def kv_mfmas(S, ks, R, X, Y):
        w = [ar(16 * ks + 4 * j, 4) for j in range(4)]
        for a, b, d in ((w[0], X, 0), (w[0], Y, 8), (w[1], X, 4), (w[1], Y, 12),
                        (X, w[2], 16), (Y, w[2], 20), (X, w[3], 24), (Y, w[3], 28)):
            c = "0" if ks == 0 else vr(R + d, 4)
            S.mf.append(f"v_mfma_f32_16x16x32_bf16 {vr(R + d, 4)}, {a}, {b}, {c}")

    VSC = cfg.get("vscale", 0)

    def drain(unit, R, tmp=None):
        cv, stv = [], []
        for n in range(4):
            t = R + 8 * n if tmp is None else tmp + 4 * n
            for k in range(4):
                a, b = R + 8 * n + 2 * k, R + 8 * n + 2 * k + 1
                if n < 2:
                    cv += [f"v_mul_f32 {vr(a)}, {sr(sQS)}, {vr(a)}", f"v_mul_f32 {vr(b)}, {sr(sQS)}, {vr(b)}"]
                elif VSC:
                    cv += [f"v_ldexp_f32 {vr(a)}, {vr(a)}, {VSC}", f"v_ldexp_f32 {vr(b)}, {vr(b)}, {VSC}"]
                cv.append(f"v_cvt_pk_bf16_f32 {vr(t + k)}, {vr(a)}, {vr(b)}")
            va = vKST if n < 2 else vVST
            imm = (n & 1) * 1024
            s = f"buffer_store_dwordx4 {vr(t, 4)}, {vr(va)}, {sr(S_WS, 4)}, {sr(sST)} offen offset:{imm} sc1 @@kvst"
            if n == 0:
                s = f"s_add_u32 {sr(sST)}, {sr(sKVST if unit < 4 else sKVST2)}, {unit * 16384}\n" + s
            if cfg.get("nokvst") and not (unit == 7 and n == 0):
                s = "s_nop 0"
            if cfg.get("kvplain"):
                s = s.replace(" sc1 @@", " @@")
            stv.append(s)
        return cv, stv

    for n in range(8):
        S = Stage(f"kv1_{n}", 18)
        S.blocks = [("C1", n), ("W", (S_WUK, sRK, False)), ("W", (S_WUV, sRK, True))]
        for kk in range(2):
            ks = 2 * n + kk
            for j in range(4):
                for x in range(2):
                    S.reads.append((tr_read(ar(16 * ks + 4 * j + 2 * x, 2), vT + 3 * (j & 1), 1 + (j >> 1),
                                            kk * 8192 + x * 256), len(S.mf) + 2 * j))
            for u in range(4):
                X, Y = ring_alloc(8), ring_alloc(8)
                S.reads.append((frag_read(X, vF, 0, (4 * u + kk) * 1024), len(S.mf)))
                S.reads.append((frag_read(Y, vF, 0, (4 * u + 2 + kk) * 1024), len(S.mf) + 1))
                kv_mfmas(S, ks, RSET[u], X, Y)
        stages.append(S)

    def mid_stage(nm, RB):
        m = re.fullmatch(r"(?:U(\d)([ab]?))?(?:S(\d))?", nm)
        u, half, n = m.group(1), m.group(2), m.group(3)
        S = Stage(nm, 8 if u is None else 18)
        rs = 8 if n is None else 12 if u is None else 14
        kvs, sms = [], []
        if u is not None:
            u = int(u)
            khs = {"": (0, 1), "a": (0,), "b": (1,)}[half]
            S.blocks += [("C2", (u, kh)) for kh in khs]
            kvs = [(j, 8 * kh + k) for j, kh in enumerate(khs) for k in range(8)]
        nb = len(S.blocks)
        if n is not None:
            n = int(n)
            S.blocks += [("SX", 2 * n), ("SB", n), ("SX", 2 * n + 1)]
            sms = list(range(4))
        per = len(kvs) // 4 if sms else 16
        while kvs or sms:
            for j, ks in kvs[:per]:
                X, Y = ring_alloc(rs), ring_alloc(rs)
                S.reads.append((frag_read(X, vF, j, (ks & 7) * 1024), len(S.mf)))
                S.reads.append((frag_read(Y, vF, j, 8192 + (ks & 7) * 1024), len(S.mf) + 1))
                kv_mfmas(S, ks, {4: RSET[4], 5: RSET[0], 6: RSET[2], 7: RSET[3]}[u], X, Y)
            kvs = kvs[per:]
            if sms:
                k4 = sms.pop(0)
                kh, kk = k4 >> 1, k4 & 1
                B = []
                for reim in range(2):
                    r = ring_alloc(rs)
                    B.append(r)
                    S.reads.append((frag_read(r, vFB, nb + 1, reim * 8192 + k4 * 1024), len(S.mf) + reim))
                for rb in range(4):
                    r = ring_alloc(rs)
                    S.reads.append((frag_read(r, vFA, nb + 2 * kh, (2 * rb + kk) * 1024), len(S.mf)))
                    for reim in range(2):
                        d = RB + 16 * reim + 4 * rb
                        c = "0" if (n == 0 and k4 == 0) else vr(d, 4)
                        S.mf.append(f"v_mfma_f32_16x16x32_bf16 {vr(d, 4)}, {r}, {B[reim]}, {c}")
        S.rs = rs
        return S

    QACC = [RSET[0], RSET[2], RSET[4], RSET[3]]
    RB = RSET[1]

    def qacc(db, qb):
        return QACC[db >> 1] + 16 * (db & 1) + 4 * qb

    qring = [0, 0]

    def q_stage(n):
        S = Stage(f"q_{n}", 14)
        S.blocks = [("X", (0, n)), ("W", (S_WQ, sRQ, False)), ("X", (1, n))]
        for kk in range(2):
            xs = []
            base = len(S.mf)
            for qb in range(4):
                r = ar(128 + 4 * (qring[0] % 12), 4)
                qring[0] += 1
                xs.append(r)
                S.reads.append((frag_read(r, vFA, 2 * (qb >> 1), (2 * (qb & 1) + kk) * 1024), base + qb))
            for db in range(8):
                rr = 192 + 4 * (qring[1] % 8)
                qring[1] += 1
                for x in range(2):
                    S.reads.append((tr_read(ar(rr + 2 * x, 2), vT + 3 * (db & 1), 1,
                                            kk * 8192 + (db >> 1) * 1024 + x * 256), len(S.mf)))
                for qb in range(4):
                    d = qacc(db, qb)
                    c = "0" if (n == 0 and kk == 0) else vr(d, 4)
                    S.mf.append(f"v_mfma_f32_16x16x32_bf16 {vr(d, 4)}, {ar(rr, 4)}, {xs[qb]}, {c}")
        return S

    made = {}
    prs = 8
    order = cfg.get("order", ["U4", "U5", "S0", "S1", "S2", "S3", "U6", "U7"])
    for nm in order:
        rs = 8 if "S" not in nm else 12 if "U" not in nm else 14
        if rs != prs:
            ringpos[0] = cfg.get("ringstart", {}).get(nm, 8 if rs > prs == 8 and rs == 14 else 0)
        S = mid_stage(nm, RB)
        if prs == 12 and rs != 12:
            S.lb = 7
        if prs == 8 and rs == 12:
            S.lb = 14
        if prs == 14:
            S.lb = cfg.get("wovlb", 10)
        made[nm] = S
        stages.append(S)
        prs = rs
    U6, U7 = stages[-2], stages[-1]
    U5 = made[cfg.get("parstage", "U5")]
    QS = [q_stage(n) for n in range(8)]
    stages += QS
    for k, v in cfg.get("frac", {}).items():
        stages[int(k)].frac = v
    for k, v in cfg.get("quota", {}).items():
        stages[int(k)].quota, stages[int(k)].dstart = v
    for k, v in cfg.get("mpace", {}).items():
        stages[int(k)].maxpace = v

    UR = [RSET[0], RSET[1], RSET[2], RSET[3], RSET[4], RSET[0], RSET[2], RSET[3]]
    byname = made
    dplan = cfg.get("drains", [["U4", 4, 36, 36, 44], ["U4", 64, 96, 96, 104], ["U5", 4, 36, 36, 44],
                               ["U5", 64, 96, 96, 104], ["U6", 2, 30, 30, 38], ["U6", 64, 96, 96, 104],
                               ["U7", 64, 96, 96, 104]])
    stag = cfg.get("stag")
    allst = {}
    for u, (nm, a, b, c, d) in enumerate(dplan):
        cv, stv = drain(u, UR[u])
        byname[nm].fill.append((cv, a, b))
        allst[u] = stv
        if not stag or not any(u in x[0] for x in stag):
            byname[nm].fill.append((stv, c, d))
    for k, (units, nm, lo, hi, grp) in enumerate(stag or []):
        items = []
        for u in units:
            for j, x in enumerate(split_items(allst[u])):
                if not x.startswith("buffer"):
                    items.append(x)
                    if cfg.get("stagoob"):
                        items.append(f"s_bitcmp{grp}_b32 s2, {cfg.get('stagbit', 5)}\n"
                                     f"s_cselect_b32 {sr(sST)}, {sr(sST)}, {WS_END + (2 << 20)}")
                elif cfg.get("stagoob"):
                    items.append(x)
                else:
                    items.append(f"~s_cbranch_vcc{'z' if grp else 'nz'} STG_{k}_{u}_{j}|{x}|STG_{k}_{u}_{j}:")
        byname[nm].fill.append((items, lo, hi))
    if stag and not cfg.get("stagoob"):
        for nm in sorted({x[1] for x in stag}):
            lo = min(x[2] for x in stag if x[1] == nm)
            byname[nm].fill.append(([f"s_bitcmp1_b32 s2, {cfg.get('stagbit', 5)}\n s_cselect_b64 vcc, -1, 0"], lo - 4, lo))
    cv7, st7 = drain(7, RSET[3], RING)
    QS[0].fill.append((cv7, 2, 22))
    QS[0].fill.append((st7, *cfg.get("st7", (24, 32))))

    def signal(line_sgpr_setup, sig=vSIG, one=vONE):
        return line_sgpr_setup + f"\n buffer_store_dword {vr(one)}, {vr(sig)}, {sr(S_FLG, 4)}, {sr(sFO)} offen sc1"

    stages[0].at_barrier.append("@need #zero")
    stages[0].after_barrier.append(f"v_lshl_add_u32 {vr(vPA)}, s2, 2, {vr(vSIG)}\n"
                                   f"buffer_store_dword {vr(vONE)}, {vr(vPA)}, {sr(S_DBG, 4)}, 0 offen sc1")
    tch = cfg.get("touch1")
    if tch:
        gw = f"s_lshl_b32 {sr(sT0)}, s2, 2\n s_add_u32 {sr(sT0)}, {sr(sT0)}, {sr(sW)}\n s_lshl_b32 {sr(sT0)}, {sr(sT0)}, 7"
        tl = [[gw, f"v_lshlrev_b32 {vr(vX0)}, 17, v0",
               f"buffer_load_dword {vr(TMP + 1)}, {vr(vX0)}, {sr(S_XA, 4)}, {sr(sT0)} offen"],
              [f"s_lshl_b32 {sr(sT0)}, s2, 1\n s_and_b32 {sr(sT1)}, {sr(sW)}, 1",
               f"s_add_u32 {sr(sT0)}, {sr(sT0)}, {sr(sT1)}\n s_lshl_b32 {sr(sT0)}, {sr(sT0)}, 7",
               f"v_lshlrev_b32 {vr(vX0)}, 16, v0",
               f"buffer_load_dword {vr(TMP + 2)}, {vr(vX0)}, {sr(S_BSEL, 4)}, {sr(sT0)} offen"],
              [f"s_lshl_b32 {sr(sT0)}, {sr(sI)}, 2\n s_add_u32 {sr(sT0)}, {sr(sT0)}, {sr(sW)}",
               f"s_lshl_b32 {sr(sT0)}, {sr(sT0)}, 13\n s_lshl_b32 {sr(sT1)}, {sr(sH)}, 8",
               f"s_add_u32 {sr(sT0)}, {sr(sT0)}, {sr(sT1)}\n v_and_b32 {vr(vX0)}, 1, v0",
               f"v_lshlrev_b32 {vr(vX0)}, 7, {vr(vX0)}\n v_lshrrev_b32 {vr(vX1)}, 1, v0",
               f"v_lshl_add_u32 {vr(vX0)}, {vr(vX1)}, 18, {vr(vX0)}",
               f"buffer_load_dword {vr(TMP + 3)}, {vr(vX0)}, {sr(S_WQ, 4)}, {sr(sT0)} offen"],
              [gw, f"v_lshlrev_b32 {vr(vX0)}, 17, v0",
               f"buffer_load_dword {vr(TMP + 4)}, {vr(vX0)}, {sr(S_XB, 4)}, {sr(sT0)} offen"]]
        for (stg, slot), items in zip(tch, tl):
            if stg >= 0:
                stages[stg].fill.append((items, slot, slot + len(items)))
    tch = cfg.get("touchg")
    touch_fixed = []
    if tch:
        gw = f"""
        s_and_b32 {sr(sT0)}, s2, 63
        s_lshl_b32 {sr(sT0)}, {sr(sT0)}, 2
        s_add_u32 {sr(sT0)}, {sr(sT0)}, {sr(sW)}
        s_lshl_b32 {sr(sT0)}, {sr(sT0)}, 13
        v_lshlrev_b32 {vr(vX0)}, 7, v0
        """

        def wq(half):
            return f"""
            s_and_b32 {sr(sT0)}, {sr(sI)}, 1
            s_lshl_b32 {sr(sT0)}, {sr(sT0)}, 2
            s_add_u32 {sr(sT0)}, {sr(sT0)}, {sr(sW)}
            s_add_u32 {sr(sT0)}, {sr(sT0)}, {8 * half}
            s_lshl_b32 {sr(sT0)}, {sr(sT0)}, 18
            s_lshl_b32 {sr(sT1)}, {sr(sH)}, 8
            s_add_u32 {sr(sT0)}, {sr(sT0)}, {sr(sT1)}
            v_and_b32 {vr(vX0)}, 1, v0
            v_lshlrev_b32 {vr(vX0)}, 7, {vr(vX0)}
            v_lshrrev_b32 {vr(vX1)}, 1, v0
            v_lshl_add_u32 {vr(vX0)}, {vr(vX1)}, 13, {vr(vX0)}
            buffer_load_dword {vr(TMP + 1)}, {vr(vX0)}, {sr(S_WQ, 4)}, {sr(sT0)} offen
            """
        tl = [gw + f"""buffer_load_dword {vr(TMP + 1)}, {vr(vX0)}, {sr(S_XA, 4)}, {sr(sT0)} offen
              s_and_b32 {sr(sT0)}, s2, 63
              s_and_b32 {sr(sT1)}, {sr(sW)}, 1
              s_lshl_b32 {sr(sT1)}, {sr(sT1)}, 6
              s_add_u32 {sr(sT0)}, {sr(sT0)}, {sr(sT1)}
              s_lshl_b32 {sr(sT0)}, {sr(sT0)}, 13
              buffer_load_dword {vr(TMP + 2)}, {vr(vX0)}, {sr(S_BSEL, 4)}, {sr(sT0)} offen""",
              wq(0), wq(1),
              gw + f"buffer_load_dword {vr(TMP + 1)}, {vr(vX0)}, {sr(S_XB, 4)}, {sr(sT0)} offen"]
        tgrp = cfg.get("tgrp", (0, 1, 2, 3))
        for k, ((stg, slot), txt) in enumerate(zip(tch, tl)):
            if stg >= 0:
                touch_fixed.append((stg, slot, f"s_lshr_b32 {sr(sT0)}, s2, 6\n s_cmp_lg_u32 {sr(sT0)}, {tgrp[k]}\n"
                                               f"s_cbranch_scc1 TCH_{k}\n{txt}\n TCH_{k}:"))
    for k, (stg, slot, grp, names, base, lanes) in enumerate(cfg.get("touchl", [])):
        txt = lin_touch([SR[x] for x in names.split("+")], base, lanes, 64, TMP + 5)
        if names == "b":
            txt = txt.replace(f"s_lshl_b32 {sr(sT0)}, {sr(sT0)}, 2\n        s_add_u32 {sr(sT0)}, {sr(sT0)}, {sr(sW)}",
                              f"s_lshl_b32 {sr(sT0)}, {sr(sT0)}, 1\n s_and_b32 {sr(sT1)}, {sr(sW)}, 1\n"
                              f"s_add_u32 {sr(sT0)}, {sr(sT0)}, {sr(sT1)}")
        touch_fixed.append((stg, slot, f"s_lshr_b32 {sr(sT0)}, s2, 6\n s_cmp_lg_u32 {sr(sT0)}, {grp}\n"
                                       f"s_cbranch_scc1 TCL_{k}\n{txt}\n TCL_{k}:"))
    U5.fill.append(([f"v_lshlrev_b32 {vr(vLA)}, 16, {vr(vLA)}",
                     f"v_lshlrev_b32 {vr(vLB)}, 16, {vr(vLB)}",
                     f"v_lshlrev_b32 {vr(vZA)}, 16, {vr(vZA)}",
                     f"v_mul_f32 {vr(vZA)}, {f32hex(LOG2E)}, {vr(vZA)}",
                     f"v_exp_f32 {vr(vZA)}, {vr(vZA)}",
                     f"v_and_b32 {vr(vPA)}, 7, v0",
                     f"v_cvt_pk_bf16_f32 {vr(vZA)}, {vr(vZA)}, {vr(vZA)}",
                     f"v_lshlrev_b32 {vr(vZA)}, 16, {vr(vZA)}",
                     f"v_mul_f32 {vr(vZB)}, {vr(vZA)}, {vr(vLB)}",
                     f"v_mul_f32 {vr(vZA)}, {vr(vZA)}, {vr(vLA)}",
                     f"v_mul_f32 {vr(vZB)}, {f32hex(1.0 / (2 * math.pi))}, {vr(vZB)}",
                     f"v_mul_f32 {vr(vZA)}, {f32hex(LOG2E)}, {vr(vZA)}",
                     f"v_lshlrev_b32 {vr(vPA)}, 2, {vr(vPA)}",
                     sync.load(S_DBG, "0", vPA, vPV)], 44, 64))
    U6.at_barrier.append(sync.check("Z", S_DBG, "0", vPA, vPV))

    U6.blocks.append(("SCR", None))
    E0 = TMP

    def scan1(addrs):
        a = addrs[-1]
        lr, li = E0, E0 + 1
        out = cexp("1.0", lr, li, E0 + 2, E0 + 3)
        cur = (RB, RB + 16)
        for t in range(1, 16):
            d = (E0 + 4 + 2 * (t & 1), E0 + 5 + 2 * (t & 1))
            out += cmadd(d[0], d[1], lr, li, cur[0], cur[1], RB + t, RB + 16 + t)
            cur = d
        assert cur == (E0 + 6, E0 + 7)
        out += [f"v_and_b32 {vr(vX0)}, 15, v0",
                f"s_and_b32 {sr(sT0)}, {sr(sW)}, 1\n s_lshl_b32 {sr(sT0)}, {sr(sT0)}, 7",
                f"s_add_u32 {sr(sT0)}, {sr(sT0)}, {a}",
                f"v_lshl_add_u32 {vr(E0 + 8)}, {vr(vX0)}, 3, {sr(sT0)}",
                f"v_lshl_add_u32 {vr(vX1)}, {vr(vSEG)}, 8, {vr(E0 + 8)}",
                f"ds_write_b64 {vr(vX1)}, {vr(E0 + 6, 2)}"]
        return out

    U6.fill.append((scan1, *cfg.get("scan1win", (6, 100))))

    ER = RSET[4]
    vEA = vFB
    scan2 = [f"ds_read_b64 {vr(ER + 2 * s, 2)}, {vr(E0 + 8)} offset:{256 * s}" for s in range(8)]
    lr, li = E0, E0 + 1
    scan2 += cexp(f32hex(16.0), lr, li, E0 + 2, E0 + 3)
    scan2 += [f"v_mov_b32 {vr(vPRE)}, 0", f"v_mov_b32 {vr(vPRE + 1)}, 0",
              f"v_and_b32 {vr(vX0)}, 15, v0",
              f"s_and_b32 {sr(sT0)}, {sr(sW)}, 1\n s_lshl_b32 {sr(sT0)}, {sr(sT0)}, 7",
              f"s_lshl_b32 {sr(sT2)}, {sr(sPG)}, 8\n s_add_u32 {sr(sT0)}, {sr(sT0)}, {sr(sT2)}",
              f"v_lshl_add_u32 {vr(vEA)}, {vr(vX0)}, 3, {sr(sT0)}",
              f"v_lshl_add_u32 {vr(vX0)}, {vr(vSEG)}, 16, {vr(vEA)}",
              f"s_lshl_b32 {sr(sT0)}, {sr(sC)}, 12"]
    cur = (ER, ER + 1)
    for s in range(1, 8):
        scan2 += [f"v_cmp_eq_u32 vcc, {s}, {vr(vSEG)}"]
        d = (E0 + 4 + 2 * (s & 1), E0 + 5 + 2 * (s & 1))
        scan2 += cmadd(d[0], d[1], lr, li, cur[0], cur[1], ER + 2 * s, ER + 2 * s + 1)
        scan2 += [f"v_cndmask_b32 {vr(vPRE)}, {vr(vPRE)}, {vr(cur[0])}, vcc",
                  f"v_cndmask_b32 {vr(vPRE + 1)}, {vr(vPRE + 1)}, {vr(cur[1])}, vcc"]
        cur = d
    scan2 += [f"buffer_store_dwordx2 {vr(E0 + 6, 2)}, {vr(vX0)}, {sr(S_E, 4)}, {sr(sT0)} offen sc1 @@est"]
    U7.fill.append((scan2, 0, 58))
    U7.at_barrier.append("@need #est")
    U7.after_barrier.append(signal(f"s_lshl_b32 {sr(sFO)}, {sr(sPG)}, 5\n s_add_u32 {sr(sFO)}, {sr(sFO)}, {sr(sC)}\n"
                                   f"s_lshl_b32 {sr(sFO)}, {sr(sFO)}, 2\n s_add_u32 {sr(sFO)}, {sr(sFO)}, {FL_E * 128}"))
    U7.fill.append(([f"v_add_u32 {vr(vFA + k)}, {sr(sWLDS)}, {vr(vF + k)}" for k in range(3)] +
                    [f"s_lshl_b32 {sr(sT1)}, {sr(sW)}, 10"] +
                    [f"v_subrev_u32 {vr(vT + k)}, {sr(sT1)}, {vr(vT + k)}" for k in range(6)], 58, 70))

    kvsig = cfg.get("kvsig", 1)
    QS[kvsig].at_barrier.append("@need #kvst")
    QS[kvsig].after_barrier.append(signal(f"s_lshl_b32 {sr(sFO)}, {sr(sH)}, 5\n s_add_u32 {sr(sFO)}, {sr(sFO)}, {sr(sI)}\n"
                                      f"s_lshl_b32 {sr(sFO)}, {sr(sFO)}, 2"))

    EV = 48
    LAM, L128, LSEG, COEF, CT = 78, 80, 82, 84, 86
    s2a = cexp("1.0", LAM, LAM + 1, CT, CT + 1) + [
        f"v_add_f32 {vr(CT)}, -1.0, {vr(LAM)}",
        f"v_mul_f32 {vr(CT + 1)}, {vr(vLA)}, {vr(vLA)}",
        f"v_fmac_f32 {vr(CT + 1)}, {vr(vLB)}, {vr(vLB)}",
        f"v_rcp_f32 {vr(CT + 1)}, {vr(CT + 1)}",
        f"v_mul_f32 {vr(COEF)}, {vr(CT)}, {vr(vLA)}",
        f"v_fmac_f32 {vr(COEF)}, {vr(LAM + 1)}, {vr(vLB)}",
        f"v_mul_f32 {vr(COEF + 1)}, {vr(LAM + 1)}, {vr(vLA)}",
        f"v_fma_f32 {vr(COEF + 1)}, -{vr(CT)}, {vr(vLB)}, {vr(COEF + 1)}",
        f"v_add_f32 {vr(CT + 1)}, {vr(CT + 1)}, {vr(CT + 1)}",
        f"v_mul_f32 {vr(COEF)}, {vr(COEF)}, {vr(CT + 1)}",
        f"v_mul_f32 {vr(COEF + 1)}, {vr(COEF + 1)}, {vr(CT + 1)}"]
    XT, LQ, EA, HP = 76, 74, 56, RING

    def ure(t):
        return XT if t == 0 else RB + t - 1

    for t in range(16):
        r, m = RB + t, RB + 16 + t
        s2a += [f"v_mul_f32 {vr(ure(t))}, {vr(COEF)}, {vr(r)}",
                f"v_fma_f32 {vr(ure(t))}, -{vr(COEF + 1)}, {vr(m)}, {vr(ure(t))}",
                f"v_mul_f32 {vr(m)}, {vr(COEF)}, {vr(m)}",
                f"v_fmac_f32 {vr(m)}, {vr(COEF + 1)}, {vr(r)}"]
    s2c = [f"v_and_b32 {vr(vPA)}, 15, v0", f"v_lshlrev_b32 {vr(vPA)}, 2, {vr(vPA)}",
           f"v_lshrrev_b32 {vr(EA + 1)}, 4, v0", f"s_add_i32 {sr(sT0)}, {sr(sC)}, -16",
           f"v_lshl_add_u32 {vr(EA)}, {vr(EA + 1)}, 2, {sr(sT0)}", f"v_lshl_add_u32 {vr(EA)}, {vr(EA)}, 12, {vr(vEA)}",
           f"v_sub_u32 {vr(EA + 1)}, 3, {vr(EA + 1)}", f"v_cvt_f32_u32 {vr(EA + 1)}, {vr(EA + 1)}",
           f"v_mul_f32 {vr(EA + 1)}, {f32hex(512.0)}, {vr(EA + 1)}"]
    s2c += cexp(vr(EA + 1), LQ, LQ + 1, EA + 2, EA + 3)
    s2c += cexp(f32hex(128.0), L128, L128 + 1, EA + 2, EA + 3)
    s2c += [f"v_cvt_f32_u32 {vr(EA + 1)}, {vr(vSEG)}", f"v_mul_f32 {vr(EA + 1)}, {f32hex(16.0)}, {vr(EA + 1)}"]
    s2c += cexp(vr(EA + 1), LSEG, LSEG + 1, EA + 2, EA + 3)
    s2c += [f"v_add_u32 {vr(EA + k)}, {4096 * k}, {vr(EA)}" for k in range(1, 4)]
    epoll = cfg.get("epoll", 2)
    QS[0].fill.append((s2c, 26, 64 * epoll))
    QS[0].fill.append((s2a, *cfg.get("s2awin", (30, 64 * (epoll + 1) + 30))))
    QS[epoll].fill.append(([f"s_lshl_b32 {sr(sFO)}, {sr(sPG)}, 7\n s_add_u32 {sr(sFO)}, {sr(sFO)}, {FL_E * 128}",
                            sync.load(S_FLG, sr(sFO), vPA, vPV)], 4, 10))
    QS[epoll].at_barrier.append(sync.check("E", S_FLG, sr(sFO), vPA, vPV))
    QS[epoll].fill.append(([f"buffer_load_dwordx2 {vr(EV + 2 * k, 2)}, {vr(EA + k)}, {sr(S_E, 4)}, 0 offen sc1"
                            for k in range(4)], 51, 62))
    A = 60
    s2b = cmadd(A, A + 1, L128, L128 + 1, EV, EV + 1, EV + 2, EV + 3)
    s2b += cmadd(A + 2, A + 3, L128, L128 + 1, A, A + 1, EV + 4, EV + 5)
    s2b += cmadd(A, A + 1, L128, L128 + 1, A + 2, A + 3, EV + 6, EV + 7)

    def cmul(d, l, h):
        return [f"v_mul_f32 {vr(d)}, {vr(l)}, {vr(h)}", f"v_mul_f32 {vr(d + 1)}, {vr(l)}, {vr(h + 1)}",
                f"v_fma_f32 {vr(d)}, -{vr(l + 1)}, {vr(h + 1)}, {vr(d)}", f"v_fmac_f32 {vr(d + 1)}, {vr(l + 1)}, {vr(h)}"]

    s2b += cmul(A + 2, LQ, A)
    for sw in ("16", "32"):
        s2b += [f"v_mov_b32 {vr(A)}, {vr(A + 2)}", f"v_mov_b32 {vr(A + 1)}, {vr(A + 3)}",
                f"v_permlane{sw}_swap_b32 {vr(A)}, {vr(A + 2)}", f"v_permlane{sw}_swap_b32 {vr(A + 1)}, {vr(A + 3)}",
                f"v_add_f32 {vr(A + 2)}, {vr(A + 2)}, {vr(A)}", f"v_add_f32 {vr(A + 3)}, {vr(A + 3)}, {vr(A + 1)}"]
    s2b += cmadd(A, A + 1, LSEG, LSEG + 1, A + 2, A + 3, vPRE, vPRE + 1)
    s2b += cmul(A + 2, COEF, A)
    cur = (A + 2, A + 3)
    for t in range(16):
        d = (ure(t), RB + 16 + t)
        s2b += cmadd(d[0], d[1], LAM, LAM + 1, cur[0], cur[1], d[0], d[1])
        if t & 1:
            s2b += [f"v_cvt_pk_bf16_f32 {vr(HP + t // 2)}, {vr(cur[0])}, {vr(d[0])}",
                    f"v_cvt_pk_bf16_f32 {vr(HP + 8 + t // 2)}, -{vr(cur[1])}, -{vr(d[1])}"]
        cur = d
    s2b += [f"v_mov_b32 {vr(vSIG2)}, {vr(vSIG)}", f"v_mov_b32 {vr(vONE2)}, 1"]
    hst = [f"""s_lshl_b32 {sr(sT1)}, {sr(sC)}, 18
    s_lshr_b32 {sr(sT2)}, {sr(sW)}, 1
    s_lshl_b32 {sr(sT2)}, {sr(sT2)}, 17
    s_add_u32 {sr(sT1)}, {sr(sT1)}, {sr(sT2)}
    s_lshl_b32 {sr(sT2)}, {sr(sPG)}, 13
    s_add_u32 {sr(sT1)}, {sr(sT1)}, {sr(sT2)}
    s_and_b32 {sr(sT2)}, {sr(sW)}, 1
    s_lshl_b32 {sr(sT2)}, {sr(sT2)}, 11
    s_add_u32 {sr(sT1)}, {sr(sT1)}, {sr(sT2)}
    s_add_u32 {sr(sT1)}, {sr(sT1)}, {WS_HF}"""]
    for reim in range(2):
        for half in range(2):
            hst.append(f"buffer_store_dwordx4 {vr(HP + 8 * reim + 4 * half, 4)}, {vr(vL16)}, {sr(S_WS, 4)}, {sr(sT1)} "
                       f"offen offset:{half * 1024} sc1 @@hst")
        if reim == 0:
            hst.append(f"s_add_u32 {sr(sT1)}, {sr(sT1)}, 4096")
    s2lo, s2hi, hhi = cfg.get("s2bwin", (64 * (epoll + 1) + 40, 64 * 5 + 40, 64 * 6))
    assert s2lo >= cfg.get("s2awin", (30, 64 * (epoll + 1) + 30))[1] and hhi <= 64 * 7 + 40
    QS[0].fill.append((s2b, s2lo, s2hi))
    QS[0].fill.append((hst, s2hi, hhi))

    QS[6].fill.append(([f"v_and_b32 {vr(vPA)}, 7, v0", f"v_lshlrev_b32 {vr(vPA)}, 2, {vr(vPA)}",
                        f"s_lshl_b32 {sr(sFO)}, {sr(sH)}, 7", sync.load(S_FLG, sr(sFO), vPA, vPV)], 6, 14))
    QS[6].at_barrier.append(sync.check("KV", S_FLG, sr(sFO), vPA, vPV))

    def qpack(cg, groups=(0, 1)):
        out = []
        for g in groups:
            for hq in range(2):
                qb = 2 * g + hq
                dst = QREG[g] + 4 * (2 * cg + hq)
                src = [qacc(2 * cg, qb) + k for k in range(4)] + [qacc(2 * cg + 1, qb) + k for k in range(4)]
                out += [f"v_cvt_pk_bf16_f32 {vr(dst + k)}, {vr(src[2 * k])}, {vr(src[2 * k + 1])}" for k in range(4)]
        return out

    QS[7].fill.append((qpack(0), 43, 52))
    QS[7].fill.append((qpack(1), 52, 61))
    QS[6].fill.append((ATT.selectors(), 16, 90))
    if cfg.get("touch4", True):
        tq4 = Prog()
        touch_code(S_CODE, "KA_pc4", 77, tq4)
        QS[5].fill.append(([x.text for x in tq4.ins], 0, 24))

    P1 = Pipe(stages, dma_group, cfg, "blk", cfg.get("npro", 6), fine(0))
    pairfree = [max(P1.free_at[2 * q], P1.free_at[2 * q + 1]) for q in range(5)]
    r0 = min(range(5), key=lambda q: [pairfree[(q + t) % 5] for t in range(4)])

    def tile_dma(tile, addr):
        out = []
        for j in range(8):
            su = []
            if j % 4 == 0:
                su = [f"s_mov_b32 {sr(sD0)}, {tile * 32768 + j * 1024}", f"s_add_u32 m0, {sr(sW8K)}, {addr + j * 1024}"]
                if tile == 0:
                    su[0] = f"s_bitcmp1_b32 {sr(sW)}, 0\n s_cselect_b32 {sr(sD0)}, {1 << 21}, 0" if j == 0 else \
                        f"s_add_u32 {sr(sD0)}, {sr(sD0)}, 4096"
            out.append((su, f"buffer_load_dwordx4 {vr(vW)}, {sr(S_KVR, 4)}, {sr(sD0)} offen offset:{(j % 4) * 1024} "
                            f"sc1 lds @@tile{tile}"))
        return out

    def tile_addr(t):
        return ((r0 + t) % 5) * 2 * BLK

    poll_bar = P1.bar[len(stages) - 1]
    P1.extra_fixed.append((poll_bar, f"s_lshl_b32 {sr(sW8K)}, {sr(sW)}, 13\n v_add_u32 {vr(vW)}, {sr(sW8K)}, {vr(vL16)}"))
    for stg, slot, txt in touch_fixed:
        P1.extra_fixed.append((P1.start[stg] + slot, txt))
    ntile_pre = 0
    tp = cfg.get("tilepace", 4)
    for t in range(cfg.get("ntilepre", 2)):
        e = max(P1.bar[pairfree[(r0 + t) % 5]], poll_bar) + 1
        if max(P1.dcur, e) + 8 * tp + 1 >= P1.total:
            break
        P1.add_dma(tile_dma(t, tile_addr(t)), e, tp, P1.total - 1)
        ntile_pre += 1
    P1.schedule()

    for gi, grp in enumerate(P1.prolog_dma):
        for setup, ins in grp:
            p("\n".join(setup))
            p(ins)
        if gi == 2:
            if timing:
                p("s_memrealtime s[92:93]")
            p(late)
            tlb = cfg.get("tlb", 0)
            if tlb:
                p(f"v_lshlrev_b32 {vr(vX0)}, {tlb}, v0\n s_lshl_b32 {sr(sT0)}, {sr(sW)}, {tlb - 2}")
                for k, srd in enumerate((S_WS, S_XA, S_BSEL, S_XB, S_WQ, S_WO, S_CSEL)):
                    p(f"buffer_load_dword {vr(TMP + 1 + k)}, {vr(vX0)}, {sr(srd, 4)}, {sr(sT0)} offen offset:8")
    if timing:
        p(f"v_mov_b32 {vr(vX0)}, {sr(sRET)}\n v_mov_b32 {vr(vX1)}, {sr(sRET)}\n v_mov_b32 v94, {63 * 8}")
        p(f"buffer_store_dwordx2 {vr(vX0, 2)}, v94, {sr(S_WS, 4)}, {sr(sStamp)} offen")
        p(f"v_mov_b32 v92, s90\n v_mov_b32 v93, s92\n v_mov_b32 v94, {62 * 8}")
        p(f"buffer_store_dwordx2 v[92:93], v94, {sr(S_WS, 4)}, {sr(sStamp)} offen")
    st(94)
    p(f"@need {P1.first_need}\n s_barrier")
    st(94)
    for t in P1.prolog_reads:
        p(t)
    xb = {}
    if timing:
        for n in (8, 10, len(stages) - 10, len(stages) - 8):
            tq = Prog()
            stamp(tq, True, nstamp[0], sTS, 92, 94, S_WS, sStamp)
            nstamp[0] += 1
            xb[P1.start[n]] = "\n".join(x.text for x in tq.ins)
    P1.emit(p, xb)
    if timing:
        p(f"v_lshlrev_b32 v94, 2, v0\n buffer_store_dword v95, v94, {sr(S_WS, 4)}, {sr(sStamp)} offen offset:768")
    st()

    p("@need #tile0\n s_barrier")
    rest = []
    for t in range(ntile_pre, 3 + cfg.get("deep", 1)):
        rest += ["\n".join(su + [ins]) for su, ins in tile_dma(t, tile_addr(t))]
    hsig = signal(f"s_lshl_b32 {sr(sFO)}, {sr(sC)}, 5\n s_add_u32 {sr(sFO)}, {sr(sFO)}, {sr(sPG)}\n"
                  f"s_lshl_b32 {sr(sFO)}, {sr(sFO)}, 2\n s_add_u32 {sr(sFO)}, {sr(sFO)}, {FL_H * 128}", vSIG2, vONE2)

    LACC, HACC, TRING, SACC, Y, XR = 32, 96, 160, 208, 224, 240
    vCX, vT5 = 192, 197
    vF5, vH = 8, 13
    W32 = 32768
    vO, vOA, vWr, vRd, vX = vVST, vSEG, vRD, vCST, 250
    sOA, sOB, sPX, sPI = sM0, sKVOFF, sSLOT, sCNT
    TSTR = 144
    ro, r2 = cfg.get("roto", (0, 0)), cfg.get("rot2", (1, 2))
    d2a = [f"""
    s_and_b32 {sr(sCT)}, {sr(sH)}, 3
    s_lshr_b32 {sr(sKQ)}, {sr(sH)}, 2
    s_mul_i32 {sr(sRO)}, {sr(sI)}, {ro[0]}
    s_mul_i32 {sr(sT2)}, {sr(sCT)}, {ro[1]}
    s_add_u32 {sr(sRO)}, {sr(sRO)}, {sr(sT2)}
    s_and_b32 {sr(sRO)}, {sr(sRO)}, 7
    s_lshl_b32 {sr(sRO2)}, {sr(sRO)}, 14
    s_lshl_b32 {sr(sRO)}, {sr(sRO)}, 16
    s_lshl_b32 {sr(sT2)}, {sr(sKQ)}, 17
    s_add_u32 {sr(sT2)}, {sr(sT2)}, {sr(sWLDS)}
    s_add_u32 {sr(sT2)}, {sr(sT2)}, {WS_CTX}
    s_lshl_b32 {sr(sT3)}, {sr(sI) if not cfg.get("abl_cx") else 0}, 20
    s_add_u32 {sr(sCTXO)}, {sr(sT2)}, {sr(sT3)}
    s_add_u32 {sr(sT2)}, {sr(sT2)}, {15 << 20}
    s_sub_u32 {sr(sCTXH)}, {sr(sT2)}, {sr(sT3)}
    s_lshl_b32 {sr(sWOO)}, {sr(sKQ)}, 19
    s_lshl_b32 {sr(sT2)}, {sr(sW)}, 14
    s_add_u32 {sr(sWOO)}, {sr(sWOO)}, {sr(sT2)}
    s_lshl_b32 {sr(sT2)}, {sr(sCT)}, 8
    s_add_u32 {sr(sWOO)}, {sr(sWOO)}, {sr(sT2)}
    """]
    d2b = f"""
    s_lshl_b32 {sr(sT2)}, {sr(sI)}, 1
    s_sub_u32 {sr(sT2)}, {r0 + 33}, {sr(sT2)}
    s_mul_i32 {sr(sT3)}, {sr(sT2)}, 52
    s_lshr_b32 {sr(sT3)}, {sr(sT3)}, 8
    s_mul_i32 {sr(sT3)}, {sr(sT3)}, 5
    s_sub_u32 {sr(sT2)}, {sr(sT2)}, {sr(sT3)}
    s_lshl_b32 {sr(sT2)}, {sr(sT2)}, 15
    s_add_u32 {sr(sMB)}, {sr(sT2)}, {sr(sWLDS)}
    """
    for q in range(1, 5):
        d2b += f"""s_add_u32 {sr(sMB + q)}, {sr(sMB + q - 1)}, 32768
        s_cmp_ge_u32 {sr(sMB + q)}, {NBLK * BLK}
        s_cselect_b32 {sr(sMB + q)}, {sr(sWLDS)}, {sr(sMB + q)}
        """
    d3x = [f"""
    s_lshr_b32 {sr(sT2)}, {sr(sKQ)}, 2
    s_lshl_b32 {sr(sT2)}, {sr(sT2)}, 6
    v_add_u32 {vr(vNa)}, 16, v0
    v_and_b32 {vr(vNa)}, 32, {vr(vNa)}
    v_xor_b32 {vr(vNa)}, {vr(vNa)}, {vr(vN)}
    v_add_u32 {vr(vNa)}, {sr(sT2)}, {vr(vNa)}
    v_xor_b32 {vr(vNb)}, 64, {vr(vNa)}
    s_lshr_b32 {sr(sT2)}, {sr(sW)}, 1
    s_lshl_b32 {sr(sT2)}, {sr(sT2)}, 12
    s_sub_u32 {sr(sT2)}, {sr(sT2)}, {sr(sWLDS)}
    v_add_u32 {vr(vF + 1)}, {sr(sT2)}, {vr(vL16)}
    s_and_b32 {sr(sT2)}, {sr(sW)}, 1
    s_lshl_b32 {sr(sT2)}, {sr(sT2)}, 11
    s_sub_u32 {sr(sT2)}, {sr(sT2)}, {sr(sWLDS)}
    v_lshrrev_b32 {vr(vX0)}, 2, v0
    v_lshl_add_u32 {vr(vF + 2)}, {vr(vX0)}, 6, {sr(sT2)}
    v_and_b32 {vr(vX0)}, 3, v0
    v_lshl_add_u32 {vr(vF + 2)}, {vr(vX0)}, 3, {vr(vF + 2)}
    v_bfe_u32 {vr(vX0)}, v0, 4, 1
    v_lshl_add_u32 {vr(vF + 2)}, {vr(vX0)}, 5, {vr(vF + 2)}
    """]
    tail1 = []
    for q in range(5):
        tail1 += [f"v_add_u32 {vr(vCX + q)}, {sr(sMB + q)}, {vr(vF + 1)}",
                  f"v_add_u32 {vr(vT5 + q)}, {sr(sMB + q)}, {vr(vF + 2)}",
                  f"v_xor_b32 {vr(vT5 + 5 + q)}, 32, {vr(vT5 + q)}"]
    tail2 = [f"""
    s_and_b32 {sr(sT0)}, s2, 7
    s_lshr_b32 {sr(sT1)}, s2, 3
    s_lshl_b32 {sr(sRT64)}, {sr(sT0)}, 2
    s_lshr_b32 {sr(sT2)}, {sr(sT1)}, 3
    s_add_u32 {sr(sRT64)}, {sr(sRT64)}, {sr(sT2)}
    s_and_b32 {sr(sCT64)}, {sr(sT1)}, 7
    s_mul_i32 {sr(sR2)}, {sr(sCT64)}, {r2[0]}
    s_mul_i32 {sr(sT2)}, {sr(sT2)}, {r2[1]}
    s_add_u32 {sr(sR2)}, {sr(sR2)}, {sr(sT2)}
    s_and_b32 {sr(sR2)}, {sr(sR2)}, 7
    s_lshl_b32 {sr(sR2)}, {sr(sR2)}, 7
    s_lshl_b32 {sr(sHO)}, {sr(sRT64) if not cfg.get("abl_s2") else 0}, 17
    s_add_u32 {sr(sHO)}, {sr(sHO)}, {sr(sWLDS)}
    s_add_u32 {sr(sHO)}, {sr(sHO)}, {WS_HF}
    s_lshl_b32 {sr(sCO)}, {sr(sCT64) if not cfg.get("abl_s2") else 0}, 16
    s_lshr_b32 {sr(sT2)}, {sr(sW)}, 1
    s_lshl_b32 {sr(sT3)}, {sr(sT2)}, 11
    s_add_u32 {sr(sCO)}, {sr(sCO)}, {sr(sT3)}
    v_lshrrev_b32 {vr(vC4)}, 2, v0
    v_mul_u32_u24 {vr(vC4)}, 3072, {vr(vC4)}
    v_add_u32 {vr(vC4)}, {vr(vC4)}, {vr(vN)}
    v_lshrrev_b32 {vr(vX0)}, 5, v0
    s_lshl_b32 {sr(sT1)}, {sr(sW)}, 8
    s_sub_u32 {sr(sT1)}, {sr(sT1)}, {sr(sWLDS)}
    v_lshl_add_u32 {vr(vX1)}, {vr(vX0)}, 11, {sr(sT1)}
    v_bfe_u32 {vr(vX0)}, v0, 1, 1
    v_lshl_add_u32 {vr(vX1)}, {vr(vX0)}, 10, {vr(vX1)}
    v_bfe_u32 {vr(vX0)}, v0, 4, 1
    v_lshl_add_u32 {vr(vX1)}, {vr(vX0)}, 7, {vr(vX1)}
    v_bfe_u32 {vr(vX0)}, v0, 2, 2
    v_lshl_add_u32 {vr(vX1)}, {vr(vX0)}, 4, {vr(vX1)}
    v_and_b32 {vr(vX0)}, 1, v0
    v_lshl_add_u32 {vr(vX1)}, {vr(vX0)}, 3, {vr(vX1)}
    v_subrev_u32 {vr(vF)}, {sr(sWLDS)}, {vr(vF)}
    """]
    for q in range(5):
        tail2 += [f"v_add_u32 {vr(vH + q)}, {sr(sMB + q)}, {vr(vX1)}", f"v_add_u32 {vr(vF5 + q)}, {sr(sMB + q)}, {vr(vF)}"]
    touch2 = lines(f"""
    s_cmp_eq_u32 {sr(sI)}, 4
    s_cselect_b32 {sr(sT1)}, 1, 0
    s_mul_i32 {sr(sT2)}, {sr(sI)}, 9
    s_bfe_u32 {sr(sT2)}, {sr(sT2)}, 0x30002
    s_sub_u32 {sr(sT2)}, {sr(sT2)}, {sr(sT1)}
    s_add_u32 {sr(sT3)}, {sr(sT1)}, 5
    v_lshrrev_b32 v226, {sr(sT3)}, v0
    v_lshlrev_b32 v226, 17, v226
    v_add_lshl_u32 v226, v226, v0, 7
    s_and_b32 {sr(sT0)}, s2, 31
    s_lshl_b32 {sr(sT0)}, {sr(sT0)}, 2
    s_add_u32 {sr(sT0)}, {sr(sT0)}, {sr(sW)}
    s_lshl_b32 {sr(sT3)}, {sr(sT0)}, 3
    s_add_u32 {sr(sT3)}, {sr(sT3)}, {sr(sT2)}
    s_lshl_b32 {sr(sT3)}, {sr(sT3)}, 12
    buffer_load_dword v237, v226, {sr(S_WO, 4)}, {sr(sT3)} offen
    s_add_u32 {sr(sT3)}, {sr(sT1)}, 3
    v_lshrrev_b32 v226, {sr(sT3)}, v0
    v_lshlrev_b32 v226, 17, v226
    v_add_lshl_u32 v226, v226, v0, 7
    s_lshr_b32 {sr(sT0)}, {sr(sT0)}, 1
    s_lshl_b32 {sr(sT0)}, {sr(sT0)}, 3
    s_add_u32 {sr(sT0)}, {sr(sT0)}, {sr(sT2)}
    s_lshl_b32 {sr(sT0)}, {sr(sT0)}, 10
    buffer_load_dword v224, v226, {sr(S_CSEL, 4)}, {sr(sT0)} offen
    """) if cfg.get("touch2", True) else []

    mid_fill = [f"""
    s_lshr_b32 {sr(sCF)}, {sr(sH)}, 2
    s_lshl_b32 {sr(sCF)}, {sr(sCF)}, 3
    s_add_u32 {sr(sCF)}, {sr(sCF)}, {sr(sI)}
    s_lshl_b32 {sr(sCF)}, {sr(sCF)}, 7
    s_add_u32 {sr(sFO)}, {sr(sCF)}, {FL_CTX * 128}
    s_and_b32 {sr(sCF)}, {sr(sH)}, 3
    s_lshl_b32 {sr(sCF)}, {sr(sCF)}, 2
    s_add_u32 {sr(sCF)}, {sr(sCF)}, {sr(sFO)}
    v_and_b32 {vr(vPA2)}, 3, v0
    v_lshlrev_b32 {vr(vPA2)}, 2, {vr(vPA2)}
    """]

    def ctx_signal(g):
        return (f"buffer_store_dword {vr(vONE2)}, {vr(vSIG2)}, {sr(S_FLG, 4)}, {sr(sCF)} offen "
                f"offset:{64 * g} sc1")

    tring = [0]
    sring = [0, 0]

    def s2_stage(n, small=False):
        S = Stage(f"s2_{n}", cfg.get("s2lb", 8))
        S.frac = 0.8
        S.group = 4
        S.blocks = [("H", n), ("C", n)]
        for ks in range(4):
            rr = 240 + 4 * (sring[1] % 4) if small else 128 + 4 * (sring[1] % 8)
            sring[1] += 1
            for x in range(2):
                S.reads.append((tr_read(ar(rr + 2 * x, 2), vH, 0, ks * 4096 + x * 64, W32), len(S.mf)))
            for db in range(4):
                r = ar(192 + 4 * (sring[0] % 12) if small else (list(range(0, 64, 4)) + list(range(160, 192, 4)))[sring[0] % 24], 4)
                sring[0] += 1
                S.reads.append((frag_read(r, vF5, 1, (db >> 1) * 8192 + (ks & 1) * 4096 + (db & 1) * 2048 + (ks >> 1) * 1024,
                                          W32), len(S.mf)))
                d = SACC + 4 * db
                c = "0" if (n == 0 and ks == 0) else vr(d, 4)
                S.mf.append(f"v_mfma_f32_16x16x32_bf16 {vr(d, 4)}, {ar(rr, 4)}, {r}, {c}")
        return S

    def o_stage(g, n):
        S = Stage(f"o{g}_{n}", 12)
        S.blocks = [("WO", n), ("CX", (0, n))] if g == 0 else [("CX", (1, n))]
        acc = HACC if g else LACC
        for kk in range(2):
            ks = 2 * n + kk
            wb = (192, 0, 128, 64)[ks >> 2] + 16 * (ks & 3)
            if g == 0:
                for mb in range(4):
                    for x in range(2):
                        S.reads.append((tr_read(ar(wb + 4 * mb + 2 * x, 2), vT5 + 5 * (mb & 1), 0,
                                                kk * 8192 + (mb >> 1) * 1024 + x * 4096, W32), len(S.mf) + mb))
            for tb in (1, 2, 3, 0):
                r = vr(TRING + 4 * (tring[0] % 8), 4)
                tring[0] += 1
                S.reads.append((frag_read(r, vCX, 1 - g, kk * 8192 + tb * 1024, W32), len(S.mf)))
                for mb in range(4):
                    d = acc + 16 * tb + 4 * mb
                    c = "0" if ks == 0 else vr(d, 4)
                    S.mf.append(f"v_mfma_f32_16x16x32_bf16 {vr(d, 4)}, {ar(wb + 4 * mb, 4)}, {r}, {c}")
        return S

    TL = [o_stage(0, n) for n in range(8)]
    TH, ns2 = [], 0
    for nm in cfg.get("hplan", ["h0h1", "h2h3", "h4h5", "h6h7"]):
        hs_ = [o_stage(1, int(nm[k + 1])) for k in range(0, len(nm), 2) if nm[k] == "h"]
        S = merge_stages(nm, hs_)
        if "s" in nm:
            S = weave(nm, S, s2_stage(ns2, True), chunk=(8 * len(hs_), 4), lb=cfg.get("wlb", 10))
            ns2 += 1
        TH.append(S)
    sring[0] = sring[1] = 0
    T2 = [s2_stage(n) for n in range(ns2, 8)]
    T2[0].lb = 14
    tst = TL + TH + T2
    n2 = len(T2)
    for S in TL + TH:
        S.minpace = cfg.get("tpace", 4.0)
    for S in T2:
        S.minpace = 1.0
    for k, v in cfg.get("tquota", {}).items():
        tst[int(k)].quota, tst[int(k)].dstart = v
    bsig, bpoll = cfg.get("bsig", 2), cfg.get("bpoll", 4)
    TL[bsig].at_barrier.append("@need #ctxst")
    TL[bsig].after_barrier.append(ctx_signal(1))
    ep = ATT.ctx_epilogue(cfg, 1, packed=HACC + 16)
    epv, eps = [x for x in ep if x.startswith("v_")], [x for x in ep if not x.startswith("v_")]
    if cfg.get("epist"):
        epv, eps = ep, []
    nexp = cfg.get("nexp", 999)
    elo, ehi, slo, shi = cfg.get("epiwin", (0, 1, 1, 16))
    if epv[nexp:]:
        TL[0].fill.append((epv[nexp:], elo, ehi))
    assert ehi <= slo and shi < 32 * (bsig + 1) - 13
    if eps:
        TL[0].fill.append((eps, slo, shi))
    TL[0].fill.append((tail2, ehi, 32 * bpoll + cfg.get("bpollat", (-4, 6))[0]))
    TL[bpoll].fill.append(([f"""
    s_add_u32 {sr(sT0)}, {sr(sFO)}, 64
    s_lshr_b32 {sr(sT1)}, {sr(sRT64)}, 1
    s_lshl_b32 {sr(sT1)}, {sr(sT1)}, 7
    s_add_u32 {sr(sT1)}, {sr(sT1)}, {FL_H * 128}
    v_add_u32 {vr(vX0)}, {sr(sT0)}, {vr(vPA2)}
    v_and_b32 {vr(vX1)}, 15, v0
    v_lshl_add_u32 {vr(vX1)}, {vr(vX1)}, 2, {sr(sT1)}
    v_cmp_gt_u32 vcc, 32, v0
    v_cndmask_b32 {vr(vPA2)}, {vr(vX1)}, {vr(vX0)}, vcc
    {sync.load(S_FLG, "0", vPA2, vPV2)}
    """], *cfg.get("bpollat", (-4, 6))))
    TL[bpoll].at_barrier.append(sync.check("B", S_FLG, "0", vPA2, vPV2))
    for S in TH + T2:
        S.gate = bpoll

    def pstore(g):
        acc = HACC if g else LACC
        out = []
        for tb in (1, 2, 3, 0):
            for mp in range(2):
                u = 2 * tb + mp
                if u == 0:
                    continue
                r = acc + 8 * u
                out += [f"s_add_u32 {sr(sT2)}, {sr(sKQ)}, {tb}", f"s_and_b32 {sr(sT2)}, {sr(sT2)}, 3",
                        f"s_and_b32 {sr(sT3)}, {sr(sKQ)}, 4", f"s_or_b32 {sr(sT2)}, {sr(sT2)}, {sr(sT3)}"] \
                    if (mp == 0 or tb == 0) else []
                if mp:
                    out.append(f"s_xor_b32 {sr(sT2)}, {sr(sT2)}, 4")
                out += [f"s_mul_i32 {sr(sT3)}, {sr(sT2)}, {7 * 4096}", f"s_add_u32 {sr(sT3)}, {sr(sT3)}, {sr(sPX)}",
                        f"s_add_u32 {sr(sT3)}, {sr(sT3)}, {g * 56 * 4096 + (u - 1) * 4096}"]
                out += [f"v_cvt_pk_bf16_f32 {vr(r + k)}, {vr(r + 2 * k)}, {vr(r + 2 * k + 1)}" for k in range(4)]
                if g in cfg.get("abl_p", ()) and u != 1:
                    continue
                out.append(f"buffer_store_dwordx4 {vr(r, 4)}, {vr(vL16)}, {sr(S_WS, 4)}, {sr(sT3)} offen sc1 @@pst{g}")
        return out

    def psig(g):
        return (f"buffer_store_dword {vr(vONE2)}, {vr(vSIG2)}, {sr(S_FLG, 4)}, {sr(sCF)} offen "
                f"offset:{128 * g} sc1")

    def pload(g):
        pr = (HACC if g else LACC) + 8
        out = []
        for k in range(1 if g in cfg.get("abl_p", ()) else 7):
            out.append(f"buffer_load_dwordx4 {vr(pr + 4 * k, 4)}, {vr(vL16)}, {sr(S_WS, 4)}, {sr(sPI)} offen sc1")
            out.append(f"s_add_u32 {sr(sPI)}, {sr(sPI)}, {4096 if k < 6 else 50 * 4096}")
        return out

    PSEL = LACC + 36

    def padd(g):
        acc = HACC if g else LACC
        return [f"v_mfma_f32_16x16x32_bf16 {vr(acc + 4 * j, 4)}, {vr(PSEL + 2 - 2 * j, 4)}, {vr(acc + 8 + 4 * k, 4)}, "
                f"{vr(acc + 4 * j, 4)}" for k in range(7) for j in range(2)]

    psel = [x + " @@keep" for x in lines(f"""
    v_bfe_u32 {vr(PSEL)}, v0, 2, 2
    v_lshrrev_b32 {vr(PSEL + 1)}, 4, v0
    v_xor_b32 {vr(PSEL)}, {vr(PSEL)}, {vr(PSEL + 1)}
    v_min_u32 {vr(PSEL)}, 1, {vr(PSEL)}
    v_xor_b32 {vr(PSEL)}, 1, {vr(PSEL)}
    v_mul_u32_u24 {vr(PSEL)}, 0x3f80, {vr(PSEL)}
    v_lshlrev_b32 {vr(PSEL + 1)}, 4, v0
    v_lshlrev_b32 {vr(PSEL)}, {vr(PSEL + 1)}, {vr(PSEL)}
    v_bfe_i32 {vr(PSEL + 1)}, v0, 1, 1
    v_and_b32 {vr(PSEL + 3)}, {vr(PSEL + 1)}, {vr(PSEL)}
    v_xor_b32 {vr(PSEL + 2)}, {vr(PSEL + 3)}, {vr(PSEL)}
    v_mov_b32 {vr(PSEL)}, 0
    v_mov_b32 {vr(PSEL + 1)}, 0
    v_mov_b32 {vr(PSEL + 4)}, 0
    v_mov_b32 {vr(PSEL + 5)}, 0
    """)]

    DR = [vF + 1, vF + 2, 18, 19]
    epi = [f"""
    s_lshl_b32 {sr(sT0)}, {sr(sI)}, 2
    s_add_u32 {sr(sT0)}, {sr(sT0)}, {sr(sCT)}
    s_lshl_b32 {sr(sFO)}, {sr(sT0)}, 8
    s_add_u32 {sr(sFO)}, {sr(sFO)}, {FL_P * 128}
    s_lshl_b32 {sr(sCF)}, {sr(sKQ)}, 2
    s_add_u32 {sr(sCF)}, {sr(sCF)}, {sr(sFO)}
    s_mul_i32 {sr(sPX)}, {sr(sT0)}, {112 * 4096}
    s_lshl_b32 {sr(sT0)}, {sr(sW)}, 10
    s_add_u32 {sr(sPX)}, {sr(sPX)}, {sr(sT0)}
    s_add_u32 {sr(sPX)}, {sr(sPX)}, {WS_PX}
    s_mul_i32 {sr(sPI)}, {sr(sKQ)}, {7 * 4096}
    s_add_u32 {sr(sPI)}, {sr(sPI)}, {sr(sPX)}
    v_and_b32 {vr(vPA2)}, 7, v0
    v_max_u32 {vr(vPA2)}, 1, {vr(vPA2)}
    v_xor_b32 {vr(vPA2)}, {sr(sKQ)}, {vr(vPA2)}
    v_lshlrev_b32 {vr(vPA2)}, 2, {vr(vPA2)}
    v_lshrrev_b32 {vr(vX0)}, 4, v0
    v_and_b32 {vr(vX1)}, 15, v0
    v_lshlrev_b32 {vr(vX)}, 12, {vr(vX0)}
    v_lshl_add_u32 {vr(vX)}, {vr(vX1)}, 3, {vr(vX)}
    s_lshl_b32 {sr(sOA)}, {sr(sRT64)}, 2
    s_add_u32 {sr(sOA)}, {sr(sOA)}, {sr(sW)}
    s_lshl_b32 {sr(sT0)}, {sr(sOA)}, 14
    s_lshl_b32 {sr(sT1)}, {sr(sCT64)}, 7
    s_add_u32 {sr(sT0)}, {sr(sT0)}, {sr(sT1)}
    """]
    for n in range(4):
        epi.append(f"buffer_load_dwordx2 {vr(XR + 2 * n, 2)}, {vr(vX)}, {sr(S_XA, 4)}, {sr(sT0)} offen offset:{n * 1024}")
    epi.append(f"""
    v_lshlrev_b32 {vr(vX)}, 3, {vr(vX1)}
    buffer_load_dwordx2 {vr(XR + 8, 2)}, {vr(vX)}, {sr(S_DSK, 4)}, {sr(sT1)} offen
    """)
    epi2 = [f"""
    v_lshlrev_b32 {vr(vOA)}, 14, {vr(vX0)}
    v_lshl_add_u32 {vr(vOA)}, {vr(vX1)}, 4, {vr(vOA)}
    s_lshl_b32 {sr(sOA)}, {sr(sOA)}, 16
    s_lshl_b32 {sr(sT1)}, {sr(sCT64)}, 8
    s_add_u32 {sr(sOA)}, {sr(sOA)}, {sr(sT1)}
    v_mul_u32_u24 {vr(vWr)}, {TSTR}, {vr(vX1)}
    v_lshl_add_u32 {vr(vWr)}, {vr(vX0)}, 4, {vr(vWr)}
    v_lshrrev_b32 {vr(vX0)}, 3, v0
    v_and_b32 {vr(vX1)}, 7, v0
    v_mul_u32_u24 {vr(vRd)}, {TSTR}, {vr(vX0)}
    v_lshl_add_u32 {vr(vRd)}, {vr(vX1)}, 4, {vr(vRd)}
    s_add_u32 {sr(sT0)}, TRBASE
    v_add_u32 {vr(vRd)}, {sr(sT0)}, {vr(vRd)}
    v_add_u32 {vr(vWr)}, {sr(sT0)}, {vr(vWr)}
    v_lshlrev_b32 {vr(vO)}, 12, {vr(vX0)}
    v_lshl_add_u32 {vr(vO)}, {vr(vX1)}, 4, {vr(vO)}
    s_lshr_b32 {sr(sT1)}, {sr(sW)}, 1
    s_lshl_b32 {sr(sT1)}, {sr(sT1)}, 2
    s_and_b32 {sr(sT0)}, {sr(sKQ)}, 3
    s_add_u32 {sr(sT1)}, {sr(sT1)}, {sr(sT0)}
    s_lshl_b32 {sr(sOB)}, {sr(sT1)}, 16
    s_lshl_b32 {sr(sT1)}, {sr(sCT)}, 1
    s_and_b32 {sr(sT0)}, {sr(sW)}, 1
    s_add_u32 {sr(sT1)}, {sr(sT1)}, {sr(sT0)}
    s_lshl_b32 {sr(sT1)}, {sr(sT1)}, 1
    s_lshr_b32 {sr(sT0)}, {sr(sKQ)}, 2
    s_add_u32 {sr(sT1)}, {sr(sT1)}, {sr(sT0)}
    s_lshl_b32 {sr(sT1)}, {sr(sT1)}, 7
    s_add_u32 {sr(sOB)}, {sr(sOB)}, {sr(sT1)}
    v_lshlrev_b32 {vr(DR[0])}, 16, {vr(XR + 8)}
    v_and_b32 {vr(DR[1])}, 0xffff0000, {vr(XR + 8)}
    v_lshlrev_b32 {vr(DR[2])}, 16, {vr(XR + 9)}
    v_and_b32 {vr(DR[3])}, 0xffff0000, {vr(XR + 9)}
    """]
    for n in range(4):
        y, x = Y + 4 * n, XR + 2 * n
        epi2 += [f"v_lshlrev_b32 {vr(y)}, 16, {vr(x)}", f"v_and_b32 {vr(y + 1)}, 0xffff0000, {vr(x)}",
                 f"v_lshlrev_b32 {vr(y + 2)}, 16, {vr(x + 1)}", f"v_and_b32 {vr(y + 3)}, 0xffff0000, {vr(x + 1)}"]
        epi2 += [f"v_mul_f32 {vr(y + e)}, {vr(y + e)}, {vr(DR[e])}" for e in range(4)]
        epi2 += [f"v_cvt_pk_bf16_f32 {vr(x)}, {vr(y)}, {vr(y + 1)}", f"v_cvt_pk_bf16_f32 {vr(x + 1)}, {vr(y + 2)}, {vr(y + 3)}",
                 f"v_lshlrev_b32 {vr(y)}, 16, {vr(x)}", f"v_and_b32 {vr(y + 1)}, 0xffff0000, {vr(x)}",
                 f"v_lshlrev_b32 {vr(y + 2)}, 16, {vr(x + 1)}", f"v_and_b32 {vr(y + 3)}, 0xffff0000, {vr(x + 1)}"]
    trbase = [None]
    assert bsig < bpoll < 7
    TL[bpoll + 1].fill.append((epi, 0, 32 * (7 - bpoll) - 2))
    TH[0].fill.append((pstore(0), 1, cfg.get("pl_hi", 50)))
    TH[0].fill.append((lambda a_: [x.replace("TRBASE", str(trbase[0])) for x in epi2], *cfg.get("epi2win", (64, 154))))
    TH[0].fill.append((psel, 170, 220))
    assert cfg.get("pl_hi", 50) <= 170
    lsig, lpoll = cfg.get("lsig", 1), cfg.get("lpoll", 7)
    hsg, hpl = cfg.get("psig", 2), cfg.get("ppoll", 99)
    R = TH + T2
    onep = cfg.get("onep", True)
    if not onep:
        R[lsig].at_barrier.append("@need #pst0")
        R[lsig].after_barrier.append(psig(0))
        if lpoll < len(R) - 1:
            R[lpoll].fill.append(([sync.load(S_FLG, sr(sFO), vPA2, vPV2)], *cfg.get("lpollat", (-6, -2))))
            R[lpoll].at_barrier.append(sync.check("PL", S_FLG, sr(sFO), vPA2, vPV2))
            R[lpoll].after_barrier += pload(0) + [f"s_add_u32 {sr(sFO)}, {sr(sFO)}, 128"]
        else:
            R[-1].fill.append(([sync.load(S_FLG, sr(sFO), vPA2, vPV2)], -6, -2))
    else:
        TH[2].fill.append(([f"s_add_u32 {sr(sFO)}, {sr(sFO)}, 128"], 0, 2))
    T2[0].fill.append((pstore(1), *cfg.get("phwin", (-10, 15))))
    if hsg < n2 - 1:
        T2[hsg].at_barrier.append("@need #pst1")
        T2[hsg].after_barrier.insert(0, psig(1))
    two = cfg.get("twopath")
    sGOT = sTHR
    if two:
        assert not onep and hsg < n2 - 1 and lpoll < len(R) - 1
        hpl = 99
        T2[two[0]].fill.append(([f"s_add_u32 {sr(sFO)}, {sr(sFO)}, {WS_FLG}", f"s_mov_b32 {sr(sEXP)}, 1",
                                 f"s_mov_b32 {sr(sGOT)}, 0", sync.load(S_WS, sr(sFO), vPA2, vPV2)],
                                *cfg.get("ppollat", (-30, -24))))
        try_txt = (f"v_cmp_ne_u32 vcc, 1, {vr(vPV2)}\n s_cbranch_vccnz PH_later\n s_mov_b32 {sr(sGOT)}, 1\n" +
                   "\n".join(pload(1)) + "\n PH_later:")
    if hpl < n2 - 1:
        T2[hpl].fill.append(([sync.load(S_FLG, sr(sFO), vPA2, vPV2)], *cfg.get("ppollat", (-6, -2))))
        T2[hpl].at_barrier.append(sync.check("PH", S_FLG, sr(sFO), vPA2, vPV2))
        T2[hpl].after_barrier += (pload(0) if onep else []) + pload(1)
    paddl = cfg.get("paddl")
    if paddl:
        R[paddl[0]].fill.append((padd(0), paddl[1], paddl[2]))

    def tail_order(blocks):
        first = [(0, 0), (1, 0), (2, 0), (3, 0), (0, 1), (1, 1)]
        return first + [x for x in blocks if x not in first]

    P2 = Pipe(tst, dma_group, cfg, "tb", cfg.get("npro2", 8), fine(24) and (lambda n: fine(24)(n).replace("v95", "v255")),
              gated=("CX", "H"), order=tail_order, slots=list(range(10)))
    q = [q for q in range(NBLK) if P2.free_at[q] < len(tst)][0]
    trbase[0] = f"{sr(sMB + q // 2)}, {(q % 2) * BLK}"
    if two:
        P2.extra_fixed.append((P2.start[8 + len(TH) + two[0]] + two[1], try_txt))
    P2.schedule()
    dm = ["\n".join(su + [ins]) for grp in P2.prolog_dma for su, ins in grp]

    tc = Prog()
    if cfg.get("touch3", True):
        touch_code(S_CODE, "KA_pc2", 237, tc)
    tcl = [x.text for x in tc.ins]
    acheck = sync.check("A", S_FLG, sr(sFO), vPA2, vPV2)
    npost = cfg.get("npost", 4)
    T = dict(d2=(d2a, [d2b]), d3a=d3x, d3post=[hsig] + mid_fill, s1=[ctx_signal(0)] + tcl + dm[:8],
             sig7="@need #ctxst\n s_barrier\n" + ctx_signal(0) + "\n" + "\n".join(dm[:8]),
             s2=dm[8:12] + [sync.load(S_FLG, sr(sFO), vPA2, vPV2)] + dm[12:16], s2bar=acheck,
             s2post=dm[16:16 + npost], s3=dm[16 + npost:24] + tail1)
    ATT.gen_attention(p, cfg, tile_addr(0), st, pre=qpack(2, (0,)) + qpack(3, (0,)) + qpack(2, (1,)) + qpack(3, (1,)),
                      rest=rest, touch=touch2, T=T)

    p("s_barrier")
    p(f"s_load_dwordx2 {sr(S_OUT, 2)}, s[0:1], {KA['OUT']}\n s_load_dwordx2 {sr(S_DSK, 2)}, s[0:1], {KA['DSK']}")
    rem, ev = dm[24:], epv[:nexp]
    d0 = cfg.get("remstart", 40)
    for k, x in enumerate(ev):
        p(x)
        if rem and k >= d0 and (k - d0) % max(1, (len(ev) - d0) // len(dm[24:])) == 0:
            p(rem.pop(0))
    for x in rem:
        p(x)
    p(f"""
    s_waitcnt lgkmcnt(0)
    s_mov_b32 {sr(S_OUT + 2)}, {2048 * 4096}
    s_mov_b32 {sr(S_OUT + 3)}, {SRD3}
    s_mov_b32 {sr(S_DSK + 2)}, 1024
    s_mov_b32 {sr(S_DSK + 3)}, {SRD3}
    @need {P2.first_need}
    s_barrier
    """)
    st()
    for t in P2.prolog_reads:
        p(t)
    xb = {}
    if timing:
        for n in (8, 8 + len(TH)):
            tq = Prog()
            stamp(tq, True, nstamp[0], sTS, 252, 254, S_WS, sStamp)
            nstamp[0] += 1
            xb[P2.start[n]] = "\n".join(x.text for x in tq.ins)
    P2.emit(p, xb)
    if timing:
        p(f"v_lshlrev_b32 v254, 2, v0\n buffer_store_dword v255, v254, {sr(S_WS, 4)}, {sr(sStamp)} offen offset:512")
    st()

    osc = " " + cfg.get("outflag", "sc1")
    lend = not onep and lpoll >= len(R) - 1
    if lend:
        assert hpl >= n2 - 1 and not paddl
        p(sync.check("PL", S_FLG, sr(sFO), vPA2, vPV2))
    if hsg >= n2 - 1:
        p("@need #pst1\n s_barrier\n" + psig(1))
    elif lend:
        p("s_barrier")
    if lend:
        for x in pload(0) + [f"s_add_u32 {sr(sFO)}, {sr(sFO)}, 128"]:
            p(x)
    if hpl >= n2 - 1 and not two:
        p(sync.load(S_FLG, sr(sFO), vPA2, vPV2))

    def out_b(g):
        acc = HACC if g else LACC
        for k in range(2):
            p(f"ds_write_b128 {vr(vWr)}, {vr(acc + 4 * k, 4)} offset:{k * 64}")
        p(f"s_lshl_b32 {sr(sT0)}, {sr(sI)}, 19")
        if g:
            p(f"s_sub_u32 {sr(sT0)}, {15 << 19}, {sr(sT0)}")
        p(f"s_add_u32 {sr(sT0)}, {sr(sT0)}, {sr(sOB)}\n s_add_u32 {sr(sT1)}, {sr(sT0)}, {8 * 4096}")
        p("s_waitcnt lgkmcnt(0)")
        for k in range(2):
            p(f"ds_read_b128 {vr(acc + 48 + 4 * k, 4)}, {vr(vRd)} offset:{k * 8 * TSTR}")

    def store_b(g):
        acc = HACC if g else LACC
        for k in range(2):
            p(f"buffer_store_dwordx4 {vr(acc + 48 + 4 * k, 4)}, {vr(vO)}, {sr(S_OUT, 4)}, {sr(sT1 if k else sT0)} offen "
              f"offset:2048{osc}")

    def fin_l():
        if not paddl:
            for x in padd(0):
                p(x)
        out_b(0)

    late_l = onep and hpl >= n2 - 1
    if not late_l:
        fin_l()
    for r in range(4):
        for db in range(4):
            p(f"v_add_f32 {vr(Y + 4 * r + db)}, {vr(Y + 4 * r + db)}, {vr(SACC + 4 * db + r)}")
    if hpl >= n2 - 1 and not two:
        p(sync.check("PH", S_FLG, sr(sFO), vPA2, vPV2))
        p("s_barrier")
        for x in (pload(0) if onep else []) + pload(1):
            p(x)
    if not late_l:
        store_b(0)
    for r in range(4):
        p(f"buffer_store_dwordx4 {vr(Y + 4 * r, 4)}, {vr(vOA)}, {sr(S_OUT, 4)}, {sr(sOA)} offen{osc}")
        if r < 3:
            p(f"s_add_u32 {sr(sOA)}, {sr(sOA)}, 4096")
    if two:
        p(f"s_cmp_eq_u32 {sr(sGOT)}, 1\n s_cbranch_scc1 PH_got")
        p(sync.check("PH", S_WS, sr(sFO), vPA2, vPV2))
        p("s_waitcnt vmcnt(6)")
        for x in pload(1) + padd(1):
            p(x)
        p("s_branch PH_done\n PH_got:")
    if late_l:
        fin_l()
        store_b(0)
    for x in padd(1):
        p(x)
    p("PH_done:")
    out_b(1)
    store_b(1)
    if timing:
        p("s_waitcnt vmcnt(0)")
    st()
    if timing and cfg.get("dbgout") is not None:
        p(f"""
        s_cmp_lg_u32 s2, {cfg["dbgout"]}
        s_cbranch_scc1 KA_end
        s_waitcnt vmcnt(0)
        s_barrier
        v_lshlrev_b32 v1, 4, v0
        v_mov_b32 v2, {63 * 8}
        buffer_load_dword v3, v1, {sr(S_WS, 4)}, {sr(sStamp)} offen offset:4 sc1
        buffer_load_dword v5, v1, {sr(S_WS, 4)}, {sr(sStamp)} offen offset:12 sc1
        buffer_load_dword v4, v2, {sr(S_WS, 4)}, {sr(sStamp)} offen sc1
        s_mov_b32 {sr(S_DBG + 2)}, 64
        v_lshlrev_b32 v1, 2, v0
        v_sub_u32 v3, v3, v4
        v_sub_u32 v5, v5, v4
        v_and_b32 v5, 0xffff, v5
        v_mul_u32_u24 v3, 100000, v3
        v_add_u32 v3, v3, v5
        buffer_store_dword v3, v1, {sr(S_DBG, 4)}, 0 offen offset:32
        """)
    p.label("KA_end")
    p("s_endpgm")
    p.label("KA_codeend")
    sync.emit(p)
    ATT.gen_attention_rare(p, cfg)
    p.finish(cfg.get("verbose_nop", False))
    if cfg.get("align8"):
        p.align8(True)
    return p


def build(cfg):
    import os
    ref = "cdna_kernels/" + NAME + ".s.ref"
    hdr = [l for l in open(ref).read().split("\n")
           if l.startswith(";") and "@launch" not in l][:19] if os.path.exists(ref) else ["; test build"]
    ka = gen(cfg)
    out = "\n".join(hdr) + "\n"
    if cfg.get("aslist"):
        out += f"; @launch kernel={NAME}_kernel grid=(256,1,1) block=(256,1,1) lds={NBLK * BLK}\n"
    else:
        out += f"; @launch grid=(256,1,1) block=(256,1,1) lds={NBLK * BLK}\n"
    out += '.amdgcn_target "amdgcn-amd-amdhsa--gfx950"\n'
    out += kernel_text(NAME + "_kernel", ka)
    out += '.section .rodata,"a"\n.p2align 6\n'
    out += descriptor_text(NAME + "_kernel", 512, 102, 256)
    print("instrs", len(ka.ins), "maxv", ka.maxreg("v"), "maxa", ka.maxreg("a"), "maxs", ka.maxreg("s"),
          "auto nops", sum(1 for x in ka.ins if x.auto and x.cls == "nop"), file=sys.stderr)
    return out


if __name__ == "__main__":
    cfg = json.loads(sys.argv[2]) if len(sys.argv) > 2 else {}
    open(sys.argv[1], "w").write(build(cfg))
```
